```python
import torch

def _softmax(x, axis=-1):
    return torch.softmax(x, dim=axis)

def _gelu(x):
    return torch.nn.functional.gelu(x, approximate='tanh')

def _silu(x):
    return torch.nn.functional.silu(x)

def _sigmoid(x):
    return torch.sigmoid(x)

def _layernorm(x, axis=-1, eps=1e-05):
    m = x.mean(dim=axis, keepdim=True)
    v = x.var(dim=axis, keepdim=True, unbiased=False)
    return (x - m) / torch.sqrt(v + eps)

def _scatter_add(tgt, idx, src, axis=0):
    return tgt.clone().index_add_(axis, idx, src)

def _segment_sum(src, seg, n):
    out = torch.zeros((n,) + src.shape[1:], dtype=src.dtype)
    return out.index_add_(0, seg, src)

def _pad(x, pw):
    flat = tuple((v for pair in reversed(pw) for v in pair))
    return torch.nn.functional.pad(x, flat)
kernel_name = 'adaLN_cond__sliding_block_cached__geglu_ffn__decode'

def setup_inputs():

    _w = lambda a: (lambda t: t.to(torch.bfloat16) if t.is_floating_point() else t)(torch.as_tensor(a))

    def _A_setup():
        B, Sq, D = (1, 1, 640)
        Hq, Hkv, Sk, Dh = (32, 32, 16384, 128)
        assert Hq % Hkv == 0, (Hq, Hkv)
        return {'x': _w((lambda *s: torch.randn(*s, dtype=torch.bfloat16) * 0.1)(B, Sq, D)), 'k_cache': _w((lambda *s: torch.randn(*s, dtype=torch.bfloat16) * 0.8)(B, Hkv, Sk, Dh)), 'v_cache': _w((lambda *s: torch.randn(*s, dtype=torch.bfloat16) * 0.8)(B, Hkv, Sk, Dh)), 'wq': _w((lambda *s: torch.randn(*s, dtype=torch.bfloat16) * 0.8)(D, Hq * Dh) * D ** (-0.5)), 'wo': _w((lambda *s: torch.randn(*s, dtype=torch.bfloat16) * 0.8)(Hq * Dh, D) * (Hq * Dh) ** (-0.5))}
    _A_in = _A_setup()

    def _B_setup():
        B, S, D, F = (1, 1, 640, 1728)
        return {'x': _w((lambda *s: torch.randn(*s, dtype=torch.bfloat16) * 0.1)(B, S, D)), 'w_gate': _w((lambda *s: torch.randn(*s, dtype=torch.bfloat16) * 0.1)(D, F)), 'w_up': _w((lambda *s: torch.randn(*s, dtype=torch.bfloat16) * 0.1)(D, F)), 'w_down': _w((lambda *s: torch.randn(*s, dtype=torch.bfloat16) * 0.1)(F, D))}
    _B_in = _B_setup()
    return {'A_x': _A_in['x'], 'A_k_cache': _A_in['k_cache'], 'A_v_cache': _A_in['v_cache'], 'A_wq': _A_in['wq'], 'A_wo': _A_in['wo'], 'B_x': _B_in['x'], 'B_w_gate': _B_in['w_gate'], 'B_w_up': _B_in['w_up'], 'B_w_down': _B_in['w_down'], 'c': _w((lambda *s: torch.randn(*s, dtype=torch.bfloat16) * 0.8)(1, 640) * 8.0), 'w_mod': _w((lambda *s: torch.randn(*s, dtype=torch.bfloat16) * 0.8)(640, 6 * 640) * 640 ** (-0.5) * 8.0)}

def reference(A_x, A_k_cache, A_v_cache, A_wq, A_wo, B_x, B_w_gate, B_w_up, B_w_down, c, w_mod):

    def _A_ref(x, k_cache, v_cache, wq, wo):
        B, Sq, D = x.shape
        Hq, Dh = (32, 128)
        Hkv, Sk = (k_cache.shape[1], k_cache.shape[2])
        W = min(4096, max(256, Sk // 4))
        rep = Hq // Hkv
        q = (lambda x, *d: x.permute(*d))((x @ wq).reshape(B, Sq, Hq, Dh), 0, 2, 1, 3)
        k = (lambda x, n, axis: torch.repeat_interleave(x, n, dim=axis))(k_cache[:, :, Sk - W:, :], rep, axis=1)
        v = (lambda x, n, axis: torch.repeat_interleave(x, n, dim=axis))(v_cache[:, :, Sk - W:, :], rep, axis=1)
        scores = torch.einsum('bhqd,bhkd->bhqk', q, k) * Dh ** (-0.5)
        p = _softmax(scores, axis=-1)
        o = torch.einsum('bhqk,bhkd->bhqd', p, v)
        return (lambda x, *d: x.permute(*d))(o, 0, 2, 1, 3).reshape(B, Sq, Hq * Dh) @ wo

    def _B_ref(x, w_gate, w_up, w_down):
        return _gelu(x @ w_gate) * (x @ w_up) @ w_down
    x = A_x
    mod = (_silu(c) @ w_mod).reshape(c.shape[0], 6, 1, -1)
    sa, ca, ga, sb, cb, gb = (mod[:, 0].clone(), mod[:, 1].clone(), mod[:, 2].clone(), mod[:, 3].clone(), mod[:, 4].clone(), mod[:, 5].clone())
    h = _layernorm(x, axis=-1) * (1 + ca) + sa
    x = x + ga * _A_ref(h, A_k_cache, A_v_cache, A_wq, A_wo)
    h = _layernorm(x, axis=-1) * (1 + cb) + sb
    x = x + gb * _B_ref(h, B_w_gate, B_w_up, B_w_down)
    return x
```

```python
NAME = "adaLN_cond__sliding_block_cached__geglu_ffn__decode"
HDR = open("cdna_kernels/" + NAME + ".s.ref").read().split("; Override launch")[0]
class A:
    def __init__(self):
        self.l = []
        self.nlab = 0
    def __call__(self, s, *a):
        for line in (s % a if a else s).split("\n"):
            self.l.append("    " + line.strip() if not line.strip().endswith(":") else line.strip())
    def c(self, s): self.l.append("    ; " + s)
    def label(self, p="L"):
        self.nlab += 1
        return f"{p}_{self.nlab}"
    def text(self): return "\n".join(self.l) + "\n"
def srd(a, d, b, nbytes):
    a(f"s_mov_b32 s{d}, s{b}")
    a(f"s_and_b32 s{d+1}, s{b+1}, 0xffff")
    a(f"s_mov_b32 s{d+2}, {nbytes}")
    a(f"s_mov_b32 s{d+3}, 0x20000")
def wrap(kernels, launches):
    out = HDR
    if len(launches) == 1 and launches[0][0] == NAME + "_kernel":
        _, g, b, lds = launches[0]
        out += f"; @launch grid=({g},1,1) block=({b},1,1) lds={lds}\n"
    else:
        for lab, g, b, lds in launches:
            out += f"; @launch kernel={lab} grid=({g},1,1) block=({b},1,1) lds={lds}\n"
    out += '.amdgcn_target "amdgcn-amd-amdhsa--gfx950"\n.text\n'
    for lab, body, vg, sg, acc in kernels:
        out += f".globl {lab}\n.p2align 8\n.type {lab},@function\n{lab}:\n{body}"
    out += '.section .rodata,"a"\n'
    for lab, body, vg, sg, acc in kernels:
        out += f""".p2align 6
.amdhsa_kernel {lab}
  .amdhsa_next_free_vgpr {vg}
  .amdhsa_next_free_sgpr {sg}
  .amdhsa_accum_offset {acc}
  .amdhsa_group_segment_fixed_size 0
  .amdhsa_kernarg_size 112
  .amdhsa_user_sgpr_count 2
  .amdhsa_user_sgpr_kernarg_segment_ptr 1
  .amdhsa_system_sgpr_workgroup_id_x 1
  .amdhsa_float_denorm_mode_32 3
.end_amdhsa_kernel
"""
    return out
```

```python
import re
TRANS = ("v_exp_f32", "v_log_f32", "v_rcp_f32", "v_rsq_f32", "v_sqrt_f32", "v_sin_f32", "v_cos_f32", "v_rcp_iflag_f32", "v_exp_f16", "v_rcp_f16")
def regs(op):
    op = op.strip()
    op = re.sub(r"^-?\|?|\|$", "", op)
    if op.startswith("neg(") or op.startswith("abs("): op = op[4:-1]
    m = re.fullmatch(r"([vsa])\[(\d+):(\d+)\]", op)
    if m: return {f"{m.group(1)}{i}" for i in range(int(m.group(2)), int(m.group(3)) + 1)}
    m = re.fullmatch(r"([vsa])(\d+)", op)
    if m: return {op}
    if op in ("vcc", "vcc_lo", "vcc_hi"): return {"vcc"}
    if op in ("exec", "exec_lo", "exec_hi"): return {"exec"}
    if op == "m0": return {"m0"}
    return set()
def split_ops(s):
    out = []; d = 0; cur = ""
    for ch in s:
        if ch == "[": d += 1
        if ch == "]": d -= 1
        if ch == "," and d == 0: out.append(cur); cur = ""
        else: cur += ch
    if cur.strip(): out.append(cur)
    return out
class I:
    def __init__(self, line):
        self.line = line
        t = line.split(";")[0].strip()
        self.label = t.endswith(":")
        self.empty = (t == "" or t.startswith("."))
        self.op = ""; self.dst = set(); self.src = set(); self.mods = ""
        if self.label or self.empty: return
        p = t.split(None, 1); self.op = op = p[0]; rest = p[1] if len(p) > 1 else ""
        ops = split_ops(rest)
        if ops:
            last = ops[-1].strip().split(None, 1)
            ops[-1] = last[0]; self.mods = last[1] if len(last) > 1 else ""
        R = [regs(o) for o in ops]
        self.R = R
        self.valu = op.startswith("v_")
        self.mfma = op.startswith("v_mfma")
        self.dot = op.startswith("v_dot")
        self.vmem = op.startswith(("buffer_", "global_", "flat_"))
        self.ds = op.startswith("ds_")
        self.salu = op.startswith("s_")
        self.dpp = ("_dpp" in op) or bool(re.search(r"quad_perm|row_sh|row_ro|row_mirror|row_half|row_bcast|row_newbcast|wave_", self.mods))
        self.sdwa = "_sdwa" in op or "op_sel" in self.mods
        base = re.sub(r"_(e32|e64|dpp|sdwa)$", "", op); self.base = base
        allr = set().union(*R) if R else set()
        if self.vmem:
            st = "store" in op or ("atomic" in op and "sc0" not in self.mods)
            lds = re.search(r"\blds\b", self.mods) or "load_lds" in op
            if st or lds: self.src = allr
            elif "atomic" in op and op.startswith("buffer_"): self.dst = R[0]; self.src = allr
            else: self.dst = R[0]; self.src = set().union(*R[1:])
            if lds: self.src |= {"m0"}
            self.lds = bool(lds)
            self.wide = st and re.search(r"x[34]$", op)
            self.data = (R[0] if op.startswith("buffer_") else R[1]) if st else set()
        elif self.ds:
            if re.match(r"ds_(read|bpermute|permute|swizzle)", op) or "_rtn" in op: self.dst = R[0]; self.src = set().union(*R[1:])
            else: self.src = allr
        elif self.valu:
            if base.startswith("v_cmpx"): self.dst = {"exec"} | (R[0] if len(R) == 3 else set()); self.src = allr - self.dst
            elif base.startswith("v_permlane") and "swap" in base or base == "v_swap_b32": self.dst = allr; self.src = allr
            elif re.match(r"v_(add|sub|subrev)_co_u32|v_div_scale", base): self.dst = R[0] | R[1]; self.src = set().union(*R[2:])
            elif re.match(r"v_(addc|subb|subbrev)_co_u32", base): self.dst = R[0] | R[1]; self.src = set().union(*R[2:])
            elif base == "v_nop": pass
            else:
                self.dst = R[0]; self.src = set().union(*R[1:]) if len(R) > 1 else set()
                if re.match(r"v_(fmac|mac|dot2c|dot4c|pk_fmac|writelane)", base) or self.dpp or self.sdwa: self.src |= R[0]
                if base == "v_cndmask_b32" and len(R) == 3: self.src |= {"vcc"}
                if base == "v_div_fmas_f32": self.src |= {"vcc"}
        elif self.salu:
            if re.match(r"s_(cmp|cbranch|branch|waitcnt|nop|barrier|endpgm|setprio|sleep|bitcmp|setreg)", op): self.src = allr
            else:
                self.dst = R[0] if R else set(); self.src = set().union(*R[1:]) if len(R) > 1 else set()
                if "saveexec" in op: self.dst |= {"exec"}
    def passes(self):
        if "32x32x16" in self.op or "32x32x8" in self.op: return 8
        if "16x16x32" in self.op or "16x16x16" in self.op: return 4
        if "16x16x4_f32" in self.op or "16x16x4f32" in self.op: return 8
        if "32x32x2" in self.op: return 16
        raise Exception("mfma passes? " + self.op)
def need(p, c):
    n = 0
    pv = {r for r in p.dst if r[0] in "va" and r != "vcc"}
    ps = {r for r in p.dst if r[0] == "s" or r == "vcc"}
    if p.valu and not p.mfma:
        if ps & c.src:
            if c.valu:
                n = max(n, 2)
                if c.base in ("v_readlane_b32", "v_writelane_b32") and ps & c.R[2]: n = max(n, 4)
                if c.base == "v_div_fmas_f32": n = max(n, 4)
            if c.vmem: n = max(n, 5)
        if "exec" in p.dst and c.valu: n = max(n, 5)
        if pv & c.src and c.valu:
            if c.dpp: n = max(n, 2)
            if c.base in ("v_readlane_b32", "v_readfirstlane_b32"): n = max(n, 1)
            if c.base.startswith("v_permlane"): n = max(n, 2)
            if c.mfma: n = max(n, 2)
            if p.base in TRANS: n = max(n, 1)
            if p.sdwa: n = max(n, 1)
        if p.sdwa and pv & c.dst and c.valu: n = max(n, 1)
        if p.base in TRANS and pv & c.src and (c.vmem or c.ds): n = max(n, 1)
        if p.dot and (pv & (c.src | c.dst)):
            same_c = c.dot and c.base == p.base and not (pv & (c.R[1] | c.R[2]))
            if not same_c: n = max(n, 3)
    if p.mfma:
        k = p.passes(); sg = "f32_16x16x4" in p.op or "32x32x2" in p.op
        full = {2: 5, 4: 8, 8: 12, 16: 20}[k] if not sg else {2: 4, 4: 6, 8: 10, 16: 18}[k]
        if c.mfma:
            if pv & (c.R[1] | c.R[2]): n = max(n, full)
            if pv & c.R[3]:
                if not (c.R[3] == p.R[0] and c.passes() == k): n = max(n, {2: 4, 4: 6, 8: 10, 16: 18}[k])
            elif pv & c.dst: n = max(n, full)
        elif pv & (c.src | c.dst): n = max(n, full)
        if not c.mfma and c.valu and (p.R[3] & c.dst): n = max(n, {2: 1, 4: 3, 8: 7, 16: 15}[k])
    if p.vmem and getattr(p, "wide", None) and (p.data & c.dst): n = max(n, 2)
    if p.salu and "m0" in p.dst and "m0" in c.src and not c.salu: n = max(n, 1)
    return n
def maxneed(p):
    if p.mfma: return {2: 5, 4: 8, 8: 12, 16: 20}[p.passes()]
    if p.valu:
        if "exec" in p.dst: return 5
        if any(r[0] == "s" for r in p.dst): return 5
        if p.dot: return 3
        return 2
    if p.vmem and getattr(p, "wide", None): return 2
    if p.salu and "m0" in p.dst: return 1
    return 0
def fix(lines):
    out = []; win = []
    npad = 0
    for ln in lines:
        c = I(ln)
        if c.label or c.empty:
            out.append(ln); continue
        pad = 0
        br = c.op.startswith(("s_cbranch", "s_branch"))
        for p, d in win:
            pad = max(pad, need(p, c) - d)
            if br: pad = max(pad, maxneed(p) - d - 1)
        if pad > 0:
            k = pad
            while k > 0:
                t = min(k, 16); out.append(f"    s_nop {t-1}"); k -= t
            win = [(p, d + pad) for p, d in win]; npad += 1
        st = 1
        if c.op == "s_nop": st = int(c.line.split()[1]) + 1
        win = [(p, d + st) for p, d in win if d + st < 21]
        if c.op in ("s_endpgm", "s_branch"): win = []
        win.append((c, 0))
        out.append(ln)
    return out
```

```python
import struct
def f2u(x): return struct.unpack("<I", struct.pack("<f", x))[0]
def fh(x): return "0x%08x" % f2u(x)
LOG2E = 1.4426950408889634
def bfr(a, d, s):
    a(f"v_cvt_pk_bf16_f32 v{d}, 0, v{s}")
def row_red(a, v, op="v_add_f32"):
    for m in ("quad_perm:[1,0,3,2]", "quad_perm:[2,3,0,1]", "row_half_mirror", "row_mirror"):
        a(f"{op}_dpp v{v}, v{v}, v{v} {m} row_mask:0xf bank_mask:0xf")
def wave_red(a, v, s0, op="v_add_f32"):
    row_red(a, v, op)
    for i in range(4): a(f"v_readlane_b32 s{s0+i}, v{v}, {16*i}")
    a(f"v_mov_b32 v{v}, s{s0}")
    for i in range(1, 4): a(f"{op} v{v}, s{s0+i}, v{v}")
def fdiv(a, d, n, dn, r, t):
    a(f"v_rcp_f32 v{r}, v{dn}")
    a(f"v_mul_f32 v{d}, v{n}, v{r}")
    a(f"v_fma_f32 v{t}, -v{d}, v{dn}, v{n}")
    a(f"v_fma_f32 v{d}, v{t}, v{r}, v{d}")
def fdiv_r(a, d, n, dn, r, t):
    a(f"v_mul_f32 v{d}, v{n}, v{r}")
    a(f"v_fma_f32 v{t}, -v{d}, v{dn}, v{n}")
    a(f"v_fma_f32 v{d}, v{t}, v{r}, v{d}")
def sigmul(a, d, x, z, t1, t2, t3):
    a(f"v_mul_f32 v{t1}, {fh(-LOG2E)}, v{z}")
    a(f"v_exp_f32 v{t1}, v{t1}")
    a(f"v_add_f32 v{t1}, 1.0, v{t1}")
    a(f"v_rcp_f32 v{t2}, v{t1}")
    a(f"v_mul_f32 v{d}, v{x}, v{t2}")
def gelu(a, d, x, t1, t2, t3):
    k = 2 * 0.7978845608028654
    a(f"v_mul_f32 v{t3}, v{x}, v{x}")
    a(f"v_mul_f32 v{t3}, v{t3}, v{x}")
    a(f"v_mov_b32 v{t1}, {fh(0.044715)}")
    a(f"v_fma_f32 v{t3}, v{t3}, v{t1}, v{x}")
    a(f"v_mul_f32 v{t3}, {fh(k)}, v{t3}")
    sigmul(a, d, x, t3, t1, t2, None)
def layernorm(a, xs, t, s0, red=wave_red, n=640):
    m, v, r, u, w = t, t + 1, t + 2, t + 3, t + 4
    a(f"v_add_f32 v{m}, v{xs[0]}, v{xs[1]}")
    for x in xs[2:]: a(f"v_add_f32 v{m}, v{m}, v{x}")
    red(a, m, s0)
    a(f"v_mul_f32 v{m}, {fh(1.0/n)}, v{m}")
    a(f"v_sub_f32 v{u}, v{xs[0]}, v{m}"); a(f"v_mul_f32 v{v}, v{u}, v{u}")
    for x in xs[1:]:
        a(f"v_sub_f32 v{u}, v{x}, v{m}"); a(f"v_fmac_f32 v{v}, v{u}, v{u}")
    red(a, v, s0)
    a(f"v_mul_f32 v{v}, {fh(1.0/n)}, v{v}")
    bfr(a, m, m); bfr(a, v, v)
    a(f"v_add_f32 v{v}, {fh(1e-5)}, v{v}"); bfr(a, v, v)
    a(f"v_sqrt_f32 v{v}, v{v}"); bfr(a, v, v)
    a(f"v_rcp_f32 v{r}, v{v}")
    for x in xs:
        a(f"v_sub_f32 v{u}, v{x}, v{m}"); bfr(a, u, u)
        fdiv_r(a, x, u, v, r, w); bfr(a, x, x)
def modulate(a, x, cm, sh):
    a(f"v_add_f32 v{cm}, 1.0, v{cm}"); bfr(a, cm, cm)
    a(f"v_mul_f32 v{x}, v{x}, v{cm}"); bfr(a, x, x)
    a(f"v_add_f32 v{x}, v{x}, v{sh}"); bfr(a, x, x)
```

```python
import sys
from asmlib import *
from mathlib import *
import hz

WS_MOD, WS_Q, WS_ML, WS_O, WS_A, WS_D, WS_SIZE = 0x1000, 0x8000, 0x10000, 0x20000, 0x40000, 0x50000, 0x70000
SPIN = 30000
NW, NM, NF = 20, 17, 27
PST = 576
L_Q, L_FLAG, L_MAX, L_SUM, L_ST, L_ACT = 0, 256, 320, 384, 512, 768
L_ACC0, L_ACC1, L_ACC2 = 1024, 1024 + 16 * PST, 1024 + 32 * PST
LDS = 1024 + 48 * PST
S_X, S_K, S_V, S_WQ, S_WO, S_WG, S_WU, S_WD, S_C, S_WM, S_OUT, S_WS = 4, 6, 8, 10, 12, 16, 18, 20, 22, 24, 26, 28
S_WAVE, S_T, S_CNT, S_M10 = 30, 31, 34, 35
R_WS, R_A, R_B, R_C, R_D, R_E = 36, 40, 44, 48, 52, 56
S_TMP = 60
S_ST = 80
V_L, V_G, V_N, V_M, V_T16, V_T10 = 1, 2, 3, 4, 8, 9
MFMA = "v_mfma_f32_16x16x32_bf16"


class G:
    def __init__(self, stamps=False, thr=2, pat="contig", opt=None):
        self.a = A(); self.stamps = stamps; self.thr = thr; self.pat = pat; self.opt = opt or {}

    def stamp(self, i):
        if self.stamps: self.a(f"s_memrealtime s[{S_ST+2*i}:{S_ST+2*i+1}]")

    def flush_stamps(self, n, first=0):
        if not self.stamps: return
        a = self.a
        a("s_waitcnt lgkmcnt(0)")
        a(f"s_lshl_b32 s60, s2, 7"); a(f"s_add_u32 s60, s{S_WS}, s60"); a(f"s_addc_u32 s61, s{S_WS+1}, 0")
        a("s_add_u32 s60, s60, 0x10000000"); a("s_addc_u32 s61, s61, 0")
        a("v_mov_b32 v10, 0")
        for j in range(first, n):
            a(f"v_mov_b32 v12, s{S_ST+2*j}"); a(f"v_mov_b32 v13, s{S_ST+2*j+1}")
            a(f"global_store_dwordx2 v10, v[12:13], s[60:61] offset:{8*j}")

    def setexec(self, lo, hi):
        self.a(f"s_mov_b32 exec_lo, {lo:#x}"); self.a(f"s_mov_b32 exec_hi, {hi:#x}")

    def allexec(self): self.a("s_mov_b64 exec, -1")

    def masks(self, t0):
        a = self.a
        a(f"v_and_b32 v{t0}, 1, v{V_N}"); a(f"v_lshlrev_b32 v{t0}, 4, v{t0}")
        a(f"v_mov_b32 v{t0+1}, 0xffff"); a(f"v_lshlrev_b32 v{t0}, v{t0}, v{t0+1}")
        a(f"v_bfe_u32 v{t0+1}, v{V_N}, 1, 2")
        for k in range(4):
            a(f"v_cmp_eq_u32 vcc, {k}, v{t0+1}"); a(f"v_cndmask_b32 v{V_M+k}, 0, v{t0}, vcc")

    def tags(self):
        a = self.a
        a(f"s_add_u32 s{S_T}, s{S_T}, 1")
        a(f"s_and_b32 s32, s{S_T}, 0xffff"); a(f"s_and_b32 s33, s{S_T}, 0x3ff")
        a(f"v_mov_b32 v{V_T16}, s32"); a(f"v_mov_b32 v{V_T10}, s33")
        a(f"s_mov_b32 s{S_M10}, 0x3ff")

    def poll(self, issue, check, name="P"):
        a = self.a
        lp, dn = a.label(name), a.label(name + "d")
        a(f"s_mov_b32 s{S_CNT}, 0")
        a(f"{lp}:")
        issue()
        a("s_waitcnt vmcnt(0)")
        check()
        a(f"s_cbranch_vccz {dn}")
        a(f"s_add_u32 s{S_CNT}, s{S_CNT}, 1"); a(f"s_cmp_lt_u32 s{S_CNT}, {SPIN}"); a(f"s_cbranch_scc1 {lp}")
        a(f"{dn}:")

    def untag(self, regs, tag, t, mask):
        a = self.a
        for r in regs: a(f"v_xor_b32 v{r}, v{r}, v{tag}")
        rs = list(regs)
        if len(rs) == 1: src = rs[0]
        else:
            if len(rs) == 2: a(f"v_or_b32 v{t}, v{rs[0]}, v{rs[1]}"); rest = []
            else: a(f"v_or3_b32 v{t}, v{rs[0]}, v{rs[1]}, v{rs[2]}"); rest = rs[3:]
            while rest:
                if len(rest) == 1: a(f"v_or_b32 v{t}, v{t}, v{rest[0]}"); rest = []
                else: a(f"v_or3_b32 v{t}, v{t}, v{rest[0]}, v{rest[1]}"); rest = rest[2:]
            src = t
        a(f"v_and_b32 v{t}, {mask:#x}, v{src}")
        a(f"v_cmp_ne_u32 vcc, 0, v{t}")

    def bprep(self, X, P, B, t):
        a = self.a
        a(f"v_mov_b32_dpp v{P}, v{X} row_newbcast:{t} row_mask:0xf bank_mask:0x3")
        a(f"v_mov_b32_dpp v{P}, v{X} row_newbcast:{8+t} row_mask:0xf bank_mask:0xc")
        for k in range(4): a(f"v_and_b32 v{B+k}, v{P}, v{V_M+k}")

    def mfma(self, D, Areg, B, first):
        self.a(f"{MFMA} v[{D}:{D+3}], v[{Areg}:{Areg+3}], v[{B}:{B+3}], " + ("0" if first else f"v[{D}:{D+3}]"))

    def fold_wide(self, D1, D2, Y):
        a = self.a
        for y in range(2):
            a(f"v_add_f32_dpp v{Y+y}, v{D2+2*y}, v{D1+2*y} row_ror:8 row_mask:0xf bank_mask:0x3")
            a(f"v_add_f32_dpp v{Y+y}, v{D1+2*y+1}, v{D2+2*y+1} row_ror:8 row_mask:0xf bank_mask:0xc")

    def fold_col(self, D1, D2, Y):
        a = self.a
        for D in (D1, D2):
            if D is None: continue
            for y in range(2): a(f"v_permlane32_swap_b32 v{D+2*y}, v{D+2*y+1}")
        for y in range(2):
            a(f"v_add_f32_dpp v{Y+y}, v{D1+2*y+1}, v{D1+2*y} row_ror:8 row_mask:0xf bank_mask:0x3")
            if D2 is not None:
                a(f"v_add_f32_dpp v{Y+y}, v{D2+2*y}, v{D2+2*y+1} row_ror:8 row_mask:0xf bank_mask:0xc")

    def colpos(self, d, col, t):
        a = self.a
        a(f"v_bfe_u32 v{d}, v{col}, 4, 1"); a(f"v_lshlrev_b32 v{d}, 6, v{d}")
        a(f"v_bfe_u32 v{t}, v{col}, 5, 1"); a(f"v_lshl_add_u32 v{d}, v{t}, 4, v{d}")
        a(f"v_bfe_u32 v{t}, v{col}, 3, 1"); a(f"v_lshl_add_u32 v{d}, v{t}, 5, v{d}")
        a(f"v_and_b32 v{t}, 7, v{col}"); a(f"v_add_u32 v{d}, v{d}, v{t}")
        a(f"v_lshlrev_b32 v{d}, 2, v{d}")

    def wraddr(self, d, stride=PST):
        a = self.a
        a(f"s_mul_i32 s79, s{S_WAVE}, {stride}"); a(f"v_lshlrev_b32 v{d}, 2, v{V_L}"); a(f"v_add_u32 v{d}, s79, v{d}")

    def putpart(self, addr, Y, acc):
        self.a(f"ds_write_b32 v{addr}, v{Y} offset:{acc}"); self.a(f"ds_write_b32 v{addr}, v{Y+1} offset:{acc+256}")

    def widerd(self, d, t):
        a = self.a
        a(f"v_and_b32 v{t}, 3, v{V_L}"); a(f"v_mul_u32_u24 v{d}, {PST}, v{t}")
        a(f"v_bfe_u32 v{t}, v{V_L}, 4, 1"); a(f"v_lshl_add_u32 v{d}, v{t}, 8, v{d}")
        a(f"v_bfe_u32 v{t}, v{V_L}, 5, 1"); a(f"v_lshl_add_u32 v{d}, v{t}, 6, v{d}")
        a(f"v_bfe_u32 v{t}, v{V_L}, 2, 2"); a(f"v_lshl_add_u32 v{d}, v{t}, 4, v{d}")
        a(f"s_and_b32 s79, s{S_WAVE}, 1"); a("s_lshl_b32 s79, s79, 7"); a(f"v_add_u32 v{d}, s79, v{d}")

    def colrd(self, d, t):
        a = self.a
        a(f"v_and_b32 v{t+1}, 60, v{V_L}")
        self.colpos(d, t + 1, t)
        a(f"v_and_b32 v{t}, 3, v{V_L}"); a(f"v_mul_u32_u24 v{t}, {PST}, v{t}"); a(f"v_add_u32 v{d}, v{d}, v{t}")

    def publish(self, acc, vrd, voff, soff, t, bf):
        a = self.a
        for j in range(4): a(f"ds_read_b128 v[{t+4*j}:{t+4*j+3}], v{vrd} offset:{acc+4*j*PST}")
        a("s_waitcnt lgkmcnt(2)")
        for i in range(4): a(f"v_add_f32 v{t+i}, v{t+i}, v{t+4+i}")
        a("s_waitcnt lgkmcnt(0)")
        for i in range(4): a(f"v_add_f32 v{t+8+i}, v{t+8+i}, v{t+12+i}")
        for i in range(4): a(f"v_add_f32 v{t+i}, v{t+i}, v{t+8+i}")
        for m in ("quad_perm:[1,0,3,2]", "quad_perm:[2,3,0,1]"):
            for i in range(4): a(f"v_add_f32_dpp v{t+i}, v{t+i}, v{t+i} {m} row_mask:0xf bank_mask:0xf")
        if bf:
            for i in range(4): a(f"v_cvt_pk_bf16_f32 v{t+i}, v{t+i}, v{t+i}")
            a("s_mov_b32 s79, 0xffff")
            for i in range(4): a(f"v_bfi_b32 v{t+i}, s79, v{V_T16}, v{t+i}")
        else:
            for i in range(4): a(f"v_bfi_b32 v{t+i}, s{S_M10}, v{V_T10}, v{t+i}")
        self.setexec(0x11111111, 0x11111111)
        a(f"buffer_store_dwordx4 v[{t}:{t+3}], v{voff}, s[{R_WS}:{R_WS+3}], s{soff} offen sc1")
        self.allexec()

    def unitoff(self, d):
        self.a(f"v_and_b32 v{d}, 60, v{V_L}"); self.a(f"v_lshlrev_b32 v{d}, 2, v{d}")

    def rowidx(self, d, t, per, spare0=False):
        a = self.a
        a(f"v_and_b32 v{t}, 7, v{V_N}"); a(f"v_lshlrev_b32 v{d}, 3, v{t}")
        a(f"v_lshl_add_u32 v{d}, v{V_G}, 1, v{d}")
        a(f"v_lshrrev_b32 v{t+1}, 3, v{V_N}"); a(f"v_add_u32 v{d}, v{d}, v{t+1}")
        if per:
            a(f"s_mul_i32 s60, s{S_WAVE}, {per}"); a(f"v_add_u32 v{d}, s60, v{d}")
            a(f"v_cmp_gt_u32 vcc, {per//8}, v{t}"); a(f"v_cndmask_b32 v{d}, v{V_G}, v{d}, vcc")

    def colvoff(self, d, stride, t):
        a = self.a
        a(f"v_lshrrev_b32 v{t}, 3, v{V_L}"); a(f"v_mul_u32_u24 v{d}, {stride}, v{t}")
        a(f"v_and_b32 v{t}, 7, v{V_L}"); a(f"v_lshl_add_u32 v{d}, v{t}, 4, v{d}")

    def colloads(self, reg, voff, srd, sbase, stride, n=5):
        a = self.a
        for t in range(n):
            if t == 0: so = sbase
            else: a(f"s_add_u32 s61, s{sbase}, {8*t*stride}"); so = 61
            a(f"buffer_load_dwordx4 v[{reg+4*t}:{reg+4*t+3}], v{voff}, s[{srd}:{srd+3}], s{so} offen nt")

    def silu(self, x, t):
        a = self.a
        a(f"v_mul_f32 v{t}, {fh(-LOG2E)}, v{x}"); a(f"v_exp_f32 v{t}, v{t}")
        a(f"v_add_f32 v{t}, 1.0, v{t}")
        a(f"v_min_f32 v{t}, {fh(3.0e38)}, v{t}")
        a(f"v_rcp_f32 v{t+1}, v{t}")
        a(f"v_mul_f32 v{t+2}, v{x}, v{t+1}")
        a(f"v_fma_f32 v{t+3}, -v{t+2}, v{t}, v{x}")
        a(f"v_fma_f32 v{x}, v{t+3}, v{t+1}, v{t+2}")
        a(f"v_cvt_pk_bf16_f32 v{x}, v{x}, v{x}")

    def xrow_allred(self, v, t, op):
        a = self.a
        a(f"v_mov_b32 v{t}, v{v}"); a(f"v_permlane32_swap_b32 v{t}, v{v}"); a(f"{op} v{v}, v{v}, v{t}")
        a(f"v_mov_b32 v{t}, v{v}"); a(f"v_permlane16_swap_b32 v{t}, v{v}"); a(f"{op} v{v}, v{v}, v{t}")

    def x2calc(self, vcol4, ga, xv, d, t):
        a = self.a
        a(f"v_add_f32 v{d}, v{d}, v{d+1}"); a(f"v_add_f32 v{d+2}, v{d+2}, v{d+3}"); a(f"v_add_f32 v{d}, v{d}, v{d+2}")
        bfr(a, d, d)
        a(f"v_mul_f32 v{d}, v{ga}, v{d}"); bfr(a, d, d)
        a(f"v_add_f32 v{d}, v{xv}, v{d}"); bfr(a, d, d)

    def attention(self):
        a = self.a; thr = self.thr
        KR, VR, D1, D2, Q, S = 32, 76, 120, 124, 10, 14
        VO, PQ, T = 20, 22, 24
        a("L_att:")
        a("s_sub_u32 s3, s2, 64")
        a("s_and_b32 s100, s3, 31"); a("s_lshr_b32 s101, s3, 5")
        a("s_mul_i32 s72, s101, 171"); a("s_cmp_eq_u32 s101, 5"); a("s_subb_u32 s72, s72, 0")
        a("s_cmp_lt_u32 s101, 4"); a("s_cselect_b32 s73, 1024, 0"); a("s_add_u32 s73, s73, %d" % (170 * 1024))
        a("s_lshl_b32 s74, s100, 22"); a("s_lshl_b32 s72, s72, 10"); a("s_add_u32 s74, s74, s72"); a("s_add_u32 s74, s74, %d" % (12288 * 256))
        step = 1024 if self.pat == "contig" else 16384
        a(f"s_mul_i32 s75, s{S_WAVE}, {11*1024 if self.pat == 'contig' else 1024}")
        a(f"v_lshlrev_b32 v{VO}, 4, v{V_L}"); a(f"v_add_u32 v{VO}, s75, v{VO}")
        a("s_sub_u32 s75, s73, s75")
        a(f"s_add_u32 s60, s100, s{S_WAVE}")
        for k in (44, 22, 11): a(f"s_sub_u32 s61, s60, {k}"); a("s_min_u32 s60, s60, s61")
        a(f"s_mul_i32 s60, s60, {step}")
        a("s_waitcnt lgkmcnt(0)")
        a(f"s_load_dword s{S_T}, s[{S_WS}:{S_WS+1}], 0")
        a(f"s_add_u32 s{S_K}, s{S_K}, s74"); a(f"s_addc_u32 s{S_K+1}, s{S_K+1}, 0")
        srd(a, R_A, S_K, "s73")
        def ld(j):
            i = j % 11; r = (KR if j < 11 else VR) + 4 * i; sr = R_A if j < 11 else R_B
            a(f"buffer_load_dwordx4 v[{r}:{r+3}], v{VO}, s[{sr}:{sr+3}], s{60+i} offen nt")
        def nxt(i):
            a(f"s_add_u32 s{60+i}, s{59+i}, {step}"); a(f"s_sub_u32 s71, s{60+i}, {11*step}"); a(f"s_min_u32 s{60+i}, s{60+i}, s71")
        n0 = thr if thr else 11
        ld(0)
        for i in range(1, 11):
            nxt(i)
            if i < n0: ld(i)
        a(f"s_add_u32 s{S_V}, s{S_V}, s74"); a(f"s_addc_u32 s{S_V+1}, s{S_V+1}, 0")
        srd(a, R_B, S_V, "s73"); srd(a, R_WS, S_WS, WS_SIZE)
        a("v_mov_b32 v21, 0")
        a(f"ds_write_b32 v21, v21 offset:{L_FLAG}")
        self.masks(T)
        a("s_waitcnt lgkmcnt(0)")
        self.tags()
        a("s_barrier")
        a(f"s_cmp_eq_u32 s{S_WAVE}, 0"); a("s_cbranch_scc1 L_att_w0")
        def flagchk(target):
            a(f"ds_read_b32 v{T}, v21 offset:{L_FLAG}"); a("s_waitcnt lgkmcnt(0)")
            a(f"v_cmp_ne_u32 vcc, 0, v{T}"); a(f"s_cbranch_vccnz {target}")
        for j in range(n0, 22):
            if thr: a(f"s_waitcnt vmcnt({thr-1})")
            ld(j)
            if thr and j < 21: flagchk(f"L_att_u{j+1}")
        a(f"s_mov_b32 s{S_CNT}, 0")
        a("L_att_spin:")
        flagchk("L_att_u22")
        a(f"s_add_u32 s{S_CNT}, s{S_CNT}, 1"); a(f"s_cmp_lt_u32 s{S_CNT}, {SPIN*16}"); a("s_cbranch_scc1 L_att_spin")
        a("s_branch L_att_u22")
        a("L_att_w0:")
        a("s_setprio 3")
        a(f"v_lshlrev_b32 v{T+2}, 3, v{V_L}"); a("s_lshl_b32 s76, s100, 9"); a(f"s_add_u32 s76, s76, {WS_Q}")
        a(f"v_lshlrev_b32 v{T+3}, 2, v{V_L}"); a(f"v_mov_b32 v{T+4}, 1"); a("s_mov_b32 s77, 0x07060302")
        def pq(): a(f"buffer_load_dwordx2 v[{PQ}:{PQ+1}], v{T+2}, s[{R_WS}:{R_WS+3}], s76 offen sc1")
        def chk(): self.untag([PQ, PQ + 1], V_T16, T, 0xffff)
        if thr:
            for j in range(n0, 22):
                if j > n0:
                    a(f"s_waitcnt vmcnt({1})"); chk(); a(f"s_cbranch_vccz L_att_got{j}")
                else: a(f"s_waitcnt vmcnt({thr-1})")
                pq(); ld(j)
        else:
            for j in range(n0, 22): ld(j)
        self.poll(pq, chk, "PQ")
        for j in [22] + (list(range(n0 + 1, 22)) if thr else []):
            a(f"L_att_got{j}:")
            a(f"v_perm_b32 v{PQ}, v{PQ+1}, v{PQ}, s77")
            a(f"ds_write_b32 v{T+3}, v{PQ} offset:{L_Q}"); a(f"ds_write_b32 v21, v{T+4} offset:{L_FLAG}")
            a("s_setprio 0")
            self.stamp(1)
            a(f"s_branch L_att_u{j}")
        if thr:
            for j in range(n0 + 1, 22):
                a(f"L_att_u{j}:"); ld(j)
        a("L_att_u22:")
        a(f"v_lshlrev_b32 v{T}, 4, v{V_N}")
        a(f"ds_read_b128 v[{Q}:{Q+3}], v{T} offset:{L_Q}")
        a("s_waitcnt lgkmcnt(0)")
        for t in range(6):
            pa, pb = 2 * t, 2 * t + 1
            a(f"s_waitcnt vmcnt({21-min(pb,10)})")
            for i, acc in ((pa, T), (pb, T + 1)):
                if i > 10: continue
                for d in range(4):
                    a(f"v_dot2_f32_bf16 v{acc}, v{KR+4*i+d}, v{Q+d}, " + ("0" if d == 0 else f"v{acc}"))
            a(f"v_add_f32_dpp v{S+t}, v{T}, v{T} row_ror:8 row_mask:0xf bank_mask:{'0x3' if pb <= 10 else '0xf'}")
            if pb <= 10: a(f"v_add_f32_dpp v{S+t}, v{T+1}, v{T+1} row_ror:8 row_mask:0xf bank_mask:0xc")
        for m in ("quad_perm:[1,0,3,2]", "quad_perm:[2,3,0,1]", "row_half_mirror"):
            for t in range(6): a(f"v_add_f32_dpp v{S+t}, v{S+t}, v{S+t} {m} row_mask:0xf bank_mask:0xf")
        a(f"v_mov_b32 v{T+1}, 0xff800000")
        for t in range(6):
            bfr(a, S + t, S + t); a(f"v_mul_f32 v{S+t}, {fh(128 ** -0.5)}, v{S+t}"); bfr(a, S + t, S + t)
            a(f"s_cmp_lt_u32 s{60+2*t}, s75"); a("s_cselect_b32 s78, 0x00ff00ff, 0")
            if 2 * t + 1 <= 10:
                a(f"s_cmp_lt_u32 s{61+2*t}, s75"); a("s_cselect_b32 s79, 0xff00ff00, 0"); a("s_or_b32 s78, s78, s79")
            a("s_mov_b32 vcc_lo, s78"); a("s_mov_b32 vcc_hi, s78")
            a(f"v_cndmask_b32 v{S+t}, v{T+1}, v{S+t}, vcc")
        a(f"v_max3_f32 v{T}, v{S}, v{S+1}, v{S+2}"); a(f"v_max3_f32 v{T}, v{T}, v{S+3}, v{S+4}"); a(f"v_max_f32 v{T}, v{T}, v{S+5}")
        a(f"v_max_f32_dpp v{T}, v{T}, v{T} row_ror:8 row_mask:0xf bank_mask:0xf")
        self.xrow_allred(T, T + 1, "v_max_f32")
        a(f"s_lshl_b32 s78, s{S_WAVE}, 2"); a(f"v_mov_b32 v{T+5}, s78"); a(f"v_lshlrev_b32 v{T+6}, 2, v{V_N}")
        a(f"ds_write_b32 v{T+5}, v{T} offset:{L_MAX}")
        a("s_waitcnt lgkmcnt(0)"); a("s_barrier")
        a(f"ds_read_b32 v{T}, v{T+6} offset:{L_MAX}"); a("s_waitcnt lgkmcnt(0)")
        row_red(a, T, "v_max_f32")
        for t in range(6):
            a(f"v_sub_f32 v{S+t}, v{S+t}, v{T}"); a(f"v_mul_f32 v{S+t}, {fh(LOG2E)}, v{S+t}"); a(f"v_exp_f32 v{S+t}, v{S+t}")
        a(f"v_add_f32 v{T+1}, v{S}, v{S+1}")
        for t in range(2, 6): a(f"v_add_f32 v{T+1}, v{T+1}, v{S+t}")
        a(f"v_add_f32_dpp v{T+1}, v{T+1}, v{T+1} row_ror:8 row_mask:0xf bank_mask:0xf")
        self.xrow_allred(T + 1, T + 2, "v_add_f32")
        a(f"ds_write_b32 v{T+5}, v{T+1} offset:{L_SUM}")
        for t in range(6):
            a(f"v_cvt_pk_bf16_f32 v{S+t}, v{S+t}, v{S+t}")
            for k in range(4): a(f"v_and_b32 v{KR+4*t+k}, v{S+t}, v{V_M+k}")
        self.wraddr(T + 2)
        self.widerd(T + 3, T + 4)
        self.unitoff(T + 4)
        a("s_mul_i32 s76, s100, 6"); a("s_add_u32 s76, s76, s101"); a("s_lshl_b32 s76, s76, 1"); a(f"s_add_u32 s76, s76, s{S_WAVE}")
        a("s_lshl_b32 s76, s76, 8"); a(f"s_add_u32 s76, s76, {WS_O}")
        a("s_waitcnt lgkmcnt(0)"); a("s_barrier")
        l = a.label("ML")
        a(f"s_cmp_lg_u32 s{S_WAVE}, 0"); a(f"s_cbranch_scc1 {l}")
        a(f"ds_read_b32 v{Q+1}, v{T+6} offset:{L_SUM}")
        a("s_lshl_b32 s77, s100, 7"); a("s_lshl_b32 s78, s101, 4"); a("s_add_u32 s77, s77, s78"); a(f"s_add_u32 s77, s77, {WS_ML}")
        a(f"v_bfi_b32 v{Q}, s{S_M10}, v{V_T10}, v{T}"); a(f"v_mov_b32 v{Q+2}, v{V_T10}"); a(f"v_mov_b32 v{Q+3}, v{V_T10}")
        a("s_waitcnt lgkmcnt(0)")
        row_red(a, Q + 1)
        a(f"v_bfi_b32 v{Q+1}, s{S_M10}, v{V_T10}, v{Q+1}")
        self.setexec(1, 0)
        a(f"buffer_store_dwordx4 v[{Q}:{Q+3}], v21, s[{R_WS}:{R_WS+3}], s77 offen sc1")
        self.allexec()
        self.stamp(2)
        a(f"{l}:")
        for i in range(11):
            a(f"s_waitcnt vmcnt({10-i})")
            self.mfma(D1 if i % 2 == 0 else D2, VR + 4 * i, KR + 4 * (i // 2), i < 2)
        self.fold_wide(D1, D2, S)
        self.putpart(T + 2, S, L_ACC0)
        a("s_waitcnt lgkmcnt(0)"); a("s_barrier")
        a(f"s_cmp_gt_u32 s{S_WAVE}, 1"); a("s_cbranch_scc1 L_end")
        self.stamp(3)
        self.publish(L_ACC0, T + 3, T + 4, 76, KR, False)
        self.stamp(4)
        if self.stamps:
            a(f"s_cmp_lg_u32 s{S_WAVE}, 0"); a("s_cbranch_scc1 L_end")
            self.flush_stamps(5)
        a("s_endpgm")

    def role_w(self):
        a = self.a
        ROW, VO, X, P, B, D1, D2, Y, T = 10, 11, 12, 13, 14, 22, 26, 30, 32
        CR, WO = 44, 64
        a("L_w:")
        self.colvoff(VO, 7680, T)
        a(f"s_mul_i32 s62, s{S_WAVE}, {40*7680}"); a("s_lshl_b32 s63, s2, 7"); a("s_add_u32 s62, s62, s63")
        self.rowidx(ROW, T, 40)
        a(f"v_lshlrev_b32 v{ROW}, 1, v{ROW}")
        a("s_waitcnt lgkmcnt(0)")
        a(f"s_load_dword s{S_T}, s[{S_WS}:{S_WS+1}], 0")
        srd(a, R_A, S_WM, 640 * 3840 * 2); srd(a, R_C, S_C, 1280)
        a(f"buffer_load_ushort v{T+8}, v{ROW}, s[{R_C}:{R_C+3}], 0 offen")
        self.colloads(CR, VO, R_A, 62, 7680)
        srd(a, R_B, S_WO, 4096 * 640 * 2); srd(a, R_WS, S_WS, WS_SIZE); srd(a, R_D, S_X, 1280); srd(a, R_E, S_OUT, 1280)
        self.masks(T)
        a("s_waitcnt vmcnt(5)")
        a(f"v_lshlrev_b32 v{X}, 16, v{T+8}")
        self.silu(X, T)
        self.wraddr(T + 8)
        self.colrd(T + 9, T)
        self.unitoff(T + 10)
        a("s_mul_i32 s64, s2, 52"); a("s_lshr_b32 s64, s64, 8"); a("s_mul_i32 s65, s64, 5"); a("s_sub_u32 s65, s2, s65")
        a(f"v_mul_u32_u24 v{VO}, 1280, v{V_G}"); a(f"v_lshl_add_u32 v{VO}, v{V_N}, 4, v{VO}")
        a("s_lshl_b32 s66, s64, 4"); a(f"s_add_u32 s66, s66, s{S_WAVE}")
        a(f"s_mul_i32 s67, s66, {64*1280}"); a("s_lshl_b32 s68, s65, 8"); a("s_add_u32 s67, s67, s68")
        a("s_waitcnt lgkmcnt(0)")
        self.tags()
        for t in range(5):
            self.bprep(X, P, B + 4 * (t & 1), t)
            a(f"s_waitcnt vmcnt({4-t})")
            self.mfma(D1, CR + 4 * t, B + 4 * (t & 1), t == 0)
        for p in range(16):
            if p: a(f"s_add_u32 s61, s67, {p*4*1280}")
            a(f"buffer_load_dwordx4 v[{WO+4*p}:{WO+4*p+3}], v{VO}, s[{R_B}:{R_B+3}], s{61 if p else 67} offen nt")
            if p == 1:
                self.fold_col(D1, None, Y)
                self.putpart(T + 8, Y, L_ACC0)
                a("s_waitcnt lgkmcnt(0)"); a("s_barrier")
                l = a.label("WP")
                a(f"s_cmp_lg_u32 s{S_WAVE}, 0"); a(f"s_cbranch_scc1 {l}")
                a("s_lshl_b32 s62, s2, 8"); a(f"s_add_u32 s62, s62, {WS_MOD}")
                self.publish(L_ACC0, T + 9, T + 10, 62, CR, True)
                self.stamp(1)
                a(f"{l}:")
        CA, CB, OA, OB = 44, 45, 48, 52
        a("s_lshr_b32 s68, s66, 1")
        a("s_lshl_b32 s69, s68, 7"); a(f"s_add_u32 s69, s69, {WS_ML}")
        a(f"v_lshlrev_b32 v{T}, 4, v{V_G}"); a(f"v_and_b32 v{T+1}, 16, v{T}")
        def iss():
            a(f"buffer_load_dwordx4 v[{OA}:{OA+3}], v{T}, s[{R_WS}:{R_WS+3}], s69 offen sc1")
            a(f"buffer_load_dwordx4 v[{OB}:{OB+3}], v{T+1}, s[{R_WS}:{R_WS+3}], s69 offen offset:64 sc1")
        self.poll(iss, lambda: self.untag(list(range(OA, OA + 8)), V_T10, T + 2, 0x3ff), "PM")
        self.stamp(2)
        a(f"v_max_f32 v{T+2}, v{OA}, v{OB}")
        self.xrow_allred(T + 2, T + 3, "v_max_f32")
        for m, c in ((OA, CA), (OB, CB)):
            a(f"v_sub_f32 v{c}, v{m}, v{T+2}"); a(f"v_mul_f32 v{c}, {fh(LOG2E)}, v{c}"); a(f"v_exp_f32 v{c}, v{c}")
        self.setexec(0, 0xffffffff); a(f"v_mov_b32 v{CB}, 0"); self.allexec()
        a(f"v_mul_f32 v{T+2}, v{CA}, v{OA+1}"); a(f"v_fmac_f32 v{T+2}, v{CB}, v{OB+1}")
        self.xrow_allred(T + 2, T + 3, "v_add_f32")
        a(f"v_rcp_f32 v{T+2}, v{T+2}")
        a(f"v_mul_f32 v{CA}, v{CA}, v{T+2}"); a(f"v_mul_f32 v{CB}, v{CB}, v{T+2}")
        a(f"v_lshlrev_b32 v{T}, 9, v{V_G}"); a(f"v_lshl_add_u32 v{T}, v{V_N}, 4, v{T}"); a(f"v_and_b32 v{T+1}, 0x2ff, v{T}")
        a(f"s_mul_i32 s69, s68, {6*512}"); a("s_and_b32 s70, s66, 1"); a("s_lshl_b32 s70, s70, 8"); a("s_add_u32 s69, s69, s70"); a(f"s_add_u32 s69, s69, {WS_O}")
        self.widerd(T + 9, T + 2)
        a("s_mul_i32 s62, s64, 2560"); a("s_lshl_b32 s63, s65, 9"); a("s_add_u32 s62, s62, s63"); a(f"s_add_u32 s62, s62, {WS_A}")
        a(f"s_lshl_b32 s63, s{S_WAVE}, 8"); a("s_add_u32 s62, s62, s63")
        def iss2():
            a(f"buffer_load_dwordx4 v[{OA}:{OA+3}], v{T}, s[{R_WS}:{R_WS+3}], s69 offen sc1")
            a(f"buffer_load_dwordx4 v[{OB}:{OB+3}], v{T+1}, s[{R_WS}:{R_WS+3}], s69 offen offset:2048 sc1")
        self.poll(iss2, lambda: self.untag(list(range(OA, OA + 8)), V_T10, T + 2, 0x3ff), "PO")
        self.stamp(3)
        for i in range(4): a(f"v_mul_f32 v{OA+i}, v{CA}, v{OA+i}")
        for i in range(4): a(f"v_fmac_f32 v{OA+i}, v{CB}, v{OB+i}")
        a(f"v_permlane32_swap_b32 v{OA}, v{OA+2}"); a(f"v_permlane32_swap_b32 v{OA+1}, v{OA+3}")
        a(f"v_add_f32 v{OA}, v{OA}, v{OA+2}"); a(f"v_add_f32 v{OA+1}, v{OA+1}, v{OA+3}")
        a(f"v_permlane16_swap_b32 v{OA}, v{OA+1}")
        a(f"v_add_f32 v{X}, v{OA}, v{OA+1}")
        a(f"v_cvt_pk_bf16_f32 v{X}, v{X}, v{X}")
        for t in range(8):
            self.bprep(X, P, B + 4 * (t & 1), t)
            self.mfma(D1, WO + 4 * t, B + 4 * (t & 1), t == 0)
            self.mfma(D2, WO + 4 * (8 + t), B + 4 * (t & 1), t == 0)
        self.fold_wide(D1, D2, Y)
        self.putpart(T + 8, Y, L_ACC1)
        a("s_waitcnt lgkmcnt(0)"); a("s_barrier")
        a(f"s_cmp_eq_u32 s{S_WAVE}, 2"); a("s_cbranch_scc1 L_red")
        a(f"s_cmp_gt_u32 s{S_WAVE}, 1"); a("s_cbranch_scc1 L_end")
        self.stamp(4)
        self.publish(L_ACC1, T + 9, T + 10, 62, CR, False)
        self.stamp(5)
        if self.stamps:
            a(f"s_cmp_lg_u32 s{S_WAVE}, 0"); a("s_cbranch_scc1 L_end")
            self.flush_stamps(6)
        a("s_endpgm")
        a("L_red:")
        COL, GA, GB, XV, A4, R = 10, 11, 12, 13, 14, 64
        a(f"v_and_b32 v{T}, 7, v{V_N}"); a(f"v_lshl_add_u32 v{COL}, v{V_G}, 3, v{T}")
        a("s_lshl_b32 s62, s2, 5"); a(f"v_add_u32 v{COL}, s62, v{COL}")
        a(f"v_lshlrev_b32 v{T+1}, 1, v{COL}"); a(f"v_lshlrev_b32 v{COL}, 2, v{COL}")
        a(f"buffer_load_ushort v{XV}, v{T+1}, s[{R_D}:{R_D+3}], 0 offen")
        a(f"s_mov_b32 s63, {WS_MOD+1280*4}"); a(f"s_mov_b32 s64, {WS_MOD+3200*4}"); a(f"s_mov_b32 s65, {WS_A}"); a(f"s_mov_b32 s66, {WS_A+5120}")
        def iss3():
            a(f"buffer_load_dword v{GA}, v{COL}, s[{R_WS}:{R_WS+3}], s63 offen sc1")
            a(f"buffer_load_dword v{GB}, v{COL}, s[{R_WS}:{R_WS+3}], s64 offen sc1")
        self.poll(iss3, lambda: self.untag([GA, GB], V_T16, T + 2, 0xffff), "PG")
        def iss4():
            for i in range(4):
                a(f"buffer_load_dword v{A4+i}, v{COL}, s[{R_WS}:{R_WS+3}], s{65+(i>>1)} offen offset:{2560*(i&1)} sc1")
        self.poll(iss4, lambda: self.untag(list(range(A4, A4 + 4)), V_T10, T + 2, 0x3ff), "PA")
        a(f"v_lshlrev_b32 v{XV}, 16, v{XV}")
        self.x2calc(COL, GA, XV, A4, T)
        self.stamp(6)
        self.colvoff(T + 2, 2560, T + 3)
        a(f"v_min_u32 v{T+3}, {2*2560+112}, v{T+2}")
        a(f"v_cmp_gt_u32 vcc, 24, v{V_L}"); a(f"v_cndmask_b32 v{T+4}, 0, 1.0, vcc")
        a("s_lshl_b32 s62, s2, 7"); a(f"s_add_u32 s62, s62, {WS_D}")
        for i in range(1, 4): a(f"s_add_u32 s{62+i}, s62, {i*8*2560}")
        def iss5():
            for i in range(4):
                a(f"buffer_load_dwordx4 v[{R+4*i}:{R+4*i+3}], v{T+2 if i < 3 else T+3}, s[{R_WS}:{R_WS+3}], s{62+i} offen sc1")
        self.poll(iss5, lambda: self.untag(list(range(R, R + 16)), V_T10, T + 5, 0x3ff), "PD")
        self.stamp(7)
        for i in range(4): a(f"v_add_f32 v{R+i}, v{R+i}, v{R+4+i}")
        for i in range(4): a(f"v_fma_f32 v{R+8+i}, v{R+12+i}, v{T+4}, v{R+8+i}")
        for i in range(4): a(f"v_add_f32 v{R+i}, v{R+i}, v{R+8+i}")
        a(f"v_permlane32_swap_b32 v{R}, v{R+2}"); a(f"v_permlane32_swap_b32 v{R+1}, v{R+3}")
        a(f"v_add_f32 v{R}, v{R}, v{R+2}"); a(f"v_add_f32 v{R+1}, v{R+1}, v{R+3}")
        a(f"v_permlane16_swap_b32 v{R}, v{R+1}")
        a(f"v_add_f32 v{R}, v{R}, v{R+1}")
        a(f"v_add_f32_dpp v{R}, v{R}, v{R} row_ror:8 row_mask:0xf bank_mask:0xf")
        bfr(a, R, R)
        a(f"v_mul_f32 v{R}, v{GB}, v{R}"); bfr(a, R, R)
        a(f"v_add_f32 v{R}, v{A4}, v{R}")
        a(f"v_cvt_pk_bf16_f32 v{R}, v{R}, v{R}")
        self.setexec(0x00ff00ff, 0x00ff00ff)
        a(f"buffer_store_short v{R}, v{T+1}, s[{R_E}:{R_E+3}], 0 offen")
        self.allexec()
        self.stamp(8)
        l = a.label("EP")
        a("s_cmp_lg_u32 s2, 0"); a(f"s_cbranch_scc1 {l}")
        a(f"v_mov_b32 v{T}, s{S_T}"); a(f"v_mov_b32 v{T+1}, 0")
        self.setexec(1, 0)
        a(f"buffer_store_dword v{T}, v{T+1}, s[{R_WS}:{R_WS+3}], 0 offen sc1")
        self.allexec()
        a(f"{l}:")
        self.flush_stamps(9, 6)
        a("s_endpgm")

    def role_fm(self):
        a = self.a
        ROW, VO, X, P, B, D1, D2, Y, T = 10, 11, 12, 13, 14, 22, 26, 30, 32
        XO, ADD, CPOS, UOFF = 44, 45, 46, 47
        WA, WB = 48, 88
        a("L_fm:")
        a(f"s_sub_u32 s68, s2, {NW}")
        a(f"s_sub_u32 s69, s2, {NW+NM}")
        a("s_lshl_b32 s65, s68, 1"); a("s_add_u32 s66, s65, 1"); a(f"s_add_u32 s70, s69, {2*NM}"); a(f"s_add_u32 s71, s69, {2*NM+NF}")
        a(f"s_cmp_ge_u32 s2, {NW+NM}"); a("s_cselect_b32 s65, s70, s65"); a("s_cselect_b32 s66, s71, s66")
        a("s_cmp_lt_u32 s66, 64"); a(f"s_cselect_b32 s67, {640*4096*2}, 0")
        self.colvoff(VO, 8192, T)
        a(f"s_mul_i32 s62, s{S_WAVE}, {40*8192}"); a("s_lshl_b32 s63, s66, 7"); a("s_add_u32 s63, s63, s62")
        a("s_lshl_b32 s70, s65, 7"); a("s_add_u32 s62, s62, s70")
        self.rowidx(ROW, T, 40)
        a(f"v_lshlrev_b32 v{T}, 1, v{ROW}"); a(f"v_lshlrev_b32 v{ADD}, 2, v{V_L}")
        a("s_waitcnt lgkmcnt(0)")
        a(f"s_load_dword s{S_T}, s[{S_WS}:{S_WS+1}], 0")
        srd(a, R_D, S_X, 1280); srd(a, R_A, S_WQ, 640 * 4096 * 2)
        XS = WB
        for i in range(5): a(f"buffer_load_dword v{XS+i}, v{ADD}, s[{R_D}:{R_D+3}], 0 offen offset:{256*i}")
        a(f"buffer_load_ushort v{XO}, v{T}, s[{R_D}:{R_D+3}], 0 offen")
        self.colloads(WA, VO, R_A, 62, 8192)
        srd(a, R_B, S_WQ, "s67")
        self.colloads(WA + 20, VO, R_B, 63, 8192)
        srd(a, R_WS, S_WS, WS_SIZE)
        self.masks(T)
        self.colrd(CPOS, T)
        self.wraddr(ADD)
        self.unitoff(UOFF)
        a(f"v_lshlrev_b32 v{ROW}, 2, v{ROW}")
        a("s_waitcnt vmcnt(10)")
        for i in range(5):
            a(f"v_and_b32 v{XS+5+i}, 0xffff0000, v{XS+i}"); a(f"v_lshlrev_b32 v{XS+i}, 16, v{XS+i}")
        a(f"v_lshlrev_b32 v{XO}, 16, v{XO}")
        m, v, r, u, w = T, T + 1, T + 2, T + 3, T + 4
        xs = list(range(XS, XS + 10))
        a(f"v_add_f32 v{m}, v{xs[0]}, v{xs[1]}")
        for x in xs[2:]: a(f"v_add_f32 v{m}, v{m}, v{x}")
        row_red(a, m); self.xrow_allred(m, u, "v_add_f32")
        a(f"v_mul_f32 v{m}, {fh(1.0/640)}, v{m}")
        a(f"v_sub_f32 v{u}, v{xs[0]}, v{m}"); a(f"v_mul_f32 v{v}, v{u}, v{u}")
        for x in xs[1:]: a(f"v_sub_f32 v{u}, v{x}, v{m}"); a(f"v_fmac_f32 v{v}, v{u}, v{u}")
        row_red(a, v); self.xrow_allred(v, u, "v_add_f32")
        a(f"v_mul_f32 v{v}, {fh(1.0/640)}, v{v}")
        def lnfin(dst, src):
            bfr(a, m, m); bfr(a, v, v)
            a(f"v_add_f32 v{v}, {fh(1e-5)}, v{v}"); bfr(a, v, v)
            a(f"v_sqrt_f32 v{v}, v{v}"); bfr(a, v, v)
            a(f"v_rcp_f32 v{r}, v{v}")
            a(f"v_sub_f32 v{u}, v{src}, v{m}"); bfr(a, u, u)
            fdiv_r(a, dst, u, v, r, w); bfr(a, dst, dst)
        lnfin(X, XO)
        a("s_waitcnt lgkmcnt(0)")
        self.tags()
        a(f"s_cmp_ge_u32 s2, {NW+NM}"); a("s_cbranch_scc1 L_f_pre")
        a("s_mul_i32 s72, s68, 3"); a("s_lshl_b32 s73, s68, 1"); a("s_add_u32 s73, s73, 6"); a("s_min_u32 s72, s72, s73"); a("s_add_u32 s72, s72, 20")
        a("s_cmp_lt_u32 s68, 6"); a(f"s_cselect_b32 s67, {640*3840*2}, 0")
        srd(a, R_C, S_WM, 640 * 3840 * 2); srd(a, R_E, S_WM, 640 * 3840 * 2)
        self.colvoff(VO, 7680, T + 5)
        a(f"s_mul_i32 s62, s{S_WAVE}, {40*7680}"); a("s_lshl_b32 s63, s72, 7"); a("s_add_u32 s62, s62, s63"); a("s_add_u32 s63, s62, 128")
        a(f"s_mov_b32 s74, {8*7680}")
        a("s_branch L_fm_poll")
        a("L_f_pre:")
        srd(a, R_C, S_WG, 640 * 1728 * 2); srd(a, R_E, S_WU, 640 * 1728 * 2)
        self.colvoff(VO, 3456, T + 5)
        a(f"s_mul_i32 s62, s{S_WAVE}, {40*3456}"); a("s_lshl_b32 s63, s69, 7"); a("s_add_u32 s62, s62, s63"); a("s_mov_b32 s63, s62")
        a(f"s_mov_b32 s74, {8*3456}")
        a("L_fm_poll:")
        a(f"s_mov_b32 s70, {WS_MOD}")
        SA, CA = T + 5, T + 6
        def iss():
            a(f"buffer_load_dword v{SA}, v{ROW}, s[{R_WS}:{R_WS+3}], s70 offen sc1")
            a(f"buffer_load_dword v{CA}, v{ROW}, s[{R_WS}:{R_WS+3}], s70 offen offset:2560 sc1")
        self.poll(iss, lambda: self.untag([SA, CA], V_T16, T + 7, 0xffff), "PH")
        self.stamp(1)
        modulate2 = lambda x, cm, sh: (a(f"v_add_f32 v{cm}, 1.0, v{cm}"), bfr(a, cm, cm), a(f"v_mul_f32 v{x}, v{x}, v{cm}"), bfr(a, x, x),
                                       a(f"v_add_f32 v{x}, v{x}, v{sh}"), a(f"v_cvt_pk_bf16_f32 v{x}, v{x}, v{x}"))
        modulate2(X, CA, SA)
        for t in range(5):
            self.bprep(X, P, B + 4 * (t & 1), t)
            self.mfma(D1, WA + 4 * t, B + 4 * (t & 1), t == 0)
            self.mfma(D2, WA + 20 + 4 * t, B + 4 * (t & 1), t == 0)
        self.fold_col(D1, D2, Y)
        self.putpart(ADD, Y, L_ACC0)
        a("s_waitcnt lgkmcnt(0)"); a("s_barrier")
        l = a.label("QP")
        a(f"s_cmp_gt_u32 s{S_WAVE}, 1"); a(f"s_cbranch_scc1 {l}")
        a(f"s_cmp_eq_u32 s{S_WAVE}, 0"); a("s_cselect_b32 s70, s65, s66")
        a("s_cmp_ge_u32 s70, 64"); a(f"s_cbranch_scc1 {l}")
        a("s_lshl_b32 s70, s70, 8"); a(f"s_add_u32 s70, s70, {WS_Q}")
        a(f"s_lshl_b32 s71, s{S_WAVE}, 5"); a(f"v_add_u32 v{T+1}, s71, v{CPOS}")
        self.publish(L_ACC0, T + 1, UOFF, 70, B, True)
        self.stamp(2)
        a(f"{l}:")
        for t in range(5):
            a(f"buffer_load_dwordx4 v[{WB+4*t}:{WB+4*t+3}], v{VO}, s[{R_C}:{R_C+3}], s62 offen nt")
            a(f"buffer_load_dwordx4 v[{WB+20+4*t}:{WB+20+4*t+3}], v{VO}, s[{R_E}:{R_E+3}], s63 offen nt")
            if t < 4: a("s_add_u32 s62, s62, s74"); a("s_add_u32 s63, s63, s74")
        a(f"s_cmp_ge_u32 s2, {NW+NM}"); a("s_cbranch_scc1 L_f")
        srd(a, R_A, S_WM, "s67"); srd(a, R_B, S_C, 1280)
        a(f"s_sub_u32 s62, s62, {4*8*7680-256}")
        self.colloads(WA, VO, R_A, 62, 7680)
        a(f"v_lshrrev_b32 v{T}, 1, v{ROW}")
        a(f"buffer_load_ushort v{X}, v{T}, s[{R_B}:{R_B+3}], 0 offen")
        a("s_waitcnt vmcnt(0)")
        a(f"v_lshlrev_b32 v{X}, 16, v{X}")
        self.silu(X, T)
        D3 = T + 4
        for t in range(5):
            self.bprep(X, P, B + 4 * (t & 1), t)
            self.mfma(D1, WB + 4 * t, B + 4 * (t & 1), t == 0)
            self.mfma(D2, WB + 20 + 4 * t, B + 4 * (t & 1), t == 0)
            self.mfma(D3, WA + 4 * t, B + 4 * (t & 1), t == 0)
        self.fold_col(D1, D2, Y)
        self.fold_col(D3, None, T)
        self.putpart(ADD, Y, L_ACC1); self.putpart(ADD, T, L_ACC2)
        a("s_waitcnt lgkmcnt(0)"); a("s_barrier")
        a("s_cmp_lt_u32 s68, 6"); a("s_cselect_b32 s70, 3, 2")
        a(f"s_cmp_ge_u32 s{S_WAVE}, s70"); a("s_cbranch_scc1 L_end")
        a(f"s_add_u32 s70, s72, s{S_WAVE}"); a("s_lshl_b32 s70, s70, 8"); a(f"s_add_u32 s70, s70, {WS_MOD}")
        a(f"s_lshl_b32 s71, s{S_WAVE}, 5"); a(f"s_cmp_eq_u32 s{S_WAVE}, 2"); a(f"s_cselect_b32 s71, {L_ACC2-L_ACC1}, s71")
        a(f"v_add_u32 v{T+1}, s71, v{CPOS}")
        self.publish(L_ACC1, T + 1, UOFF, 70, B, True)
        if self.stamps:
            a(f"s_cmp_lg_u32 s{S_WAVE}, 0"); a("s_cbranch_scc1 L_end")
            self.stamp(3); self.flush_stamps(4)
        a("s_endpgm")
        a("L_f:")
        srd(a, R_A, S_WD, 1728 * 640 * 2)
        l = a.label("FD")
        a(f"s_cmp_ge_u32 s{S_WAVE}, 10"); a(f"s_cbranch_scc1 {l}")
        self.colvoff(VO, 1280, T)
        a(f"s_mul_i32 s62, s69, {64*1280}"); a(f"s_lshl_b32 s63, s{S_WAVE}, 7"); a("s_add_u32 s62, s62, s63")
        self.colloads(WA, VO, R_A, 62, 1280, n=8)
        a(f"{l}:")
        GA, SB, CB, A4, VAL, GPOS, DOFF = T + 5, T + 6, T + 7, T + 8, 47, 80, 81
        self.rowidx(GPOS, T, 0); a(f"v_lshlrev_b32 v{GPOS}, 2, v{GPOS}")
        GST = 528
        self.wraddr(ADD, GST)
        a(f"s_lshl_b32 s73, s{S_WAVE}, 4"); a(f"v_lshlrev_b32 v{T+1}, 2, v{V_G}"); a(f"v_add_u32 v{T+1}, s73, v{T+1}")
        self.colpos(CPOS, T + 1, T)
        a(f"v_mul_u32_u24 v{T}, {GST}, v{V_N}"); a(f"v_add_u32 v{CPOS}, v{CPOS}, v{T}")
        a(f"s_lshl_b32 s73, s{S_WAVE}, 6"); a(f"v_and_b32 v{GPOS+4}, 60, v{V_L}"); a(f"v_add_u32 v{GPOS+4}, s73, v{GPOS+4}")
        a(f"v_lshlrev_b32 v{DOFF}, 7, v{V_G}"); a(f"v_lshl_add_u32 v{DOFF}, v{V_N}, 4, v{DOFF}")
        a("s_mul_i32 s72, s69, 2560"); a(f"s_lshl_b32 s73, s{S_WAVE}, 8"); a("s_add_u32 s72, s72, s73"); a(f"s_add_u32 s72, s72, {WS_D}")
        a(f"v_and_b32 v{T}, 7, v{V_N}"); a(f"v_cmp_gt_u32 vcc, 5, v{T}"); a(f"v_cndmask_b32 v{VAL}, 0, 1.0, vcc")
        a(f"v_lshlrev_b32 v{GPOS+2}, 3, v{V_N}")
        a(f"s_lshl_b32 s73, s{S_WAVE}, 3"); a(f"v_mov_b32 v{GPOS+3}, s73")
        a(f"s_mov_b32 s63, {WS_MOD+1280*4}"); a(f"s_mov_b32 s64, {WS_MOD+2560*4}"); a(f"s_mov_b32 s65, {WS_A}"); a(f"s_mov_b32 s66, {WS_A+5120}")
        def iss3():
            a(f"buffer_load_dword v{GA}, v{ROW}, s[{R_WS}:{R_WS+3}], s63 offen sc1")
            a(f"buffer_load_dword v{SB}, v{ROW}, s[{R_WS}:{R_WS+3}], s63 offen offset:2560 sc1")
            a(f"buffer_load_dword v{CB}, v{ROW}, s[{R_WS}:{R_WS+3}], s64 offen sc1")
        self.poll(iss3, lambda: self.untag([GA, SB, CB], V_T16, T, 0xffff), "PG")
        self.stamp(3)
        a(f"v_add_f32 v{CB}, 1.0, v{CB}"); bfr(a, CB, CB)
        def iss4():
            for i in range(4):
                a(f"buffer_load_dword v{A4+i}, v{ROW}, s[{R_WS}:{R_WS+3}], s{65+(i>>1)} offen offset:{2560*(i&1)} sc1")
        self.poll(iss4, lambda: self.untag(list(range(A4, A4 + 4)), V_T10, T, 0x3ff), "PA")
        self.stamp(4)
        self.x2calc(ROW, GA, XO, A4, T)
        a(f"v_readlane_b32 s74, v{A4}, 7")
        a(f"v_subrev_f32 v{m}, s74, v{A4}"); a(f"v_mul_f32 v{m}, v{m}, v{VAL}"); a(f"v_mul_f32 v{v}, v{m}, v{m}")
        for md in ("quad_perm:[1,0,3,2]", "quad_perm:[2,3,0,1]", "row_half_mirror", "row_mirror"):
            for q in (m, v): a(f"v_add_f32_dpp v{q}, v{q}, v{q} {md} row_mask:0xf bank_mask:0xf")
        a(f"v_mov_b32 v{u}, v{m}"); a(f"v_mov_b32 v{w}, v{v}")
        a(f"v_permlane32_swap_b32 v{u}, v{m}"); a(f"v_permlane32_swap_b32 v{w}, v{v}")
        a(f"v_add_f32 v{m}, v{m}, v{u}"); a(f"v_add_f32 v{v}, v{v}, v{w}")
        a(f"v_mov_b32 v{u}, v{m}"); a(f"v_mov_b32 v{w}, v{v}")
        a(f"v_permlane16_swap_b32 v{u}, v{m}"); a(f"v_permlane16_swap_b32 v{w}, v{v}")
        a(f"v_add_f32 v{m}, v{m}, v{u}"); a(f"v_add_f32 v{v}, v{v}, v{w}")
        self.setexec(1, 0)
        a(f"ds_write_b64 v{GPOS+3}, v[{m}:{v}] offset:{L_ST}")
        self.allexec()
        self.stamp(7)
        a("s_waitcnt lgkmcnt(0)"); a("s_barrier")
        self.stamp(8)
        a(f"ds_read_b64 v[{m}:{v}], v{GPOS+2} offset:{L_ST}"); a("s_waitcnt lgkmcnt(0)")
        for md in ("quad_perm:[1,0,3,2]", "quad_perm:[2,3,0,1]", "row_half_mirror", "row_mirror"):
            for q in (m, v): a(f"v_add_f32_dpp v{q}, v{q}, v{q} {md} row_mask:0xf bank_mask:0xf")
        a(f"v_mul_f32 v{m}, {fh(1.0/640)}, v{m}"); a(f"v_mul_f32 v{v}, {fh(1.0/640)}, v{v}")
        a(f"v_fma_f32 v{v}, -v{m}, v{m}, v{v}"); a(f"v_max_f32 v{v}, 0, v{v}")
        a(f"v_add_f32 v{m}, s74, v{m}")
        lnfin(X, A4)
        a(f"v_mul_f32 v{X}, v{X}, v{CB}"); bfr(a, X, X)
        a(f"v_add_f32 v{X}, v{X}, v{SB}"); a(f"v_cvt_pk_bf16_f32 v{X}, v{X}, v{X}")
        for t in range(5):
            self.bprep(X, P, B + 4 * (t & 1), t)
            self.mfma(D1, WB + 4 * t, B + 4 * (t & 1), t == 0)
            self.mfma(D2, WB + 20 + 4 * t, B + 4 * (t & 1), t == 0)
        self.fold_col(D1, D2, Y)
        self.stamp(9)
        self.putpart(ADD, Y, L_ACC1)
        a("s_waitcnt lgkmcnt(0)"); a("s_barrier")
        a(f"s_cmp_ge_u32 s{S_WAVE}, 10"); a("s_cbranch_scc1 L_end")
        self.stamp(1)
        l = a.label("FA")
        a(f"s_cmp_ge_u32 s{S_WAVE}, 4"); a(f"s_cbranch_scc1 {l}")
        a(f"ds_read_b128 v[{D1}:{D1+3}], v{CPOS} offset:{L_ACC1}"); a(f"ds_read_b128 v[{D2}:{D2+3}], v{CPOS} offset:{L_ACC1+32}")
        a("s_waitcnt lgkmcnt(0)")
        for D, R in ((D1, B), (D2, B + 2)):
            for j in range(2):
                a(f"v_add_f32_dpp v{R+j}, v{D+j}, v{D+j} row_ror:8 row_mask:0xf bank_mask:0x3")
                a(f"v_add_f32_dpp v{R+j}, v{D+2+j}, v{D+2+j} row_ror:8 row_mask:0xf bank_mask:0xc")
        for R, Z in ((B, T), (B + 2, T + 1)):
            a(f"v_add_f32_dpp v{Z}, v{R}, v{R} row_shl:4 row_mask:0xf bank_mask:0x5")
            a(f"v_add_f32_dpp v{Z}, v{R+1}, v{R+1} row_shr:4 row_mask:0xf bank_mask:0xa")
        for md in ("quad_perm:[1,0,3,2]", "quad_perm:[2,3,0,1]"):
            for Z in (T, T + 1): a(f"v_add_f32_dpp v{Z}, v{Z}, v{Z} {md} row_mask:0xf bank_mask:0xf")
        bfr(a, T, T); bfr(a, T + 1, T + 1)
        gelu(a, X, T, T + 2, T + 3, T + 4); bfr(a, X, X)
        a(f"v_mul_f32 v{X}, v{X}, v{T+1}"); a(f"v_cvt_pk_bf16_f32 v{X}, v{X}, v{X}")
        a(f"ds_write_b32 v{GPOS+4}, v{X} offset:{L_ACT}")
        a("s_waitcnt lgkmcnt(0)")
        a(f"{l}:")
        a("s_barrier")
        self.stamp(5)
        a(f"ds_read_b32 v{X}, v{GPOS} offset:{L_ACT}")
        a("s_waitcnt lgkmcnt(0)")
        for t in range(8):
            self.bprep(X, P, B + 4 * (t & 1), t)
            self.mfma(D1, WA + 4 * t, B + 4 * (t & 1), t == 0)
        for r in range(4): a(f"v_permlane32_swap_b32 v{D1+r}, v{D2+r}")
        for r in range(4): a(f"v_add_f32_dpp v{D1+r}, v{D2+r}, v{D1+r} row_ror:8 row_mask:0xf bank_mask:0xf")
        for r in range(4): a(f"v_bfi_b32 v{D1+r}, s{S_M10}, v{V_T10}, v{D1+r}")
        self.setexec(0x00ff00ff, 0)
        a(f"buffer_store_dwordx4 v[{D1}:{D1+3}], v{DOFF}, s[{R_WS}:{R_WS+3}], s72 offen sc1")
        self.allexec()
        if self.stamps:
            a(f"s_cmp_lg_u32 s{S_WAVE}, {self.opt.get('sw', 0)}"); a("s_cbranch_scc1 L_end")
            self.stamp(6); self.flush_stamps(10)
        a("s_endpgm")

    def build(self):
        a = self.a
        a("s_cmp_ge_u32 s2, 256"); a("s_cbranch_scc1 L_end")
        a("s_load_dwordx16 s[4:19], s[0:1], 0"); a("s_load_dwordx8 s[20:27], s[0:1], 64"); a("s_load_dwordx2 s[28:29], s[0:1], 104")
        self.stamp(0)
        a("v_lshrrev_b32 v2, 6, v0"); a(f"v_and_b32 v{V_L}, 63, v0"); a(f"v_readfirstlane_b32 s{S_WAVE}, v2")
        a(f"v_bfe_u32 v{V_G}, v0, 4, 2"); a(f"v_and_b32 v{V_N}, 15, v0")
        a("s_cmp_ge_u32 s2, 64"); a("s_cbranch_scc1 L_att")
        a(f"s_cmp_ge_u32 s2, {NW}"); a("s_cbranch_scc1 L_fm")
        self.role_w()
        self.role_fm()
        self.attention()
        a("L_end:"); a("s_endpgm")
        body = "\n".join(hz.fix(a.l)) + "\n"
        return wrap([(NAME + "_kernel", body, 128, 102, 128)], [(NAME + "_kernel", 256, 1024, LDS)])


if __name__ == "__main__":
    open("f_st.s", "w").write(G(stamps=True).build())
    open("f_st9.s", "w").write(G(stamps=True, opt=dict(sw=9)).build())
    open("f.s", "w").write(G(stamps=False).build())
```

```python
import sys
from asmlib import *
from mathlib import *
import hz

WS_MOD, WS_Q, WS_ML, WS_O, WS_A, WS_D, WS_SIZE = 0x1000, 0x8000, 0x10000, 0x20000, 0x40000, 0x50000, 0x70000
SPIN = 30000
NW, NM, NF = 20, 17, 27
PST = 576
L_Q, L_FLAG, L_MAX, L_SUM, L_ST, L_ACT = 0, 256, 320, 384, 512, 768
L_ACC0, L_ACC1, L_ACC2 = 1024, 1024 + 16 * PST, 1024 + 32 * PST
LDS = 1024 + 48 * PST
S_X, S_K, S_V, S_WQ, S_WO, S_WG, S_WU, S_WD, S_C, S_WM, S_OUT, S_WS = 4, 6, 8, 10, 12, 16, 18, 20, 22, 24, 26, 28
S_WAVE, S_T, S_CNT, S_M10 = 30, 31, 34, 35
R_WS, R_A, R_B, R_C, R_D, R_E = 36, 40, 44, 48, 52, 56
S_TMP = 60
S_ST = 80
V_L, V_G, V_N, V_M, V_T16, V_T10 = 1, 2, 3, 4, 8, 9
MFMA = "v_mfma_f32_16x16x32_bf16"


class G:
    def __init__(self, stamps=False, thr=2, pat="contig", opt=None):
        self.a = A(); self.stamps = stamps; self.thr = thr; self.pat = pat; self.opt = opt or {}

    def stamp(self, i):
        if self.stamps: self.a(f"s_memrealtime s[{S_ST+2*i}:{S_ST+2*i+1}]")

    DBG = dict(W={0: 0, 1: 1, 3: 2, 5: 3, 7: 4, 8: 5}, M={0: 0, 1: 6, 2: 7, 3: 8}, F={0: 0, 3: 9, 4: 10, 6: 11}, A={0: 0, 1: 12, 2: 13, 4: 14})
    def flush_stamps(self, n, first=0, role=None):
        if not self.stamps: return
        a = self.a
        if self.opt.get("dbg"):
            a("s_load_dwordx2 s[60:61], s[0:1], 96")
            a("s_waitcnt lgkmcnt(0)")
            a("v_mov_b32 v10, 0")
            self.setexec(1, 0)
            for j in range(first, n):
                if j not in self.DBG[role]: continue
                a(f"v_mov_b32 v12, s{S_ST+2*j}")
                if j == 0:
                    a(f"global_atomic_umax v10, v12, s[60:61] offset:60")
                    a("v_not_b32 v12, v12")
                a(f"global_atomic_umax v10, v12, s[60:61] offset:{4*self.DBG[role][j]}")
            return
        a("s_waitcnt lgkmcnt(0)")
        a(f"s_lshl_b32 s60, s2, 7"); a(f"s_add_u32 s60, s{S_WS}, s60"); a(f"s_addc_u32 s61, s{S_WS+1}, 0")
        a("s_add_u32 s60, s60, 0x10000000"); a("s_addc_u32 s61, s61, 0")
        a("v_mov_b32 v10, 0")
        for j in range(first, n):
            a(f"v_mov_b32 v12, s{S_ST+2*j}"); a(f"v_mov_b32 v13, s{S_ST+2*j+1}")
            a(f"global_store_dwordx2 v10, v[12:13], s[60:61] offset:{8*j}")

    def setexec(self, lo, hi):
        self.a(f"s_mov_b32 exec_lo, {lo:#x}"); self.a(f"s_mov_b32 exec_hi, {hi:#x}")

    def allexec(self): self.a("s_mov_b64 exec, -1")

    def masks(self, t0):
        a = self.a
        a(f"v_and_b32 v{t0}, 1, v{V_N}"); a(f"v_lshlrev_b32 v{t0}, 4, v{t0}")
        a(f"v_mov_b32 v{t0+1}, 0xffff"); a(f"v_lshlrev_b32 v{t0}, v{t0}, v{t0+1}")
        a(f"v_bfe_u32 v{t0+1}, v{V_N}, 1, 2")
        for k in range(4):
            a(f"v_cmp_eq_u32 vcc, {k}, v{t0+1}"); a(f"v_cndmask_b32 v{V_M+k}, 0, v{t0}, vcc")

    def tags(self):
        a = self.a
        a(f"s_add_u32 s{S_T}, s{S_T}, 1")
        a(f"s_and_b32 s32, s{S_T}, 0xffff"); a(f"s_and_b32 s33, s{S_T}, 0x3ff")
        a(f"v_mov_b32 v{V_T16}, s32"); a(f"v_mov_b32 v{V_T10}, s33")
        a(f"s_mov_b32 s{S_M10}, 0x3ff")

    def poll(self, issue, check, name="P"):
        a = self.a
        lp, dn = a.label(name), a.label(name + "d")
        a(f"s_mov_b32 s{S_CNT}, 0")
        a(f"{lp}:")
        issue()
        a("s_waitcnt vmcnt(0)")
        check()
        a(f"s_cbranch_vccz {dn}")
        a(f"s_add_u32 s{S_CNT}, s{S_CNT}, 1"); a(f"s_cmp_lt_u32 s{S_CNT}, {SPIN}"); a(f"s_cbranch_scc1 {lp}")
        a(f"{dn}:")

    def untag(self, regs, tag, t, mask):
        a = self.a
        for r in regs: a(f"v_xor_b32 v{r}, v{r}, v{tag}")
        rs = list(regs)
        if len(rs) == 1: src = rs[0]
        else:
            if len(rs) == 2: a(f"v_or_b32 v{t}, v{rs[0]}, v{rs[1]}"); rest = []
            else: a(f"v_or3_b32 v{t}, v{rs[0]}, v{rs[1]}, v{rs[2]}"); rest = rs[3:]
            while rest:
                if len(rest) == 1: a(f"v_or_b32 v{t}, v{t}, v{rest[0]}"); rest = []
                else: a(f"v_or3_b32 v{t}, v{t}, v{rest[0]}, v{rest[1]}"); rest = rest[2:]
            src = t
        a(f"v_and_b32 v{t}, {mask:#x}, v{src}")
        a(f"v_cmp_ne_u32 vcc, 0, v{t}")

    def bprep(self, X, P, B, t):
        a = self.a
        a(f"v_mov_b32_dpp v{P}, v{X} row_newbcast:{t} row_mask:0xf bank_mask:0x3")
        a(f"v_mov_b32_dpp v{P}, v{X} row_newbcast:{8+t} row_mask:0xf bank_mask:0xc")
        for k in range(4): a(f"v_and_b32 v{B+k}, v{P}, v{V_M+k}")

    def mfma(self, D, Areg, B, first):
        self.a(f"{MFMA} v[{D}:{D+3}], v[{Areg}:{Areg+3}], v[{B}:{B+3}], " + ("0" if first else f"v[{D}:{D+3}]"))

    def fold_wide(self, D1, D2, Y):
        a = self.a
        for y in range(2):
            a(f"v_add_f32_dpp v{Y+y}, v{D2+2*y}, v{D1+2*y} row_ror:8 row_mask:0xf bank_mask:0x3")
            a(f"v_add_f32_dpp v{Y+y}, v{D1+2*y+1}, v{D2+2*y+1} row_ror:8 row_mask:0xf bank_mask:0xc")

    def fold_col(self, D1, D2, Y):
        a = self.a
        for D in (D1, D2):
            if D is None: continue
            for y in range(2): a(f"v_permlane32_swap_b32 v{D+2*y}, v{D+2*y+1}")
        for y in range(2):
            a(f"v_add_f32_dpp v{Y+y}, v{D1+2*y+1}, v{D1+2*y} row_ror:8 row_mask:0xf bank_mask:0x3")
            if D2 is not None:
                a(f"v_add_f32_dpp v{Y+y}, v{D2+2*y}, v{D2+2*y+1} row_ror:8 row_mask:0xf bank_mask:0xc")

    def colpos(self, d, col, t):
        a = self.a
        a(f"v_bfe_u32 v{d}, v{col}, 4, 1"); a(f"v_lshlrev_b32 v{d}, 6, v{d}")
        a(f"v_bfe_u32 v{t}, v{col}, 5, 1"); a(f"v_lshl_add_u32 v{d}, v{t}, 4, v{d}")
        a(f"v_bfe_u32 v{t}, v{col}, 3, 1"); a(f"v_lshl_add_u32 v{d}, v{t}, 5, v{d}")
        a(f"v_and_b32 v{t}, 7, v{col}"); a(f"v_add_u32 v{d}, v{d}, v{t}")
        a(f"v_lshlrev_b32 v{d}, 2, v{d}")

    def wraddr(self, d, stride=PST):
        a = self.a
        a(f"s_mul_i32 s79, s{S_WAVE}, {stride}"); a(f"v_lshlrev_b32 v{d}, 2, v{V_L}"); a(f"v_add_u32 v{d}, s79, v{d}")

    def putpart(self, addr, Y, acc):
        self.a(f"ds_write_b32 v{addr}, v{Y} offset:{acc}"); self.a(f"ds_write_b32 v{addr}, v{Y+1} offset:{acc+256}")

    def widerd(self, d, t):
        a = self.a
        a(f"v_and_b32 v{t}, 3, v{V_L}"); a(f"v_mul_u32_u24 v{d}, {PST}, v{t}")
        a(f"v_bfe_u32 v{t}, v{V_L}, 4, 1"); a(f"v_lshl_add_u32 v{d}, v{t}, 8, v{d}")
        a(f"v_bfe_u32 v{t}, v{V_L}, 5, 1"); a(f"v_lshl_add_u32 v{d}, v{t}, 6, v{d}")
        a(f"v_bfe_u32 v{t}, v{V_L}, 2, 2"); a(f"v_lshl_add_u32 v{d}, v{t}, 4, v{d}")
        a(f"s_and_b32 s79, s{S_WAVE}, 1"); a("s_lshl_b32 s79, s79, 7"); a(f"v_add_u32 v{d}, s79, v{d}")

    def colrd(self, d, t):
        a = self.a
        a(f"v_and_b32 v{t+1}, 60, v{V_L}")
        self.colpos(d, t + 1, t)
        a(f"v_and_b32 v{t}, 3, v{V_L}"); a(f"v_mul_u32_u24 v{t}, {PST}, v{t}"); a(f"v_add_u32 v{d}, v{d}, v{t}")

    def publish(self, acc, vrd, voff, soff, t, bf):
        a = self.a
        for j in range(4): a(f"ds_read_b128 v[{t+4*j}:{t+4*j+3}], v{vrd} offset:{acc+4*j*PST}")
        a("s_waitcnt lgkmcnt(2)")
        for i in range(4): a(f"v_add_f32 v{t+i}, v{t+i}, v{t+4+i}")
        a("s_waitcnt lgkmcnt(0)")
        for i in range(4): a(f"v_add_f32 v{t+8+i}, v{t+8+i}, v{t+12+i}")
        for i in range(4): a(f"v_add_f32 v{t+i}, v{t+i}, v{t+8+i}")
        for m in ("quad_perm:[1,0,3,2]", "quad_perm:[2,3,0,1]"):
            for i in range(4): a(f"v_add_f32_dpp v{t+i}, v{t+i}, v{t+i} {m} row_mask:0xf bank_mask:0xf")
        if bf:
            for i in range(4): a(f"v_cvt_pk_bf16_f32 v{t+i}, v{t+i}, v{t+i}")
            a("s_mov_b32 s79, 0xffff")
            for i in range(4): a(f"v_bfi_b32 v{t+i}, s79, v{V_T16}, v{t+i}")
        else:
            for i in range(4): a(f"v_bfi_b32 v{t+i}, s{S_M10}, v{V_T10}, v{t+i}")
        self.setexec(0x11111111, 0x11111111)
        a(f"buffer_store_dwordx4 v[{t}:{t+3}], v{voff}, s[{R_WS}:{R_WS+3}], s{soff} offen sc1")
        self.allexec()

    def unitoff(self, d):
        self.a(f"v_and_b32 v{d}, 60, v{V_L}"); self.a(f"v_lshlrev_b32 v{d}, 2, v{d}")

    def rowidx(self, d, t, per, spare0=False):
        a = self.a
        a(f"v_and_b32 v{t}, 7, v{V_N}"); a(f"v_lshlrev_b32 v{d}, 3, v{t}")
        a(f"v_lshl_add_u32 v{d}, v{V_G}, 1, v{d}")
        a(f"v_lshrrev_b32 v{t+1}, 3, v{V_N}"); a(f"v_add_u32 v{d}, v{d}, v{t+1}")
        if per:
            a(f"s_mul_i32 s60, s{S_WAVE}, {per}"); a(f"v_add_u32 v{d}, s60, v{d}")
            a(f"v_cmp_gt_u32 vcc, {per//8}, v{t}"); a(f"v_cndmask_b32 v{d}, v{V_G}, v{d}, vcc")

    def colvoff(self, d, stride, t):
        a = self.a
        a(f"v_lshrrev_b32 v{t}, 3, v{V_L}"); a(f"v_mul_u32_u24 v{d}, {stride}, v{t}")
        a(f"v_and_b32 v{t}, 7, v{V_L}"); a(f"v_lshl_add_u32 v{d}, v{t}, 4, v{d}")

    def colloads(self, reg, voff, srd, sbase, stride, n=5):
        a = self.a
        for t in range(n):
            if t == 0: so = sbase
            else: a(f"s_add_u32 s61, s{sbase}, {8*t*stride}"); so = 61
            a(f"buffer_load_dwordx4 v[{reg+4*t}:{reg+4*t+3}], v{voff}, s[{srd}:{srd+3}], s{so} offen nt")

    def silu(self, x, t):
        a = self.a
        a(f"v_mul_f32 v{t}, {fh(-LOG2E)}, v{x}"); a(f"v_exp_f32 v{t}, v{t}")
        a(f"v_add_f32 v{t}, 1.0, v{t}")
        a(f"v_min_f32 v{t}, {fh(3.0e38)}, v{t}")
        a(f"v_rcp_f32 v{t+1}, v{t}")
        a(f"v_mul_f32 v{t+2}, v{x}, v{t+1}")
        a(f"v_fma_f32 v{t+3}, -v{t+2}, v{t}, v{x}")
        a(f"v_fma_f32 v{x}, v{t+3}, v{t+1}, v{t+2}")
        a(f"v_cvt_pk_bf16_f32 v{x}, v{x}, v{x}")

    def xrow_allred(self, v, t, op):
        a = self.a
        a(f"v_mov_b32 v{t}, v{v}"); a(f"v_permlane32_swap_b32 v{t}, v{v}"); a(f"{op} v{v}, v{v}, v{t}")
        a(f"v_mov_b32 v{t}, v{v}"); a(f"v_permlane16_swap_b32 v{t}, v{v}"); a(f"{op} v{v}, v{v}, v{t}")

    def x2calc(self, vcol4, ga, xv, d, t):
        a = self.a
        a(f"v_add_f32 v{d}, v{d}, v{d+1}"); a(f"v_add_f32 v{d+2}, v{d+2}, v{d+3}"); a(f"v_add_f32 v{d}, v{d}, v{d+2}")
        bfr(a, d, d)
        a(f"v_mul_f32 v{d}, v{ga}, v{d}"); bfr(a, d, d)
        a(f"v_add_f32 v{d}, v{xv}, v{d}"); bfr(a, d, d)

    def attention(self):
        a = self.a; thr = self.thr
        KR, VR, D1, D2, Q, S = 32, 76, 120, 124, 10, 14
        VO, PQ, T = 20, 22, 24
        a("L_att:")
        a("s_sub_u32 s3, s2, 64")
        a("s_and_b32 s100, s3, 31"); a("s_lshr_b32 s101, s3, 5")
        a("s_mul_i32 s72, s101, 171"); a("s_cmp_eq_u32 s101, 5"); a("s_subb_u32 s72, s72, 0")
        a("s_cmp_lt_u32 s101, 4"); a("s_cselect_b32 s73, 1024, 0"); a("s_add_u32 s73, s73, %d" % (170 * 1024))
        a("s_lshl_b32 s74, s100, 22"); a("s_lshl_b32 s72, s72, 10"); a("s_add_u32 s74, s74, s72"); a("s_add_u32 s74, s74, %d" % (12288 * 256))
        step = 1024 if self.pat == "contig" else 16384
        a(f"s_mul_i32 s75, s{S_WAVE}, {11*1024 if self.pat == 'contig' else 1024}")
        a(f"v_lshlrev_b32 v{VO}, 4, v{V_L}"); a(f"v_add_u32 v{VO}, s75, v{VO}")
        a("s_sub_u32 s75, s73, s75")
        a(f"s_add_u32 s60, s100, s{S_WAVE}")
        for k in (44, 22, 11): a(f"s_sub_u32 s61, s60, {k}"); a("s_min_u32 s60, s60, s61")
        a(f"s_mul_i32 s60, s60, {step}")
        a("s_waitcnt lgkmcnt(0)")
        a(f"s_load_dword s{S_T}, s[{S_WS}:{S_WS+1}], 0")
        a(f"s_add_u32 s{S_K}, s{S_K}, s74"); a(f"s_addc_u32 s{S_K+1}, s{S_K+1}, 0")
        srd(a, R_A, S_K, "s73")
        def ld(j):
            i = j % 11; r = (KR if j < 11 else VR) + 4 * i; sr = R_A if j < 11 else R_B
            a(f"buffer_load_dwordx4 v[{r}:{r+3}], v{VO}, s[{sr}:{sr+3}], s{60+i} offen nt")
        def nxt(i):
            a(f"s_add_u32 s{60+i}, s{59+i}, {step}"); a(f"s_sub_u32 s71, s{60+i}, {11*step}"); a(f"s_min_u32 s{60+i}, s{60+i}, s71")
        n0 = thr if thr else 11
        ld(0)
        for i in range(1, 11):
            nxt(i)
            if i < n0: ld(i)
        a(f"s_add_u32 s{S_V}, s{S_V}, s74"); a(f"s_addc_u32 s{S_V+1}, s{S_V+1}, 0")
        srd(a, R_B, S_V, "s73"); srd(a, R_WS, S_WS, WS_SIZE)
        a("v_mov_b32 v21, 0")
        a(f"ds_write_b32 v21, v21 offset:{L_FLAG}")
        self.masks(T)
        a("s_waitcnt lgkmcnt(0)")
        self.tags()
        a("s_barrier")
        a(f"s_cmp_eq_u32 s{S_WAVE}, 0"); a("s_cbranch_scc1 L_att_w0")
        def flagchk(target):
            a(f"ds_read_b32 v{T}, v21 offset:{L_FLAG}"); a("s_waitcnt lgkmcnt(0)")
            a(f"v_cmp_ne_u32 vcc, 0, v{T}"); a(f"s_cbranch_vccnz {target}")
        for j in range(n0, 22):
            if thr: a(f"s_waitcnt vmcnt({thr-1})")
            ld(j)
            if thr and j < 21: flagchk(f"L_att_u{j+1}")
        a(f"s_mov_b32 s{S_CNT}, 0")
        a("L_att_spin:")
        flagchk("L_att_u22")
        a(f"s_add_u32 s{S_CNT}, s{S_CNT}, 1"); a(f"s_cmp_lt_u32 s{S_CNT}, {SPIN*16}"); a("s_cbranch_scc1 L_att_spin")
        a("s_branch L_att_u22")
        a("L_att_w0:")
        a("s_setprio 3")
        a(f"v_lshlrev_b32 v{T+2}, 3, v{V_L}"); a("s_lshl_b32 s76, s100, 9"); a(f"s_add_u32 s76, s76, {WS_Q}")
        a(f"v_lshlrev_b32 v{T+3}, 2, v{V_L}"); a(f"v_mov_b32 v{T+4}, 1"); a("s_mov_b32 s77, 0x07060302")
        def pq(): a(f"buffer_load_dwordx2 v[{PQ}:{PQ+1}], v{T+2}, s[{R_WS}:{R_WS+3}], s76 offen sc1")
        def chk(): self.untag([PQ, PQ + 1], V_T16, T, 0xffff)
        if thr:
            for j in range(n0, 22):
                if j > n0:
                    a(f"s_waitcnt vmcnt({1})"); chk(); a(f"s_cbranch_vccz L_att_got{j}")
                else: a(f"s_waitcnt vmcnt({thr-1})")
                pq(); ld(j)
        else:
            for j in range(n0, 22): ld(j)
        self.poll(pq, chk, "PQ")
        for j in [22] + (list(range(n0 + 1, 22)) if thr else []):
            a(f"L_att_got{j}:")
            a(f"v_perm_b32 v{PQ}, v{PQ+1}, v{PQ}, s77")
            a(f"ds_write_b32 v{T+3}, v{PQ} offset:{L_Q}"); a(f"ds_write_b32 v21, v{T+4} offset:{L_FLAG}")
            a("s_setprio 0")
            self.stamp(1)
            a(f"s_branch L_att_u{j}")
        if thr:
            for j in range(n0 + 1, 22):
                a(f"L_att_u{j}:"); ld(j)
        a("L_att_u22:")
        a(f"v_lshlrev_b32 v{T}, 4, v{V_N}")
        a(f"ds_read_b128 v[{Q}:{Q+3}], v{T} offset:{L_Q}")
        a("s_waitcnt lgkmcnt(0)")
        for t in range(6):
            pa, pb = 2 * t, 2 * t + 1
            a(f"s_waitcnt vmcnt({21-min(pb,10)})")
            for i, acc in ((pa, T), (pb, T + 1)):
                if i > 10: continue
                for d in range(4):
                    a(f"v_dot2_f32_bf16 v{acc}, v{KR+4*i+d}, v{Q+d}, " + ("0" if d == 0 else f"v{acc}"))
            a(f"v_add_f32_dpp v{S+t}, v{T}, v{T} row_ror:8 row_mask:0xf bank_mask:{'0x3' if pb <= 10 else '0xf'}")
            if pb <= 10: a(f"v_add_f32_dpp v{S+t}, v{T+1}, v{T+1} row_ror:8 row_mask:0xf bank_mask:0xc")
        for m in ("quad_perm:[1,0,3,2]", "quad_perm:[2,3,0,1]", "row_half_mirror"):
            for t in range(6): a(f"v_add_f32_dpp v{S+t}, v{S+t}, v{S+t} {m} row_mask:0xf bank_mask:0xf")
        a(f"v_mov_b32 v{T+1}, 0xff800000")
        for t in range(6):
            bfr(a, S + t, S + t); a(f"v_mul_f32 v{S+t}, {fh(128 ** -0.5)}, v{S+t}"); bfr(a, S + t, S + t)
            a(f"s_cmp_lt_u32 s{60+2*t}, s75"); a("s_cselect_b32 s78, 0x00ff00ff, 0")
            if 2 * t + 1 <= 10:
                a(f"s_cmp_lt_u32 s{61+2*t}, s75"); a("s_cselect_b32 s79, 0xff00ff00, 0"); a("s_or_b32 s78, s78, s79")
            a("s_mov_b32 vcc_lo, s78"); a("s_mov_b32 vcc_hi, s78")
            a(f"v_cndmask_b32 v{S+t}, v{T+1}, v{S+t}, vcc")
        a(f"v_max3_f32 v{T}, v{S}, v{S+1}, v{S+2}"); a(f"v_max3_f32 v{T}, v{T}, v{S+3}, v{S+4}"); a(f"v_max_f32 v{T}, v{T}, v{S+5}")
        a(f"v_max_f32_dpp v{T}, v{T}, v{T} row_ror:8 row_mask:0xf bank_mask:0xf")
        self.xrow_allred(T, T + 1, "v_max_f32")
        a(f"s_lshl_b32 s78, s{S_WAVE}, 2"); a(f"v_mov_b32 v{T+5}, s78"); a(f"v_lshlrev_b32 v{T+6}, 2, v{V_N}")
        a(f"ds_write_b32 v{T+5}, v{T} offset:{L_MAX}")
        a("s_waitcnt lgkmcnt(0)"); a("s_barrier")
        a(f"ds_read_b32 v{T}, v{T+6} offset:{L_MAX}"); a("s_waitcnt lgkmcnt(0)")
        row_red(a, T, "v_max_f32")
        for t in range(6):
            a(f"v_sub_f32 v{S+t}, v{S+t}, v{T}"); a(f"v_mul_f32 v{S+t}, {fh(LOG2E)}, v{S+t}"); a(f"v_exp_f32 v{S+t}, v{S+t}")
        a(f"v_add_f32 v{T+1}, v{S}, v{S+1}")
        for t in range(2, 6): a(f"v_add_f32 v{T+1}, v{T+1}, v{S+t}")
        a(f"v_add_f32_dpp v{T+1}, v{T+1}, v{T+1} row_ror:8 row_mask:0xf bank_mask:0xf")
        self.xrow_allred(T + 1, T + 2, "v_add_f32")
        a(f"ds_write_b32 v{T+5}, v{T+1} offset:{L_SUM}")
        for t in range(6):
            a(f"v_cvt_pk_bf16_f32 v{S+t}, v{S+t}, v{S+t}")
            for k in range(4): a(f"v_and_b32 v{KR+4*t+k}, v{S+t}, v{V_M+k}")
        self.wraddr(T + 2)
        self.widerd(T + 3, T + 4)
        self.unitoff(T + 4)
        a("s_mul_i32 s76, s100, 6"); a("s_add_u32 s76, s76, s101"); a("s_lshl_b32 s76, s76, 1"); a(f"s_add_u32 s76, s76, s{S_WAVE}")
        a("s_lshl_b32 s76, s76, 8"); a(f"s_add_u32 s76, s76, {WS_O}")
        a("s_waitcnt lgkmcnt(0)"); a("s_barrier")
        l = a.label("ML")
        a(f"s_cmp_lg_u32 s{S_WAVE}, 0"); a(f"s_cbranch_scc1 {l}")
        a(f"ds_read_b32 v{Q+1}, v{T+6} offset:{L_SUM}")
        a("s_lshl_b32 s77, s100, 7"); a("s_lshl_b32 s78, s101, 4"); a("s_add_u32 s77, s77, s78"); a(f"s_add_u32 s77, s77, {WS_ML}")
        a(f"v_bfi_b32 v{Q}, s{S_M10}, v{V_T10}, v{T}"); a(f"v_mov_b32 v{Q+2}, v{V_T10}"); a(f"v_mov_b32 v{Q+3}, v{V_T10}")
        a("s_waitcnt lgkmcnt(0)")
        row_red(a, Q + 1)
        a(f"v_bfi_b32 v{Q+1}, s{S_M10}, v{V_T10}, v{Q+1}")
        self.setexec(1, 0)
        a(f"buffer_store_dwordx4 v[{Q}:{Q+3}], v21, s[{R_WS}:{R_WS+3}], s77 offen sc1")
        self.allexec()
        self.stamp(2)
        a(f"{l}:")
        for i in range(11):
            a(f"s_waitcnt vmcnt({10-i})")
            self.mfma(D1 if i % 2 == 0 else D2, VR + 4 * i, KR + 4 * (i // 2), i < 2)
        self.fold_wide(D1, D2, S)
        self.putpart(T + 2, S, L_ACC0)
        a("s_waitcnt lgkmcnt(0)"); a("s_barrier")
        a(f"s_cmp_gt_u32 s{S_WAVE}, 1"); a("s_cbranch_scc1 L_end")
        self.stamp(3)
        self.publish(L_ACC0, T + 3, T + 4, 76, KR, False)
        self.stamp(4)
        if self.stamps:
            a(f"s_cmp_lg_u32 s{S_WAVE}, 0"); a("s_cbranch_scc1 L_end")
            self.flush_stamps(5, role='A')
        a("s_endpgm")

    def role_w(self):
        a = self.a
        ROW, VO, X, P, B, D1, D2, Y, T = 10, 11, 12, 13, 14, 22, 26, 30, 32
        CR, WO = 44, 64
        a("L_w:")
        self.colvoff(VO, 7680, T)
        a(f"s_mul_i32 s62, s{S_WAVE}, {40*7680}"); a("s_lshl_b32 s63, s2, 7"); a("s_add_u32 s62, s62, s63")
        self.rowidx(ROW, T, 40)
        a(f"v_lshlrev_b32 v{ROW}, 1, v{ROW}")
        a("s_waitcnt lgkmcnt(0)")
        a(f"s_load_dword s{S_T}, s[{S_WS}:{S_WS+1}], 0")
        srd(a, R_A, S_WM, 640 * 3840 * 2); srd(a, R_C, S_C, 1280)
        a(f"buffer_load_ushort v{T+8}, v{ROW}, s[{R_C}:{R_C+3}], 0 offen")
        self.colloads(CR, VO, R_A, 62, 7680)
        srd(a, R_B, S_WO, 4096 * 640 * 2); srd(a, R_WS, S_WS, WS_SIZE); srd(a, R_D, S_X, 1280); srd(a, R_E, S_OUT, 1280)
        self.masks(T)
        a("s_waitcnt vmcnt(5)")
        a(f"v_lshlrev_b32 v{X}, 16, v{T+8}")
        self.silu(X, T)
        self.wraddr(T + 8)
        self.colrd(T + 9, T)
        self.unitoff(T + 10)
        a("s_mul_i32 s64, s2, 52"); a("s_lshr_b32 s64, s64, 8"); a("s_mul_i32 s65, s64, 5"); a("s_sub_u32 s65, s2, s65")
        a(f"v_mul_u32_u24 v{VO}, 1280, v{V_G}"); a(f"v_lshl_add_u32 v{VO}, v{V_N}, 4, v{VO}")
        a("s_lshl_b32 s66, s64, 4"); a(f"s_add_u32 s66, s66, s{S_WAVE}")
        a(f"s_mul_i32 s67, s66, {64*1280}"); a("s_lshl_b32 s68, s65, 8"); a("s_add_u32 s67, s67, s68")
        a("s_waitcnt lgkmcnt(0)")
        self.tags()
        for t in range(5):
            self.bprep(X, P, B + 4 * (t & 1), t)
            a(f"s_waitcnt vmcnt({4-t})")
            self.mfma(D1, CR + 4 * t, B + 4 * (t & 1), t == 0)
        for p in range(16):
            if p: a(f"s_add_u32 s61, s67, {p*4*1280}")
            a(f"buffer_load_dwordx4 v[{WO+4*p}:{WO+4*p+3}], v{VO}, s[{R_B}:{R_B+3}], s{61 if p else 67} offen nt")
            if p == 1:
                self.fold_col(D1, None, Y)
                self.putpart(T + 8, Y, L_ACC0)
                a("s_waitcnt lgkmcnt(0)"); a("s_barrier")
                l = a.label("WP")
                a(f"s_cmp_lg_u32 s{S_WAVE}, 0"); a(f"s_cbranch_scc1 {l}")
                a("s_lshl_b32 s62, s2, 8"); a(f"s_add_u32 s62, s62, {WS_MOD}")
                self.publish(L_ACC0, T + 9, T + 10, 62, CR, True)
                self.stamp(1)
                a(f"{l}:")
        CA, CB, OA, OB = 44, 45, 48, 52
        a("s_lshr_b32 s68, s66, 1")
        a("s_lshl_b32 s69, s68, 7"); a(f"s_add_u32 s69, s69, {WS_ML}")
        a(f"v_lshlrev_b32 v{T}, 4, v{V_G}"); a(f"v_and_b32 v{T+1}, 16, v{T}")
        def iss():
            a(f"buffer_load_dwordx4 v[{OA}:{OA+3}], v{T}, s[{R_WS}:{R_WS+3}], s69 offen sc1")
            a(f"buffer_load_dwordx4 v[{OB}:{OB+3}], v{T+1}, s[{R_WS}:{R_WS+3}], s69 offen offset:64 sc1")
        self.poll(iss, lambda: self.untag(list(range(OA, OA + 8)), V_T10, T + 2, 0x3ff), "PM")
        self.stamp(2)
        a(f"v_max_f32 v{T+2}, v{OA}, v{OB}")
        self.xrow_allred(T + 2, T + 3, "v_max_f32")
        for m, c in ((OA, CA), (OB, CB)):
            a(f"v_sub_f32 v{c}, v{m}, v{T+2}"); a(f"v_mul_f32 v{c}, {fh(LOG2E)}, v{c}"); a(f"v_exp_f32 v{c}, v{c}")
        self.setexec(0, 0xffffffff); a(f"v_mov_b32 v{CB}, 0"); self.allexec()
        a(f"v_mul_f32 v{T+2}, v{CA}, v{OA+1}"); a(f"v_fmac_f32 v{T+2}, v{CB}, v{OB+1}")
        self.xrow_allred(T + 2, T + 3, "v_add_f32")
        a(f"v_rcp_f32 v{T+2}, v{T+2}")
        a(f"v_mul_f32 v{CA}, v{CA}, v{T+2}"); a(f"v_mul_f32 v{CB}, v{CB}, v{T+2}")
        a(f"v_lshlrev_b32 v{T}, 9, v{V_G}"); a(f"v_lshl_add_u32 v{T}, v{V_N}, 4, v{T}"); a(f"v_and_b32 v{T+1}, 0x2ff, v{T}")
        a(f"s_mul_i32 s69, s68, {6*512}"); a("s_and_b32 s70, s66, 1"); a("s_lshl_b32 s70, s70, 8"); a("s_add_u32 s69, s69, s70"); a(f"s_add_u32 s69, s69, {WS_O}")
        self.widerd(T + 9, T + 2)
        a("s_mul_i32 s62, s64, 2560"); a("s_lshl_b32 s63, s65, 9"); a("s_add_u32 s62, s62, s63"); a(f"s_add_u32 s62, s62, {WS_A}")
        a(f"s_lshl_b32 s63, s{S_WAVE}, 8"); a("s_add_u32 s62, s62, s63")
        def iss2():
            a(f"buffer_load_dwordx4 v[{OA}:{OA+3}], v{T}, s[{R_WS}:{R_WS+3}], s69 offen sc1")
            a(f"buffer_load_dwordx4 v[{OB}:{OB+3}], v{T+1}, s[{R_WS}:{R_WS+3}], s69 offen offset:2048 sc1")
        self.poll(iss2, lambda: self.untag(list(range(OA, OA + 8)), V_T10, T + 2, 0x3ff), "PO")
        self.stamp(3)
        for i in range(4): a(f"v_mul_f32 v{OA+i}, v{CA}, v{OA+i}")
        for i in range(4): a(f"v_fmac_f32 v{OA+i}, v{CB}, v{OB+i}")
        a(f"v_permlane32_swap_b32 v{OA}, v{OA+2}"); a(f"v_permlane32_swap_b32 v{OA+1}, v{OA+3}")
        a(f"v_add_f32 v{OA}, v{OA}, v{OA+2}"); a(f"v_add_f32 v{OA+1}, v{OA+1}, v{OA+3}")
        a(f"v_permlane16_swap_b32 v{OA}, v{OA+1}")
        a(f"v_add_f32 v{X}, v{OA}, v{OA+1}")
        a(f"v_cvt_pk_bf16_f32 v{X}, v{X}, v{X}")
        for t in range(8):
            self.bprep(X, P, B + 4 * (t & 1), t)
            self.mfma(D1, WO + 4 * t, B + 4 * (t & 1), t == 0)
            self.mfma(D2, WO + 4 * (8 + t), B + 4 * (t & 1), t == 0)
        self.fold_wide(D1, D2, Y)
        self.putpart(T + 8, Y, L_ACC1)
        a("s_waitcnt lgkmcnt(0)"); a("s_barrier")
        a(f"s_cmp_eq_u32 s{S_WAVE}, 2"); a("s_cbranch_scc1 L_red")
        a(f"s_cmp_gt_u32 s{S_WAVE}, 1"); a("s_cbranch_scc1 L_end")
        self.stamp(4)
        self.publish(L_ACC1, T + 9, T + 10, 62, CR, False)
        self.stamp(5)
        if self.stamps:
            a(f"s_cmp_lg_u32 s{S_WAVE}, 0"); a("s_cbranch_scc1 L_end")
            self.flush_stamps(6, role='W')
        a("s_endpgm")
        a("L_red:")
        COL, GA, GB, XV, A4, R = 10, 11, 12, 13, 14, 64
        a(f"v_and_b32 v{T}, 7, v{V_N}"); a(f"v_lshl_add_u32 v{COL}, v{V_G}, 3, v{T}")
        a("s_lshl_b32 s62, s2, 5"); a(f"v_add_u32 v{COL}, s62, v{COL}")
        a(f"v_lshlrev_b32 v{T+1}, 1, v{COL}"); a(f"v_lshlrev_b32 v{COL}, 2, v{COL}")
        a(f"buffer_load_ushort v{XV}, v{T+1}, s[{R_D}:{R_D+3}], 0 offen")
        a(f"s_mov_b32 s63, {WS_MOD+1280*4}"); a(f"s_mov_b32 s64, {WS_MOD+3200*4}"); a(f"s_mov_b32 s65, {WS_A}"); a(f"s_mov_b32 s66, {WS_A+5120}")
        def iss3():
            a(f"buffer_load_dword v{GA}, v{COL}, s[{R_WS}:{R_WS+3}], s63 offen sc1")
            a(f"buffer_load_dword v{GB}, v{COL}, s[{R_WS}:{R_WS+3}], s64 offen sc1")
        self.poll(iss3, lambda: self.untag([GA, GB], V_T16, T + 2, 0xffff), "PG")
        def iss4():
            for i in range(4):
                a(f"buffer_load_dword v{A4+i}, v{COL}, s[{R_WS}:{R_WS+3}], s{65+(i>>1)} offen offset:{2560*(i&1)} sc1")
        self.poll(iss4, lambda: self.untag(list(range(A4, A4 + 4)), V_T10, T + 2, 0x3ff), "PA")
        a(f"v_lshlrev_b32 v{XV}, 16, v{XV}")
        self.x2calc(COL, GA, XV, A4, T)
        self.stamp(6)
        self.colvoff(T + 2, 2560, T + 3)
        a(f"v_min_u32 v{T+3}, {2*2560+112}, v{T+2}")
        a(f"v_cmp_gt_u32 vcc, 24, v{V_L}"); a(f"v_cndmask_b32 v{T+4}, 0, 1.0, vcc")
        a("s_lshl_b32 s62, s2, 7"); a(f"s_add_u32 s62, s62, {WS_D}")
        for i in range(1, 4): a(f"s_add_u32 s{62+i}, s62, {i*8*2560}")
        def iss5():
            for i in range(4):
                a(f"buffer_load_dwordx4 v[{R+4*i}:{R+4*i+3}], v{T+2 if i < 3 else T+3}, s[{R_WS}:{R_WS+3}], s{62+i} offen sc1")
        self.poll(iss5, lambda: self.untag(list(range(R, R + 16)), V_T10, T + 5, 0x3ff), "PD")
        self.stamp(7)
        for i in range(4): a(f"v_add_f32 v{R+i}, v{R+i}, v{R+4+i}")
        for i in range(4): a(f"v_fma_f32 v{R+8+i}, v{R+12+i}, v{T+4}, v{R+8+i}")
        for i in range(4): a(f"v_add_f32 v{R+i}, v{R+i}, v{R+8+i}")
        a(f"v_permlane32_swap_b32 v{R}, v{R+2}"); a(f"v_permlane32_swap_b32 v{R+1}, v{R+3}")
        a(f"v_add_f32 v{R}, v{R}, v{R+2}"); a(f"v_add_f32 v{R+1}, v{R+1}, v{R+3}")
        a(f"v_permlane16_swap_b32 v{R}, v{R+1}")
        a(f"v_add_f32 v{R}, v{R}, v{R+1}")
        a(f"v_add_f32_dpp v{R}, v{R}, v{R} row_ror:8 row_mask:0xf bank_mask:0xf")
        bfr(a, R, R)
        a(f"v_mul_f32 v{R}, v{GB}, v{R}"); bfr(a, R, R)
        a(f"v_add_f32 v{R}, v{A4}, v{R}")
        a(f"v_cvt_pk_bf16_f32 v{R}, v{R}, v{R}")
        self.setexec(0x00ff00ff, 0x00ff00ff)
        a(f"buffer_store_short v{R}, v{T+1}, s[{R_E}:{R_E+3}], 0 offen")
        self.allexec()
        self.stamp(8)
        l = a.label("EP")
        a("s_cmp_lg_u32 s2, 0"); a(f"s_cbranch_scc1 {l}")
        a(f"v_mov_b32 v{T}, s{S_T}"); a(f"v_mov_b32 v{T+1}, 0")
        self.setexec(1, 0)
        a(f"buffer_store_dword v{T}, v{T+1}, s[{R_WS}:{R_WS+3}], 0 offen sc1")
        self.allexec()
        a(f"{l}:")
        self.flush_stamps(9, 6, role='W')
        a("s_endpgm")

    def role_fm(self):
        a = self.a
        ROW, VO, X, P, B, D1, D2, Y, T = 10, 11, 12, 13, 14, 22, 26, 30, 32
        XO, ADD, CPOS, UOFF = 44, 45, 46, 47
        WA, WB = 48, 88
        a("L_fm:")
        a(f"s_sub_u32 s68, s2, {NW}")
        a(f"s_sub_u32 s69, s2, {NW+NM}")
        a("s_lshl_b32 s65, s68, 1"); a("s_add_u32 s66, s65, 1"); a(f"s_add_u32 s70, s69, {2*NM}"); a(f"s_add_u32 s71, s69, {2*NM+NF}")
        a(f"s_cmp_ge_u32 s2, {NW+NM}"); a("s_cselect_b32 s65, s70, s65"); a("s_cselect_b32 s66, s71, s66")
        a("s_cmp_lt_u32 s66, 64"); a(f"s_cselect_b32 s67, {640*4096*2}, 0")
        self.colvoff(VO, 8192, T)
        a(f"s_mul_i32 s62, s{S_WAVE}, {40*8192}"); a("s_lshl_b32 s63, s66, 7"); a("s_add_u32 s63, s63, s62")
        a("s_lshl_b32 s70, s65, 7"); a("s_add_u32 s62, s62, s70")
        self.rowidx(ROW, T, 40)
        a(f"v_lshlrev_b32 v{T}, 1, v{ROW}"); a(f"v_lshlrev_b32 v{ADD}, 2, v{V_L}")
        a("s_waitcnt lgkmcnt(0)")
        a(f"s_load_dword s{S_T}, s[{S_WS}:{S_WS+1}], 0")
        srd(a, R_D, S_X, 1280); srd(a, R_A, S_WQ, 640 * 4096 * 2)
        XS = WB
        for i in range(5): a(f"buffer_load_dword v{XS+i}, v{ADD}, s[{R_D}:{R_D+3}], 0 offen offset:{256*i}")
        a(f"buffer_load_ushort v{XO}, v{T}, s[{R_D}:{R_D+3}], 0 offen")
        self.colloads(WA, VO, R_A, 62, 8192)
        srd(a, R_B, S_WQ, "s67")
        self.colloads(WA + 20, VO, R_B, 63, 8192)
        srd(a, R_WS, S_WS, WS_SIZE)
        self.masks(T)
        self.colrd(CPOS, T)
        self.wraddr(ADD)
        self.unitoff(UOFF)
        a(f"v_lshlrev_b32 v{ROW}, 2, v{ROW}")
        a("s_waitcnt vmcnt(10)")
        for i in range(5):
            a(f"v_and_b32 v{XS+5+i}, 0xffff0000, v{XS+i}"); a(f"v_lshlrev_b32 v{XS+i}, 16, v{XS+i}")
        a(f"v_lshlrev_b32 v{XO}, 16, v{XO}")
        m, v, r, u, w = T, T + 1, T + 2, T + 3, T + 4
        xs = list(range(XS, XS + 10))
        a(f"v_add_f32 v{m}, v{xs[0]}, v{xs[1]}")
        for x in xs[2:]: a(f"v_add_f32 v{m}, v{m}, v{x}")
        row_red(a, m); self.xrow_allred(m, u, "v_add_f32")
        a(f"v_mul_f32 v{m}, {fh(1.0/640)}, v{m}")
        a(f"v_sub_f32 v{u}, v{xs[0]}, v{m}"); a(f"v_mul_f32 v{v}, v{u}, v{u}")
        for x in xs[1:]: a(f"v_sub_f32 v{u}, v{x}, v{m}"); a(f"v_fmac_f32 v{v}, v{u}, v{u}")
        row_red(a, v); self.xrow_allred(v, u, "v_add_f32")
        a(f"v_mul_f32 v{v}, {fh(1.0/640)}, v{v}")
        def lnfin(dst, src):
            bfr(a, m, m); bfr(a, v, v)
            a(f"v_add_f32 v{v}, {fh(1e-5)}, v{v}"); bfr(a, v, v)
            a(f"v_sqrt_f32 v{v}, v{v}"); bfr(a, v, v)
            a(f"v_rcp_f32 v{r}, v{v}")
            a(f"v_sub_f32 v{u}, v{src}, v{m}"); bfr(a, u, u)
            fdiv_r(a, dst, u, v, r, w); bfr(a, dst, dst)
        lnfin(X, XO)
        a("s_waitcnt lgkmcnt(0)")
        self.tags()
        a(f"s_cmp_ge_u32 s2, {NW+NM}"); a("s_cbranch_scc1 L_f_pre")
        a("s_mul_i32 s72, s68, 3"); a("s_lshl_b32 s73, s68, 1"); a("s_add_u32 s73, s73, 6"); a("s_min_u32 s72, s72, s73"); a("s_add_u32 s72, s72, 20")
        a("s_cmp_lt_u32 s68, 6"); a(f"s_cselect_b32 s67, {640*3840*2}, 0")
        srd(a, R_C, S_WM, 640 * 3840 * 2); srd(a, R_E, S_WM, 640 * 3840 * 2)
        self.colvoff(VO, 7680, T + 5)
        a(f"s_mul_i32 s62, s{S_WAVE}, {40*7680}"); a("s_lshl_b32 s63, s72, 7"); a("s_add_u32 s62, s62, s63"); a("s_add_u32 s63, s62, 128")
        a(f"s_mov_b32 s74, {8*7680}")
        a("s_branch L_fm_poll")
        a("L_f_pre:")
        srd(a, R_C, S_WG, 640 * 1728 * 2); srd(a, R_E, S_WU, 640 * 1728 * 2)
        self.colvoff(VO, 3456, T + 5)
        a(f"s_mul_i32 s62, s{S_WAVE}, {40*3456}"); a("s_lshl_b32 s63, s69, 7"); a("s_add_u32 s62, s62, s63"); a("s_mov_b32 s63, s62")
        a(f"s_mov_b32 s74, {8*3456}")
        a("L_fm_poll:")
        a(f"s_mov_b32 s70, {WS_MOD}")
        SA, CA = T + 5, T + 6
        def iss():
            a(f"buffer_load_dword v{SA}, v{ROW}, s[{R_WS}:{R_WS+3}], s70 offen sc1")
            a(f"buffer_load_dword v{CA}, v{ROW}, s[{R_WS}:{R_WS+3}], s70 offen offset:2560 sc1")
        self.poll(iss, lambda: self.untag([SA, CA], V_T16, T + 7, 0xffff), "PH")
        self.stamp(1)
        modulate2 = lambda x, cm, sh: (a(f"v_add_f32 v{cm}, 1.0, v{cm}"), bfr(a, cm, cm), a(f"v_mul_f32 v{x}, v{x}, v{cm}"), bfr(a, x, x),
                                       a(f"v_add_f32 v{x}, v{x}, v{sh}"), a(f"v_cvt_pk_bf16_f32 v{x}, v{x}, v{x}"))
        modulate2(X, CA, SA)
        for t in range(5):
            self.bprep(X, P, B + 4 * (t & 1), t)
            self.mfma(D1, WA + 4 * t, B + 4 * (t & 1), t == 0)
            self.mfma(D2, WA + 20 + 4 * t, B + 4 * (t & 1), t == 0)
        self.fold_col(D1, D2, Y)
        self.putpart(ADD, Y, L_ACC0)
        a("s_waitcnt lgkmcnt(0)"); a("s_barrier")
        l = a.label("QP")
        a(f"s_cmp_gt_u32 s{S_WAVE}, 1"); a(f"s_cbranch_scc1 {l}")
        a(f"s_cmp_eq_u32 s{S_WAVE}, 0"); a("s_cselect_b32 s70, s65, s66")
        a("s_cmp_ge_u32 s70, 64"); a(f"s_cbranch_scc1 {l}")
        a("s_lshl_b32 s70, s70, 8"); a(f"s_add_u32 s70, s70, {WS_Q}")
        a(f"s_lshl_b32 s71, s{S_WAVE}, 5"); a(f"v_add_u32 v{T+1}, s71, v{CPOS}")
        self.publish(L_ACC0, T + 1, UOFF, 70, B, True)
        self.stamp(2)
        a(f"{l}:")
        for t in range(5):
            a(f"buffer_load_dwordx4 v[{WB+4*t}:{WB+4*t+3}], v{VO}, s[{R_C}:{R_C+3}], s62 offen nt")
            a(f"buffer_load_dwordx4 v[{WB+20+4*t}:{WB+20+4*t+3}], v{VO}, s[{R_E}:{R_E+3}], s63 offen nt")
            if t < 4: a("s_add_u32 s62, s62, s74"); a("s_add_u32 s63, s63, s74")
        a(f"s_cmp_ge_u32 s2, {NW+NM}"); a("s_cbranch_scc1 L_f")
        srd(a, R_A, S_WM, "s67"); srd(a, R_B, S_C, 1280)
        a(f"s_sub_u32 s62, s62, {4*8*7680-256}")
        self.colloads(WA, VO, R_A, 62, 7680)
        a(f"v_lshrrev_b32 v{T}, 1, v{ROW}")
        a(f"buffer_load_ushort v{X}, v{T}, s[{R_B}:{R_B+3}], 0 offen")
        a("s_waitcnt vmcnt(0)")
        a(f"v_lshlrev_b32 v{X}, 16, v{X}")
        self.silu(X, T)
        D3 = T + 4
        for t in range(5):
            self.bprep(X, P, B + 4 * (t & 1), t)
            self.mfma(D1, WB + 4 * t, B + 4 * (t & 1), t == 0)
            self.mfma(D2, WB + 20 + 4 * t, B + 4 * (t & 1), t == 0)
            self.mfma(D3, WA + 4 * t, B + 4 * (t & 1), t == 0)
        self.fold_col(D1, D2, Y)
        self.fold_col(D3, None, T)
        self.putpart(ADD, Y, L_ACC1); self.putpart(ADD, T, L_ACC2)
        a("s_waitcnt lgkmcnt(0)"); a("s_barrier")
        a("s_cmp_lt_u32 s68, 6"); a("s_cselect_b32 s70, 3, 2")
        a(f"s_cmp_ge_u32 s{S_WAVE}, s70"); a("s_cbranch_scc1 L_end")
        a(f"s_add_u32 s70, s72, s{S_WAVE}"); a("s_lshl_b32 s70, s70, 8"); a(f"s_add_u32 s70, s70, {WS_MOD}")
        a(f"s_lshl_b32 s71, s{S_WAVE}, 5"); a(f"s_cmp_eq_u32 s{S_WAVE}, 2"); a(f"s_cselect_b32 s71, {L_ACC2-L_ACC1}, s71")
        a(f"v_add_u32 v{T+1}, s71, v{CPOS}")
        self.publish(L_ACC1, T + 1, UOFF, 70, B, True)
        if self.stamps:
            a(f"s_cmp_lg_u32 s{S_WAVE}, 0"); a("s_cbranch_scc1 L_end")
            self.stamp(3); self.flush_stamps(4, role='M')
        a("s_endpgm")
        a("L_f:")
        srd(a, R_A, S_WD, 1728 * 640 * 2)
        l = a.label("FD")
        a(f"s_cmp_ge_u32 s{S_WAVE}, 10"); a(f"s_cbranch_scc1 {l}")
        self.colvoff(VO, 1280, T)
        a(f"s_mul_i32 s62, s69, {64*1280}"); a(f"s_lshl_b32 s63, s{S_WAVE}, 7"); a("s_add_u32 s62, s62, s63")
        self.colloads(WA, VO, R_A, 62, 1280, n=8)
        a(f"{l}:")
        GA, SB, CB, A4, VAL, GPOS, DOFF = T + 5, T + 6, T + 7, T + 8, 47, 80, 81
        self.rowidx(GPOS, T, 0); a(f"v_lshlrev_b32 v{GPOS}, 2, v{GPOS}")
        GST = 528
        self.wraddr(ADD, GST)
        a(f"s_lshl_b32 s73, s{S_WAVE}, 4"); a(f"v_lshlrev_b32 v{T+1}, 2, v{V_G}"); a(f"v_add_u32 v{T+1}, s73, v{T+1}")
        self.colpos(CPOS, T + 1, T)
        a(f"v_mul_u32_u24 v{T}, {GST}, v{V_N}"); a(f"v_add_u32 v{CPOS}, v{CPOS}, v{T}")
        a(f"s_lshl_b32 s73, s{S_WAVE}, 6"); a(f"v_and_b32 v{GPOS+4}, 60, v{V_L}"); a(f"v_add_u32 v{GPOS+4}, s73, v{GPOS+4}")
        a(f"v_lshlrev_b32 v{DOFF}, 7, v{V_G}"); a(f"v_lshl_add_u32 v{DOFF}, v{V_N}, 4, v{DOFF}")
        a("s_mul_i32 s72, s69, 2560"); a(f"s_lshl_b32 s73, s{S_WAVE}, 8"); a("s_add_u32 s72, s72, s73"); a(f"s_add_u32 s72, s72, {WS_D}")
        a(f"v_and_b32 v{T}, 7, v{V_N}"); a(f"v_cmp_gt_u32 vcc, 5, v{T}"); a(f"v_cndmask_b32 v{VAL}, 0, 1.0, vcc")
        a(f"v_lshlrev_b32 v{GPOS+2}, 3, v{V_N}")
        a(f"s_lshl_b32 s73, s{S_WAVE}, 3"); a(f"v_mov_b32 v{GPOS+3}, s73")
        a(f"s_mov_b32 s63, {WS_MOD+1280*4}"); a(f"s_mov_b32 s64, {WS_MOD+2560*4}"); a(f"s_mov_b32 s65, {WS_A}"); a(f"s_mov_b32 s66, {WS_A+5120}")
        def iss3():
            a(f"buffer_load_dword v{GA}, v{ROW}, s[{R_WS}:{R_WS+3}], s63 offen sc1")
            a(f"buffer_load_dword v{SB}, v{ROW}, s[{R_WS}:{R_WS+3}], s63 offen offset:2560 sc1")
            a(f"buffer_load_dword v{CB}, v{ROW}, s[{R_WS}:{R_WS+3}], s64 offen sc1")
        self.poll(iss3, lambda: self.untag([GA, SB, CB], V_T16, T, 0xffff), "PG")
        self.stamp(3)
        a(f"v_add_f32 v{CB}, 1.0, v{CB}"); bfr(a, CB, CB)
        def iss4():
            for i in range(4):
                a(f"buffer_load_dword v{A4+i}, v{ROW}, s[{R_WS}:{R_WS+3}], s{65+(i>>1)} offen offset:{2560*(i&1)} sc1")
        self.poll(iss4, lambda: self.untag(list(range(A4, A4 + 4)), V_T10, T, 0x3ff), "PA")
        self.stamp(4)
        self.x2calc(ROW, GA, XO, A4, T)
        a(f"v_readlane_b32 s74, v{A4}, 7")
        a(f"v_subrev_f32 v{m}, s74, v{A4}"); a(f"v_mul_f32 v{m}, v{m}, v{VAL}"); a(f"v_mul_f32 v{v}, v{m}, v{m}")
        for md in ("quad_perm:[1,0,3,2]", "quad_perm:[2,3,0,1]", "row_half_mirror", "row_mirror"):
            for q in (m, v): a(f"v_add_f32_dpp v{q}, v{q}, v{q} {md} row_mask:0xf bank_mask:0xf")
        a(f"v_mov_b32 v{u}, v{m}"); a(f"v_mov_b32 v{w}, v{v}")
        a(f"v_permlane32_swap_b32 v{u}, v{m}"); a(f"v_permlane32_swap_b32 v{w}, v{v}")
        a(f"v_add_f32 v{m}, v{m}, v{u}"); a(f"v_add_f32 v{v}, v{v}, v{w}")
        a(f"v_mov_b32 v{u}, v{m}"); a(f"v_mov_b32 v{w}, v{v}")
        a(f"v_permlane16_swap_b32 v{u}, v{m}"); a(f"v_permlane16_swap_b32 v{w}, v{v}")
        a(f"v_add_f32 v{m}, v{m}, v{u}"); a(f"v_add_f32 v{v}, v{v}, v{w}")
        self.setexec(1, 0)
        a(f"ds_write_b64 v{GPOS+3}, v[{m}:{v}] offset:{L_ST}")
        self.allexec()
        self.stamp(7)
        a("s_waitcnt lgkmcnt(0)"); a("s_barrier")
        self.stamp(8)
        a(f"ds_read_b64 v[{m}:{v}], v{GPOS+2} offset:{L_ST}"); a("s_waitcnt lgkmcnt(0)")
        for md in ("quad_perm:[1,0,3,2]", "quad_perm:[2,3,0,1]", "row_half_mirror", "row_mirror"):
            for q in (m, v): a(f"v_add_f32_dpp v{q}, v{q}, v{q} {md} row_mask:0xf bank_mask:0xf")
        a(f"v_mul_f32 v{m}, {fh(1.0/640)}, v{m}"); a(f"v_mul_f32 v{v}, {fh(1.0/640)}, v{v}")
        a(f"v_fma_f32 v{v}, -v{m}, v{m}, v{v}"); a(f"v_max_f32 v{v}, 0, v{v}")
        a(f"v_add_f32 v{m}, s74, v{m}")
        lnfin(X, A4)
        a(f"v_mul_f32 v{X}, v{X}, v{CB}"); bfr(a, X, X)
        a(f"v_add_f32 v{X}, v{X}, v{SB}"); a(f"v_cvt_pk_bf16_f32 v{X}, v{X}, v{X}")
        for t in range(5):
            self.bprep(X, P, B + 4 * (t & 1), t)
            self.mfma(D1, WB + 4 * t, B + 4 * (t & 1), t == 0)
            self.mfma(D2, WB + 20 + 4 * t, B + 4 * (t & 1), t == 0)
        self.fold_col(D1, D2, Y)
        self.stamp(9)
        self.putpart(ADD, Y, L_ACC1)
        a("s_waitcnt lgkmcnt(0)"); a("s_barrier")
        a(f"s_cmp_ge_u32 s{S_WAVE}, 10"); a("s_cbranch_scc1 L_end")
        self.stamp(1)
        l = a.label("FA")
        a(f"s_cmp_ge_u32 s{S_WAVE}, 4"); a(f"s_cbranch_scc1 {l}")
        a(f"ds_read_b128 v[{D1}:{D1+3}], v{CPOS} offset:{L_ACC1}"); a(f"ds_read_b128 v[{D2}:{D2+3}], v{CPOS} offset:{L_ACC1+32}")
        a("s_waitcnt lgkmcnt(0)")
        for D, R in ((D1, B), (D2, B + 2)):
            for j in range(2):
                a(f"v_add_f32_dpp v{R+j}, v{D+j}, v{D+j} row_ror:8 row_mask:0xf bank_mask:0x3")
                a(f"v_add_f32_dpp v{R+j}, v{D+2+j}, v{D+2+j} row_ror:8 row_mask:0xf bank_mask:0xc")
        for R, Z in ((B, T), (B + 2, T + 1)):
            a(f"v_add_f32_dpp v{Z}, v{R}, v{R} row_shl:4 row_mask:0xf bank_mask:0x5")
            a(f"v_add_f32_dpp v{Z}, v{R+1}, v{R+1} row_shr:4 row_mask:0xf bank_mask:0xa")
        for md in ("quad_perm:[1,0,3,2]", "quad_perm:[2,3,0,1]"):
            for Z in (T, T + 1): a(f"v_add_f32_dpp v{Z}, v{Z}, v{Z} {md} row_mask:0xf bank_mask:0xf")
        bfr(a, T, T); bfr(a, T + 1, T + 1)
        gelu(a, X, T, T + 2, T + 3, T + 4); bfr(a, X, X)
        a(f"v_mul_f32 v{X}, v{X}, v{T+1}"); a(f"v_cvt_pk_bf16_f32 v{X}, v{X}, v{X}")
        a(f"ds_write_b32 v{GPOS+4}, v{X} offset:{L_ACT}")
        a("s_waitcnt lgkmcnt(0)")
        a(f"{l}:")
        a("s_barrier")
        self.stamp(5)
        a(f"ds_read_b32 v{X}, v{GPOS} offset:{L_ACT}")
        a("s_waitcnt lgkmcnt(0)")
        for t in range(8):
            self.bprep(X, P, B + 4 * (t & 1), t)
            self.mfma(D1, WA + 4 * t, B + 4 * (t & 1), t == 0)
        for r in range(4): a(f"v_permlane32_swap_b32 v{D1+r}, v{D2+r}")
        for r in range(4): a(f"v_add_f32_dpp v{D1+r}, v{D2+r}, v{D1+r} row_ror:8 row_mask:0xf bank_mask:0xf")
        for r in range(4): a(f"v_bfi_b32 v{D1+r}, s{S_M10}, v{V_T10}, v{D1+r}")
        self.setexec(0x00ff00ff, 0)
        a(f"buffer_store_dwordx4 v[{D1}:{D1+3}], v{DOFF}, s[{R_WS}:{R_WS+3}], s72 offen sc1")
        self.allexec()
        if self.stamps:
            a(f"s_cmp_lg_u32 s{S_WAVE}, {self.opt.get('sw', 0)}"); a("s_cbranch_scc1 L_end")
            self.stamp(6); self.flush_stamps(10, role='F')
        a("s_endpgm")

    def build(self):
        a = self.a
        a("s_cmp_ge_u32 s2, 256"); a("s_cbranch_scc1 L_end")
        a("s_load_dwordx16 s[4:19], s[0:1], 0"); a("s_load_dwordx8 s[20:27], s[0:1], 64"); a("s_load_dwordx2 s[28:29], s[0:1], 104")
        self.stamp(0)
        a("v_lshrrev_b32 v2, 6, v0"); a(f"v_and_b32 v{V_L}, 63, v0"); a(f"v_readfirstlane_b32 s{S_WAVE}, v2")
        a(f"v_bfe_u32 v{V_G}, v0, 4, 2"); a(f"v_and_b32 v{V_N}, 15, v0")
        a("s_cmp_ge_u32 s2, 64"); a("s_cbranch_scc1 L_att")
        a(f"s_cmp_ge_u32 s2, {NW}"); a("s_cbranch_scc1 L_fm")
        self.role_w()
        self.role_fm()
        self.attention()
        a("L_end:"); a("s_endpgm")
        body = "\n".join(hz.fix(a.l)) + "\n"
        return wrap([(NAME + "_kernel", body, 128, 102, 128)], [(NAME + "_kernel", 256, 1024, LDS)])


if __name__ == "__main__":
    open("f_st.s", "w").write(G(stamps=True).build())
    open("f_st9.s", "w").write(G(stamps=True, opt=dict(sw=9)).build())
    open("f_dbg.s", "w").write(G(stamps=True, opt=dict(dbg=1)).build())
    open("f.s", "w").write(G(stamps=False).build())
```

```python
import sys
from asmlib import *
from mathlib import *
import hz

WS_CR = 0x64000
WS_TK = 0x5800
WS_VOTE, WS_RC, WS_ON = 0x5000, 0x6c000, 0x70000
WS_MOD, WS_Q, WS_ML, WS_O, WS_A, WS_D, WS_SIZE = 0x1000, 0x8000, 0x10000, 0x20000, 0x40000, 0x90000, 0xe0000
SPIN = 30000
NW, NM, NF, NWO = 20, 37, 27, 80
PST = 576
L_CNT = 260
L_COEF, L_NEAR, L_TK = 512, 640, 656
L_Q, L_FLAG, L_MAX, L_SUM, L_ST, L_ACT = 0, 256, 320, 384, 512, 768
L_ACC0, L_ACC1, L_ACC2 = 1024, 1024 + 16 * PST, 1024 + 32 * PST
LDS = 1024 + 48 * PST
S_X, S_K, S_V, S_WQ, S_WO, S_WG, S_WU, S_WD, S_C, S_WM, S_OUT, S_WS = 4, 6, 8, 10, 12, 16, 18, 20, 22, 24, 26, 28
S_WAVE, S_T, S_CNT, S_M10 = 30, 31, 34, 35
R_WS, R_A, R_B, R_C, R_D, R_E = 36, 40, 44, 48, 52, 56
S_TMP = 60
S_ST = 80
V_HM, V_L, V_G, V_N, V_M, V_T16, V_T10 = 0, 1, 2, 3, 4, 8, 9
MFMA = "v_mfma_f32_16x16x32_bf16"


class G:
    def __init__(self, stamps=False, thr=2, pat="contig", opt=None):
        self.a = A(); self.stamps = stamps; self.thr = thr; self.pat = pat; self.opt = opt or {}; self.holes = {}

    def stamp(self, i):
        if self.stamps: self.a(f"s_memrealtime s[{S_ST+2*i}:{S_ST+2*i+1}]")

    DBG = dict(W={0: 0, 1: 1, 3: 2, 5: 3, 7: 4, 8: 5}, M={0: 0, 1: 6, 2: 7, 3: 8}, F={0: 0, 3: 9, 4: 10, 6: 11}, A={0: 0, 1: 12, 2: 13, 4: 14})
    def flush_stamps(self, n, first=0, role=None):
        if not self.stamps: return
        a = self.a
        if self.opt.get("dbg"):
            a("s_load_dwordx2 s[60:61], s[0:1], 96")
            a("s_waitcnt lgkmcnt(0)")
            a("v_mov_b32 v10, 0")
            self.setexec(1, 0)
            for j in range(first, n):
                if j not in self.DBG[role]: continue
                a(f"v_mov_b32 v12, s{S_ST+2*j}")
                if j == 0:
                    a(f"global_atomic_umax v10, v12, s[60:61] offset:60")
                    a("v_not_b32 v12, v12")
                a(f"global_atomic_umax v10, v12, s[60:61] offset:{4*self.DBG[role][j]}")
            return
        a("s_waitcnt lgkmcnt(0)")
        a(f"s_lshl_b32 s60, s2, 7"); a(f"s_add_u32 s60, s{S_WS}, s60"); a(f"s_addc_u32 s61, s{S_WS+1}, 0")
        a("s_add_u32 s60, s60, 0x10000000"); a("s_addc_u32 s61, s61, 0")
        a("v_mov_b32 v10, 0")
        for j in range(first, n):
            a(f"v_mov_b32 v12, s{S_ST+2*j}"); a(f"v_mov_b32 v13, s{S_ST+2*j+1}")
            a(f"global_store_dwordx2 v10, v[12:13], s[60:61] offset:{8*j}")

    def pw(self, js):
        if not (self.stamps and self.opt.get("pw")): return
        a = self.a
        a("s_waitcnt lgkmcnt(0)")
        a(f"s_lshl_b32 s60, s2, 9"); a(f"s_lshl_b32 s61, s{S_WAVE}, 5"); a("s_add_u32 s60, s60, s61"); a(f"s_add_u32 s60, s{S_WS}, s60"); a(f"s_addc_u32 s61, s{S_WS+1}, 0")
        a("s_add_u32 s60, s60, 0x10400000"); a("s_addc_u32 s61, s61, 0")
        a("v_mov_b32 v10, 0")
        for k, j in enumerate(js):
            a(f"v_mov_b32 v12, {j}" if isinstance(j, str) else f"v_mov_b32 v12, s{S_ST+2*j}" if j >= 0 else f"v_mov_b32 v12, s{S_CNT}")
            a(f"global_store_dword v10, v12, s[60:61] offset:{4*k}")

    def hole(self, grp, skip=False):
        if not self.opt.get("touch", 1): return
        a = self.a
        l = a.label("H" + grp); self.holes.setdefault(grp, []).append(l)
        if skip: a(f"s_branch {l}x")
        a(f"{l}:"); a(f"s_branch L_ret{grp}")
        if skip: a(f"{l}x:")

    def page(self, grp):
        if self.opt.get("pg", 1): self.a(".p2alignl 12, 0xbf810000")
        self.hole(grp)

    def touch(self, grp):
        if self.opt.get("touch", 1): self.a(f"; TOUCH {grp}"); self.a(f"L_ret{grp}:")

    def setexec(self, lo, hi):
        self.a(f"s_mov_b32 exec_lo, {lo:#x}"); self.a(f"s_mov_b32 exec_hi, {hi:#x}")

    def allexec(self): self.a("s_mov_b64 exec, -1")

    def masks(self, t0):
        a = self.a
        a(f"v_and_b32 v{t0}, 1, v{V_N}"); a(f"v_lshlrev_b32 v{t0}, 4, v{t0}")
        a(f"v_mov_b32 v{t0+1}, 0xffff"); a(f"v_lshlrev_b32 v{V_HM}, v{t0}, v{t0+1}")
        a(f"v_bfe_u32 v{t0+1}, v{V_N}, 1, 2")
        for k in range(4):
            a(f"v_cmp_eq_u32 vcc, {k}, v{t0+1}"); a(f"v_cndmask_b32 v{V_M+k}, 0, 1.0, vcc")

    def spread(self, B, P):
        assert P % 2 == 0 and B % 2 == 0
        for k in (0, 2):
            self.a(f"v_pk_mul_f32 v[{B+k}:{B+k+1}], v[{P}:{P+1}], v[{V_M+k}:{V_M+k+1}] op_sel:[0,0] op_sel_hi:[0,1]")

    def tags(self):
        a = self.a
        a(f"s_add_u32 s{S_T}, s{S_T}, 1")
        a(f"s_and_b32 s32, s{S_T}, 0xffff"); a(f"s_and_b32 s33, s{S_T}, 0x3ff")
        a(f"v_mov_b32 v{V_T16}, s32"); a(f"v_mov_b32 v{V_T10}, s33")
        a(f"s_mov_b32 s{S_M10}, 0x3ff")

    def poll(self, issue, check, name="P", hole=None):
        a = self.a
        lp, dn = a.label(name), a.label(name + "d")
        a(f"s_mov_b32 s{S_CNT}, 0")
        a(f"{lp}:")
        issue()
        a("s_waitcnt vmcnt(0)")
        check()
        a(f"s_cbranch_vccz {dn}")
        a(f"s_add_u32 s{S_CNT}, s{S_CNT}, 1"); a(f"s_cmp_lt_u32 s{S_CNT}, {SPIN}"); a(f"s_cbranch_scc1 {lp}")
        if hole and self.opt.get("touch", 1): a(f"s_branch {dn}"); self.hole(hole)
        a(f"{dn}:")

    def ppoll(self, loads, regs, ms, t, name="P", hole=None):
        a = self.a
        lp, dn = a.label(name), a.label(name + "d")
        a(f"s_mov_b32 s{S_CNT}, 0")
        for m in ms: a(f"s_mov_b64 s[{m}:{m+1}], -1")
        a(f"{lp}:")
        for ld, m in zip(loads, ms):
            l = a.label("SK")
            a(f"s_cmp_eq_u64 s[{m}:{m+1}], 0"); a(f"s_cbranch_scc1 {l}"); a(ld); a(f"{l}:")
        a("s_waitcnt vmcnt(0)")
        for i, r in enumerate(regs): a(f"v_and_b32 v{t+i}, s{S_M10}, v{r}")
        for i, m in enumerate(ms): a(f"v_cmp_ne_u32 s[{m}:{m+1}], v{t+i}, v{V_T10}")
        if len(ms) == 1: a(f"s_cmp_lg_u64 s[{ms[0]}:{ms[0]+1}], 0")
        else:
            a(f"s_or_b64 vcc, s[{ms[0]}:{ms[0]+1}], s[{ms[1]}:{ms[1]+1}]")
            for m in ms[2:]: a(f"s_or_b64 vcc, vcc, s[{m}:{m+1}]")
        a(f"s_cbranch_scc0 {dn}")
        a(f"s_add_u32 s{S_CNT}, s{S_CNT}, 1"); a(f"s_cmp_lt_u32 s{S_CNT}, {SPIN}"); a(f"s_cbranch_scc1 {lp}")
        if hole and self.opt.get("touch", 1): a(f"s_branch {dn}"); self.hole(hole)
        a(f"{dn}:")
        for r in regs: a(f"v_xor_b32 v{r}, v{r}, v{V_T10}")

    def voteld(self, v, t):
        self.a(f"buffer_load_dword v{v}, v{t}, s[{R_WS}:{R_WS+3}], s75 offen sc1")

    def side(self, v, d):
        a = self.a
        sd = self.opt.get("side", 2)
        if sd == 2:
            a(f"s_lshl_b32 s76, s{S_T}, 2"); a("s_or_b32 s77, s76, 1"); a("s_or_b32 s76, s76, 2")
            a(f"v_cmp_eq_u32 vcc, s77, v{v}"); a("s_bcnt1_i32_b64 s77, vcc")
            a(f"v_cmp_eq_u32 vcc, s76, v{v}"); a("s_bcnt1_i32_b64 s76, vcc")
            a("s_cmp_gt_u32 s76, s77"); a("s_cselect_b32 s77, 1, 0")
        else: a(f"s_mov_b32 s77, {sd & 1}")
        a("s_getreg_b32 s76, hwreg(HW_REG_XCC_ID, 2, 1)"); a("s_xor_b32 s76, s76, s77")
        if sd == 3: a("s_mov_b32 s76, 0")
        a(f"s_lshl_b32 s{d}, s76, 13")

    def races(self, t):
        a = self.a
        a(f"s_sub_u32 s60, s2, {13 if self.opt.get('pq') else 40}"); a("s_lshl_b32 s61, s60, 8"); a(f"s_add_u32 s61, s61, {WS_RC}")
        a("s_add_u32 s62, s61, 0x2000"); a("s_add_u32 s63, s61, 0x2080"); a("s_add_u32 s64, s61, 0x80")
        for k in range(2):
            a(f"s_load_dword s65, s[{S_WS}:{S_WS+1}], s{61+2*k}"); a(f"s_load_dword s66, s[{S_WS}:{S_WS+1}], s{62+2*k}")
            a("s_waitcnt lgkmcnt(1)")
            a(f"s_getreg_b32 s{67+k}, hwreg(HW_REG_IB_STS, 8, 1)")
            a("s_waitcnt lgkmcnt(0)")
        a("s_getreg_b32 s65, hwreg(HW_REG_XCC_ID, 2, 1)"); a("s_xor_b32 s66, s65, 1")
        a("s_lshl_b32 s67, s67, s65"); a("s_lshl_b32 s68, s68, s66"); a("s_or_b32 s67, s67, s68")
        a(f"s_lshl_b32 s68, s{S_T}, 2"); a("s_or_b32 s67, s67, s68")
        a("s_lshl_b32 s60, s60, 2"); a(f"s_add_u32 s60, s60, {WS_VOTE}")
        a(f"v_mov_b32 v{t}, s67"); a(f"v_mov_b32 v{t+1}, 0")
        self.setexec(1, 0)
        a(f"buffer_store_dword v{t}, v{t+1}, s[{R_WS}:{R_WS+3}], s60 offen sc1")
        self.allexec()

    def untag(self, regs, tag, t, mask):
        a = self.a
        for r in regs: a(f"v_xor_b32 v{r}, v{r}, v{tag}")
        rs = list(regs)
        if len(rs) == 1: src = rs[0]
        else:
            if len(rs) == 2: a(f"v_or_b32 v{t}, v{rs[0]}, v{rs[1]}"); rest = []
            else: a(f"v_or3_b32 v{t}, v{rs[0]}, v{rs[1]}, v{rs[2]}"); rest = rs[3:]
            while rest:
                if len(rest) == 1: a(f"v_or_b32 v{t}, v{t}, v{rest[0]}"); rest = []
                else: a(f"v_or3_b32 v{t}, v{t}, v{rest[0]}, v{rest[1]}"); rest = rest[2:]
            src = t
        if mask is not None: a(f"v_and_b32 v{t}, {mask:#x}, v{src}"); src = t
        a(f"v_cmp_ne_u32 vcc, 0, v{src}")

    def bprep(self, X, P, B, t):
        a = self.a
        a(f"v_and_b32_dpp v{P}, v{X}, v{V_HM} row_newbcast:{t} row_mask:0xf bank_mask:0x3")
        a(f"v_and_b32_dpp v{P}, v{X}, v{V_HM} row_newbcast:{8+t} row_mask:0xf bank_mask:0xc")
        self.spread(B, P)

    def gemv(self, X, P, B, jobs, n, wait=None, pre=None):
        self.bprep(X, P, B, 0)
        for t in range(n):
            if t + 1 < n: self.bprep(X, P + 2 * ((t + 1) & 1), B + 4 * ((t + 1) & 1), t + 1)
            if wait: self.a(f"s_waitcnt vmcnt({wait(t)})")
            if pre: pre(t)
            for D, W in jobs: self.mfma(D, W[t] if isinstance(W, list) else W + 4 * t, B + 4 * (t & 1), t == 0)

    def mfma(self, D, Areg, B, first):
        self.a(f"{MFMA} v[{D}:{D+3}], v[{Areg}:{Areg+3}], v[{B}:{B+3}], " + ("0" if first else f"v[{D}:{D+3}]"))

    def fold_wide(self, D1, D2, Y):
        a = self.a
        for y in range(2):
            a(f"v_add_f32_dpp v{Y+y}, v{D2+2*y}, v{D1+2*y} row_ror:8 row_mask:0xf bank_mask:0x3")
            a(f"v_add_f32_dpp v{Y+y}, v{D1+2*y+1}, v{D2+2*y+1} row_ror:8 row_mask:0xf bank_mask:0xc")

    def fold_col(self, D1, D2, Y):
        a = self.a
        for D in (D1, D2):
            if D is None: continue
            for y in range(2): a(f"v_permlane32_swap_b32 v{D+2*y}, v{D+2*y+1}")
        for y in range(2):
            a(f"v_add_f32_dpp v{Y+y}, v{D1+2*y+1}, v{D1+2*y} row_ror:8 row_mask:0xf bank_mask:0x3")
            if D2 is not None:
                a(f"v_add_f32_dpp v{Y+y}, v{D2+2*y}, v{D2+2*y+1} row_ror:8 row_mask:0xf bank_mask:0xc")

    def colpos(self, d, col, t):
        a = self.a
        a(f"v_bfe_u32 v{d}, v{col}, 4, 1"); a(f"v_lshlrev_b32 v{d}, 6, v{d}")
        a(f"v_bfe_u32 v{t}, v{col}, 5, 1"); a(f"v_lshl_add_u32 v{d}, v{t}, 4, v{d}")
        a(f"v_bfe_u32 v{t}, v{col}, 3, 1"); a(f"v_lshl_add_u32 v{d}, v{t}, 5, v{d}")
        a(f"v_and_b32 v{t}, 7, v{col}"); a(f"v_add_u32 v{d}, v{d}, v{t}")
        a(f"v_lshlrev_b32 v{d}, 2, v{d}")

    def wraddr(self, d, stride=PST):
        a = self.a
        a(f"s_mul_i32 s79, s{S_WAVE}, {stride}"); a(f"v_lshlrev_b32 v{d}, 2, v{V_L}"); a(f"v_add_u32 v{d}, s79, v{d}")

    def putpart(self, addr, Y, acc):
        self.a(f"ds_write_b32 v{addr}, v{Y} offset:{acc}"); self.a(f"ds_write_b32 v{addr}, v{Y+1} offset:{acc+256}")

    def widerd(self, d, t):
        a = self.a
        a(f"v_and_b32 v{t}, 3, v{V_L}"); a(f"v_mul_u32_u24 v{d}, {PST}, v{t}")
        a(f"v_bfe_u32 v{t}, v{V_L}, 4, 1"); a(f"v_lshl_add_u32 v{d}, v{t}, 8, v{d}")
        a(f"v_bfe_u32 v{t}, v{V_L}, 5, 1"); a(f"v_lshl_add_u32 v{d}, v{t}, 6, v{d}")
        a(f"v_bfe_u32 v{t}, v{V_L}, 2, 2"); a(f"v_lshl_add_u32 v{d}, v{t}, 4, v{d}")
        a(f"s_and_b32 s79, s{S_WAVE}, 1"); a("s_lshl_b32 s79, s79, 7"); a(f"v_add_u32 v{d}, s79, v{d}")

    def colrd(self, d, t):
        a = self.a
        a(f"v_and_b32 v{t+1}, 60, v{V_L}")
        self.colpos(d, t + 1, t)
        a(f"v_and_b32 v{t}, 3, v{V_L}"); a(f"v_mul_u32_u24 v{t}, {PST}, v{t}"); a(f"v_add_u32 v{d}, v{d}, v{t}")

    def publish(self, acc, vrd, voff, soff, t, bf, near=None, dual=False, half=False, one=False, gate=None):
        a = self.a
        for j in range(2 if half else 4): a(f"ds_read_b128 v[{t+4*j}:{t+4*j+3}], v{vrd} offset:{acc+4*j*PST}")
        a(f"s_waitcnt lgkmcnt({0 if half else 2})")
        for i in range(4): a(f"v_add_f32 v{t+i}, v{t+i}, v{t+4+i}")
        if not half:
            a("s_waitcnt lgkmcnt(0)")
            for i in range(4): a(f"v_add_f32 v{t+8+i}, v{t+8+i}, v{t+12+i}")
            for i in range(4): a(f"v_add_f32 v{t+i}, v{t+i}, v{t+8+i}")
        for m in ("quad_perm:[1,0,3,2]", "quad_perm:[2,3,0,1]"):
            for i in range(4): a(f"v_add_f32_dpp v{t+i}, v{t+i}, v{t+i} {m} row_mask:0xf bank_mask:0xf")
        if bf == 2:
            a("s_mov_b32 vcc_lo, 0xaaaaaaaa"); a("s_mov_b32 vcc_hi, 0xaaaaaaaa")
            a(f"v_cndmask_b32 v{t}, v{t}, v{t+2}, vcc"); a(f"v_cndmask_b32 v{t+2}, v{t+1}, v{t+3}, vcc")
            a(f"v_mov_b32 v{t+1}, s{S_T}"); a(f"v_mov_b32 v{t+3}, s{S_T}")
            self.setexec(0x33333333, 0x33333333)
            a(f"buffer_store_dwordx4 v[{t}:{t+3}], v{voff}, s[{R_WS}:{R_WS+3}], s{soff} offen sc1")
            self.allexec()
            return
        if bf:
            for i in range(4): a(f"v_cvt_pk_bf16_f32 v{t+i}, v{t+i}, v{t+i}")
            a("s_mov_b32 s79, 0xffff")
            for i in range(4): a(f"v_bfi_b32 v{t+i}, s79, v{V_T16}, v{t+i}")
        else:
            for i in range(1 if one else 4): a(f"v_bfi_b32 v{t+i}, s{S_M10}, v{V_T10}, v{t+i}")
        m = {0: 0x11111111, 1: 0x33333333, 2: 0xffffffff}[int(dual)]
        if gate: a(f"s_cmp_eq_u32 {gate[0]}, 0"); a(f"s_cbranch_scc1 {gate[1]}")
        self.setexec(m, m)
        if near is not None and self.opt.get("nn") != 1: a(f"buffer_store_dwordx4 v[{t}:{t+3}], v{voff}, s[{R_WS}:{R_WS+3}], s{near} offen" + self.opt.get("ns", ""))
        a(f"buffer_store_dwordx4 v[{t}:{t+3}], v{voff}, s[{R_WS}:{R_WS+3}], s{soff} offen sc1")
        self.allexec()

    def unitoff(self, d):
        self.a(f"v_and_b32 v{d}, 60, v{V_L}"); self.a(f"v_lshlrev_b32 v{d}, 2, v{d}")

    def rowidx(self, d, t, steps):
        a = self.a
        a(f"v_lshrrev_b32 v{t}, 3, v{V_L}"); a(f"v_mul_u32_u24 v{d}, {steps}, v{t}")
        a(f"v_and_b32 v{t}, 7, v{V_L}"); a(f"v_add_u32 v{d}, v{d}, v{t}")

    def colvoff(self, d, stride, t):
        a = self.a
        a(f"v_lshrrev_b32 v{t}, 3, v{V_L}"); a(f"v_mul_u32_u24 v{d}, {stride}, v{t}")
        a(f"v_and_b32 v{t}, 7, v{V_L}"); a(f"v_lshl_add_u32 v{d}, v{t}, 4, v{d}")

    def colloads(self, reg, voff, srd, sbase, stride, n=5, thr=0):
        a = self.a
        for t in range(n):
            if thr: a(f"s_waitcnt vmcnt({thr-1})")
            if t * stride < 4096: so = f"s{sbase} offen offset:{t*stride}"
            else: a(f"s_add_u32 s61, s{sbase}, {t*stride}"); so = "s61 offen"
            a(f"buffer_load_dwordx4 v[{reg+4*t}:{reg+4*t+3}], v{voff}, s[{srd}:{srd+3}], {so} nt")

    def silu(self, x, t):
        a = self.a
        a(f"v_mul_f32 v{t}, {fh(-LOG2E)}, v{x}"); a(f"v_exp_f32 v{t}, v{t}")
        a(f"v_add_f32 v{t}, 1.0, v{t}")
        a(f"v_min_f32 v{t}, {fh(3.0e38)}, v{t}")
        a(f"v_rcp_f32 v{t+1}, v{t}")
        a(f"v_mul_f32 v{t+2}, v{x}, v{t+1}")
        a(f"v_fma_f32 v{t+3}, -v{t+2}, v{t}, v{x}")
        a(f"v_fma_f32 v{x}, v{t+3}, v{t+1}, v{t+2}")
        a(f"v_cvt_pk_bf16_f32 v{x}, v{x}, v{x}")

    def xrow_allred(self, v, t, op):
        a = self.a
        a(f"v_mov_b32 v{t}, v{v}"); a(f"v_permlane32_swap_b32 v{t}, v{v}"); a(f"{op} v{v}, v{v}, v{t}")
        a(f"v_mov_b32 v{t}, v{v}"); a(f"v_permlane16_swap_b32 v{t}, v{v}"); a(f"{op} v{v}, v{v}, v{t}")

    def x2calc(self, vcol4, ga, xv, d, t):
        a = self.a
        if self.opt.get("w2"):
            for i in range(0, 8, 2): a(f"v_pk_add_f32 v[{t+i}:{t+i+1}], v[{t+i}:{t+i+1}], v[{t+8+i}:{t+9+i}]")
        a(f"v_pk_add_f32 v[{t}:{t+1}], v[{t}:{t+1}], v[{t+2}:{t+3}]"); a(f"v_pk_add_f32 v[{t+4}:{t+5}], v[{t+4}:{t+5}], v[{t+6}:{t+7}]")
        a(f"v_pk_add_f32 v[{t}:{t+1}], v[{t}:{t+1}], v[{t+4}:{t+5}]"); a(f"v_add_f32 v{d}, v{t}, v{t+1}")
        bfr(a, d, d)
        a(f"v_mul_f32 v{d}, v{ga}, v{d}"); bfr(a, d, d)
        a(f"v_add_f32 v{d}, v{xv}, v{d}"); bfr(a, d, d)

    def attention(self, mid):
        a = self.a
        n1, n2 = self.opt.get("n1", 4), self.opt.get("n2", 99)
        base = self.thr
        TH = [1 if j < n1 else (base if j < n2 else base + 1) for j in range(22)]
        KR, VR, D1, D2, Q, S = 32, 76, 120, 124, 10, 14
        VO, PQ, T = 20, 22, 24
        dy = self.opt.get("dy", 0); ty = self.opt.get("ty", 21); NB = self.opt.get("nblk", 20)
        if dy: a("s_load_dwordx2 s[52:53], s[0:1], 96")
        a("s_sub_u32 s3, s2, 64")
        a("s_and_b32 s100, s3, 31"); a("s_lshr_b32 s101, s3, 5")
        cnt = self.opt.get("cnt", [171, 171, 171, 171, 170, 170]); assert sum(cnt) == 1024 and max(cnt) <= 176 and min(cnt) > 165
        lc = sum((c - 165) << (4 * i) for i, c in enumerate(cnt)); ls = sum((sum(cnt[:i]) - 165 * i) << (5 * i) for i in range(6))
        assert all(sum(cnt[:i]) - 165 * i < 32 for i in range(6))
        a("s_mul_i32 s72, s101, 5"); a(f"s_lshr_b32 s72, {ls:#x}, s72"); a("s_and_b32 s72, s72, 31"); a("s_mul_i32 s73, s101, 165"); a("s_add_u32 s72, s72, s73")
        a("s_lshl_b32 s73, s101, 2"); a(f"s_lshr_b32 s73, {lc:#x}, s73"); a("s_and_b32 s73, s73, 15"); a("s_add_u32 s73, s73, 165"); a("s_lshl_b32 s73, s73, 10")
        a("s_lshl_b32 s74, s100, 22"); a("s_lshl_b32 s72, s72, 10"); a("s_add_u32 s74, s74, s72"); a("s_add_u32 s74, s74, %d" % (12288 * 256))
        step = 1024 if self.pat == "contig" else 16384
        a(f"s_sub_u32 s75, 15, s{S_WAVE}")
        a(f"s_mul_i32 s75, s75, {11*1024 if self.pat == 'contig' else 1024}")
        a(f"v_lshlrev_b32 v{VO}, 4, v{V_L}"); a(f"v_add_u32 v{VO}, s75, v{VO}")
        a("s_sub_u32 s75, s73, s75")
        a(f"s_add_u32 s60, s100, s{S_WAVE}")
        for k in (44, 22, 11): a(f"s_sub_u32 s61, s60, {k}"); a("s_min_u32 s60, s60, s61")
        a(f"s_mul_i32 s60, s60, {step}")
        a("s_waitcnt lgkmcnt(0)")
        a(f"s_load_dword s{S_T}, s[{S_WS}:{S_WS+1}], 0")
        a(f"s_add_u32 s{S_K}, s{S_K}, s74"); a(f"s_addc_u32 s{S_K+1}, s{S_K+1}, 0")
        srd(a, R_A, S_K, "s73")
        def ld(j, mark=True):
            i = j % 11; r = (KR if j < 11 else VR) + 4 * i; sr = R_A if j < 11 else R_B
            a(f"buffer_load_dwordx4 v[{r}:{r+3}], v{VO}, s[{sr}:{sr+3}], s{60+i} offen nt")
            if dy and mark and j == ty:
                l = a.label("TK")
                a(f"s_cmp_lg_u32 s{S_WAVE}, 1"); a(f"s_cbranch_scc1 {l}")
                a("s_mov_b64 exec, 1"); a(f"global_atomic_inc v{PQ}, v{PQ+1}, v{PQ}, s[52:53] sc0 sc1"); a("s_mov_b64 exec, -1")
                a(f"{l}:")
        def nxt(i):
            a(f"s_add_u32 s{60+i}, s{59+i}, {step}"); a(f"s_sub_u32 s71, s{60+i}, {11*step}"); a(f"s_min_u32 s{60+i}, s{60+i}, s71")
        n0 = TH[0] if n1 else base
        ld(0)
        self.touch("A")
        a("s_branch L_att")
        mid()
        a("; GRP A")
        self.hole("A")
        a("L_att:")
        for i in range(1, 11):
            nxt(i)
            if i < n0: ld(i)
        a(f"s_add_u32 s{S_V}, s{S_V}, s74"); a(f"s_addc_u32 s{S_V+1}, s{S_V+1}, 0")
        srd(a, R_B, S_V, "s73"); srd(a, R_WS, S_WS, WS_SIZE)
        a("v_mov_b32 v21, 0")
        a(f"ds_write_b32 v21, v21 offset:{L_FLAG}")
        a(f"ds_write_b32 v21, v21 offset:{L_CNT}")
        dc = self.opt.get("dc", 0)
        if dc: a(f"ds_write_b32 v21, v21 offset:{L_NEAR}")
        if dy: a(f"v_mov_b32 v{PQ}, {63 if self.opt.get('tt') == 1 else 23}"); a("s_and_b32 s71, s3, 7"); a("s_lshl_b32 s71, s71, 5"); a(f"v_mov_b32 v{PQ+1}, s71")
        self.masks(T)
        a("s_waitcnt lgkmcnt(0)")
        self.tags()
        a("s_barrier")
        jp = max(n0, self.opt.get("jp", n1))
        def flagchk(target):
            a(f"ds_read_b32 v{T}, v21 offset:{L_FLAG}"); a("s_waitcnt lgkmcnt(0)")
            a(f"v_cmp_ne_u32 vcc, 0, v{T}"); a(f"s_cbranch_vccnz {target}")
        chk_j = [j for j in range(22) if j - TH[j] >= 10]
        for j in range(n0, 22):
            if j == jp:
                a(f"s_cmp_eq_u32 s{S_WAVE}, 0"); a("s_cbranch_scc1 L_att_w0")
            a(f"L_att_a{j}:")
            a(f"s_waitcnt vmcnt({TH[j]-1})")
            ld(j)
            if j in chk_j and j < 21: flagchk(f"L_att_b{j}")
        a("L_att_a22:")
        a(f"s_mov_b32 s76, 21")
        a(f"s_mov_b32 s{S_CNT}, 0")
        a("L_att_spin:")
        flagchk("L_att_qk")
        a(f"s_add_u32 s{S_CNT}, s{S_CNT}, 1"); a(f"s_cmp_lt_u32 s{S_CNT}, {SPIN*16}"); a("s_cbranch_scc1 L_att_spin")
        a("s_branch L_att_qk")
        self.hole("A")
        bq = self.opt.get("bq", 2)
        for j in chk_j[:-1]:
            a(f"L_att_b{j}:")
            for j2 in range(j + 1, min(j + bq, 21) + 1): ld(j2)
            a(f"s_mov_b32 s76, {min(j + bq, 21)}"); a("s_branch L_att_qk")
        a("L_att_w0:")
        a("s_setprio 3")
        a(f"v_lshlrev_b32 v{T+2}, 3, v{V_L}"); a("s_lshl_b32 s76, s100, 9"); a(f"s_add_u32 s76, s76, {WS_Q}")
        a(f"v_lshlrev_b32 v{T+3}, 2, v{V_L}"); a(f"v_mov_b32 v{T+4}, 1"); a("s_mov_b32 s77, 0x07060302")
        def pq(): a(f"buffer_load_dwordx2 v[{PQ}:{PQ+1}], v{T+2}, s[{R_WS}:{R_WS+3}], s76 offen sc1")
        def chk():
            self.untag([PQ, PQ + 1], V_T16, T, 0xffff)
            if self.opt.get("xq"): a("s_mov_b64 vcc, 0")
        ps = self.opt.get("ps", 3)
        slots = list(range(jp, 22, ps))
        for j in slots:
            if j > jp:
                a(f"s_waitcnt vmcnt({ps})"); chk(); a(f"s_cbranch_vccz L_att_got{j}")
            else: a(f"s_waitcnt vmcnt({TH[j]-1})")
            pq()
            for j2 in range(j, min(j + ps, 22)): ld(j2, False)
        self.poll(pq, chk, "PQ")
        for j in [22] + slots[1:]:
            a(f"L_att_got{j}:")
            a(f"v_perm_b32 v{PQ}, v{PQ+1}, v{PQ}, s77")
            a(f"ds_write_b32 v{T+3}, v{PQ} offset:{L_Q}"); a(f"ds_write_b32 v21, v{T+4} offset:{L_FLAG}")
            a("s_setprio 0")
            self.stamp(1)
            a(f"s_branch L_att_a{j}")
        self.hole("A")
        a("L_att_qk:")
        swa = self.opt.get("swa", 0); aw = self.opt.get("aw", 0)
        if swa: self.stamp(1)
        if aw: self.stamp(8)
        a(f"v_lshlrev_b32 v{T}, 4, v{V_N}")
        a(f"ds_read_b128 v[{Q}:{Q+3}], v{T} offset:{L_Q}")
        a("s_waitcnt lgkmcnt(0)")
        for t in range(6):
            pa, pb = 2 * t, 2 * t + 1
            for d in range(4):
                for i, acc in ((pa, T), (pb, T + 1)):
                    if i > 10: continue
                    a(f"v_dot2_f32_bf16 v{acc}, v{KR+4*i+d}, v{Q+d}, " + ("0" if d == 0 else f"v{acc}"))
            a(f"v_add_f32_dpp v{S+t}, v{T}, v{T} row_ror:8 row_mask:0xf bank_mask:{'0x3' if pb <= 10 else '0xf'}")
            if pb <= 10: a(f"v_add_f32_dpp v{S+t}, v{T+1}, v{T+1} row_ror:8 row_mask:0xf bank_mask:0xc")
        for m in ("quad_perm:[1,0,3,2]", "quad_perm:[2,3,0,1]", "row_half_mirror"):
            for t in range(6): a(f"v_add_f32_dpp v{S+t}, v{S+t}, v{S+t} {m} row_mask:0xf bank_mask:0xf")
        a(f"v_mov_b32 v{T+1}, 0xff800000")
        for t in range(6): bfr(a, S + t, S + t)
        for t in range(6): a(f"v_mul_f32 v{S+t}, {fh(128 ** -0.5)}, v{S+t}")
        for t in range(6): bfr(a, S + t, S + t)
        l = a.label("MK")
        a(f"s_cmp_lg_u32 s{S_WAVE}, 0"); a(f"s_cbranch_scc1 {l}")
        assert self.pat == "contig"
        for t in range(6):
            a(f"s_cmp_lt_u32 s{60+2*t}, s75"); a("s_cselect_b32 s78, 0x00ff00ff, 0")
            if 2 * t + 1 <= 10:
                a(f"s_cmp_lt_u32 s{61+2*t}, s75"); a("s_cselect_b32 s79, 0xff00ff00, 0"); a("s_or_b32 s78, s78, s79")
            a("s_mov_b32 vcc_lo, s78"); a("s_mov_b32 vcc_hi, s78")
            a(f"v_cndmask_b32 v{S+t}, v{T+1}, v{S+t}, vcc")
        if self.opt.get("touch", 1): a(f"s_branch {l}"); self.hole("A")
        a(f"{l}:")
        MW = T + 6
        a(f"v_max3_f32 v{MW}, v{S}, v{S+1}, v{S+2}"); a(f"v_max3_f32 v{MW}, v{MW}, v{S+3}, v{S+4}"); a(f"v_max_f32 v{MW}, v{MW}, v{S+5}")
        a(f"v_mov_b32_dpp v{S+5}, v{T+1} quad_perm:[0,1,2,3] row_mask:0xf bank_mask:0xc")
        a(f"v_max_f32_dpp v{MW}, v{MW}, v{MW} row_ror:8 row_mask:0xf bank_mask:0xf")
        self.xrow_allred(MW, T + 1, "v_max_f32")
        for t in range(6): a(f"v_sub_f32 v{S+t}, v{S+t}, v{MW}")
        for t in range(6): a(f"v_mul_f32 v{S+t}, {fh(LOG2E)}, v{S+t}")
        for t in range(6): a(f"v_exp_f32 v{S+t}, v{S+t}")
        a(f"s_lshl_b32 s78, s{S_WAVE}, 3"); a(f"v_mov_b32 v{T+5}, s78")
        a(f"v_add_f32 v{MW+1}, v{S}, v{S+1}"); a(f"v_add_f32 v{T+1}, v{S+2}, v{S+3}"); a(f"v_add_f32 v{T+2}, v{S+4}, v{S+5}")
        a(f"v_add_f32 v{MW+1}, v{MW+1}, v{T+1}"); a(f"v_add_f32 v{MW+1}, v{MW+1}, v{T+2}")
        for t in range(6): a(f"v_cvt_pk_bf16_f32 v{S+t}, v{S+t}, v{S+t}")
        a(f"v_add_f32_dpp v{MW+1}, v{MW+1}, v{MW+1} row_ror:8 row_mask:0xf bank_mask:0xf")
        for t in range(6): a(f"v_and_b32 v{KR+24+2*t}, v{S+t}, v{V_HM}")
        for t in range(6): self.spread(KR + 4 * t, KR + 24 + 2 * t)
        self.xrow_allred(MW + 1, T + 2, "v_add_f32")
        a(f"ds_write_b64 v{T+5}, v[{MW}:{MW+1}] offset:{L_MAX}")
        a(f"v_mov_b32 v{T+1}, 1")
        self.setexec(1, 0)
        a(f"ds_add_u32 v21, v{T+1} offset:{L_CNT}")
        self.allexec()
        self.stamp(5)
        j0 = min(chk_j[0] + bq, 21)
        tq = self.opt.get("tq", 0)
        for j in range(21, j0, -1):
            a(f"s_cmp_eq_u32 s76, {j}"); a(f"s_cbranch_scc1 L_att_c{j+1}")
        if self.opt.get("touch", 1): a(f"s_branch L_att_c{j0+1}"); self.hole("A")
        for j in range(j0 + 1, 22):
            a(f"L_att_c{j}:")
            a(f"s_waitcnt vmcnt({(tq or TH[j])-1})")
            ld(j)
        a("L_att_c22:")
        if swa: self.stamp(2)
        if aw: self.stamp(9)
        self.wraddr(T + 2)
        self.widerd(T + 3, T + 4)
        self.unitoff(T + 4)
        a(f"v_lshlrev_b32 v{T+5}, 3, v{V_N}")
        a("s_mul_i32 s76, s100, 6"); a("s_add_u32 s76, s76, s101"); a("s_lshl_b32 s76, s76, 1")
        if dc: a(f"s_and_b32 s77, s{S_WAVE}, 1"); a("s_add_u32 s76, s76, s77")
        else: a(f"s_add_u32 s76, s76, s{S_WAVE}")
        a("s_lshl_b32 s76, s76, 8"); a(f"s_add_u32 s76, s76, {WS_O}")
        a(f"s_add_u32 s72, s76, {WS_ON-WS_O}")
        WO = KR + 24
        self.colvoff(VO, 4 * 1280, T)
        w2 = self.opt.get("w2", 0); NWO = 160 if w2 else 80
        a("s_and_b32 s64, s3, 7")
        if not dy: a("s_lshr_b32 s65, s3, 3")
        if dy: a(f"s_bfe_u32 s73, s{S_WAVE}, 0x10002")
        elif w2:
            a("s_cmp_ge_u32 s65, 10"); a("s_cselect_b32 s79, 1, 0"); a("s_cselect_b32 s73, 10, 0"); a("s_sub_u32 s65, s65, s73")
            a(f"s_bfe_u32 s73, s{S_WAVE}, 0x10002"); a("s_lshl1_add_u32 s73, s79, s73")
        else: a(f"s_lshr_b32 s73, s{S_WAVE}, 2")
        a("s_lshl_b32 s68, s73, 3"); a("s_add_u32 s68, s68, s64")
        a(f"s_and_b32 s71, s{S_WAVE}, 3"); a("s_lshl_b32 s66, s68, 2"); a("s_add_u32 s66, s66, s71")
        a(f"s_mul_i32 s60, s66, {32*1280}")
        if dy: a(f"s_cmp_ge_u32 s{S_WAVE}, 8"); a(f"s_cselect_b32 s67, {4096*640*2}, 0")
        else:
            a("s_lshl_b32 s61, s65, 7"); a("s_add_u32 s60, s60, s61")
            a(f"s_cmp_lt_u32 s3, {NWO}"); a(f"s_cselect_b32 s67, {0 if self.opt.get('xw') else 4096*640*2}, 0")
            if w2: a(f"s_cmp_ge_u32 s{S_WAVE}, 8"); a("s_cselect_b32 s67, s67, 0")
        srd(a, R_C, S_WO, "s67")
        xc = self.opt.get("xc", 0); wst = 1280
        if xc & 1:
            a(f"v_lshlrev_b32 v{VO}, 4, v{V_L}"); a(f"s_lshl_b32 s60, s3, 3"); a(f"s_add_u32 s60, s60, s{S_WAVE}"); a("s_sub_u32 s60, s60, 8"); a("s_lshl_b32 s60, s60, 12"); wst = 1024
        a("s_lshl_b32 s69, s64, 7"); a(f"s_add_u32 s69, s69, {WS_ML}")
        a("s_mul_i32 s70, s68, 3072"); a("s_lshl_b32 s71, s71, 7"); a("s_add_u32 s70, s70, s71"); a(f"s_add_u32 s70, s70, {WS_O-1 if dc else WS_O}")
        if dy: a("s_lshl_b32 s62, s64, 14")
        else:
            if w2: a("s_lshl_b32 s62, s64, 14"); a("s_mul_i32 s63, s79, 2560")
            else: a("s_lshr_b32 s62, s64, 1"); a("s_lshl_b32 s62, s62, 14"); a("s_and_b32 s63, s64, 1"); a("s_mul_i32 s63, s63, 2560")
            a("s_add_u32 s62, s62, s63"); a("s_lshl_b32 s63, s65, 8")
            a("s_add_u32 s62, s62, s63")
        a(f"s_add_u32 s62, s62, {WS_A}")
        ML, O, X, P, B, Y, C, AD = 76, 88, 14, 16, 92, 22, 10, 80
        w1 = self.opt.get("w1", 2)
        hy = self.opt.get("hy", 0); WO2 = [72, 100, 104, 108]; wx = w1 + (4 if hy else 0)
        def wold(lo, hi):
            for t in range(lo, hi):
                a(f"buffer_load_dwordx4 v[{WO+4*t}:{WO+4*t+3}], v{VO}, s[{R_C}:{R_C+3}], s60 offen offset:{wst*t} nt")
                if hy: a(f"buffer_load_dwordx4 v[{WO2[t]}:{WO2[t]+3}], v{ML+3}, s[{R_C}:{R_C+3}], s60 offen offset:{wst*t} nt")
        def addr():
            t0, t1, t5, t6 = 86, 87, 78, 79
            a(f"v_bfe_u32 v{t0}, v{V_N}, 2, 1"); a(f"v_mul_u32_u24 v{t0}, 3, v{t0}"); a(f"v_lshrrev_b32 v{t1}, 3, v{V_N}")
            a("s_lshl_b32 s77, s73, 5")
            a(f"v_lshl_add_u32 v{AD+1}, v{t0}, 2, s77"); a(f"v_lshl_add_u32 v{AD}, v{t1}, 2, v{AD+1}")
            a(f"v_and_b32 v{t5}, 3, v{V_N}"); a(f"v_lshlrev_b32 v{t5}, 2, v{t5}")
            a(f"v_lshrrev_b32 v{t6}, 3, v{V_L}"); a(f"v_lshl_add_u32 v{t5}, v{t6}, 4, v{t5}")
            a(f"v_lshl_add_u32 v{AD+4}, v{t0}, 9, v{t5}"); a(f"v_lshl_add_u32 v{AD+2}, v{t1}, 9, v{AD+4}")
            a(f"v_xor_b32 v{t1}, 1, v{t1}"); a(f"v_lshl_add_u32 v{AD+3}, v{t1}, 9, v{AD+4}"); a(f"v_lshl_add_u32 v{AD+5}, v{t1}, 2, v{AD+1}")
        def isso():
            for j in range(3): a(f"buffer_load_dword v{O+j}, v{AD+2+j}, s[{R_WS}:{R_WS+3}], s70 offen offset:{1024 if j == 2 else 0} sc1")
        def scale():
            a(f"v_mov_b32 v{T}, v{Q}")
            row_red(a, T, "v_max_f32")
            a(f"v_sub_f32 v{MW}, v{MW}, v{T}"); a(f"v_mul_f32 v{MW}, {fh(LOG2E)}, v{MW}"); a(f"v_exp_f32 v{MW}, v{MW}")
        def fold():
            self.fold_wide(D1, D2, S)
            a(f"v_mul_f32 v{S}, v{S}, v{MW}"); a(f"v_mul_f32 v{S+1}, v{S+1}, v{MW}")
            self.putpart(T + 2, S, L_ACC0)
        dp = "row_mask:0xf bank_mask:0xf"
        nb = self.opt.get("nb", 9)
        for i in range(11):
            a(f"s_waitcnt vmcnt({10-i+(wx if i >= nb else 0)})")
            self.mfma(D1 if i % 2 == 0 else D2, VR + 4 * i, KR + 4 * (i // 2), i < 2)
            if i == nb - 1:
                self.stamp(6)
                addr()
                l = a.label("ML")
                a(f"s_cmp_lg_u32 s{S_WAVE}, 0"); a(f"s_cbranch_scc1 {l}")
                a("s_waitcnt vmcnt(0)")
                for i2 in range(nb, 11): self.mfma(D1 if i2 % 2 == 0 else D2, VR + 4 * i2, KR + 4 * (i2 // 2), False)
                a("s_lshl_b32 s77, s100, 7"); a("s_lshl_b32 s78, s101, 4"); a("s_add_u32 s77, s77, s78"); a(f"s_add_u32 s77, s77, {WS_ML}")
                a("s_getreg_b32 s74, hwreg(HW_REG_XCC_ID, 0, 4)"); a("s_lshl_b32 s74, s74, 10")
                lp, dn = a.label("CL"), a.label("CD")
                a(f"s_mov_b32 s{S_CNT}, 0")
                a(f"{lp}:")
                a(f"ds_read_b32 v{T}, v21 offset:{L_CNT}"); a(f"ds_read_b64 v[{Q}:{Q+1}], v{T+5} offset:{L_MAX}"); a("s_waitcnt lgkmcnt(0)")
                a(f"v_cmp_eq_u32 vcc, 16, v{T}"); a(f"s_cbranch_vccnz {dn}")
                a(f"s_add_u32 s{S_CNT}, s{S_CNT}, 1"); a(f"s_cmp_lt_u32 s{S_CNT}, {SPIN*16}"); a(f"s_cbranch_scc1 {lp}")
                if self.opt.get("touch", 1): a(f"s_branch {dn}"); self.hole("A")
                a(f"{dn}:")
                scale()
                a(f"v_sub_f32 v{Q}, v{Q}, v{T}"); a(f"v_mul_f32 v{Q}, {fh(LOG2E)}, v{Q}"); a(f"v_exp_f32 v{Q}, v{Q}")
                a(f"v_or_b32 v{Q+2}, s74, v{V_T10}"); a(f"v_mov_b32 v{Q+3}, v{V_T10}")
                a(f"v_mul_f32 v{Q+1}, v{Q+1}, v{Q}")
                a(f"v_bfi_b32 v{Q}, s{S_M10}, v{V_T10}, v{T}")
                row_red(a, Q + 1)
                a(f"v_bfi_b32 v{Q+1}, s{S_M10}, v{V_T10}, v{Q+1}")
                self.setexec(1, 0)
                a(f"buffer_store_dwordx4 v[{Q}:{Q+3}], v21, s[{R_WS}:{R_WS+3}], s77 offen sc1")
                self.allexec()
                self.stamp(2)
                fold()
                RA, VA = O, O + 1
                a(f"v_and_b32 v{T}, 7, v{V_L}"); a(f"v_cmp_gt_u32 vcc, 6, v{T}"); a(f"v_cndmask_b32 v{VA}, 0, 1.0, vcc")
                a(f"v_min_u32 v{T}, 5, v{T}"); a(f"v_lshlrev_b32 v{T}, 4, v{T}")
                if dc:
                    a(f"v_bfe_u32 v{T+1}, v{V_L}, 3, 1"); a(f"v_add_u32 v{T+1}, s73, v{T+1}")
                    a("s_lshl_b32 s77, s73, 5"); a(f"v_lshl_add_u32 v{O+2}, v{V_N}, 2, s77")
                else: a(f"v_bfe_u32 v{T+1}, v{V_L}, 3, 2")
                a(f"v_lshl_add_u32 v{RA}, v{T+1}, 10, v{T}")
                a("s_setprio 3")
                if dc: a("s_waitcnt lgkmcnt(0)")
                a("s_barrier")
                self.stamp(7)
                if dy:
                    a(f"ds_read_b32 v{T}, v21 offset:{L_TK+8}"); a("s_waitcnt lgkmcnt(0)"); a(f"v_readfirstlane_b32 s65, v{T}")
                    a(f"s_cmp_ge_u32 s65, {NB}"); a(f"s_cbranch_scc1 {'L_w_f0' if self.stamps else 'L_end'}")
                    a("s_cmp_ge_u32 s65, 10"); a("s_cselect_b32 s65, 2048, 0"); a(f"s_cselect_b32 s66, {16*3072+1}, 1"); a("s_add_u32 s69, s69, s65")
                else: a(f"s_cmp_ge_u32 s3, {NWO}"); a(f"s_cbranch_scc1 {('L_w_f0' if self.stamps else 'L_end') if dc else 'L_att_fin'}")
                def issm(): a(f"buffer_load_dwordx4 v[{ML}:{ML+3}], v{RA}, s[{R_WS}:{R_WS+3}], s69 offen sc1")
                def chkm(): self.untag(list(range(ML, ML + 4)), V_T10, T, 0x3ff)
                issm()
                if dc: a("s_barrier"); a("s_waitcnt vmcnt(0)")
                else:
                    wold(0, w1)
                    a(f"s_waitcnt vmcnt({w1})")
                chkm()
                a("s_cbranch_vccz L_w_c")
                self.poll(issm, chkm, "PM")
                a("L_w_c:")
                r8 = ("quad_perm:[1,0,3,2]", "quad_perm:[2,3,0,1]", "row_half_mirror")
                a(f"v_max_f32_dpp v{T}, v{ML}, v{ML} {r8[0]} {dp}")
                a(f"v_cmp_ne_u32 vcc, s74, v{ML+2}")
                for m in r8[1:]: a(f"v_max_f32_dpp v{T}, v{T}, v{T} {m} {dp}")
                a(f"v_mul_f32 v{ML+1}, v{ML+1}, v{VA}")
                a(f"v_sub_f32 v{ML}, v{ML}, v{T}"); a(f"v_mul_f32 v{ML}, {fh(LOG2E)}, v{ML}"); a(f"v_exp_f32 v{ML}, v{ML}")
                if dy: a("s_cmp_eq_u64 vcc, 0"); a(f"s_cselect_b32 s77, {0 if self.opt.get('nn') == 1 else WS_ON-WS_O}, 0"); a("s_add_u32 s77, s77, s66")
                else: a("s_cmp_eq_u64 vcc, 0"); a(f"s_cselect_b32 s77, {(WS_ON-WS_O if self.opt.get('near', 1) else 0)+dc}, {dc}")
                a(f"v_mov_b32 v{T+1}, s77")
                if not dc: a(f"ds_write_b32 v21, v{T+1} offset:{L_NEAR}")
                a(f"v_mul_f32 v{T}, v{ML}, v{ML+1}")
                for m in r8: a(f"v_add_f32_dpp v{T}, v{T}, v{T} {m} {dp}")
                a(f"v_rcp_f32 v{T}, v{T}")
                if not dc: a(f"v_and_b32 v{T+1}, 31, v{V_L}"); a(f"v_lshlrev_b32 v{T+1}, 2, v{T+1}")
                a(f"v_mul_f32 v{ML}, v{ML}, v{T}")
                if dc:
                    a(f"ds_write_b32 v{O+2}, v{ML} offset:{L_COEF}"); a(f"ds_write_b32 v21, v{T+1} offset:{L_NEAR}")
                    a("s_waitcnt lgkmcnt(0)")
                    if self.stamps:
                        a("L_w_f1:"); self.flush_stamps(3, role='A'); self.flush_stamps(8, 5, role='A')
                    a("s_endpgm")
                    if self.stamps: a("L_w_f0:"); a("s_barrier"); a("s_branch L_w_f1")
                else:
                    a(f"ds_write_b32 v{T+1}, v{ML} offset:{L_COEF}")
                    a("s_branch L_att_fin")
                self.hole("A")
                a(f"{l}:")
                if dy:
                    l = a.label("TW")
                    a(f"s_cmp_lg_u32 s{S_WAVE}, 1"); a(f"s_cbranch_scc1 {l}")
                    a(f"s_waitcnt vmcnt({21-ty})"); a(f"v_readfirstlane_b32 s65, v{PQ}")
                    mw = self.opt.get("mw", 0)
                    if mw:
                        assert not hy
                        a("s_lshr_b32 s77, s65, 1"); a("s_and_b32 s65, s65, 1"); a("s_mul_i32 s65, s65, 10")
                        a("s_add_u32 s65, s65, s77"); a(f"s_cmp_ge_u32 s77, {10-mw}"); a("s_cselect_b32 s65, 63, s65")
                    if hy:
                        a("s_lshr_b32 s77, s65, 1"); a("s_and_b32 s65, s65, 1"); a("s_mul_i32 s65, s65, 10")
                        a(f"s_cmp_lt_u32 s77, {hy}"); a(f"s_cselect_b32 s66, s77, {hy}"); a("s_cselect_b32 s78, 128, 0x40000000"); a("s_add_u32 s77, s77, s66")
                        a("s_add_u32 s65, s65, s77"); a("s_cmp_ge_u32 s77, 10"); a("s_cselect_b32 s65, 63, s65"); a(f"v_mov_b32 v{ML+3}, s78")
                    a("s_cmp_ge_u32 s65, 10"); a(f"s_cselect_b32 s66, {16*128*1280-1280}, 0")
                    a("s_lshl_b32 s77, s65, 7"); a("s_add_u32 s66, s66, s77"); a("s_lshl_b32 s77, s65, 8")
                    a(f"s_cmp_ge_u32 s65, {NB}"); a("s_cselect_b32 s66, 0x40000000, s66")
                    a(f"v_mov_b32 v{ML}, s66"); a(f"v_mov_b32 v{ML+1}, s77"); a(f"v_mov_b32 v{ML+2}, s65")
                    if hy: a(f"ds_write_b128 v21, v[{ML}:{ML+3}] offset:{L_TK}")
                    else: a(f"ds_write_b96 v21, v[{ML}:{ML+2}] offset:{L_TK}")
                    a("s_waitcnt lgkmcnt(0)")
                    a(f"{l}:")
                a("s_barrier")
                sk = self.opt.get("sk", 0)
                if sk:
                    assert dy
                    ls, lj = a.label("WS"), a.label("WJ")
                    a(f"ds_read_b64 v[{Q}:{Q+1}], v{T+5} offset:{L_MAX}")
                    a(f"s_cmp_lt_u32 s{S_WAVE}, 8"); a(f"s_cbranch_scc1 {ls}")
                    if hy: a(f"ds_read_b128 v[{ML}:{ML+3}], v21 offset:{L_TK}")
                    else: a(f"ds_read_b96 v[{ML}:{ML+2}], v21 offset:{L_TK}")
                    a("s_waitcnt lgkmcnt(0)"); a(f"v_readfirstlane_b32 s65, v{ML+2}"); a(f"v_add_u32 v{VO}, v{VO}, v{ML}")
                    a(f"s_cmp_ge_u32 s65, {NB}"); a(f"s_cbranch_scc1 {ls}")
                    for t in range(4): a(f"buffer_load_dwordx4 v[{WO+4*t}:{WO+4*t+3}], v{VO}, s[{R_C}:{R_C+3}], s60 offen offset:{wst*t} nt")
                    a(f"v_readfirstlane_b32 s63, v{ML+1}"); a("s_add_u32 s62, s62, s63")
                    if hy:
                        l2 = a.label("WD")
                        a(f"v_readfirstlane_b32 s79, v{ML+3}")
                        a(f"s_and_b32 s63, s{S_WAVE}, 1"); a("s_lshl_b32 s78, s63, 5"); a("s_lshl_b32 s63, s63, 8"); a("s_add_u32 s62, s62, s63")
                        a("s_cmp_eq_u32 s79, 128"); a("s_cselect_b32 s79, 10, 9"); a(f"s_cbranch_scc1 {l2}")
                        scale(); a("s_waitcnt vmcnt(4)"); a(f"s_branch {lj}")
                        a(f"{l2}:")
                        for t in range(4): a(f"buffer_load_dwordx4 v[{WO2[t]}:{WO2[t]+3}], v{VO}, s[{R_C}:{R_C+3}], s60 offen offset:{wst*t+128} nt")
                    scale()
                    a(f"s_branch {lj}")
                    a(f"{ls}:"); a("s_waitcnt lgkmcnt(0)"); scale(); a("s_waitcnt vmcnt(0)")
                    a(f"{lj}:")
                    continue
                else:
                    if hy: a(f"ds_read_b128 v[{ML}:{ML+3}], v21 offset:{L_TK}")
                    elif dy: a(f"ds_read_b96 v[{ML}:{ML+2}], v21 offset:{L_TK}")
                    a(f"ds_read_b64 v[{Q}:{Q+1}], v{T+5} offset:{L_MAX}")
                    if dy: a("s_waitcnt lgkmcnt(1)"); a(f"v_add_u32 v{VO}, v{VO}, v{ML}")
                    if hy: a(f"v_readfirstlane_b32 s79, v{ML+3}"); a(f"v_add_u32 v{ML+3}, v{ML+3}, v{VO}")
                    wold(0, w1)
                    if dy: a(f"v_readfirstlane_b32 s63, v{ML+1}"); a(f"v_readfirstlane_b32 s65, v{ML+2}"); a("s_add_u32 s62, s62, s63")
                    if hy:
                        a("s_cmp_eq_u32 s79, 128"); a("s_cselect_b32 s79, 10, 9")
                        a(f"s_and_b32 s63, s{S_WAVE}, 1"); a("s_lshl_b32 s78, s63, 5"); a("s_lshl_b32 s63, s63, 8"); a("s_add_u32 s62, s62, s63")
                a("s_waitcnt lgkmcnt(0)")
                scale()
        fold()
        a("L_att_fin:")
        if aw:
            self.stamp(3); a("s_mov_b64 s[74:75], s[60:61]"); self.pw([8, 9, 6, 3, -1]); a("s_mov_b64 s[60:61], s[74:75]")
        if swa: self.stamp(3)
        a("s_waitcnt lgkmcnt(0)"); a("s_barrier")
        if swa: self.stamp(4)
        if dc:
            a(f"s_cmp_ge_u32 s{S_WAVE}, 8"); a("s_cbranch_scc1 L_w")
            tt = self.opt.get("tt", 0) == 2
            a(f"s_lshr_b32 s77, s{S_WAVE}, 1"); a("s_cmp_lg_u32 s77, 1"); a(f"s_cbranch_scc1 {'L_flag' if tt else 'L_end'}")
            a("s_setprio 3")
            self.stamp(3)
            self.publish(L_ACC0, T + 3, T + 4, 76, KR, False, near=72)
            self.stamp(4)
            if self.stamps:
                a(f"s_cmp_lg_u32 s{S_WAVE}, 2"); a("s_cbranch_scc1 L_end"); self.flush_stamps(5, 3, role='A')
            a("s_endpgm")
            if tt:
                a("L_flag:")
                a(f"s_cmp_lg_u32 s{S_WAVE}, 1"); a("s_cbranch_scc1 L_end")
                a("s_lshl_b32 s65, s65, 3"); a("s_add_u32 s65, s65, s64"); a("s_lshl_b32 s65, s65, 2"); a(f"s_add_u32 s65, s65, {WS_TK}")
                a(f"v_mov_b32 v{T}, s{S_T}"); a("s_mov_b64 exec, 1")
                a(f"buffer_store_dword v{T}, v21, s[{R_WS}:{R_WS+3}], s65 offen sc1")
                a("s_endpgm")
            a("L_w:")
            if dy: a(f"s_cmp_ge_u32 s65, {NB}"); a(f"s_cbranch_scc1 {'L_w_sk' if self.stamps else 'L_end'}")
            else: a(f"s_cmp_ge_u32 s3, {NWO}"); a(f"s_cbranch_scc1 L_end")
            a(f"s_mov_b32 s{S_CNT}, 0")
            a("L_w_sp:")
            a(f"ds_read_b32 v{T}, v21 offset:{L_NEAR}")
            a(f"s_add_u32 s{S_CNT}, s{S_CNT}, 1"); a(f"s_cmp_ge_u32 s{S_CNT}, {SPIN*64}"); a(f"s_cbranch_scc1 L_end")
            a("s_waitcnt lgkmcnt(0)")
            a(f"v_cmp_eq_u32 vcc, 0, v{T}"); a("s_cbranch_vccnz L_w_sp")
            a(f"ds_read_b32 v{C}, v{AD} offset:{L_COEF}"); a(f"ds_read_b32 v{C+1}, v{AD+5} offset:{L_COEF}"); a(f"ds_read_b32 v{C+2}, v{AD+1} offset:{L_COEF+8}")
        else:
            a(f"s_cmp_gt_u32 s{S_WAVE}, 1"); a("s_cbranch_scc1 L_w")
            self.stamp(3)
            self.publish(L_ACC0, T + 3, T + 4, 76, KR, False, near=72)
            self.stamp(4)
            a("L_w:")
            a(f"s_cmp_ge_u32 s3, {NWO}"); a(f"s_cbranch_scc1 {'L_w_fl' if self.stamps else 'L_end'}")
            if w2:
                assert w1 == 4
                a(f"s_cmp_lt_u32 s{S_WAVE}, 8"); a(f"s_cbranch_scc1 {'L_w_fl' if self.stamps else 'L_end'}")
            a(f"ds_read_b32 v{T}, v21 offset:{L_NEAR}")
            a(f"ds_read_b32 v{C}, v{AD} offset:{L_COEF}"); a(f"ds_read_b32 v{C+1}, v{AD+5} offset:{L_COEF}"); a(f"ds_read_b32 v{C+2}, v{AD+1} offset:{L_COEF+8}")
        if w1 < 4:
            a("s_barrier")
            wold(w1, 4)
        if not dc: a("s_waitcnt lgkmcnt(3)")
        a(f"v_readfirstlane_b32 s77, v{T}"); a("s_add_u32 s70, s70, s77")
        if self.opt.get("pw"): self.stamp(7); a(f"s_mov_b32 s{S_CNT}, -1")
        isso()
        a(f"v_and_b32 v{T+1}, 1, v{V_L}"); a(f"v_lshl_add_u32 v{T+4}, v{T+1}, 13, v{T+4}")
        qa = self.opt.get("qa", 0)
        if qa: a(f"v_and_b32 v{T+1}, 2, v{V_L}"); a(f"v_lshl_add_u32 v{T+4}, v{T+1}, 18, v{T+4}")
        self.colrd(T + 3, T)
        if hy: a(f"v_add_u32 v{T+3}, s78, v{T+3}")
        if self.opt.get("ws") and self.stamps: a("s_waitcnt vmcnt(3)"); self.stamp(5)
        a("s_waitcnt vmcnt(0) lgkmcnt(0)")
        self.untag(list(range(O, O + 3)), V_T10, T + 1, 0x3ff)
        a("s_cbranch_vccz L_w_go")
        self.poll(isso, lambda: self.untag(list(range(O, O + 3)), V_T10, T + 1, 0x3ff), "PO", hole="A")
        a("L_w_go:")
        self.stamp(8)
        a(f"v_mul_f32 v{X}, v{C}, v{O}"); a(f"v_fmac_f32 v{X}, v{C+1}, v{O+1}"); a(f"v_fmac_f32 v{X}, v{C+2}, v{O+2}")
        a(f"v_add_f32_dpp v{X}, v{X}, v{X} row_shl:4 row_mask:0xf bank_mask:0x5")
        a(f"v_cvt_pk_bf16_f32 v{X}, v{X}, v{X}")
        self.gemv(X, P, B, [(D1, WO), (D2, WO2)] if hy else [(D1, WO)], 4)
        self.fold_col(D1, D2 if hy else None, Y)
        self.putpart(T + 2, Y, L_ACC1)
        if swa: self.stamp(9)
        if self.opt.get("pw"): self.stamp(6)
        a("s_waitcnt lgkmcnt(0)"); a("s_barrier")
        if self.opt.get("pw") and not self.opt.get("ws"): self.stamp(5)
        a(f"s_cmp_ge_u32 s{S_WAVE}, s79" if hy else f"s_cmp_lg_u32 s{S_WAVE}, {8 if w2 else 0}"); a(f"s_cbranch_scc1 {('L_w_pw' if self.opt.get('pw') else 'L_w_fl') if self.stamps else 'L_end'}")
        self.publish(L_ACC1 + (8 * PST if w2 else 0), T + 3, T + 4, 62, KR, False, dual=2 if qa else 1, half=w2, one=self.opt.get("f3"))
        self.stamp(9)
        if self.stamps and w2:
            if hy: a(f"s_cmp_lg_u32 s{S_WAVE}, 8"); a(f"s_cbranch_scc1 L_w_pw")
            self.flush_stamps(10, 8, role='A')
            a("L_w_pw:")
            if not aw: self.pw([7, 8, 6, 5, -1, "s65"])
            a("s_endpgm")
            if dy:
                a("L_w_sk:")
                for j in (5, 6, 7, 8, 9): self.stamp(j)
                a(f"s_mov_b32 s{S_CNT}, 777")
                a(f"s_cmp_lg_u32 s{S_WAVE}, 8"); a("s_cbranch_scc1 L_w_pw"); self.flush_stamps(10, 8, role='A'); a("s_branch L_w_pw")
            a("L_w_fl:")
            if not dc:
                a(f"s_cmp_lg_u32 s{S_WAVE}, {swa}"); a("s_cbranch_scc1 L_end")
                self.flush_stamps(8, role='A')
        elif self.stamps:
            a("L_w_fl:")
            a(f"s_cmp_lg_u32 s{S_WAVE}, {swa}"); a("s_cbranch_scc1 L_end")
            self.flush_stamps(10, role='A')
        a("s_endpgm")

    ROW, VO, X, B, D1, D2, Y, T = 10, 11, 12, 14, 22, 26, 30, 32
    XO, ADD, CPOS, UOFF, P = 44, 45, 46, 47, 48
    def front(self):
        a = self.a
        ROW, VO, X, B, D1, D2, Y, T, XO, ADD, CPOS, UOFF, P = self.ROW, self.VO, self.X, self.B, self.D1, self.D2, self.Y, self.T, self.XO, self.ADD, self.CPOS, self.UOFF, self.P
        CR, WQ, XS, CV, VQ = 52, 64, 84, 94, 95
        pq = self.opt.get("pq", 0); WQ2 = 96; pc = self.opt.get("pc", 0); SC = "s3" if pq or pc else "s2"
        if pc:
            self.roleidx(2)
            a("s_lshl_b32 s60, s2, 1"); a("s_add_u32 s3, s60, 7"); a(f"s_sub_u32 s61, s60, 34"); a(f"s_sub_u32 s62, s60, {2*NM-1}")
            a(f"s_cmp_ge_u32 s2, 17"); a("s_cselect_b32 s3, s61, s3")
            a(f"s_cmp_ge_u32 s2, {NM}"); a("s_cselect_b32 s3, s62, s3")
            a(f"s_cmp_ge_u32 s2, 40"); a("s_cselect_b32 s3, s2, s3")
            if pc == 2: a("s_mov_b32 s3, s2")
        if pq:
            self.roleidx(2)
            a("s_lshl_b32 s60, s2, 1"); a("s_add_u32 s3, s60, 15"); a(f"s_sub_u32 s61, s60, {2*NM}"); a(f"s_sub_u32 s62, s60, {2*NM+39}")
            a(f"s_cmp_ge_u32 s2, {NM}"); a("s_cselect_b32 s3, s61, s3"); a(f"s_cselect_b32 s76, 0, {640*4096*2}")
            a(f"s_cmp_ge_u32 s2, {NM+20}"); a("s_cselect_b32 s3, s62, s3")
        a(f"s_and_b32 s64, {SC}, 1"); a(f"s_lshr_b32 s65, {SC}, 1")
        a("s_cmp_eq_u32 s64, 0"); a("s_cselect_b32 s66, 24, 16"); a("s_cselect_b32 s67, 0, 384"); a(f"s_cselect_b32 s68, {2*7680}, 0x40000000")
        a("s_cselect_b32 s73, 3, 2"); a("s_mul_i32 s72, s73, 7680")
        self.colvoff(VO, "s72", T)
        a(f"s_mul_i32 s66, s66, s{S_WAVE}"); a("s_add_u32 s66, s66, s67")
        a("s_mul_i32 s62, s66, 7680"); a("s_lshl_b32 s63, s65, 7"); a("s_add_u32 s62, s62, s63")
        a(f"s_add_u32 s63, s62, 7680"); a("s_add_u32 s68, s68, s62")
        a(f"s_cmp_lt_u32 {SC}, 40"); a(f"s_cselect_b32 s69, {640*3840*2}, 0")
        self.rowidx(CV, T, "s73")
        a(f"v_add_u32 v{CV}, s66, v{CV}"); a(f"v_lshlrev_b32 v{CV}, 1, v{CV}")
        self.colvoff(VQ, 5 * 8192, T)
        if pq:
            a("s_sub_u32 s71, s2, 8"); a("s_mul_i32 s71, s71, 43"); a("s_lshr_b32 s71, s71, 7"); a("s_min_u32 s71, s71, 5"); a("s_add_u32 s71, s71, s2"); a("s_sub_u32 s71, s71, 10"); a("s_lshl_b32 s71, s71, 1")
            a("s_lshr_b32 s70, s2, 1"); a("s_lshl_b32 s70, s70, 3"); a("s_and_b32 s101, s2, 1"); a("s_add_u32 s70, s70, s101"); a("s_add_u32 s70, s70, 2")
            a("s_cmp_lt_u32 s2, 10"); a("s_cselect_b32 s101, s70, s71"); a("s_cselect_b32 s77, 0x40000000, 128"); a("s_cselect_b32 s78, 1, 2")
        else:
            a("s_cmp_ge_u32 s2, 48"); a("s_cselect_b32 s71, 8, 0"); a("s_sub_u32 s71, s2, s71")
            a("s_add_u32 s70, s71, 4"); a("s_mul_i32 s70, s70, 37"); a("s_lshr_b32 s70, s70, 8"); a("s_add_u32 s71, s71, s70")
            a("s_lshl_b32 s70, s2, 3"); a("s_sub_u32 s70, s70, 317"); a("s_lshr_b32 s101, s2, 3"); a("s_cmp_eq_u32 s101, 5"); a("s_cselect_b32 s101, s70, s71")
        a(f"s_mul_i32 s70, s{S_WAVE}, {40*8192}"); a("s_lshl_b32 s71, s101, 7"); a("s_add_u32 s70, s70, s71")
        xc = self.opt.get("xc", 0); qst = 8192
        if xc & 8:
            a(f"v_lshlrev_b32 v{VQ}, 4, v{V_L}"); a(f"s_lshl_b32 s70, s101, 4"); a(f"s_add_u32 s70, s70, s{S_WAVE}"); a("s_mul_i32 s70, s70, 5120"); qst = 1024
        if xc & 16:
            a(f"v_lshlrev_b32 v{VO}, 4, v{V_L}"); a(f"s_lshl_b32 s62, s65, 4"); a(f"s_add_u32 s62, s62, s{S_WAVE}"); a("s_mul_i32 s62, s62, 5120")
            a("s_mul_i32 s63, s64, 3072"); a("s_add_u32 s62, s62, s63"); a("s_add_u32 s63, s62, 1024")
            a("s_cmp_eq_u32 s64, 0"); a(f"s_cselect_b32 s68, 2048, 0x40000000"); a("s_add_u32 s68, s68, s62")
        self.rowidx(ROW, T, 5)
        a(f"s_mul_i32 s74, s{S_WAVE}, 40"); a(f"v_add_u32 v{ROW}, s74, v{ROW}"); a(f"v_min_u32 v{ROW}, 639, v{ROW}")
        a(f"v_lshlrev_b32 v{T}, 1, v{ROW}"); a(f"v_lshlrev_b32 v{ADD}, 2, v{V_L}")
        a("s_waitcnt lgkmcnt(0)")
        a(f"s_load_dword s{S_T}, s[{S_WS}:{S_WS+1}], 0")
        srd(a, R_C, S_C, 1280); srd(a, R_A, S_WM, "s69")
        def cld(t): a(f"buffer_load_dwordx4 v[{CR+4*t}:{CR+4*t+3}], v{VO}, s[{R_A}:{R_A+3}], s{(62, 63, 68)[t]} offen nt")
        def wld(t):
            if pq:
                u, t = t & 1, t >> 1
                if t and not u: a(f"s_add_u32 s70, s70, {qst}")
                if u: a(f"s_add_u32 s61, s70, s77")
                r = (WQ2 if u else WQ) + 4 * t
                a(f"buffer_load_dwordx4 v[{r}:{r+3}], v{VQ}, s[{R_B}:{R_B+3}], s{61 if u else 70} offen nt")
                return
            if t: a(f"s_add_u32 s61, s70, {t*qst}")
            a(f"buffer_load_dwordx4 v[{WQ+4*t}:{WQ+4*t+3}], v{VQ}, s[{R_B}:{R_B+3}], s{61 if t else 70} offen nt")
        NQ = 10 if pq else 5
        lnc, lx = a.label("NC"), a.label("NX")
        a(f"s_cmp_ge_u32 {SC}, 40"); a(f"s_cbranch_scc1 {lx}")
        a(f"buffer_load_ushort v{CV}, v{CV}, s[{R_C}:{R_C+3}], 0 offen")
        cb = self.opt.get("cb", 0)
        cld(0); cld(1)
        if cb: cld(2)
        a(f"{lx}:")
        srd(a, R_D, S_X, 1280); srd(a, R_B, S_WQ, "s76" if pq else 640 * 4096 * 2)
        for i in range(5): a(f"buffer_load_dword v{XS+i}, v{ADD}, s[{R_D}:{R_D+3}], 0 offen offset:{256*i}")
        a(f"buffer_load_ushort v{XO}, v{T}, s[{R_D}:{R_D+3}], 0 offen")
        l = a.label("NW")
        a(f"s_cmp_lt_u32 {SC}, 40"); a(f"s_cbranch_scc1 {l}")
        for t in range(NQ): wld(t)
        a(f"{l}:")
        srd(a, R_WS, S_WS, WS_SIZE)
        self.masks(T)
        self.colrd(CPOS, T)
        self.wraddr(ADD)
        self.unitoff(UOFF)
        a(f"v_lshlrev_b32 v{ROW}, 2, v{ROW}")
        a("s_waitcnt lgkmcnt(0)")
        self.tags()
        a(f"s_cmp_ge_u32 {SC}, 40"); a(f"s_cbranch_scc1 {lnc}")
        a(f"s_waitcnt vmcnt({8+cb})")
        a(f"v_lshlrev_b32 v{X}, 16, v{CV}")
        self.silu(X, T)
        def cwait(t):
            if t == 0:
                a(f"s_waitcnt vmcnt({7+cb})")
                if not cb: cld(2)
            elif t == 1: a("s_waitcnt vmcnt(7)"); wld(0)
            else: a(f"s_waitcnt vmcnt({7 if cb else 1})"); wld(1)
        self.gemv(X, P, B, [(D1, CR)], 3, pre=cwait)
        self.fold_col(D1, None, Y)
        self.putpart(ADD, Y, L_ACC1)
        a("s_waitcnt lgkmcnt(0)"); a("s_barrier")
        a(f"s_cmp_lg_u32 s{S_WAVE}, 0"); a(f"s_cbranch_scc1 {lnc}")
        a("s_mul_i32 s62, s64, 10240"); a("s_lshl_b32 s63, s65, 9"); a("s_add_u32 s62, s62, s63"); a(f"s_add_u32 s62, s62, {WS_CR}")
        a(f"v_and_b32 v{T}, 1, v{V_L}"); a(f"v_lshlrev_b32 v{T}, 4, v{T}"); a(f"v_lshl_add_u32 v{T}, v{UOFF}, 1, v{T}")
        self.publish(L_ACC1, CPOS, T, 62, B, 2)
        self.stamp(1)
        a(f"{lnc}:")
        if cb:
            l = a.label("XW")
            a(f"s_cmp_ge_u32 {SC}, 40"); a(f"s_cbranch_scc1 {l}"); a("s_waitcnt vmcnt(2)"); a(f"{l}:")
        a(f"s_waitcnt vmcnt({NQ})")
        for i in range(5):
            a(f"v_and_b32 v{XS+5+i}, 0xffff0000, v{XS+i}"); a(f"v_lshlrev_b32 v{XS+i}, 16, v{XS+i}")
        a(f"v_lshlrev_b32 v{XO}, 16, v{XO}")
        m, v, r, u, w = T, T + 1, T + 2, T + 3, T + 4
        xs = list(range(XS, XS + 10))
        a(f"v_add_f32 v{m}, v{xs[0]}, v{xs[1]}")
        for x in xs[2:]: a(f"v_add_f32 v{m}, v{m}, v{x}")
        row_red(a, m); self.xrow_allred(m, u, "v_add_f32")
        a(f"v_mul_f32 v{m}, {fh(1.0/640)}, v{m}")
        a(f"v_sub_f32 v{u}, v{xs[0]}, v{m}"); a(f"v_mul_f32 v{v}, v{u}, v{u}")
        for x in xs[1:]: a(f"v_sub_f32 v{u}, v{x}, v{m}"); a(f"v_fmac_f32 v{v}, v{u}, v{u}")
        row_red(a, v); self.xrow_allred(v, u, "v_add_f32")
        a(f"v_mul_f32 v{v}, {fh(1.0/640)}, v{v}")
        bfr(a, m, m); bfr(a, v, v)
        a(f"v_add_f32 v{v}, {fh(1e-5)}, v{v}"); bfr(a, v, v)
        a(f"v_readfirstlane_b32 s100, v{m}")
        a(f"v_sqrt_f32 v{v}, v{v}"); bfr(a, v, v)
        a(f"v_rcp_f32 v{r}, v{v}")
        a(f"v_sub_f32 v{u}, v{XO}, v{m}"); bfr(a, u, u)
        fdiv_r(a, X, u, v, r, w); bfr(a, X, X)
        l = a.label("NR")
        a(f"s_cmp_ge_u32 {SC}, 40"); a(f"s_cbranch_scc1 {l}")
        tw = self.opt.get("tw", 2)
        for t in range(2, NQ):
            if tw: a(f"s_waitcnt vmcnt({tw-1})")
            wld(t)
        l2 = a.label("NV")
        a(f"s_branch {l2}")
        a(f"{l}:")
        a(f"s_cmp_eq_u32 s{S_WAVE}, 1"); a(f"s_cbranch_scc1 L_race")
        a(f"{l2}:"); self.l_back = l2
        self.touch("F")
        if pq: a(f"s_cmp_ge_u32 s2, {NM}"); a("s_cbranch_scc1 L_f")
        for i in range(4): a(f"s_mov_b32 s{70+i}, {WS_CR+5120*i}")
        H = B
        a(f"v_lshlrev_b32 v{T+1}, 1, v{ROW}"); a(f"v_mov_b32 v{T+2}, s{S_T}")
        def iss():
            for i in range(4):
                a(f"buffer_load_dwordx2 v[{H+2*i}:{H+2*i+1}], v{T+1}, s[{R_WS}:{R_WS+3}], s{70+i} offen sc1")
        chkh = lambda: self.untag(list(range(H + 1, H + 8, 2)), T + 2, T, None)
        ne = self.opt.get("ne", 0)
        nl = self.opt.get("nl", 0); hh = self.opt.get("hh", 0)
        if nl:
            assert pc and ne
            a("s_mov_b32 s3, s2"); a(f"s_sub_u32 s69, s3, {NM}")
            self.gu_row(T + 3); self.gu_addr(T + 3)
            self.poll(iss, chkh, "PH", hole="F" if hh else None)
            self.stamp(9)
            le = a.label("NE")
            a(f"s_cmp_lt_u32 s3, {NM}"); a(f"s_cbranch_scc1 {le}")
            a(f"s_cmp_ge_u32 s{S_WAVE}, 10"); a(f"s_cbranch_scc1 {le}")
            for j in range(ne): self.gu_ld(j, False)
            a(f"{le}:")
        else:
            if ne:
                iss()
                if pc: a("s_mov_b32 s3, s2")
                else: self.roleidx(3)
                le, lj = a.label("NE"), a.label("NJ")
                a(f"s_sub_u32 s69, s3, {NM}")
                self.gu_row(T + 3); self.gu_addr(T + 3)
                a(f"s_cmp_lt_u32 s3, {NM}"); a(f"s_cbranch_scc1 {le}")
                a(f"s_cmp_ge_u32 s{S_WAVE}, 10"); a(f"s_cbranch_scc1 {le}")
                for j in range(ne): self.gu_ld(j, False)
                a(f"s_waitcnt vmcnt({ne})"); a(f"s_branch {lj}")
                a(f"{le}:"); a("s_waitcnt vmcnt(0)")
                a(f"{lj}:")
                chkh()
                a("s_cbranch_vccz L_hgo")
            self.poll(iss, chkh, "PH", hole="F" if hh else None)
            a("L_hgo:")
            self.stamp(9)
        a(f"v_add_f32 v{H}, v{H}, v{H+4}"); a(f"v_add_f32 v{H+1}, v{H+2}, v{H+6}")
        bfr(a, H, H); bfr(a, H + 1, H + 1)
        a(f"v_add_f32 v{H+1}, 1.0, v{H+1}"); bfr(a, H + 1, H + 1)
        a(f"v_mul_f32 v{X}, v{X}, v{H+1}"); bfr(a, X, X)
        a(f"v_add_f32 v{X}, v{X}, v{H}"); a(f"v_cvt_pk_bf16_f32 v{X}, v{X}, v{X}")
        if pq:
            self.gemv(X, P, B, [(D1, WQ), (D2, WQ2)], 5)
            self.fold_col(D1, D2, Y)
        else:
            self.gemv(X, P, B, [(D1, WQ)], 5)
            if hh > 1: self.hole("F", True)
            self.fold_col(D1, None, Y)
        self.putpart(ADD, Y, L_ACC0)
        a("s_waitcnt lgkmcnt(0)"); a("s_barrier")
        l = a.label("QP")
        if pq:
            a(f"s_cmp_ge_u32 s{S_WAVE}, s78"); a(f"s_cbranch_scc1 {l}")
            a(f"s_add_u32 s70, s101, s{S_WAVE}"); a("s_lshl_b32 s70, s70, 8"); a(f"s_add_u32 s70, s70, {WS_Q}")
            a(f"s_lshl_b32 s71, s{S_WAVE}, 5"); a(f"v_add_u32 v{T+1}, s71, v{CPOS}")
            self.publish(L_ACC0, T + 1, UOFF, 70, B, True)
        else:
            a(f"s_cmp_lg_u32 s{S_WAVE}, 0"); a(f"s_cbranch_scc1 {l}")
            a("s_lshl_b32 s70, s101, 8"); a(f"s_add_u32 s70, s70, {WS_Q}")
            self.publish(L_ACC0, CPOS, UOFF, 70, B, True)
        self.stamp(2)
        a(f"{l}:")
        if pq: a("s_branch L_m")
        else:
            if ne: a("s_mov_b32 s2, s3")
            elif not pc: self.roleidx(2)
            a(f"s_cmp_lt_u32 s2, {NM}"); a("s_cbranch_scc1 L_m"); a("s_branch L_f")
        self.page("F")
        a("L_m:")

    def roleidx(self, d):
        a = self.a
        nf = self.opt.get("nf")
        if nf:
            assert sum(nf) == NF
            nm = [8 - v for v in nf]; pm = [sum(nm[:i]) for i in range(8)]
            lutn = sum(nm[i] << (4 * i) for i in range(8))
            lo = sum(pm[i] << (8 * i) for i in range(4)); hi = sum(pm[4 + i] << (8 * i) for i in range(4))
            a("s_lshr_b32 s60, s2, 3"); a("s_and_b32 s61, s2, 7")
            a("s_lshl_b32 s62, s60, 2"); a(f"s_lshr_b32 s62, {lutn:#x}, s62"); a("s_and_b32 s62, s62, 15")
            a(f"s_mov_b32 s64, {lo:#x}"); a(f"s_mov_b32 s65, {hi:#x}"); a("s_lshl_b32 s63, s60, 3"); a("s_lshr_b64 s[64:65], s[64:65], s63"); a("s_and_b32 s64, s64, 255")
            a("s_add_u32 s65, s64, s61")
            a("s_sub_u32 s66, s2, s64"); a("s_sub_u32 s66, s66, s62"); a(f"s_add_u32 s66, s66, {NM}")
            if self.opt.get("pf"):
                s2nm = "s63"
                a("s_lshl_b32 s63, s62, 1"); a("s_sub_u32 s63, s63, 8")
                a("s_sub_u32 s3, s2, s64"); a("s_sub_u32 s3, s3, s63")
                a("s_cmp_ge_u32 s61, s63"); a(f"s_cselect_b32 s101, {640*1728*2}, 0")
            a("s_cmp_lt_u32 s61, s62"); a(f"s_cselect_b32 s{d}, s65, s66")

    def role_m(self):
        a = self.a
        ROW, VO, X, B, D1, D2, Y, T, XO, ADD, CPOS, UOFF, P = self.ROW, self.VO, self.X, self.B, self.D1, self.D2, self.Y, self.T, self.XO, self.ADD, self.CPOS, self.UOFF, self.P
        WB = 88
        tm = self.opt.get("tm", 2)
        dbl = self.opt.get("dbl")
        if dbl:
            mk = sum(1 << i for i in dbl); assert len(dbl) == 3
            a(f"s_mov_b32 s64, {mk & 0xffffffff:#x}"); a(f"s_mov_b32 s65, {mk >> 32:#x}")
            a("s_bfm_b64 s[66:67], s2, 0"); a("s_and_b64 s[66:67], s[66:67], s[64:65]"); a("s_bcnt1_i32_b64 s66, s[66:67]")
            a("s_lshl_b32 s68, s66, 1"); a("s_add_u32 s68, s68, 54"); a("s_sub_u32 s69, s2, s66"); a("s_add_u32 s69, s69, 20")
            a("s_bitcmp1_b64 s[64:65], s2")
        else:
            a("s_lshl_b32 s68, s2, 1"); a("s_add_u32 s68, s68, 54"); a("s_add_u32 s69, s2, 17")
            a("s_cmp_lt_u32 s2, 3")
        mw = self.opt.get("mw", 0); rd = self.opt.get("rd", 0)
        if rd:
            u0 = self.opt.get("u0", 0)
            srd(a, R_A, S_WM, 640 * 3840 * 2); srd(a, R_E, S_OUT, 1280); srd(a, R_B, S_WD, 640 * 1728 * 2)
            if rd == 2:
                rm = self.opt["rm"]; u1 = [i for i in range(NM) if i not in rm or i in self.opt.get("ru", [])]
                u3 = self.opt.get("u3", []); assert len(u1) + len(u3) == 30
                a("s_mov_b32 s3, 0")
                self.member(u1, 68, "L_rd")
                if u3: a("s_cmp_lt_u32 s68, 20"); a("s_cselect_b32 s69, 30, 0"); a("s_add_u32 s68, s68, s69")
                else: a("s_add_u32 s68, s68, 20")
                a("L_mu:")
            else:
                a(f"s_sub_u32 s68, s2, {u0}"); a("s_cmp_ge_u32 s68, 30"); a("s_cbranch_scc1 L_rd")
                a("s_add_u32 s68, s68, 20")
            a(f"v_lshrrev_b32 v{T}, 1, v{ROW}")
            a(f"buffer_load_ushort v{X}, v{T}, s[{R_C}:{R_C+3}], 0 offen")
            self.colvoff(VO, 5 * 7680, T)
            a(f"s_mul_i32 s62, s{S_WAVE}, {40*7680}"); a("s_lshl_b32 s63, s68, 7"); a("s_add_u32 s62, s62, s63")
            self.colloads(WB, VO, R_A, 62, 7680, thr=tm)
            a(f"s_waitcnt vmcnt(5)")
            a(f"v_lshlrev_b32 v{X}, 16, v{X}")
            self.silu(X, T)
            self.gemv(X, P, B, [(D1, WB)], 5, wait=lambda t: 4 - t)
            self.fold_col(D1, None, Y)
            self.putpart(ADD, Y, L_ACC1)
            a("s_waitcnt lgkmcnt(0)"); a("s_barrier")
            a(f"s_cmp_lg_u32 s{S_WAVE}, 0"); a(f"s_cbranch_scc1 L_rd")
            a("s_lshl_b32 s70, s68, 8"); a(f"s_add_u32 s70, s70, {WS_MOD}")
            self.publish(L_ACC1, CPOS, UOFF, 70, WB, True)
            a("L_rd:")
            if self.stamps:
                l = a.label("MS")
                a(f"s_cmp_lg_u32 s{S_WAVE}, 0"); a(f"s_cbranch_scc1 {l}")
                if rd == 2:
                    l2 = a.label("MT")
                    a(f"s_cmp_eq_u32 s3, 0"); a(f"s_cbranch_scc1 {l2}")
                    self.stamp(9); self.flush_stamps(10, 9, role='M'); a("s_endpgm")
                    a(f"{l2}:")
                self.stamp(3); a("v_mov_b32 v63, v10"); self.flush_stamps(4, role='M'); a("v_mov_b32 v10, v63")
                a(f"{l}:")
            if rd == 2:
                u2 = self.opt["u2"]; assert len(u2) == 10 and not set(u2) & set(rm) and not set(u3) & set(rm) and not set(u3) & set(u2)
                a("s_cmp_lg_u32 s3, 0"); a("s_cbranch_scc1 L_end")
                a("s_mov_b32 s3, 1")
                l = a.label("MG")
                if u3:
                    l3 = a.label("MH")
                    self.member(u3, 68, l3)
                    a(f"s_add_u32 s68, s68, {30-len(u3)}"); a(f"s_branch {l}")
                    a(f"{l3}:")
                self.member(u2, 68, "L_rd2")
                a("s_add_u32 s68, s68, 50")
                a(f"s_cmp_lg_u32 s{S_WAVE}, 3"); a(f"s_cbranch_scc1 {l}")
                self.otrig(self.opt.get("gj", 0), T)
                a(f"{l}:")
                a("s_barrier")
                a("s_branch L_mu")
                a("L_rd2:")
                self.role_rd2()
            else: self.role_rd()
        elif mw:
            WO, VW = 64, 61
            a("s_cselect_b32 s68, s68, s69"); a("s_cselect_b32 s69, 2, 1")
            srd(a, R_A, S_WM, 640 * 3840 * 2); srd(a, R_E, S_OUT, 1280)
            a(f"v_lshrrev_b32 v{T}, 1, v{ROW}")
            a(f"buffer_load_ushort v{X}, v{T}, s[{R_C}:{R_C+3}], 0 offen")
            self.colvoff(VO, 5 * 7680, T)
            a(f"s_mul_i32 s62, s{S_WAVE}, {40*7680}"); a("s_lshl_b32 s63, s68, 7"); a("s_add_u32 s62, s62, s63"); a("s_add_u32 s64, s62, 128")
            self.colloads(WB, VO, R_A, 62, 7680, thr=tm)
            nm = [8 - v for v in self.opt["nf"]]; pm = [sum(nm[:i]) for i in range(8)]; mk = sum(1 << p for p in pm)
            a(f"s_mov_b32 s76, {mk & 0xffffffff:#x}"); a(f"s_mov_b32 s77, {mk >> 32:#x}")
            a("s_add_u32 s72, s2, 1"); a("s_bfm_b64 s[66:67], s72, 0"); a("s_and_b64 s[66:67], s[66:67], s[76:77]")
            a("s_bcnt1_i32_b64 s72, s[66:67]"); a("s_sub_u32 s72, s72, 1"); a("s_flbit_i32_b64 s73, s[66:67]")
            a("s_add_u32 s73, s73, s2"); a(f"s_sub_u32 s73, s73, {63-10+mw}")
            a("s_cmp_ge_u32 s72, 4"); a("s_cselect_b32 s74, 3, 0"); a("s_xor_b32 s72, s72, s74")
            a("s_cmp_lt_u32 s73, 10"); a(f"s_cselect_b32 s67, {4096*640*2}, 0")
            srd(a, R_B, S_WO, "s67")
            a(f"s_lshr_b32 s74, s{S_WAVE}, 2"); a("s_lshl_b32 s74, s74, 3"); a("s_add_u32 s74, s74, s72")
            a(f"s_and_b32 s75, s{S_WAVE}, 3"); a("s_lshl_b32 s66, s74, 2"); a("s_add_u32 s66, s66, s75")
            a(f"s_mul_i32 s66, s66, {32*1280}"); a("s_lshl_b32 s67, s73, 7"); a("s_add_u32 s66, s66, s67")
            self.colvoff(VW, 4 * 1280, T)
            pn = self.opt.get("pn", 2)
            def wl(lo, hi, thr):
                for t in range(lo, hi):
                    if thr: a(f"s_waitcnt vmcnt({thr-1})")
                    a(f"buffer_load_dwordx4 v[{WO+4*t}:{WO+4*t+3}], v{VW}, s[{R_B}:{R_B+3}], s66 offen offset:{1280*t} nt")
            l = a.label("MD")
            a("s_cmp_eq_u32 s69, 1"); a(f"s_cbranch_scc1 {l}")
            self.colloads(WB + 20, VO, R_A, 64, 7680, thr=tm)
            a("s_waitcnt vmcnt(0)")
            a(f"{l}:")
            wl(0, pn, tm)
            a(f"s_waitcnt vmcnt({5+pn})")
            a(f"v_lshlrev_b32 v{X}, 16, v{X}")
            self.silu(X, T)
            self.gemv(X, P, B, [(D1, WB), (D2, WB + 20)], 5, wait=lambda t: 4 - t + pn)
            self.fold_col(D1, D2, Y)
            self.putpart(ADD, Y, L_ACC1)
            wl(pn, 4, 0)
            a("s_waitcnt lgkmcnt(0)"); a("s_barrier")
            l = a.label("MP")
            a(f"s_cmp_ge_u32 s{S_WAVE}, s69"); a(f"s_cbranch_scc1 {l}")
            a(f"s_add_u32 s70, s68, s{S_WAVE}"); a("s_lshl_b32 s70, s70, 8"); a(f"s_add_u32 s70, s70, {WS_MOD}")
            a(f"s_lshl_b32 s71, s{S_WAVE}, 5"); a(f"v_add_u32 v{T+1}, s71, v{CPOS}")
            self.publish(L_ACC1, T + 1, UOFF, 70, WB, True)
            if self.stamps:
                a(f"s_cmp_lg_u32 s{S_WAVE}, 0"); a(f"s_cbranch_scc1 {l}")
                self.stamp(3); self.flush_stamps(4, role='M'); self.flush_stamps(10, 9, role='M')
            a(f"{l}:")
            a("s_cmp_lt_u32 s73, 10"); a("s_cbranch_scc1 L_mw")
            a(f"s_cmp_eq_u32 s{S_WAVE}, 2"); a("s_cbranch_scc1 L_red")
            a("s_endpgm")
        else:
            a(f"s_cselect_b32 s67, {640*3840*2}, 0"); a("s_cselect_b32 s68, s68, s69"); a("s_cselect_b32 s69, 2, 1")
            if self.opt.get("xg"):
                a("s_cmp_ge_u32 s68, 50"); a(f"s_cselect_b32 s67, 0, {640*3840*2}")
                srd(a, R_A, S_WM, "s67"); srd(a, R_B, S_WM, 0); srd(a, R_E, S_OUT, 1280)
            else:
                srd(a, R_A, S_WM, 0 if self.opt.get("xm") else 640 * 3840 * 2); srd(a, R_B, S_WM, 0 if self.opt.get("xm") else "s67"); srd(a, R_E, S_OUT, 1280)
            a(f"v_lshrrev_b32 v{T}, 1, v{ROW}")
            a(f"buffer_load_ushort v{X}, v{T}, s[{R_C}:{R_C+3}], 0 offen")
            self.colvoff(VO, 5 * 7680, T)
            a(f"s_mul_i32 s62, s{S_WAVE}, {40*7680}"); a("s_lshl_b32 s63, s68, 7"); a("s_add_u32 s62, s62, s63"); a("s_add_u32 s64, s62, 128")
            md = self.opt.get("md")
            if md:
                l = a.label("MG")
                a(f"s_cmp_lg_u32 s{S_WAVE}, 3"); a(f"s_cbranch_scc1 {l}")
                par = [((128, 16, WS_ML), (3072, 512, WS_O))[md[k]] + (md[k + 1],) for k in (0, 2)]
                a("s_cmp_ge_u32 s68, 50")
                for i in range(4): a(f"s_mov_b32 s{72+i}, {par[0][i]}"); a(f"s_cselect_b32 s{72+i}, {par[1][i]}, s{72+i}")
                a(f"v_and_b32 v{T}, 31, v{V_L}"); a(f"v_mul_u32_u24 v{T}, s72, v{T}")
                a(f"v_lshrrev_b32 v{T+1}, 5, v{V_L}"); a(f"v_and_b32 v{T+2}, 1, v{V_L}"); a(f"v_lshl_add_u32 v{T+1}, v{T+1}, 1, v{T+2}")
                a(f"v_mul_u32_u24 v{T+1}, s73, v{T+1}"); a(f"v_add_u32 v{T}, v{T}, v{T+1}")
                lp = a.label("MQ")
                a(f"s_mov_b32 s{S_CNT}, 0")
                a("s_cmp_eq_u32 s75, 0"); a(f"s_cbranch_scc1 {l}")
                a(f"{lp}:")
                a(f"buffer_load_dword v{T+1}, v{T}, s[{R_WS}:{R_WS+3}], s74 offen sc1")
                a("s_waitcnt vmcnt(0)")
                a(f"v_and_b32 v{T+1}, s{S_M10}, v{T+1}"); a(f"v_cmp_eq_u32 vcc, v{T+1}, v{V_T10}")
                a("s_bcnt1_i32_b64 s72, vcc"); a("s_cmp_ge_u32 s72, s75"); a(f"s_cbranch_scc1 {l}")
                a(f"s_add_u32 s{S_CNT}, s{S_CNT}, 1"); a(f"s_cmp_lt_u32 s{S_CNT}, {SPIN}"); a(f"s_cbranch_scc1 {lp}")
                a(f"{l}:")
                a("s_barrier")
                self.stamp(9)
            if self.opt.get("xc", 0) & 4:
                a(f"v_lshlrev_b32 v{VO}, 4, v{V_L}"); a(f"s_lshl_b32 s62, s68, 4"); a(f"s_add_u32 s62, s62, s{S_WAVE}"); a("s_mul_i32 s62, s62, 5120"); a(f"s_add_u32 s64, s62, {16*5120}")
                self.colloads(WB, VO, R_A, 62, 1024, thr=tm)
                self.colloads(WB + 20, VO, R_B, 64, 1024, thr=tm)
            elif self.opt.get("pf"):
                self.colloads(WB + 20, VO, R_B, 64, 7680, thr=tm)
                self.colloads(WB, VO, R_A, 62, 7680, thr=tm)
            else:
                self.colloads(WB, VO, R_A, 62, 7680, thr=tm)
                self.colloads(WB + 20, VO, R_B, 64, 7680, thr=tm)
            pf = self.opt.get("pf", 0); pn = self.opt.get("pn", 2) if pf else 0
            def pfld(lo, hi, thr):
                for i in range(lo, hi):
                    if thr: a(f"s_waitcnt vmcnt({thr-1})")
                    a(f"buffer_load_dwordx4 v[{64+4*i}:{64+4*i+3}], v{VO}, s[{R_B}:{R_B+3}], s62 offen offset:{1024*(i%4)}" + (" nt" if pf == 2 else ""))
                    if i == 3: a("s_add_u32 s62, s62, 4096")
            if pf:
                srd(a, R_B, S_WD, "s101")
                a(f"s_mul_i32 s62, s3, {64*1280}"); a(f"s_mul_i32 s63, s{S_WAVE}, 5120"); a("s_add_u32 s62, s62, s63")
                a(f"v_lshlrev_b32 v{VO}, 4, v{V_L}")
                pfld(0, pn, tm)
            a(f"s_waitcnt vmcnt({10+pn})")
            a(f"v_lshlrev_b32 v{X}, 16, v{X}")
            self.silu(X, T)
            self.gemv(X, P, B, [(D1, WB), (D2, WB + 20)], 5, wait=lambda t: 4 - t + pn)
            self.fold_col(D1, D2, Y)
            self.putpart(ADD, Y, L_ACC1)
            if pf: pfld(pn, 5, 0)
            a("s_waitcnt lgkmcnt(0)"); a("s_barrier")
            a(f"s_cmp_eq_u32 s{S_WAVE}, 2"); a("s_cbranch_scc1 L_red")
            a(f"s_cmp_ge_u32 s{S_WAVE}, s69"); a(f"s_cbranch_scc1 L_end")
            a(f"s_add_u32 s70, s68, s{S_WAVE}"); a("s_lshl_b32 s70, s70, 8"); a(f"s_add_u32 s70, s70, {WS_MOD}")
            a(f"s_lshl_b32 s71, s{S_WAVE}, 5"); a(f"v_add_u32 v{T+1}, s71, v{CPOS}")
            self.publish(L_ACC1, T + 1, UOFF, 70, WB, True)
            if self.stamps:
                a(f"s_cmp_lg_u32 s{S_WAVE}, 0"); a("s_cbranch_scc1 L_end")
                self.stamp(3); self.flush_stamps(4, role='M'); self.flush_stamps(10, 9, role='M')
            a("s_endpgm")
        a("L_race:")
        self.races(T)
        a(f"s_branch {self.l_back}")
        self.hole("F")
        a("L_red:")
        if not rd: a(f"s_cmp_ge_u32 s2, {NW}"); a("s_cbranch_scc1 L_end")
        COL, GA, GB, XV, A4, R = 10, 11, 12, 13, 14, 64
        f3 = self.opt.get("f3")
        if f3:
            a(f"v_and_b32 v{T}, 3, v{V_N}"); a(f"v_lshlrev_b32 v{T}, 3, v{T}"); a(f"v_and_or_b32 v{T+6}, v{V_N}, 4, v{T}"); a(f"v_add_u32 v{COL}, v{T+6}, v{V_G}")
        else: a(f"v_and_b32 v{T}, 7, v{V_N}"); a(f"v_lshl_add_u32 v{COL}, v{V_G}, 3, v{T}")
        a("s_lshl_b32 s62, s2, 5"); a(f"v_add_u32 v{COL}, s62, v{COL}")
        a(f"v_lshlrev_b32 v{T+1}, 1, v{COL}"); a(f"v_lshlrev_b32 v{COL}, 2, v{COL}")
        a(f"buffer_load_ushort v{XV}, v{T+1}, s[{R_D}:{R_D+3}], 0 offen")
        if self.opt.get("ot"): a(f"buffer_load_ushort v{R}, v{T+1}, s[{R_E}:{R_E+3}], 0 offen")
        a(f"s_mov_b32 s63, {WS_MOD+1280*4}"); a(f"s_mov_b32 s64, {WS_MOD+3200*4}")
        a(f"s_mov_b32 s75, {WS_VOTE}"); a(f"v_lshlrev_b32 v{T+3}, 2, v{V_L}")
        self.voteld(T + 4, T + 3)
        def iss3():
            a(f"buffer_load_dword v{GA}, v{COL}, s[{R_WS}:{R_WS+3}], s63 offen sc1")
            if not rd: a(f"buffer_load_dword v{GB}, v{COL}, s[{R_WS}:{R_WS+3}], s64 offen sc1")
        self.poll(iss3, lambda: self.untag([GA] if rd else [GA, GB], V_T16, T + 2, 0xffff), "PG")
        self.side(T + 4, 74)
        if rd == 1:
            l, lp = a.label("RG"), a.label("RQ")
            a(f"v_and_b32 v{T+2}, 31, v{V_L}"); a(f"v_mul_u32_u24 v{T+2}, 3072, v{T+2}")
            a(f"v_lshrrev_b32 v{T+3}, 5, v{V_L}"); a(f"v_mul_u32_u24 v{T+3}, 3, v{T+3}"); a(f"v_and_b32 v{T+4}, 1, v{V_L}"); a(f"v_add_u32 v{T+3}, v{T+3}, v{T+4}")
            a(f"v_lshl_add_u32 v{T+2}, v{T+3}, 9, v{T+2}")
            a(f"s_mov_b32 s{S_CNT}, 0"); a(f"s_mov_b32 s72, {WS_O}")
            a(f"v_mov_b32 v{A4}, 0"); a(f"v_mov_b32 v{A4+1}, 0"); a(f"v_lshlrev_b32 v{T+4}, 3, v{V_L}")
            if self.opt.get("rj", 16):
                a(f"{lp}:")
                a(f"buffer_load_dword v{T+3}, v{T+2}, s[{R_WS}:{R_WS+3}], s72 offen sc1")
                a("s_waitcnt vmcnt(0)")
                a(f"v_and_b32 v{T+3}, s{S_M10}, v{T+3}"); a(f"v_cmp_eq_u32 vcc, v{T+3}, v{V_T10}")
                a("s_bcnt1_i32_b64 s73, vcc"); a(f"s_cmp_ge_u32 s73, {self.opt.get('rj', 16)}"); a(f"s_cbranch_scc1 {l}")
                a(f"s_add_u32 s{S_CNT}, s{S_CNT}, 1"); a(f"s_cmp_lt_u32 s{S_CNT}, {SPIN}"); a(f"s_cbranch_scc1 {lp}")
                a(f"{l}:")
            a("s_barrier")
            self.stamp(4)
            a(f"ds_write_b64 v{T+4}, v[{A4}:{A4+1}] offset:{L_ACC0+15*512}")
            a("s_waitcnt lgkmcnt(0)")
        def red8(R):
            a(f"v_permlane32_swap_b32 v{R}, v{R+2}"); a(f"v_permlane32_swap_b32 v{R+1}, v{R+3}")
            a(f"v_add_f32 v{R}, v{R}, v{R+2}"); a(f"v_add_f32 v{R+1}, v{R+1}, v{R+3}")
            a(f"v_permlane16_swap_b32 v{R}, v{R+1}")
            a(f"v_add_f32 v{R}, v{R}, v{R+1}")
            a(f"v_add_f32_dpp v{R}, v{R}, v{R} row_ror:8 row_mask:0xf bank_mask:0xf")
            bfr(a, R, R)
        if f3:
            assert self.opt.get("w2")
            a("s_lshl_b32 s65, s2, 7"); a("s_add_u32 s65, s65, s74"); a(f"s_add_u32 s65, s65, {WS_A}"); a("s_add_u32 s66, s65, 0x10000")
            a(f"v_lshlrev_b32 v{T+6}, 2, v{T+6}"); a(f"v_lshl_add_u32 v{T+6}, v{V_G}, 14, v{T+6}")
            a(f"v_lshrrev_b32 v{T+2}, 3, v{V_N}"); a(f"v_mul_u32_u24 v{T+2}, 2560, v{T+2}"); a(f"v_add_u32 v{T+6}, v{T+6}, v{T+2}")
            def iss4():
                for i in range(2): a(f"buffer_load_dwordx4 v[{A4+4*i}:{A4+4*i+3}], v{T+6}, s[{R_WS}:{R_WS+3}], s{65+i} offen sc1")
            self.poll(iss4, lambda: self.untag([A4, A4 + 4], V_T10, T + 2, 0x3ff), "PA", hole="F")
            a(f"v_lshlrev_b32 v{XV}, 16, v{XV}")
            for i in range(4): a(f"v_add_f32 v{A4+i}, v{A4+i}, v{A4+4+i}")
            red8(A4)
            a(f"v_mul_f32 v{A4}, v{GA}, v{A4}"); bfr(a, A4, A4)
            a(f"v_add_f32 v{A4}, v{XV}, v{A4}"); bfr(a, A4, A4)
        else:
            for i in range(4): a(f"s_add_u32 s{65+i}, s74, {WS_A+16384*i}")
            NP = 16 if self.opt.get("w2") else 8
            if NP == 16: a(f"v_add_u32 v{T+6}, 0x10000, v{COL}")
            def iss4():
                for i in range(NP):
                    a(f"buffer_load_dword v{A4+i}, v{COL if i < 8 else T+6}, s[{R_WS}:{R_WS+3}], s{65+((i>>1)&3)} offen offset:{2560*(i&1)} sc1")
            self.poll(iss4, lambda: self.untag(list(range(A4, A4 + NP)), V_T10, T + 2, 0x3ff), "PA", hole="F")
            a(f"v_lshlrev_b32 v{XV}, 16, v{XV}")
            self.x2calc(COL, GA, XV, A4, A4)
        self.stamp(6)
        a(f"v_lshlrev_b32 v{T+2}, 4, v{V_L}")
        if rd:
            R = 64
            def lsum(acc, n):
                for i in range(n): a(f"ds_read_b128 v[{R+4*i}:{R+4*i+3}], v{T+2} offset:{acc+1024*i}")
                def ad(x, y):
                    for i in (0, 2): a(f"v_pk_add_f32 v[{R+4*x+i}:{R+4*x+i+1}], v[{R+4*x+i}:{R+4*x+i+1}], v[{R+4*y+i}:{R+4*y+i+1}]")
                for x in range(0, n - 1, 2):
                    a(f"s_waitcnt lgkmcnt({n-x-2})"); ad(x, x + 1)
                    if x % 4 == 2: ad(x - 2, x)
                if n % 2: a("s_waitcnt lgkmcnt(0)")
                if n == 7: ad(4, 6)
                ad(0, 4)
                red8(R)
            if rd == 2:
                if self.opt.get("rb"): a("s_barrier")
                self.poll(lambda: a(f"buffer_load_dword v{GB}, v{COL}, s[{R_WS}:{R_WS+3}], s64 offen sc1"), lambda: self.untag([GB], V_T16, T + 3, 0xffff), "PB")
                self.stamp(5)
                a("s_and_b32 s62, s2, 1"); a(f"s_mul_i32 s62, s62, {7*1024}"); a(f"v_add_u32 v{T+2}, s62, v{T+2}")
            else:
                a("s_barrier")
                self.stamp(5)
                lsum(L_ACC2, 5)
                a(f"v_mov_b32 v{GB}, v{R}")
            a("s_setprio 3")
            self.hole("F", True)
            a("s_barrier")
            self.stamp(7)
            lsum(L_ACC0, 8 if rd == 1 else 7)
        else: self.red_gather(red8)
        R = self.R
        a(f"v_mul_f32 v{R}, v{GB}, v{R}"); bfr(a, R, R)
        a(f"v_add_f32 v{R}, v{A4}, v{R}")
        a(f"v_cvt_pk_bf16_f32 v{R}, v{R}, v{R}")
        self.setexec(0x00ff00ff, 0x00ff00ff)
        a(f"buffer_store_short v{R}, v{T+1}, s[{R_E}:{R_E+3}], 0 offen" + self.opt.get("os", ""))
        self.allexec()
        self.stamp(8)
        ep = self.opt.get("ep", 0)
        if ep < 2:
            l = a.label("EP")
            a("s_cmp_lg_u32 s2, 0"); a(f"s_cbranch_scc1 {l}")
            a(f"v_mov_b32 v{T}, s{S_T}"); a(f"v_mov_b32 v{T+1}, 0")
            self.setexec(1, 0)
            a(f"buffer_store_dword v{T}, v{T+1}, s[{R_WS}:{R_WS+3}], 0 offen" + ("" if ep else " sc1"))
            self.allexec()
            a(f"{l}:")
        if rd == 2: a(f"s_mov_b32 s{S_WAVE}, 2")
        self.pw([6, 7, 8, 8, -1])
        self.flush_stamps(9, 4 if rd else 6, role='W')
        a("s_endpgm")

    def member(self, lst, d, out):
        a = self.a; mk = sum(1 << i for i in lst)
        a(f"s_mov_b32 s64, {mk & 0xffffffff:#x}"); a(f"s_mov_b32 s65, {mk >> 32:#x}")
        a("s_bitcmp0_b64 s[64:65], s2"); a(f"s_cbranch_scc1 {out}")
        a("s_bfm_b64 s[66:67], s2, 0"); a("s_and_b64 s[66:67], s[66:67], s[64:65]"); a(f"s_bcnt1_i32_b64 s{d}, s[66:67]")

    def otrig(self, n, T):
        a = self.a
        if not n: return
        l, lp = a.label("RG"), a.label("RQ")
        if self.opt.get("tt") == 2:
            a(f"v_and_b32 v{T+2}, 7, v{V_L}"); a(f"v_lshlrev_b32 v{T+2}, 2, v{T+2}")
            a(f"s_mov_b32 s{S_CNT}, 0"); a(f"s_mov_b32 s72, {WS_TK+32*n[0]}"); a("s_mov_b64 exec, 0xff")
            a(f"{lp}:")
            a(f"buffer_load_dword v{T+3}, v{T+2}, s[{R_WS}:{R_WS+3}], s72 offen sc1")
            a("s_waitcnt vmcnt(0)")
            a(f"v_cmp_eq_u32 vcc, s{S_T}, v{T+3}")
            a("s_bcnt1_i32_b64 s73, vcc"); a(f"s_cmp_ge_u32 s73, {n[1]}"); a(f"s_cbranch_scc1 {l}")
            a(f"s_add_u32 s{S_CNT}, s{S_CNT}, 1"); a(f"s_cmp_lt_u32 s{S_CNT}, {SPIN}"); a(f"s_cbranch_scc1 {lp}")
            a(f"{l}:")
            a("s_mov_b64 exec, -1")
            return
        if self.opt.get("tt"):
            dp = "row_mask:0xf bank_mask:0xf"
            a("s_load_dwordx2 s[66:67], s[0:1], 96")
            a(f"v_and_b32 v{T+2}, 7, v{V_L}"); a(f"v_lshlrev_b32 v{T+2}, 5, v{T+2}")
            a(f"s_mov_b32 s{S_CNT}, 0"); a("s_waitcnt lgkmcnt(0)")
            a(f"{lp}:")
            a(f"global_load_dword v{T+3}, v{T+2}, s[66:67] sc0 sc1")
            a("s_waitcnt vmcnt(0)")
            for m in ("quad_perm:[1,0,3,2]", "quad_perm:[2,3,0,1]", "row_half_mirror"): a(f"v_add_u32_dpp v{T+3}, v{T+3}, v{T+3} {m} {dp}")
            a(f"v_readfirstlane_b32 s73, v{T+3}"); a(f"s_cmp_ge_u32 s73, {n}"); a(f"s_cbranch_scc1 {l}")
            a(f"s_add_u32 s{S_CNT}, s{S_CNT}, 1"); a(f"s_cmp_lt_u32 s{S_CNT}, {SPIN}"); a(f"s_cbranch_scc1 {lp}")
            a(f"{l}:")
            return
        a(f"v_and_b32 v{T+2}, 31, v{V_L}"); a(f"v_mul_u32_u24 v{T+2}, 3072, v{T+2}")
        a(f"v_lshrrev_b32 v{T+3}, 5, v{V_L}"); a(f"v_mul_u32_u24 v{T+3}, 3, v{T+3}"); a(f"v_and_b32 v{T+4}, 1, v{V_L}"); a(f"v_add_u32 v{T+3}, v{T+3}, v{T+4}")
        a(f"v_lshl_add_u32 v{T+2}, v{T+3}, 9, v{T+2}")
        a(f"s_mov_b32 s{S_CNT}, 0"); a(f"s_mov_b32 s72, {WS_O}")
        a(f"{lp}:")
        a(f"buffer_load_dword v{T+3}, v{T+2}, s[{R_WS}:{R_WS+3}], s72 offen sc1")
        a("s_waitcnt vmcnt(0)")
        a(f"v_and_b32 v{T+3}, s{S_M10}, v{T+3}"); a(f"v_cmp_eq_u32 vcc, v{T+3}, v{V_T10}")
        a("s_bcnt1_i32_b64 s73, vcc"); a(f"s_cmp_ge_u32 s73, {n}"); a(f"s_cbranch_scc1 {l}")
        a(f"s_add_u32 s{S_CNT}, s{S_CNT}, 1"); a(f"s_cmp_lt_u32 s{S_CNT}, {SPIN}"); a(f"s_cbranch_scc1 {lp}")
        a(f"{l}:")

    def role_rd2(self):
        a = self.a
        VO, AR, T = self.VO, self.B, self.T
        IDX, PS, D, WB, LA, PA = 13, 22, 48, 64, 44, 45
        self.member(self.opt["rm"], 2, "L_end")
        a("s_lshl_b32 s60, s2, 7"); a("s_lshl_b32 s2, s2, 1")
        a(f"s_sub_u32 s73, s{S_WAVE}, 2"); a("s_cmp_lt_u32 s73, 2"); a(f"s_cbranch_scc0 L_rdw")
        a("s_add_u32 s2, s2, s73")
        rk = self.opt.get("rk", 0)
        if rk:
            l = a.label("RK")
            a("s_cmp_eq_u32 s73, 0"); a(f"s_cbranch_scc1 {l}")
            self.otrig(self.opt["rj"], T)
            a(f"{l}:")
            a("s_barrier")
            self.stamp(4)
        a("s_branch L_red")
        a("L_rdw:")
        a(f"s_min_u32 s73, s73, s{S_WAVE}")
        self.gu_row(T)
        a(f"v_and_b32 v{T}, 8, v{V_N}"); a(f"v_lshl_add_u32 v{T+1}, v{T}, 1, v{T+1}"); a(f"v_and_b32 v{T+2}, 7, v{V_N}")
        a(f"v_mul_u32_u24 v{VO}, 1280, v{T+1}"); a(f"v_lshl_add_u32 v{VO}, v{T+2}, 4, v{VO}")
        a(f"s_mul_i32 s62, s73, {128*1280}"); a("s_add_u32 s62, s62, s60")
        a(f"s_mov_b32 s75, {WS_VOTE}"); a(f"v_lshlrev_b32 v{PA}, 2, v{V_L}")
        self.voteld(PS, PA)
        rt = self.opt.get("rt", 2); rt = rt if isinstance(rt, list) else [rt] * 16
        for j in range(16):
            if j and j % 2 == 0: a(f"s_add_u32 s62, s62, {(4 if j % 4 else 28)*1280}")
            if rk and j == rk: a("s_barrier")
            if j >= rt[j]: a(f"s_waitcnt vmcnt({rt[j]-1})")
            a(f"buffer_load_dwordx4 v[{WB+4*j}:{WB+4*j+3}], v{VO}, s[{R_B}:{R_B+3}], s62 offen offset:{2560*(j&1)} nt")
        a(f"v_and_b32 v{T+2}, 3, v{V_N}"); a(f"v_mul_u32_u24 v{IDX}, 0x5555, v{T+2}")
        a(f"v_bfe_u32 v{T}, v{V_N}, 2, 1"); a(f"v_mul_u32_u24 v{LA}, {7*1024}, v{T}"); a(f"v_lshl_add_u32 v{LA}, v{V_G}, 7, v{LA}"); a(f"v_lshl_add_u32 v{LA}, v{T+2}, 4, v{LA}")
        a("s_lshl_b32 s62, s73, 9"); a(f"v_add_u32 v{LA}, s62, v{LA}")
        for i in range(16): a(f"v_mov_b32 v{D+i}, 0")
        self.side(PS, 74)
        a("s_add_u32 s70, s62, s74"); a(f"s_add_u32 s70, s70, {WS_D}"); a("s_cmp_lt_u32 s73, 13"); a("s_cselect_b32 s71, 256, 0"); a("s_add_u32 s71, s71, s70")
        a("s_mov_b32 s76, 0xff0000ff"); a("s_mov_b32 s77, 0"); a("s_mov_b32 s78, 0"); a("s_mov_b32 s79, 0xff0000ff")
        a("s_waitcnt vmcnt(0)")
        self.stamp(4)
        self.regroup(WB)
        if self.opt.get("rb"): a("s_barrier")
        self.stamp(5)
        def bc(dst, src):
            for d in range(4): a(f"v_mov_b32_dpp v{dst+d}, v{src} quad_perm:[{d},{d},{d},{d}] row_mask:0xf bank_mask:0xf")
        ns = self.opt.get("rs", 1)
        def iss(k):
            for i in range(2): a(f"buffer_load_dword v{PS+2*k+i}, v{PA}, s[{R_WS}:{R_WS+3}], s{70+i} offen sc1")
        for k in range(ns): iss(k)
        a(f"s_mov_b32 s{S_CNT}, 0")
        a("L_pd:")
        for k in range(ns):
            a(f"s_waitcnt vmcnt({2*(ns-1)})")
            self.untag([PS + 2 * k, PS + 2 * k + 1], V_T16, T, 0xffff)
            a(f"s_cbranch_vccz L_pd{k}")
            iss(k)
        a(f"s_add_u32 s{S_CNT}, s{S_CNT}, 1"); a(f"s_cmp_lt_u32 s{S_CNT}, {SPIN}"); a(f"s_cbranch_scc1 L_pd")
        a("s_branch L_pd0"); self.hole("F")
        for k in range(ns):
            a(f"L_pd{k}:")
            bc(AR, PS + 2 * k); bc(AR + 4, PS + 2 * k + 1)
            if k < ns - 1: a("s_branch L_pdx")
        a("L_pdx:")
        self.stamp(6)
        for t in range(4):
            for h in range(2):
                d = D + 8 * (t & 1) + 4 * h; A_ = AR + 4 * (t >> 1); W = WB + 16 * t + 8 * h
                a(f"v_smfmac_f32_16x16x64_bf16 v[{d}:{d+3}], v[{A_}:{A_+3}], v[{W}:{W+7}], v{IDX}")
        for hb in range(2):
            a(f"s_mov_b64 exec, s[{76+2*hb}:{77+2*hb}]")
            for h in range(2): a(f"ds_write_b128 v{LA}, v[{D+8*hb+4*h}:{D+8*hb+4*h+3}] offset:{L_ACC0+64*h}")
        a("s_waitcnt lgkmcnt(0)"); a("s_barrier")
        if self.stamps:
            self.allexec()
            self.stamp(7)
            self.pw([4, 5, 6, 7, -1])
        a("s_endpgm")

    R = 64
    def role_rd(self):
        a = self.a
        VO, X, AR, T = self.VO, self.X, self.B, self.T
        IDX, VG, PS, D, WB, LA, PA = 13, 10, 22, 48, 64, 44, 45
        rm = self.opt.get("rm", list(range(20))); assert len(rm) == 20
        mk = sum(1 << i for i in rm)
        a(f"s_mov_b32 s64, {mk & 0xffffffff:#x}"); a(f"s_mov_b32 s65, {mk >> 32:#x}")
        a("s_bitcmp0_b64 s[64:65], s2"); a("s_cbranch_scc1 L_end")
        a("s_bfm_b64 s[66:67], s2, 0"); a("s_and_b64 s[66:67], s[66:67], s[64:65]"); a("s_bcnt1_i32_b64 s2, s[66:67]")
        a(f"s_cmp_eq_u32 s{S_WAVE}, 2"); a("s_cbranch_scc1 L_red")
        a(f"s_cmp_gt_u32 s{S_WAVE}, 2"); a(f"s_subb_u32 s73, s{S_WAVE}, 0")
        a(f"s_mov_b32 s75, {WS_VOTE}"); a(f"v_lshlrev_b32 v{PA}, 2, v{V_L}")
        self.voteld(PS, PA)
        a("s_max_u32 s72, s73, 5"); a("s_sub_u32 s72, s72, 5")
        a(f"v_lshl_add_u32 v{T}, v{V_N}, 2, v{V_G}"); a(f"v_lshlrev_b32 v{T}, 1, v{T}"); a("s_lshl_b32 s62, s72, 7")
        a(f"buffer_load_ushort v{X}, v{T}, s[{R_C}:{R_C+3}], s62 offen")
        a(f"v_and_b32 v{T+2}, 3, v{V_N}"); a(f"v_mul_u32_u24 v{IDX}, 0x5555, v{T+2}")
        self.gu_row(T)
        a(f"v_and_b32 v{T}, 12, v{V_N}"); a(f"v_lshl_add_u32 v{T+1}, v{T}, 2, v{T+1}")
        a(f"v_mul_u32_u24 v{VO}, 1280, v{T+1}"); a(f"v_lshl_add_u32 v{VO}, v{T+2}, 4, v{VO}")
        a(f"v_mul_u32_u24 v{VG}, 7680, v{T+1}"); a(f"v_lshl_add_u32 v{VG}, v{T+2}, 4, v{VG}")
        a(f"v_lshlrev_b32 v{LA}, 7, v{V_G}"); a(f"v_lshl_add_u32 v{LA}, v{T+2}, 4, v{LA}"); a("s_lshl_b32 s62, s73, 9"); a(f"v_add_u32 v{LA}, s62, v{LA}")
        a("s_lshl_b32 s60, s2, 6")
        a(f"s_mul_i32 s62, s73, {64*1280}"); a("s_add_u32 s62, s62, s60"); a("s_add_u32 s63, s62, 5120")
        a("s_cmp_lt_u32 s73, 12"); a(f"s_cselect_b32 s64, {15*64*1280}, 0x40000000"); a(f"s_cselect_b32 s71, {15*256}, 0")
        a("s_add_u32 s65, s64, s63"); a("s_add_u32 s64, s64, s62")
        a(f"s_mul_i32 s66, s72, {64*7680}"); a("s_add_u32 s66, s66, s60"); a("s_add_u32 s66, s66, 6400")
        for i in range(3): a(f"s_add_u32 s{67+i}, s{66+i}, {2*7680}")
        for i in range(8): a(f"v_mov_b32 v{D+i}, 0")
        a("s_waitcnt vmcnt(0)")
        self.side(PS, 74)
        a("s_lshl_b32 s70, s73, 8"); a("s_add_u32 s70, s70, s74"); a(f"s_add_u32 s70, s70, {WS_D}"); a("s_add_u32 s71, s71, s70")
        a(f"v_lshlrev_b32 v{X}, 16, v{X}")
        self.silu(X, T)
        a(f"v_and_b32 v{X}, 0xffff0000, v{X}")
        def bc(dst, src):
            for d in range(4): a(f"v_mov_b32_dpp v{dst+d}, v{src} quad_perm:[{d},{d},{d},{d}] row_mask:0xf bank_mask:0xf")
        def rg(W):
            for x, y in ((2, 8), (3, 9), (6, 12), (7, 13)): a(f"v_swap_b32 v{W+x}, v{W+y}")
        def mm(A_, W):
            for h in range(2): a(f"v_smfmac_f32_16x16x64_bf16 v[{D+4*h}:{D+4*h+3}], v[{A_}:{A_+3}], v[{W+8*h}:{W+8*h+7}], v{IDX}")
        def put(acc):
            self.setexec(0x00f0000f, 0xf0000f00)
            for h in range(2): a(f"ds_write_b128 v{LA}, v[{D+4*h}:{D+4*h+3}] offset:{acc+64*h}")
        bc(AR, X)
        rt = self.opt.get("rt", 0); nt = " nt" if self.opt.get("rn", 1) else ""
        def wd():
            for j in range(8):
                if rt: a(f"s_waitcnt vmcnt({rt-1})")
                a(f"buffer_load_dwordx4 v[{WB+4*j}:{WB+4*j+3}], v{VO}, s[{R_B}:{R_B+3}], s{62+(j>>1)} offen offset:{2560*(j&1)}{nt}")
        l, l2 = a.label("RN"), a.label("RM")
        a("s_cmp_lt_u32 s73, 5")
        a("s_barrier")
        a(f"s_cbranch_scc1 {l}")
        for j in range(4):
            if rt: a(f"s_waitcnt vmcnt({rt-1})")
            a(f"buffer_load_dwordx4 v[{WB+32+4*j}:{WB+32+4*j+3}], v{VG}, s[{R_A}:{R_A+3}], s{66+j} offen{nt}")
        a(f"{l}:")
        wd()
        a(f"s_cbranch_scc1 {l2}")
        a("s_waitcnt vmcnt(8)")
        rg(WB + 32); mm(AR, WB + 32); put(L_ACC2 - 5 * 512)
        self.allexec()
        a("s_waitcnt lgkmcnt(0)")
        for i in range(8): a(f"v_mov_b32 v{D+i}, 0")
        a(f"{l2}:")
        a("s_waitcnt vmcnt(0)")
        self.stamp(4)
        rg(WB); rg(WB + 16)
        a("s_barrier")
        self.stamp(5)
        ns = self.opt.get("rs", 1)
        def iss(k):
            for i in range(2): a(f"buffer_load_dword v{PS+2*k+i}, v{PA}, s[{R_WS}:{R_WS+3}], s{70+i} offen sc1")
        for k in range(ns): iss(k)
        a(f"s_mov_b32 s{S_CNT}, 0")
        a("L_pd:")
        for k in range(ns):
            a(f"s_waitcnt vmcnt({2*(ns-1)})")
            self.untag([PS + 2 * k, PS + 2 * k + 1], V_T16, T, 0xffff)
            a(f"s_cbranch_vccz L_pd{k}")
            iss(k)
        a(f"s_add_u32 s{S_CNT}, s{S_CNT}, 1"); a(f"s_cmp_lt_u32 s{S_CNT}, {SPIN}"); a(f"s_cbranch_scc1 L_pd")
        a("s_branch L_pd0"); self.hole("F")
        for k in range(ns):
            a(f"L_pd{k}:")
            bc(AR, PS + 2 * k); bc(AR + 4, PS + 2 * k + 1)
            if k < ns - 1: a("s_branch L_pdx")
        a("L_pdx:")
        self.stamp(6)
        mm(AR, WB); mm(AR + 4, WB + 16)
        put(L_ACC0)
        a("s_waitcnt lgkmcnt(0)"); a("s_barrier")
        if self.stamps:
            self.allexec()
            self.stamp(7)
            self.pw([4, 5, 6, 7, -1])
        a("s_endpgm")

    def red_gather(self, red8):
        a = self.a; T = self.T; R = 64; f3 = self.opt.get("f3")
        a(f"v_min_u32 v{T+3}, {2*128+112}, v{T+2}")
        a(f"v_cmp_gt_u32 vcc, 24, v{V_L}"); a(f"v_cndmask_b32 v{T+4}, 0, 1.0, vcc")
        a("s_lshr_b32 s62, s2, 1"); a("s_mul_i32 s62, s62, 16512"); a("s_and_b32 s63, s2, 1"); a("s_mul_i32 s63, s63, 3456"); a("s_add_u32 s62, s62, s63")
        a("s_add_u32 s62, s62, s74"); a(f"s_add_u32 s62, s62, {WS_D}")
        def iss5(R=R):
            for i in range(4):
                a(f"buffer_load_dwordx4 v[{R+4*i}:{R+4*i+3}], v{T+2 if i < 3 else T+3}, s[{R_WS}:{R_WS+3}], s62 offen offset:{1024*i} sc1")
        ns = self.opt.get("rs", 1)
        if ns > 1:
            sets = [48 + 16 * k for k in range(ns)]; R = 22
            for S_ in sets: iss5(S_)
            a(f"s_mov_b32 s{S_CNT}, 0")
            a("L_pd:")
            for k, S_ in enumerate(sets):
                a(f"s_waitcnt vmcnt({4*(ns-1)})")
                self.untag(list(range(S_, S_ + 16, 4)), V_T10, T + 5, 0x3ff)
                a(f"s_cbranch_vccz L_pd{k}")
                iss5(S_)
            a(f"s_add_u32 s{S_CNT}, s{S_CNT}, 1"); a(f"s_cmp_lt_u32 s{S_CNT}, {SPIN}"); a(f"s_cbranch_scc1 L_pd")
            a("s_branch L_pd0"); self.hole("F")
            for k, S_ in enumerate(sets):
                a(f"L_pd{k}:")
                for i in range(4): a(f"v_add_f32 v{R+i}, v{S_+i}, v{S_+4+i}")
                for i in range(4): a(f"v_fma_f32 v{R+4+i}, v{S_+12+i}, v{T+4}, v{S_+8+i}")
                if k < ns - 1: a("s_branch L_pdx")
            a("L_pdx:")
            self.stamp(7)
            for i in range(4): a(f"v_add_f32 v{R+i}, v{R+i}, v{R+4+i}")
        else:
            self.poll(iss5, lambda: self.untag(list(range(R, R + 16, 4 if f3 else 1)), V_T10, T + 5, 0x3ff), "PD")
            self.stamp(7)
            for i in range(4): a(f"v_add_f32 v{R+i}, v{R+i}, v{R+4+i}")
            for i in range(4): a(f"v_fma_f32 v{R+8+i}, v{R+12+i}, v{T+4}, v{R+8+i}")
            for i in range(4): a(f"v_add_f32 v{R+i}, v{R+i}, v{R+8+i}")
        red8(R)
        self.R = R

    def role_f(self):
        a = self.a
        ROW, VO, X, B, D1, D2, Y, T, XO, ADD, CPOS, UOFF, P = self.ROW, self.VO, self.X, self.B, self.D1, self.D2, self.Y, self.T, self.XO, self.ADD, self.CPOS, self.UOFF, self.P
        WA, WB = 56, 88
        tf = self.opt.get("tf", 2)
        a("; GRP F")
        self.hole("F")
        a("L_f:")
        a(f"s_sub_u32 s69, s2, {NM}")
        fsz = 0 if self.opt.get("xf") else 640 * 1728 * 2
        srd(a, R_C, S_WG, fsz); srd(a, R_E, S_WU, fsz); srd(a, R_A, S_WD, fsz)
        self.colvoff(VO, 5 * 3456, T)
        a(f"s_mul_i32 s62, s{S_WAVE}, {40*3456}"); a("s_lshl_b32 s63, s69, 7"); a("s_add_u32 s62, s62, s63")
        for t in range(5):
            if t: a(f"s_add_u32 s62, s62, 3456")
            for h, sr in enumerate((R_C, R_E)):
                th = 1 if 2 * t + h <= self.opt.get("f1", 0) else tf
                if th: a(f"s_waitcnt vmcnt({th-1})")
                a(f"buffer_load_dwordx4 v[{WB+20*h+4*t}:{WB+20*h+4*t+3}], v{VO}, s[{sr}:{sr+3}], s62 offen nt")
        def downloads(thr, vo):
            l = a.label("FD")
            a(f"s_cmp_ge_u32 s{S_WAVE}, 10"); a(f"s_cbranch_scc1 {l}")
            self.colvoff(vo, 8 * 1280, T)
            a(f"s_mul_i32 s62, s69, {64*1280}"); a(f"s_lshl_b32 s74, s{S_WAVE}, 7"); a("s_add_u32 s62, s62, s74")
            self.colloads(WA, vo, R_A, 62, 1280, n=8, thr=thr)
            a(f"{l}:")
        fd = self.opt.get("fd", 0)
        if not fd: downloads(tf, VO)
        GA, SB, CB, A4, VAL = T + 5, T + 6, T + 7, T + 8, UOFF
        GPOS, DOFF, SRD_, SWR = 52, 53, 54, 55
        AWR, G1 = VO, 13
        a(f"v_lshlrev_b32 v{GPOS}, 2, v{V_L}")
        GST = 528
        self.wraddr(ADD, GST)
        a(f"s_lshl_b32 s73, s{S_WAVE}, 4"); a(f"v_lshlrev_b32 v{T+1}, 2, v{V_G}"); a(f"v_add_u32 v{T+1}, s73, v{T+1}")
        self.colpos(CPOS, T + 1, T)
        a(f"v_mul_u32_u24 v{T}, {GST}, v{V_N}"); a(f"v_add_u32 v{CPOS}, v{CPOS}, v{T}")
        a(f"s_lshl_b32 s73, s{S_WAVE}, 6"); a(f"v_and_b32 v{AWR}, 60, v{V_L}"); a(f"v_add_u32 v{AWR}, s73, v{AWR}")
        a(f"v_mul_u32_u24 v{DOFF}, 3456, v{V_G}"); a(f"v_lshl_add_u32 v{DOFF}, v{V_N}, 4, v{DOFF}")
        a("s_lshl_b32 s72, s69, 7"); a(f"s_mul_i32 s73, s{S_WAVE}, 16512"); a("s_add_u32 s72, s72, s73"); a(f"s_add_u32 s72, s72, {WS_D}"); a("s_add_u32 s71, s72, 8192")
        a(f"v_and_b32 v{T}, 7, v{V_N}"); a(f"v_cmp_gt_u32 vcc, 5, v{T}"); a(f"v_cndmask_b32 v{VAL}, 0, 1.0, vcc")
        a(f"v_lshlrev_b32 v{SRD_}, 3, v{V_N}")
        a(f"s_lshl_b32 s73, s{S_WAVE}, 3"); a(f"v_mov_b32 v{SWR}, s73")
        a(f"s_mov_b32 s63, {WS_MOD+1280*4}"); a(f"s_mov_b32 s64, {WS_MOD+2560*4}")
        a(f"s_mov_b32 s75, {WS_VOTE}")
        self.voteld(A4, GPOS)
        def iss3():
            a(f"buffer_load_dword v{GA}, v{ROW}, s[{R_WS}:{R_WS+3}], s63 offen sc1")
            a(f"buffer_load_dword v{SB}, v{ROW}, s[{R_WS}:{R_WS+3}], s63 offen offset:2560 sc1")
            a(f"buffer_load_dword v{CB}, v{ROW}, s[{R_WS}:{R_WS+3}], s64 offen sc1")
        self.poll(iss3, lambda: self.untag([GA, SB, CB], V_T16, T, 0xffff), "PG", hole="F")
        self.stamp(3)
        if fd == 1: downloads(0, T + 1)
        self.side(A4, 70)
        for i in range(4): a(f"s_add_u32 s{65+i}, s70, {WS_A+16384*i}")
        a(f"v_add_f32 v{CB}, 1.0, v{CB}"); bfr(a, CB, CB)
        def colred(acc, Z):
            a(f"ds_read_b128 v[{D1}:{D1+3}], v{CPOS} offset:{acc}"); a(f"ds_read_b128 v[{D2}:{D2+3}], v{CPOS} offset:{acc+32}")
            yield
            for D, R in ((D1, B), (D2, B + 2)):
                for j in range(2): a(f"v_add_f32_dpp v{R+j}, v{D+j}, v{D+j} row_ror:8 row_mask:0xf bank_mask:0x3")
            for D, R in ((D1, B), (D2, B + 2)):
                for j in range(2): a(f"v_add_f32_dpp v{R+j}, v{D+2+j}, v{D+2+j} row_ror:8 row_mask:0xf bank_mask:0xc")
            yield
            for R, z in ((B, Z), (B + 2, Z + 1)): a(f"v_add_f32_dpp v{z}, v{R}, v{R} row_shl:4 row_mask:0xf bank_mask:0x5")
            yield
            for R, z in ((B, Z), (B + 2, Z + 1)): a(f"v_add_f32_dpp v{z}, v{R+1}, v{R+1} row_shr:4 row_mask:0xf bank_mask:0xa")
            for md in ("quad_perm:[1,0,3,2]", "quad_perm:[2,3,0,1]"):
                yield
                for z in (Z, Z + 1): a(f"v_add_f32_dpp v{z}, v{z}, v{z} {md} row_mask:0xf bank_mask:0xf")
        for src, acc in ((CB, L_ACC1), (SB, L_ACC2)):
            a(f"v_cvt_pk_bf16_f32 v{X}, v{src}, v{src}")
            self.gemv(X, P, B, [(D1, WB), (D2, WB + 20)], 5)
            self.fold_col(D1, D2, Y)
            self.putpart(ADD, Y, acc)
        self.hole("F", True)
        a("s_waitcnt lgkmcnt(0)"); a("s_barrier")
        C1, C2 = B + 4, B + 6
        l = a.label("FC")
        a(f"s_cmp_ge_u32 s{S_WAVE}, 4"); a(f"s_cbranch_scc1 {l}")
        for acc, Z in ((L_ACC1, T), (L_ACC2, T + 2)):
            for i, _ in enumerate(colred(acc, Z)):
                if i == 0: a("s_waitcnt lgkmcnt(0)")
        K1G, K1U, K2G, K2U = SB, G1, V_G, V_N
        a(f"v_mov_b32 v{K1G}, v{T}"); a(f"v_mov_b32 v{K1U}, v{T+1}"); a(f"v_mov_b32 v{K2G}, v{T+2}"); a(f"v_mov_b32 v{K2U}, v{T+3}")
        a(f"{l}:")
        if fd == 2: downloads(self.opt.get("td", 0), T + 1)
        self.stamp(7)
        NP = 16 if self.opt.get("w2") else 8
        if NP == 16: a(f"v_add_u32 v{T+1}, 0x10000, v{ROW}")
        def iss4():
            for i in range(NP):
                a(f"buffer_load_dword v{B+i}, v{ROW if i < 8 else T+1}, s[{R_WS}:{R_WS+3}], s{65+((i>>1)&3)} offen offset:{2560*(i&1)} sc1")
        self.poll(iss4, lambda: self.untag(list(range(B, B + NP)), V_T10, T, 0x3ff), "PA", hole="F")
        self.stamp(4)
        m, v, r, u, w = T, T + 1, T + 2, T + 3, T + 4
        self.x2calc(ROW, GA, XO, A4, B)
        a(f"v_subrev_f32 v{m}, s100, v{A4}")
        a(f"v_mul_f32 v{X}, v{m}, v{CB}"); a(f"v_cvt_pk_bf16_f32 v{X}, v{X}, v{X}")
        a(f"v_mul_f32 v{m}, v{m}, v{VAL}")
        self.gemv(X, P, B, [(D1, WB), (D2, WB + 20)], 5)
        a(f"v_mul_f32 v{v}, v{m}, v{m}")
        a(f"v_permlane32_swap_b32 v{m}, v{v}"); a(f"v_add_f32 v{m}, v{m}, v{v}")
        row_red(a, m)
        a(f"v_mov_b32 v{v}, v{m}"); a(f"v_permlane16_swap_b32 v{v}, v{m}"); a(f"v_add_f32 v{m}, v{m}, v{v}")
        self.fold_col(D1, D2, Y)
        self.setexec(1, 1)
        a(f"v_lshrrev_b32 v{v}, 3, v{V_L}"); a(f"v_add_u32 v{v}, v{v}, v{SWR}")
        a(f"ds_write_b32 v{v}, v{m} offset:{L_ST}")
        self.allexec()
        self.putpart(ADD, Y, L_ACC0)
        self.stamp(8)
        a("s_waitcnt lgkmcnt(0)"); a("s_barrier")
        a(f"s_cmp_ge_u32 s{S_WAVE}, 10"); a("s_cbranch_scc1 L_end")
        self.stamp(1)
        l = a.label("FA")
        a(f"s_cmp_ge_u32 s{S_WAVE}, 4"); a(f"s_cbranch_scc1 {l}")
        a(f"ds_read_b64 v[{m}:{v}], v{SRD_} offset:{L_ST}")
        Z = A4
        cr = colred(L_ACC0, Z); next(cr)
        a("s_waitcnt lgkmcnt(2)")
        mds = ("quad_perm:[1,0,3,2]", "quad_perm:[2,3,0,1]", "row_half_mirror", "row_mirror")
        st = []
        for md in mds: st.append([f"v_add_f32_dpp v{q}, v{q}, v{q} {md} row_mask:0xf bank_mask:0xf" for q in (m, v)])
        st.append([f"v_mul_f32 v{m}, {fh(1.0/640)}, v{m}", f"v_mul_f32 v{v}, {fh(1.0/640)}, v{v}", f"v_fma_f32 v{v}, -v{m}, v{m}, v{v}",
                   f"v_add_f32 v{m}, s100, v{m}", f"v_max_f32 v{v}, 0, v{v}", f"v_cvt_pk_bf16_f32 v{m}, 0, v{m}", f"v_cvt_pk_bf16_f32 v{v}, 0, v{v}"])
        st.append([f"v_add_f32 v{v}, {fh(1e-5)}, v{v}", f"v_sub_f32 v{m}, s100, v{m}", f"v_cvt_pk_bf16_f32 v{v}, 0, v{v}", f"v_sqrt_f32 v{v}, v{v}"])
        st.append([f"v_cvt_pk_bf16_f32 v{v}, 0, v{v}", f"v_rcp_f32 v{r}, v{v}"])
        for x in st[0] + st[1]: a(x)
        a("s_waitcnt lgkmcnt(0)")
        for grp in st[2:]:
            next(cr, None)
            for x in grp: a(x)
        for _ in cr: pass
        a(f"v_fmac_f32 v{Z}, v{m}, v{K1G}"); a(f"v_fmac_f32 v{Z+1}, v{m}, v{K1U}")
        a(f"v_fma_f32 v{Z}, v{Z}, v{r}, v{K2G}"); a(f"v_fma_f32 v{Z+1}, v{Z+1}, v{r}, v{K2U}")
        bfr(a, Z, Z); bfr(a, Z + 1, Z + 1)
        gelu(a, X, Z, T + 2, T + 3, T + 4); bfr(a, X, X)
        a(f"v_mul_f32 v{X}, v{X}, v{Z+1}"); a(f"v_cvt_pk_bf16_f32 v{X}, v{X}, v{X}")
        a(f"ds_write_b32 v{AWR}, v{X} offset:{L_ACT}")
        self.hole("F", True)
        a("s_waitcnt lgkmcnt(0)")
        a(f"{l}:")
        a("s_barrier")
        self.stamp(5)
        a(f"ds_read_b32 v{X}, v{GPOS} offset:{L_ACT}")
        a("s_waitcnt lgkmcnt(0)")
        if self.opt.get("fs"): self.stamp(9)
        self.gemv(X, P, B, [(D1, WA)], 8)
        for r_ in range(4): a(f"v_permlane32_swap_b32 v{D1+r_}, v{D2+r_}")
        for r_ in range(4): a(f"v_add_f32_dpp v{D1+r_}, v{D2+r_}, v{D1+r_} row_ror:8 row_mask:0xf bank_mask:0xf")
        for r_ in range(4): a(f"v_bfi_b32 v{D1+r_}, s{S_M10}, v{V_T10}, v{D1+r_}")
        if self.opt.get("fs"): a(f"v_readfirstlane_b32 s79, v{D1+3}"); self.stamp(2)
        self.setexec(0x00ff00ff, 0)
        a(f"buffer_store_dwordx4 v[{D1}:{D1+3}], v{DOFF}, s[{R_WS}:{R_WS+3}], s72 offen sc1")
        a(f"buffer_store_dwordx4 v[{D1}:{D1+3}], v{DOFF}, s[{R_WS}:{R_WS+3}], s71 offen sc1")
        self.allexec()
        if self.stamps:
            a(f"s_cmp_lg_u32 s{S_WAVE}, {self.opt.get('sw', 0)}"); a("s_cbranch_scc1 L_end")
            self.stamp(6); self.flush_stamps(10, role='F')
        a("s_endpgm")

    def role_f2(self):
        a = self.a
        ROW, VO, X, B, D1, D2, Y, T, XO, ADD, CPOS, UOFF, P = self.ROW, self.VO, self.X, self.B, self.D1, self.D2, self.Y, self.T, self.XO, self.ADD, self.CPOS, self.UOFF, self.P
        WB = 64
        tf = self.opt.get("tf", 3); td = self.opt.get("td", 6)
        GST = 528
        a("; GRP F")
        self.hole("F")
        a("L_f:")
        a(f"s_sub_u32 s69, s2, {NM}")
        fsz = 0 if self.opt.get("xf") else 640 * 1728 * 2
        a(f"s_cmp_ge_u32 s{S_WAVE}, 10"); a("s_cbranch_scc1 L_fd")
        srd(a, R_C, S_WG, fsz); srd(a, R_E, S_WU, fsz)
        a(f"v_bfe_u32 v{T}, v{V_L}, 3, 1"); a(f"v_lshl_add_u32 v{T}, v{T}, 5, v{V_G}"); a(f"v_mul_u32_u24 v{VO}, 3456, v{T}")
        a(f"v_and_b32 v{T}, 7, v{V_L}"); a(f"v_lshl_add_u32 v{VO}, v{T}, 4, v{VO}")
        a(f"s_mul_i32 s62, s{S_WAVE}, {64*3456}"); a("s_lshl_b32 s63, s69, 7"); a("s_add_u32 s62, s62, s63")
        a(f"s_lshl_b32 s73, s{S_WAVE}, 6"); a(f"v_lshl_add_u32 v{ROW}, v{V_N}, 2, v{V_G}"); a(f"v_add_u32 v{ROW}, s73, v{ROW}")
        a(f"v_lshlrev_b32 v{T}, 1, v{ROW}"); a(f"v_lshlrev_b32 v{ROW}, 2, v{ROW}")
        a(f"buffer_load_ushort v{XO}, v{T}, s[{R_D}:{R_D+3}], 0 offen")
        for t in range(8):
            if t: a(f"s_add_u32 s62, s62, {4*3456}")
            for h, sr in enumerate((R_C, R_E)):
                a(f"s_waitcnt vmcnt({tf-1})")
                a(f"buffer_load_dwordx4 v[{WB+32*h+4*t}:{WB+32*h+4*t+3}], v{VO}, s[{sr}:{sr+3}], s62 offen nt")
                if 2 * t + h == self.opt.get("fb", 15): a("s_barrier")
        GA, SB, CB, A4 = T + 5, T + 6, T + 7, T + 8
        GPOS, PAD, SRD_, SWR = 52, 53, 54, 55
        AWR, G1 = VO, 13
        a(f"v_lshlrev_b32 v{GPOS}, 2, v{V_L}")
        self.wraddr(ADD, GST)
        a(f"s_lshl_b32 s73, s{S_WAVE}, 4"); a(f"v_lshlrev_b32 v{T+1}, 2, v{V_G}"); a(f"v_add_u32 v{T+1}, s73, v{T+1}")
        self.colpos(CPOS, T + 1, T)
        a(f"v_mul_u32_u24 v{T}, {GST}, v{V_N}"); a(f"v_add_u32 v{CPOS}, v{CPOS}, v{T}")
        a(f"s_lshl_b32 s73, s{S_WAVE}, 6"); a(f"v_and_b32 v{AWR}, 60, v{V_L}"); a(f"v_add_u32 v{AWR}, s73, v{AWR}")
        a(f"v_and_b32 v{T}, 1, v{V_G}"); a(f"v_mul_u32_u24 v{PAD}, 2560, v{T}"); a(f"v_lshrrev_b32 v{T}, 1, v{V_G}"); a(f"v_lshl_add_u32 v{PAD}, v{T}, 14, v{PAD}")
        a(f"v_lshl_add_u32 v{PAD}, v{V_N}, 4, v{PAD}")
        a(f"v_lshlrev_b32 v{SRD_}, 3, v{V_N}")
        a(f"s_lshl_b32 s73, s{S_WAVE}, 3"); a(f"v_lshrrev_b32 v{SWR}, 3, v{V_L}"); a(f"v_add_u32 v{SWR}, s73, v{SWR}")
        a(f"s_mov_b32 s63, {WS_MOD+1280*4}"); a(f"s_mov_b32 s64, {WS_MOD+2560*4}")
        a(f"s_mov_b32 s75, {WS_VOTE}")
        self.voteld(A4, GPOS)
        def iss3():
            a(f"buffer_load_dword v{GA}, v{ROW}, s[{R_WS}:{R_WS+3}], s63 offen sc1")
            a(f"buffer_load_dword v{SB}, v{ROW}, s[{R_WS}:{R_WS+3}], s63 offen offset:2560 sc1")
            a(f"buffer_load_dword v{CB}, v{ROW}, s[{R_WS}:{R_WS+3}], s64 offen sc1")
        self.poll(iss3, lambda: self.untag([GA, SB, CB], V_T16, T, 0xffff), "PG", hole="F")
        self.stamp(3)
        self.side(A4, 70)
        NJ = 4 if self.opt.get("w2") else 2
        a(f"s_lshl_b32 s73, s{S_WAVE}, 8"); a("s_add_u32 s70, s70, s73")
        for i in range(NJ): a(f"s_add_u32 s{65+i}, s70, {WS_A+32768*i}")
        a(f"v_add_f32 v{CB}, 1.0, v{CB}"); bfr(a, CB, CB)
        a(f"v_lshlrev_b32 v{XO}, 16, v{XO}")
        def colred(acc, Z):
            a(f"ds_read_b128 v[{D1}:{D1+3}], v{CPOS} offset:{acc}"); a(f"ds_read_b128 v[{D2}:{D2+3}], v{CPOS} offset:{acc+32}")
            yield
            for D, R in ((D1, B), (D2, B + 2)):
                for j in range(2): a(f"v_add_f32_dpp v{R+j}, v{D+j}, v{D+j} row_ror:8 row_mask:0xf bank_mask:0x3")
            for D, R in ((D1, B), (D2, B + 2)):
                for j in range(2): a(f"v_add_f32_dpp v{R+j}, v{D+2+j}, v{D+2+j} row_ror:8 row_mask:0xf bank_mask:0xc")
            yield
            for R, z in ((B, Z), (B + 2, Z + 1)): a(f"v_add_f32_dpp v{z}, v{R}, v{R} row_shl:4 row_mask:0xf bank_mask:0x5")
            yield
            for R, z in ((B, Z), (B + 2, Z + 1)): a(f"v_add_f32_dpp v{z}, v{R+1}, v{R+1} row_shr:4 row_mask:0xf bank_mask:0xa")
            for md in ("quad_perm:[1,0,3,2]", "quad_perm:[2,3,0,1]"):
                yield
                for z in (Z, Z + 1): a(f"v_add_f32_dpp v{z}, v{z}, v{z} {md} row_mask:0xf bank_mask:0xf")
        a(f"v_cvt_pk_bf16_f32 v{X}, v{CB}, v{CB}"); a(f"v_add_u32 v{T}, {L_ACC1}, v{ADD}"); a("s_mov_b32 s73, 0")
        a("L_fp:")
        self.gemv(X, P, B, [(D1, WB), (D2, WB + 32)], 8)
        self.fold_col(D1, D2, Y)
        self.putpart(T, Y, 0)
        a(f"v_cvt_pk_bf16_f32 v{X}, v{SB}, v{SB}"); a(f"v_add_u32 v{T}, {L_ACC2}, v{ADD}")
        a("s_add_u32 s73, s73, 1"); a("s_cmp_lt_u32 s73, 2"); a("s_cbranch_scc1 L_fp")
        self.hole("F", True)
        a("s_waitcnt lgkmcnt(0)"); a("s_barrier")
        l = a.label("FC")
        a(f"s_cmp_ge_u32 s{S_WAVE}, 4"); a(f"s_cbranch_scc1 {l}")
        for acc, Z in ((L_ACC1, T), (L_ACC2, T + 2)):
            for i, _ in enumerate(colred(acc, Z)):
                if i == 0: a("s_waitcnt lgkmcnt(0)")
        K1G, K1U, K2G, K2U = 56, 57, 58, 59
        a(f"v_mov_b32 v{K1G}, v{T}"); a(f"v_mov_b32 v{K1U}, v{T+1}"); a(f"v_mov_b32 v{K2G}, v{T+2}"); a(f"v_mov_b32 v{K2U}, v{T+3}")
        a(f"{l}:")
        self.stamp(7)
        def iss4():
            for i in range(NJ):
                a(f"buffer_load_dwordx4 v[{B+4*i}:{B+4*i+3}], v{PAD}, s[{R_WS}:{R_WS+3}], s{65+i} offen sc1")
        self.poll(iss4, lambda: self.untag(list(range(B, B + 4 * NJ)), V_T10, T, 0x3ff), "PA", hole="F")
        self.stamp(4)
        m, v, r, u, w = T, T + 1, T + 2, T + 3, T + 4
        if NJ == 4:
            for i in range(0, 8, 2): a(f"v_pk_add_f32 v[{B+i}:{B+i+1}], v[{B+i}:{B+i+1}], v[{B+8+i}:{B+9+i}]")
        for i in (0, 2): a(f"v_pk_add_f32 v[{B+i}:{B+i+1}], v[{B+i}:{B+i+1}], v[{B+4+i}:{B+5+i}]")
        a(f"v_permlane32_swap_b32 v{B}, v{B+2}"); a(f"v_permlane32_swap_b32 v{B+1}, v{B+3}")
        a(f"v_pk_add_f32 v[{B}:{B+1}], v[{B}:{B+1}], v[{B+2}:{B+3}]")
        a(f"v_permlane16_swap_b32 v{B}, v{B+1}")
        a(f"v_add_f32 v{A4}, v{B}, v{B+1}")
        bfr(a, A4, A4)
        a(f"v_mul_f32 v{A4}, v{GA}, v{A4}"); bfr(a, A4, A4)
        a(f"v_add_f32 v{A4}, v{XO}, v{A4}"); bfr(a, A4, A4)
        a(f"v_subrev_f32 v{m}, s100, v{A4}")
        a(f"v_mul_f32 v{X}, v{m}, v{CB}"); a(f"v_cvt_pk_bf16_f32 v{X}, v{X}, v{X}")
        st = [f"v_mul_f32 v{v}, v{m}, v{m}", f"v_permlane32_swap_b32 v{m}, v{v}", f"v_add_f32 v{m}, v{m}, v{v}"]
        st += [f"v_add_f32_dpp v{m}, v{m}, v{m} {md} row_mask:0xf bank_mask:0xf" for md in ("quad_perm:[1,0,3,2]", "quad_perm:[2,3,0,1]", "row_half_mirror", "row_mirror")]
        st += [f"v_mov_b32 v{v}, v{m}"]
        self.gemv(X, P, B, [(D1, WB), (D2, WB + 32)], 8, pre=lambda t: a(st[t]))
        a(f"v_permlane16_swap_b32 v{v}, v{m}"); a(f"v_add_f32 v{m}, v{m}, v{v}")
        self.setexec(1, 1)
        a(f"ds_write_b32 v{SWR}, v{m} offset:{L_ST}")
        self.allexec()
        self.fold_col(D1, D2, Y)
        self.putpart(ADD, Y, L_ACC0)
        self.stamp(8)
        a("s_waitcnt lgkmcnt(0)"); a("s_barrier")
        self.stamp(1)
        a(f"s_cmp_ge_u32 s{S_WAVE}, 4"); a(f"s_cbranch_scc1 {'L_fpw' if self.stamps and self.opt.get('pw') else 'L_end'}")
        a(f"ds_read_b64 v[{m}:{v}], v{SRD_} offset:{L_ST}")
        Z = A4
        cr = colred(L_ACC0, Z); next(cr)
        a("s_waitcnt lgkmcnt(2)")
        mds = ("quad_perm:[1,0,3,2]", "quad_perm:[2,3,0,1]", "row_half_mirror", "row_mirror")
        st = []
        for md in mds: st.append([f"v_add_f32_dpp v{q}, v{q}, v{q} {md} row_mask:0xf bank_mask:0xf" for q in (m, v)])
        st.append([f"v_mul_f32 v{m}, {fh(1.0/640)}, v{m}", f"v_mul_f32 v{v}, {fh(1.0/640)}, v{v}", f"v_fma_f32 v{v}, -v{m}, v{m}, v{v}",
                   f"v_add_f32 v{m}, s100, v{m}", f"v_max_f32 v{v}, 0, v{v}", f"v_cvt_pk_bf16_f32 v{m}, 0, v{m}", f"v_cvt_pk_bf16_f32 v{v}, 0, v{v}"])
        st.append([f"v_add_f32 v{v}, {fh(1e-5)}, v{v}", f"v_sub_f32 v{m}, s100, v{m}", f"v_cvt_pk_bf16_f32 v{v}, 0, v{v}", f"v_sqrt_f32 v{v}, v{v}"])
        st.append([f"v_cvt_pk_bf16_f32 v{v}, 0, v{v}", f"v_rcp_f32 v{r}, v{v}"])
        for x in st[0] + st[1]: a(x)
        a("s_waitcnt lgkmcnt(0)")
        for grp in st[2:]:
            next(cr, None)
            for x in grp: a(x)
        for _ in cr: pass
        a(f"v_fmac_f32 v{Z}, v{m}, v{K1G}"); a(f"v_fmac_f32 v{Z+1}, v{m}, v{K1U}")
        a(f"v_fma_f32 v{Z}, v{Z}, v{r}, v{K2G}"); a(f"v_fma_f32 v{Z+1}, v{Z+1}, v{r}, v{K2U}")
        bfr(a, Z, Z); bfr(a, Z + 1, Z + 1)
        gelu(a, X, Z, T + 2, T + 3, T + 4); bfr(a, X, X)
        a(f"v_mul_f32 v{X}, v{X}, v{Z+1}"); a(f"v_cvt_pk_bf16_f32 v{X}, v{X}, v{X}")
        a(f"ds_write_b32 v{AWR}, v{X} offset:{L_ACT}")
        a("s_waitcnt lgkmcnt(0)")
        a("s_barrier")
        if self.stamps:
            a("L_fpw:")
            self.pw([7, 4, 8, 1, -1])
            a(f"s_cmp_lg_u32 s{S_WAVE}, 0"); a("s_cbranch_scc1 L_end")
            self.flush_stamps(5, role='F'); self.flush_stamps(10, 7, role='F')
        a("s_endpgm")
        self.hole("F")
        a("L_fd:")
        DOFF = 53
        a(f"s_cmp_lt_u32 s{S_WAVE}, 15"); a(f"s_cselect_b32 s67, {fsz}, 0")
        srd(a, R_A, S_WD, "s67")
        self.wraddr(ADD, GST)
        a(f"v_mov_b32 v{Y}, 0"); a(f"v_mov_b32 v{Y+1}, 0")
        self.putpart(ADD, Y, L_ACC1); self.putpart(ADD, Y, L_ACC2)
        a(f"s_lshl_b32 s73, s{S_WAVE}, 3"); a(f"v_mov_b32 v{T}, s73"); a(f"ds_write_b64 v{T}, v[{Y}:{Y+1}] offset:{L_ST}")
        a(f"s_sub_u32 s74, s{S_WAVE}, 10")
        self.colvoff(VO, 8 * 1280, T)
        a(f"s_mul_i32 s62, s69, {64*1280}"); a(f"s_lshl_b32 s63, s74, 8"); a("s_add_u32 s62, s62, s63")
        a(f"v_lshlrev_b32 v{GPOS}, 2, v{V_L}")
        a(f"v_and_b32 v{T}, 1, v{V_G}"); a(f"v_mul_u32_u24 v{DOFF}, 3456, v{T}"); a(f"v_lshrrev_b32 v{T}, 1, v{V_G}"); a(f"v_mul_u32_u24 v{T}, 16512, v{T}")
        a(f"v_add_u32 v{DOFF}, v{DOFF}, v{T}"); a(f"v_lshl_add_u32 v{DOFF}, v{V_N}, 4, v{DOFF}")
        a("s_lshl_b32 s72, s69, 7"); a(f"s_mul_i32 s73, s74, {2*16512}"); a("s_add_u32 s72, s72, s73"); a(f"s_add_u32 s72, s72, {WS_D}"); a("s_add_u32 s71, s72, 8192")
        a("s_barrier")
        for t in range(8):
            if t == 3 or t == 6: a(f"s_add_u32 s62, s62, {3*1280}")
            for h in range(2):
                if 2 * t + h >= td: a(f"s_waitcnt vmcnt({td-1})")
                a(f"buffer_load_dwordx4 v[{WB+32*h+4*t}:{WB+32*h+4*t+3}], v{VO}, s[{R_A}:{R_A+3}], s62 offen offset:{1280*(t%3)+128*h} nt")
        a("s_waitcnt lgkmcnt(0)"); a("s_barrier")
        self.putpart(ADD, Y, L_ACC0)
        a("s_waitcnt lgkmcnt(0)")
        a(f"s_cmp_eq_u32 s{S_WAVE}, 15"); a("s_cbranch_scc1 L_end")
        if self.opt.get("fs"): a("s_waitcnt vmcnt(0)"); self.stamp(5)
        a("s_barrier"); a("s_barrier")
        if not self.opt.get("fs"): self.stamp(5)
        a(f"ds_read_b32 v{X}, v{GPOS} offset:{L_ACT}")
        a("s_waitcnt vmcnt(0) lgkmcnt(0)")
        self.gemv(X, P, B, [(D1, WB), (D2, WB + 32)], 8)
        for r_ in range(4): a(f"v_permlane32_swap_b32 v{D1+r_}, v{D2+r_}")
        for r_ in range(4): a(f"v_add_f32_dpp v{D1+r_}, v{D2+r_}, v{D1+r_} row_ror:8 row_mask:0xf bank_mask:0xf")
        for r_ in range(4): a(f"v_bfi_b32 v{D1+r_}, s{S_M10}, v{V_T10}, v{D1+r_}")
        self.setexec(0x00ff00ff, 0x00ff00ff)
        a(f"buffer_store_dwordx4 v[{D1}:{D1+3}], v{DOFF}, s[{R_WS}:{R_WS+3}], s72 offen sc1")
        a(f"buffer_store_dwordx4 v[{D1}:{D1+3}], v{DOFF}, s[{R_WS}:{R_WS+3}], s71 offen sc1")
        self.allexec()
        if self.stamps:
            self.stamp(6)
            self.pw([5, 5, 6, 6, -1])
            a(f"s_cmp_lg_u32 s{S_WAVE}, {self.opt.get('sw', 14)}"); a("s_cbranch_scc1 L_end")
            self.flush_stamps(7, 5, role='F')
        a("s_endpgm")

    def regroup(self, WB):
        for t in range(4):
            for x, y in ((2, 8), (3, 9), (6, 12), (7, 13)): self.a(f"v_swap_b32 v{WB+16*t+x}, v{WB+16*t+y}")

    def sgemv(self, srcs, AR, D, WB, IDX, fill=()):
        a = self.a; fill = list(fill)
        def prep(t, ds):
            for src, bm in srcs:
                for d in ds: a(f"v_mov_b32_dpp v{AR+4*t+d}, v{src} row_newbcast:{4*t+d} row_mask:0xf bank_mask:{bm:#x}")
        prep(0, range(4)); prep(1, (0, 1))
        for t in range(4):
            for h in range(2):
                a(f"v_smfmac_f32_16x16x64_bf16 v[{D+4*h}:{D+4*h+3}], v[{AR+4*t}:{AR+4*t+3}], v[{WB+16*t+8*h}:{WB+16*t+8*h+7}], v{IDX}")
                k = 2 * t + h + 3
                if k < 8: prep(k >> 1, (2 * (k & 1), 2 * (k & 1) + 1))
                for _ in range(1 if k < 8 else 2):
                    if fill: a(fill.pop(0))
        for x in fill: a(x)

    def gu_row(self, T):
        a = self.a
        a(f"v_and_b32 v{T}, 1, v{V_G}"); a(f"v_lshrrev_b32 v{T+1}, 1, v{V_G}"); a(f"v_lshl_add_u32 v{T+1}, v{T}, 3, v{T+1}")

    def gu_addr(self, T):
        a = self.a; VO, AD = self.VO, 56
        r0 = 32 if self.opt.get("ne") else 0
        a(f"v_mul_u32_u24 v{VO}, 3456, v{T+1}"); a(f"v_and_b32 v{T}, 7, v{V_N}"); a(f"v_lshl_add_u32 v{VO}, v{T}, 4, v{VO}")
        a(f"s_mul_i32 s62, s{S_WAVE}, {64*3456}"); a("s_lshl_b32 s63, s69, 7"); a("s_add_u32 s62, s62, s63"); a(f"s_add_u32 s62, s62, {(r0+1)*3456}")
        a(f"v_add_u32 v{VO}, s62, v{VO}")
        if self.opt.get("xc", 0) & 2:
            a(f"v_lshlrev_b32 v{VO}, 7, v{V_G}"); a(f"v_lshl_add_u32 v{VO}, v{T}, 4, v{VO}")
            a("s_mul_i32 s62, s69, 10"); a(f"s_add_u32 s62, s62, s{S_WAVE}"); a("s_lshl_b32 s62, s62, 13"); a("s_add_u32 s62, s62, 256"); a(f"v_add_u32 v{VO}, s62, v{VO}")
        a(f"v_mov_b32 v{AD}, s{S_WG}"); a(f"v_mov_b32 v{AD+1}, s{S_WG+1}"); a(f"v_mov_b32 v{T}, s{S_WU}"); a(f"v_mov_b32 v{T+1}, s{S_WU+1}")
        a(f"v_cmp_lt_u32 vcc, 7, v{V_N}"); a(f"v_cndmask_b32 v{AD}, v{AD}, v{T}, vcc"); a(f"v_cndmask_b32 v{AD+1}, v{AD+1}, v{T+1}, vcc")
        a(f"v_add_co_u32 v{AD}, vcc, v{AD}, v{VO}"); a(f"v_addc_co_u32 v{AD+1}, vcc, 0, v{AD+1}, vcc")
        a(f"s_mov_b32 s64, {4*3456}"); a("s_mov_b32 s65, 0"); a(f"s_mov_b32 s66, {12*3456}"); a("s_mov_b32 s67, 0")
        if self.opt.get("xc", 0) & 2: a(f"s_mov_b32 s64, 1024"); a(f"s_mov_b32 s66, 1024")

    def gu_ld(self, j, thr):
        a = self.a; AD, WB = 56, 64
        ne = self.opt.get("ne", 0); tf = self.opt.get("tf", 3)
        if ne and j == 8:
            a(f"s_mov_b32 s62, {-52*3456}"); a("s_mov_b32 s63, -1")
            a(f"v_lshl_add_u64 v[{AD}:{AD+1}], v[{AD}:{AD+1}], 0, s[62:63]")
        elif j and j % 2 == 0: a(f"v_lshl_add_u64 v[{AD}:{AD+1}], v[{AD}:{AD+1}], 0, s[{64 if j % 4 else 66}:{65 if j % 4 else 67}]")
        if isinstance(tf, list): tf = tf[j]
        if thr: a(f"s_waitcnt vmcnt({tf-1})")
        r = WB + 4 * ((j + 8) % 16 if ne else j)
        a(f"global_load_dwordx4 v[{r}:{r+3}], v[{AD}:{AD+1}], off offset:{(1 if j & 1 else -1) * (256 if self.opt.get('xc', 0) & 2 else 3456)} nt")

    def role_f3(self):
        a = self.a
        ROW, VO, X, B, T, XO, ADD = self.ROW, self.VO, self.X, self.B, self.T, self.XO, self.ADD
        WB, IDX, D, AD, PAD, SWR, GPOS = 64, 13, 48, 56, 58, 59, 60
        tf = self.opt.get("tf", 3); td = self.opt.get("td", 6)
        GST = 512
        dp = "row_mask:0xf bank_mask:0xf"
        a("; GRP F")
        self.hole("F")
        a("L_f:")
        a(f"s_sub_u32 s69, s2, {NM}")
        a(f"v_and_b32 v{T}, 3, v{V_N}"); a(f"v_mul_u32_u24 v{IDX}, 0x5555, v{T}")
        self.gu_row(T)
        for i in range(8): a(f"v_mov_b32 v{D+i}, 0")
        a(f"s_cmp_ge_u32 s{S_WAVE}, 10"); a("s_cbranch_scc1 L_fd")
        ne = self.opt.get("ne", 0); fw = self.opt.get("fw", 0)
        if not ne: self.gu_addr(T)
        a(f"s_lshl_b32 s73, s{S_WAVE}, 6"); a(f"v_lshl_add_u32 v{ROW}, v{V_N}, 2, v{V_G}"); a(f"v_add_u32 v{ROW}, s73, v{ROW}")
        a(f"v_lshlrev_b32 v{T}, 1, v{ROW}"); a(f"v_lshlrev_b32 v{ROW}, 2, v{ROW}")
        a(f"buffer_load_ushort v{XO}, v{T}, s[{R_D}:{R_D+3}], 0 offen")
        for j in range(ne, 16):
            self.gu_ld(j, True)
            if j == self.opt.get("fb", 15):
                if fw: self.stamp(5)
                a("s_barrier")
        GA, SB, CB, A4 = T + 5, T + 6, T + 7, T + 8
        a(f"v_lshlrev_b32 v{GPOS}, 2, v{V_L}")
        a(f"s_lshl_b32 s79, s{S_WAVE}, 9"); a(f"v_lshl_add_u32 v{ADD}, v{V_N}, 5, s79")
        a(f"v_lshrrev_b32 v{T}, 1, v{V_G}"); a(f"v_mul_u32_u24 v{VO}, {L_ACC2-L_ACC1}, v{T}"); a(f"v_add_u32 v{VO}, v{VO}, v{ADD}")
        a(f"v_and_b32 v{T+1}, 1, v{V_G}"); a(f"v_mul_u32_u24 v{PAD}, 2560, v{T+1}"); a(f"v_lshl_add_u32 v{PAD}, v{T}, 14, v{PAD}")
        a(f"v_lshl_add_u32 v{PAD}, v{V_N}, 4, v{PAD}")
        a(f"s_lshl_b32 s73, s{S_WAVE}, 3"); a(f"v_lshrrev_b32 v{SWR}, 3, v{V_L}"); a(f"v_add_u32 v{SWR}, s73, v{SWR}")
        a(f"s_mov_b32 s63, {WS_MOD+1280*4}"); a(f"s_mov_b32 s64, {WS_MOD+2560*4}")
        a(f"s_mov_b32 s75, {WS_VOTE}")
        self.voteld(A4, GPOS)
        gs = self.opt.get("gs", 0)
        def iss3():
            if not gs: a(f"buffer_load_dword v{GA}, v{ROW}, s[{R_WS}:{R_WS+3}], s63 offen sc1")
            a(f"buffer_load_dword v{SB}, v{ROW}, s[{R_WS}:{R_WS+3}], s63 offen offset:2560 sc1")
            a(f"buffer_load_dword v{CB}, v{ROW}, s[{R_WS}:{R_WS+3}], s64 offen sc1")
        self.poll(iss3, lambda: self.untag([SB, CB] if gs else [GA, SB, CB], V_T16, T, 0xffff), "PG", hole="F")
        self.stamp(3)
        if fw and self.stamps: a(f"s_mov_b32 s{S_ST+16}, s{S_CNT}")
        self.side(A4, 70)
        a(f"s_lshl_b32 s73, s{S_WAVE}, 8"); a("s_add_u32 s70, s70, s73")
        if self.opt.get("qa") == 1: a("s_and_b32 s73, s69, 1"); a("s_lshl_b32 s73, s73, 19"); a("s_add_u32 s70, s70, s73")
        for i in range(4): a(f"s_add_u32 s{65+i}, s70, {WS_A+32768*i}")
        a(f"v_add_f32 v{CB}, 1.0, v{CB}"); bfr(a, CB, CB)
        a(f"v_lshlrev_b32 v{XO}, 16, v{XO}")
        self.regroup(WB)
        self.sgemv([(CB, 0x3), (SB, 0xc)], B, D, WB, IDX)
        a(f"v_mov_b32 v{T}, 0"); a(f"v_mov_b32 v{T+1}, 1")
        self.setexec(0xffff, 0xffff)
        for h in range(2): a(f"ds_write_b128 v{VO}, v[{D+4*h}:{D+4*h+3}] offset:{L_ACC1+16*h}")
        pb = self.opt.get("pb", 0)
        if not pb:
            self.setexec(1, 0)
            a(f"ds_add_u32 v{T}, v{T+1} offset:{L_CNT}")
        self.allexec()
        a("s_waitcnt lgkmcnt(0)")
        for i in range(8): a(f"v_mov_b32 v{D+i}, 0")
        la = self.opt.get("la", 0); L_S2 = 640
        if la:
            a(f"v_lshrrev_b32 v{T}, 2, v{V_N}"); a(f"v_mul_u32_u24 v{IDX}, 0x5555, v{T}")
            a(f"v_lshrrev_b32 v{SWR}, 5, v{V_L}"); a(f"v_lshlrev_b32 v{SWR}, 2, v{SWR}")
        if fw: self.stamp(6)
        if pb: a("s_barrier")
        if gs: self.poll(lambda: a(f"buffer_load_dword v{GA}, v{ROW}, s[{R_WS}:{R_WS+3}], s63 offen sc1"), lambda: self.untag([GA], V_T16, T, 0xffff), "PH")
        self.stamp(7)
        lds4 = [f"buffer_load_dwordx4 v[{B+4*i}:{B+4*i+3}], v{PAD}, s[{R_WS}:{R_WS+3}], s{65+i} offen sc1" for i in range(4)]
        def iss4():
            for x in lds4: a(x)
        if self.opt.get("pp"): self.ppoll(lds4, list(range(B, B + 16, 4)), [60, 62, 72, 78], T, "PA", hole="F")
        else: self.poll(iss4, lambda: self.untag(list(range(B, B + 16, 4)), V_T10, T, 0x3ff), "PA", hole="F")
        self.stamp(4)
        m, v, r, u, w = T, T + 1, T + 2, T + 3, T + 4
        for i in range(8): a(f"v_add_f32 v{B+i}, v{B+i}, v{B+8+i}")
        for i in (0, 2, 1, 3): a(f"v_add_f32 v{B+i}, v{B+i}, v{B+4+i}")
        a(f"v_permlane32_swap_b32 v{B}, v{B+2}"); a(f"v_permlane32_swap_b32 v{B+1}, v{B+3}")
        a(f"v_add_f32 v{B}, v{B}, v{B+2}"); a(f"v_add_f32 v{B+1}, v{B+1}, v{B+3}")
        a(f"v_permlane16_swap_b32 v{B}, v{B+1}")
        a(f"v_add_f32 v{A4}, v{B}, v{B+1}")
        bfr(a, A4, A4)
        a(f"v_mul_f32 v{A4}, v{GA}, v{A4}"); bfr(a, A4, A4)
        a(f"v_add_f32 v{A4}, v{XO}, v{A4}"); bfr(a, A4, A4)
        a(f"v_subrev_f32 v{m}, s100, v{A4}")
        a(f"v_mul_f32 v{X}, v{m}, v{CB}"); bfr(a, X, X)
        a(f"v_mul_f32 v{v}, v{m}, v{m}")
        st = [f"v_permlane32_swap_b32 v{m}, v{v}", f"v_add_f32 v{m}, v{m}, v{v}"]
        st += [f"v_add_f32_dpp v{m}, v{m}, v{m} {md} {dp}" for md in ("quad_perm:[1,0,3,2]", "quad_perm:[2,3,0,1]", "row_half_mirror", "row_mirror")]
        if la:
            st += [f"v_mul_f32 v{m}, {fh(1.0/640)}, v{m}", "s_mov_b32 s76, 0x10001", "s_mov_b32 s77, 0x10001", "s_mov_b64 exec, s[76:77]", f"ds_add_f32 v{SWR}, v{m} offset:{L_S2}", "s_mov_b64 exec, -1"]
            self.sgemv([(X, 0xf)], B, D, WB, IDX, st)
            for h in range(2): a(f"ds_add_f32 v{GPOS}, v{D+4*h} offset:{288*h}")
        else:
            st += [f"v_mov_b32 v{v}, v{m}", "s_mov_b32 s76, 1", f"v_permlane16_swap_b32 v{v}, v{m}", "s_mov_b32 s77, 1", f"v_add_f32 v{m}, v{m}, v{v}"]
            self.sgemv([(X, 0xf)], B, D, WB, IDX, st)
            a("s_mov_b64 exec, s[76:77]")
            a(f"ds_write_b32 v{SWR}, v{m} offset:{L_ST}")
            a("s_mov_b64 exec, 0xffff")
            for h in range(2): a(f"ds_write_b128 v{ADD}, v[{D+4*h}:{D+4*h+3}] offset:{L_ACC0+16*h}")
        if not fw: self.stamp(8)
        a("s_waitcnt lgkmcnt(0)"); a("s_barrier")
        if self.opt.get("ep", 0) >= 2:
            l = a.label("EP")
            a(f"s_or_b32 s62, s69, s{S_WAVE}"); a("s_cmp_lg_u32 s62, 0"); a(f"s_cbranch_scc1 {l}")
            a(f"v_mov_b32 v{T}, s{S_T}"); a(f"v_mov_b32 v{T+1}, 0")
            self.setexec(1, 0)
            a(f"buffer_store_dword v{T}, v{T+1}, s[{R_WS}:{R_WS+3}], 0 offen" + (" sc1" if self.opt["ep"] == 2 else ""))
            a(f"{l}:")
        if self.stamps:
            self.allexec()
            self.stamp(1)
            self.pw([5, 3, 6, 7, 8] if fw else [7, 4, 8, 1, -1])
            a(f"s_cmp_lg_u32 s{S_WAVE}, 0"); a("s_cbranch_scc1 L_end")
            self.flush_stamps(5, role='F'); self.flush_stamps(10, 7, role='F')
        a("s_endpgm")
        self.hole("F")
        a("L_fd:")
        DOFF, RD, SRD_, K = 58, 59, 60, 44
        Q = B
        rd = self.opt.get("rd", 0)
        a(f"s_cmp_ge_u32 s{S_WAVE}, {11 if rd else 15}"); a("s_cbranch_scc1 L_end")
        if not rd: srd(a, R_A, S_WD, 0 if self.opt.get("xd") else 640 * 1728 * 2)
        a(f"v_lshlrev_b32 v{SRD_}, 3, v{V_N}")
        if la:
            assert pb
            a(f"v_lshlrev_b32 v{T}, 4, v{V_L}"); a(f"ds_write_b128 v{T}, v[{D}:{D+3}]")
            a(f"v_and_b32 v{T}, 1, v{V_N}"); a(f"v_mul_u32_u24 v{SRD_}, 288, v{T}"); a(f"v_lshl_add_u32 v{SRD_}, v{V_G}, 6, v{SRD_}")
            a(f"v_lshrrev_b32 v{T}, 1, v{V_N}"); a(f"v_lshl_add_u32 v{SRD_}, v{T}, 2, v{SRD_}")
        else: a(f"ds_write_b64 v{SRD_}, v[{D}:{D+1}] offset:{L_ST}"); a(f"ds_write_b32 v{D}, v{D} offset:{L_CNT}")
        if rd:
            a(f"v_lshlrev_b32 v{DOFF}, 2, v{V_L}"); a("s_lshl_b32 s72, s69, 8"); a(f"s_add_u32 s72, s72, {WS_D}"); a("s_add_u32 s73, s72, 8192")
        else:
            a(f"s_sub_u32 s74, s{S_WAVE}, 10")
            a(f"v_mul_u32_u24 v{VO}, 1280, v{T+1}"); a(f"v_lshl_add_u32 v{VO}, v{V_N}, 4, v{VO}")
            a(f"s_mul_i32 s62, s69, {64*1280}"); a(f"s_lshl_b32 s63, s74, 8"); a("s_add_u32 s62, s62, s63")
            a(f"v_lshrrev_b32 v{T}, 3, v{V_N}"); a(f"v_mul_u32_u24 v{DOFF}, 16512, v{T}"); a(f"v_bfe_u32 v{T}, v{V_N}, 2, 1"); a(f"v_mul_u32_u24 v{T}, 3456, v{T}")
            a(f"v_add_u32 v{DOFF}, v{DOFF}, v{T}"); a(f"v_and_b32 v{T}, 3, v{V_N}"); a(f"v_lshl_add_u32 v{DOFF}, v{T}, 4, v{DOFF}"); a(f"v_lshl_add_u32 v{DOFF}, v{V_G}, 13, v{DOFF}")
            a("s_lshl_b32 s72, s69, 7"); a(f"s_mul_i32 s73, s74, {2*16512}"); a("s_add_u32 s72, s72, s73"); a(f"s_add_u32 s72, s72, {WS_D}")
        a(f"v_lshrrev_b32 v{T}, 1, v{V_G}"); a(f"v_mul_u32_u24 v{RD}, {5*GST-512}, v{T}"); a(f"v_lshl_add_u32 v{RD}, v{V_L}, 4, v{RD}")
        if rd and self.opt.get("fj"):
            a("s_mov_b32 s70, s72"); a("s_mov_b32 s71, s73")
            self.otrig(self.opt["fj"], T)
            a("s_mov_b32 s72, s70"); a("s_mov_b32 s73, s71")
        a("s_waitcnt lgkmcnt(0)"); a("s_barrier")
        if fw: self.stamp(1)
        for j in range(0 if rd else 16):
            if j and j % 2 == 0: a(f"s_add_u32 s62, s62, {(4 if j % 4 else 12)*1280}")
            if j >= td: a(f"s_waitcnt vmcnt({td-1})")
            a(f"buffer_load_dwordx4 v[{WB+4*j}:{WB+4*j+3}], v{VO}, s[{R_A}:{R_A+3}], s62 offen offset:{2560*(j&1)} nt")
        if fw: self.stamp(3)
        def colsum(acc, Z):
            for i in range(5): a(f"ds_read_b128 v[{Q+4*i}:{Q+4*i+3}], v{RD} offset:{acc+GST*i}")
            yield
            a("s_waitcnt lgkmcnt(3)")
            for i in (0, 2): a(f"v_pk_add_f32 v[{Q+i}:{Q+i+1}], v[{Q+i}:{Q+i+1}], v[{Q+4+i}:{Q+5+i}]")
            yield
            a("s_waitcnt lgkmcnt(1)")
            for i in (0, 2): a(f"v_pk_add_f32 v[{Q+8+i}:{Q+9+i}], v[{Q+8+i}:{Q+9+i}], v[{Q+12+i}:{Q+13+i}]")
            a("s_waitcnt lgkmcnt(0)")
            for i in (0, 2): a(f"v_pk_add_f32 v[{Q+i}:{Q+i+1}], v[{Q+i}:{Q+i+1}], v[{Q+16+i}:{Q+17+i}]")
            for i in (0, 2): a(f"v_pk_add_f32 v[{Q+i}:{Q+i+1}], v[{Q+i}:{Q+i+1}], v[{Q+8+i}:{Q+9+i}]")
            yield
            a(f"v_permlane32_swap_b32 v{Q}, v{Q+2}"); a(f"v_permlane32_swap_b32 v{Q+1}, v{Q+3}")
            yield
            a(f"v_pk_add_f32 v[{Z}:{Z+1}], v[{Q}:{Q+1}], v[{Q+2}:{Q+3}]")
            yield
            a(f"v_permlane16_swap_b32 v{Z}, v{Z+1}")
        if pb:
            a(f"s_waitcnt vmcnt({self.opt.get('pk', 0)})")
            if fw: self.stamp(4)
            a("s_barrier")
        else:
            lp, dn = a.label("CL"), a.label("CD")
            a(f"s_mov_b32 s{S_CNT}, 0")
            a(f"{lp}:")
            a(f"ds_read_b32 v{T+2}, v{D} offset:{L_CNT}"); a("s_waitcnt lgkmcnt(0)")
            a(f"v_cmp_eq_u32 vcc, 10, v{T+2}"); a(f"s_cbranch_vccnz {dn}")
            a(f"s_add_u32 s{S_CNT}, s{S_CNT}, 1"); a(f"s_cmp_lt_u32 s{S_CNT}, {SPIN*16}"); a(f"s_cbranch_scc1 {lp}")
            if self.opt.get("touch", 1): a(f"s_branch {dn}"); self.hole("F")
            a(f"{dn}:")
        for acc, Z in ((L_ACC1, K), (L_ACC2, K + 2)):
            for _ in colsum(acc, Z): pass
        a("s_waitcnt vmcnt(0)")
        if rd: a("s_mov_b32 s79, 0xffff")
        else: self.regroup(WB)
        self.stamp(9)
        self.hole("F", True)
        a("s_barrier")
        self.stamp(5)
        m, v, r = T + 2, T + 3, T + 4
        Z = T + 8
        if la:
            t1, t3, t4 = T + 5, T + 6, T + 7
            kk = -2 * 0.7978845608028654 * LOG2E
            a(f"ds_read_b64 v[{m}:{v}], v{D} offset:{L_S2}")
            a(f"ds_read2_b32 v[{Z}:{Z+1}], v{SRD_} offset0:0 offset1:8")
            a("s_waitcnt lgkmcnt(1)")
            a(f"v_fma_f32 v{v}, -v{m}, v{m}, v{v}"); a(f"v_add_f32 v{m}, s100, v{m}")
            a(f"v_cvt_pk_bf16_f32 v{v}, 0, |v{v}|"); a(f"v_cvt_pk_bf16_f32 v{m}, 0, v{m}")
            a(f"v_add_f32 v{v}, {fh(1e-5)}, v{v}"); a(f"v_sub_f32 v{m}, s100, v{m}")
            a(f"v_cvt_pk_bf16_f32 v{v}, 0, v{v}"); a(f"v_sqrt_f32 v{v}, v{v}")
            a("s_waitcnt lgkmcnt(0)")
            a(f"v_fmac_f32 v{Z}, v{m}, v{K}")
            a(f"v_cvt_pk_bf16_f32 v{v}, 0, v{v}"); a(f"v_rcp_f32 v{r}, v{v}")
            a(f"v_fmac_f32 v{Z+1}, v{m}, v{K+1}")
            a(f"v_fma_f32 v{Z}, v{Z}, v{r}, v{K+2}")
            bfr(a, Z, Z)
            a(f"v_mul_f32 v{t3}, v{Z}, v{Z}"); a(f"v_mul_f32 v{t4}, {fh(kk*0.044715)}, v{Z}"); a(f"v_mul_f32 v{t1}, {fh(kk)}, v{Z}")
            a(f"v_fmac_f32 v{t1}, v{t4}, v{t3}")
        else:
            a(f"ds_read_b64 v[{m}:{v}], v{SRD_} offset:{L_ST}")
            cr = colsum(L_ACC0, Z); next(cr)
            a("s_waitcnt lgkmcnt(5)")
            mds = ("quad_perm:[1,0,3,2]", "quad_perm:[2,3,0,1]", "row_half_mirror", "row_mirror")
            st = []
            for md in mds: st.append([f"v_add_f32_dpp v{q}, v{q}, v{q} {md} {dp}" for q in (m, v)])
            st.append([f"v_mul_f32 v{m}, {fh(1.0/640)}, v{m}", f"v_mul_f32 v{v}, {fh(1.0/640)}, v{v}"])
            st.append([f"v_fma_f32 v{v}, -v{m}, v{m}, v{v}", f"v_add_f32 v{m}, s100, v{m}", f"v_max_f32 v{v}, 0, v{v}"])
            st.append([f"v_cvt_pk_bf16_f32 v{m}, 0, v{m}", f"v_cvt_pk_bf16_f32 v{v}, 0, v{v}",
                       f"v_add_f32 v{v}, {fh(1e-5)}, v{v}", f"v_sub_f32 v{m}, s100, v{m}", f"v_cvt_pk_bf16_f32 v{v}, 0, v{v}", f"v_sqrt_f32 v{v}, v{v}"])
            for x in st[0]: a(x)
            for grp in st[1:]:
                next(cr, None)
                for x in grp: a(x)
            for _ in cr: pass
            a(f"v_fmac_f32 v{Z}, v{m}, v{K}")
            a(f"v_cvt_pk_bf16_f32 v{v}, 0, v{v}"); a(f"v_rcp_f32 v{r}, v{v}")
            a(f"v_fmac_f32 v{Z+1}, v{m}, v{K+1}")
            a(f"v_fma_f32 v{Z}, v{Z}, v{r}, v{K+2}")
            bfr(a, Z, Z)
            t1, t3 = T + 5, T + 6
            kk = -2 * 0.7978845608028654 * LOG2E
            a(f"v_mul_f32 v{t3}, v{Z}, v{Z}")
            a(f"v_mul_f32 v{t1}, {fh(kk)}, v{Z}")
            a(f"v_fmaak_f32 v{t3}, s71, v{t3}, 1.0") if False else None
            a(f"v_mul_f32 v{t3}, {fh(0.044715)}, v{t3}")
            a(f"v_fmac_f32 v{t1}, v{t1}, v{t3}")
        a(f"v_exp_f32 v{t1}, v{t1}")
        a(f"v_fma_f32 v{Z+1}, v{Z+1}, v{r}, v{K+3}")
        a(f"v_add_f32 v{t1}, 1.0, v{t1}")
        a(f"v_rcp_f32 v{t1}, v{t1}")
        bfr(a, Z + 1, Z + 1)
        a(f"v_mul_f32 v{X}, v{Z}, v{t1}"); bfr(a, X, X)
        a(f"v_mul_f32 v{X}, v{X}, v{Z+1}"); bfr(a, X, X)
        if self.opt.get("pw"): self.stamp(2)
        if rd:
            a(f"v_or_b32 v{X}, v{X}, v{V_T16}")
            for h in range(2): a(f"buffer_store_dword v{X}, v{DOFF}, s[{R_WS}:{R_WS+3}], s{72+h} offen sc1")
        else:
            self.sgemv([(X, 0xf)], B, D, WB, IDX)
            a("s_mov_b32 exec_hi, 0")
            for h in range(2):
                a(f"v_bfi_b32 v{D+4*h}, s{S_M10}, v{V_T10}, v{D+4*h}")
                a(f"buffer_store_dwordx4 v[{D+4*h}:{D+4*h+3}], v{DOFF}, s[{R_WS}:{R_WS+3}], s72 offen offset:{64*h} sc1")
        if self.stamps:
            self.allexec()
            self.stamp(6)
            self.pw([1, 3, 4, 9, -1] if fw else [5, 2, 6, 9, -1])
            a(f"s_cmp_lg_u32 s{S_WAVE}, {self.opt.get('sw', 10 if rd else 14)}"); a("s_cbranch_scc1 L_end")
            self.flush_stamps(7, 5, role='F')
        a("s_endpgm")

    def role_mw(self):
        a = self.a
        X, B, D1, Y, T, ADD, CPOS, UOFF, P = self.X, self.B, self.D1, self.Y, self.T, self.ADD, self.CPOS, self.UOFF, self.P
        WO, AD, C, ML, O, RA, VA, CW = 64, 52, 58, 80, 84, 62, 63, 87
        dp = "row_mask:0xf bank_mask:0xf"
        self.hole("F")
        a("L_mw:")
        t0, t1, t5, t6 = T, T + 1, T + 2, T + 3
        a(f"v_bfe_u32 v{t0}, v{V_N}, 2, 1"); a(f"v_mul_u32_u24 v{t0}, 3, v{t0}"); a(f"v_lshrrev_b32 v{t1}, 3, v{V_N}")
        a(f"s_lshl_b32 s77, s{S_WAVE}, 5")
        a(f"v_lshl_add_u32 v{AD+1}, v{t0}, 2, s77"); a(f"v_lshl_add_u32 v{AD}, v{t1}, 2, v{AD+1}")
        a(f"v_and_b32 v{t5}, 3, v{V_N}"); a(f"v_lshlrev_b32 v{t5}, 2, v{t5}")
        a(f"v_lshrrev_b32 v{t6}, 3, v{V_L}"); a(f"v_lshl_add_u32 v{t5}, v{t6}, 4, v{t5}")
        a(f"v_lshl_add_u32 v{AD+4}, v{t0}, 9, v{t5}"); a(f"v_lshl_add_u32 v{AD+2}, v{t1}, 9, v{AD+4}")
        a(f"v_xor_b32 v{t1}, 1, v{t1}"); a(f"v_lshl_add_u32 v{AD+3}, v{t1}, 9, v{AD+4}"); a(f"v_lshl_add_u32 v{AD+5}, v{t1}, 2, v{AD+1}")
        a(f"v_and_b32 v{T}, 7, v{V_L}"); a(f"v_cmp_gt_u32 vcc, 6, v{T}"); a(f"v_cndmask_b32 v{VA}, 0, 1.0, vcc")
        a(f"v_lshl_add_u32 v{CW}, v{T}, 2, s77")
        a(f"v_min_u32 v{T}, 5, v{T}"); a(f"v_lshlrev_b32 v{RA}, 4, v{T}")
        a("s_lshl_b32 s69, s74, 7"); a(f"s_add_u32 s69, s69, {WS_ML}")
        a("s_mul_i32 s70, s74, 3072"); a("s_lshl_b32 s75, s75, 7"); a("s_add_u32 s70, s70, s75"); a(f"s_add_u32 s70, s70, {WS_O}")
        a(f"s_lshr_b32 s63, s{S_WAVE}, 3"); a("s_mul_i32 s64, s63, 2560"); a(f"s_mul_i32 s63, s63, {8*PST}"); a(f"v_add_u32 v{CPOS}, s63, v{CPOS}")
        a("s_lshl_b32 s62, s72, 14"); a("s_add_u32 s62, s62, s64"); a("s_lshl_b32 s64, s73, 8"); a("s_add_u32 s62, s62, s64"); a(f"s_add_u32 s62, s62, {WS_A}")
        a(f"v_and_b32 v{T}, 1, v{V_L}"); a(f"v_lshl_add_u32 v{UOFF}, v{T}, 13, v{UOFF}")
        a("s_getreg_b32 s68, hwreg(HW_REG_XCC_ID, 0, 4)"); a("s_lshl_b32 s68, s68, 10")
        a(f"s_and_b32 s71, s{S_WAVE}, 7"); a("s_mov_b32 s75, 0")
        a("s_branch L_mw_go")
        a("L_mw_real:")
        a("s_mov_b32 s75, 1")
        if self.stamps and self.opt.get("pw"): a("s_waitcnt vmcnt(0)"); self.stamp(5)
        self.poll(lambda: a(f"buffer_load_dwordx4 v[{ML}:{ML+3}], v{RA}, s[{R_WS}:{R_WS+3}], s69 offen sc1"), lambda: self.untag(list(range(ML, ML + 4)), V_T10, T, 0x3ff), "PM")
        r8 = ("quad_perm:[1,0,3,2]", "quad_perm:[2,3,0,1]", "row_half_mirror")
        a(f"v_max_f32_dpp v{T}, v{ML}, v{ML} {r8[0]} {dp}")
        a(f"v_cmp_ne_u32 vcc, s68, v{ML+2}")
        for m in r8[1:]: a(f"v_max_f32_dpp v{T}, v{T}, v{T} {m} {dp}")
        a(f"v_mul_f32 v{ML+1}, v{ML+1}, v{VA}")
        a(f"v_sub_f32 v{ML}, v{ML}, v{T}"); a(f"v_mul_f32 v{ML}, {fh(LOG2E)}, v{ML}"); a(f"v_exp_f32 v{ML}, v{ML}")
        a("s_cmp_eq_u64 vcc, 0"); a(f"s_cselect_b32 s77, {WS_ON-WS_O}, 0"); a("s_add_u32 s70, s70, s77")
        a(f"v_mul_f32 v{T}, v{ML}, v{ML+1}")
        for m in r8: a(f"v_add_f32_dpp v{T}, v{T}, v{T} {m} {dp}")
        a(f"v_rcp_f32 v{T}, v{T}")
        a(f"v_mul_f32 v{ML}, v{ML}, v{T}")
        a(f"ds_write_b32 v{CW}, v{ML}")
        a(f"ds_read_b32 v{C}, v{AD}"); a(f"ds_read_b32 v{C+1}, v{AD+5}"); a(f"ds_read_b32 v{C+2}, v{AD+1} offset:8")
        self.stamp(7)
        def isso():
            for j in range(3): a(f"buffer_load_dword v{O+j}, v{AD+2+j}, s[{R_WS}:{R_WS+3}], s70 offen offset:{1024 if j == 2 else 0} sc1")
        self.poll(isso, lambda: self.untag(list(range(O, O + 3)), V_T10, T + 1, 0x3ff), "PO")
        a("s_waitcnt lgkmcnt(0)")
        self.stamp(8)
        a("L_mw_go:")
        a(f"v_mul_f32 v{X}, v{C}, v{O}"); a(f"v_fmac_f32 v{X}, v{C+1}, v{O+1}"); a(f"v_fmac_f32 v{X}, v{C+2}, v{O+2}")
        a(f"v_add_f32_dpp v{X}, v{X}, v{X} row_shl:4 row_mask:0xf bank_mask:0x5")
        a(f"v_cvt_pk_bf16_f32 v{X}, v{X}, v{X}")
        self.gemv(X, P, B, [(D1, WO)], 4)
        self.fold_col(D1, None, Y)
        self.putpart(ADD, Y, L_ACC2)
        a("s_waitcnt lgkmcnt(0)"); a("s_barrier")
        a("s_cmp_lg_u32 s71, 0"); a("s_cbranch_scc1 L_mw_n")
        self.publish(L_ACC2, CPOS, UOFF, 62, 88, False, dual=True, half=True, one=True, gate=("s75", "L_mw_real"))
        self.stamp(6)
        a("L_mw_n:")
        a("s_cmp_eq_u32 s75, 0"); a("s_cbranch_scc1 L_mw_real")
        a(f"s_cmp_eq_u32 s{S_WAVE}, 2"); a("s_cbranch_scc1 L_red")
        self.pw([7, 8, 6, 5, -1, "s72"])
        a("s_endpgm")

    def breaks(self, L):
        import subprocess, re
        txt = "\n".join(l for l in L if not l.strip().startswith((".", ";"))) + "\n"
        o = subprocess.run(["llvm-mc", "-arch=amdgcn", "-mcpu=gfx950", "-show-encoding"], input=txt, capture_output=True, text=True)
        assert o.returncode == 0, o.stderr
        sz = [len(m.split(",")) for m in re.findall(r"encoding: \[([^\]]*)\]", o.stdout)]
        out = []; pos = None; k = 0; grp = "F"; prev = ""; pend = []
        for ln in L:
            t = ln.strip()
            if t.startswith(".p2alignl"): pos = 0; out.append(ln); continue
            if t.startswith("; GRP"): grp = t.split()[-1]
            if t.startswith((".", ";")) or not t:
                (pend if pend else out).append(ln); continue
            if t.endswith(":"): pend.append(ln); continue
            n = sz[k]; k += 1
            if pos is not None:
                term = prev.startswith(("s_branch", "s_endpgm"))
                last = t.startswith(("s_branch", "s_endpgm"))
                if pos + n + (0 if last else 4) > 4096 or (term and pos + 60 > 4096):
                    ishole = t.startswith("s_branch L_ret")
                    l = self.a.label("B" + grp)
                    if not term: out.append(f"    s_branch {l}x")
                    out.append("    .p2alignl 12, 0xbf810000"); pos = 0
                    if not ishole:
                        self.holes[grp].append(l); out += [f"{l}:", f"    s_branch L_ret{grp}"]; pos = 4
                    if not term: out.append(f"{l}x:")
                pos += n
            out += pend; pend = []
            out.append(ln); prev = t
        assert k == len(sz) and not pend
        return out

    def build(self):
        a = self.a
        a("s_cmp_ge_u32 s2, 256"); a("s_cbranch_scc1 L_end")
        a("s_load_dwordx16 s[4:19], s[0:1], 0"); a("s_load_dwordx8 s[20:27], s[0:1], 64"); a("s_load_dwordx2 s[28:29], s[0:1], 104")
        self.stamp(0)
        a("v_lshrrev_b32 v2, 6, v0"); a(f"v_and_b32 v{V_L}, 63, v0"); a(f"v_readfirstlane_b32 s{S_WAVE}, v2")
        a(f"v_bfe_u32 v{V_G}, v0, 4, 2"); a(f"v_and_b32 v{V_N}, 15, v0")
        if self.opt.get("remap", 1) == 2:
            order = self.opt.get("xo", [5, 4, 0, 1, 2, 3, 7, 6])
            lut = sum(order.index(x) << (4 * x) for x in range(8))
            a("s_and_b32 s3, s2, 7"); a("s_lshl_b32 s3, s3, 2"); a(f"s_lshr_b32 s3, {lut:#x}, s3"); a("s_and_b32 s3, s3, 7")
            a("s_lshl_b32 s3, s3, 5"); a("s_lshr_b32 s2, s2, 3"); a("s_or_b32 s2, s2, s3")
        a("s_cmp_lt_u32 s2, 64"); a("s_cbranch_scc1 L_front")
        def mid():
            a("L_end:"); a("s_endpgm")
            a("L_front:")
            if self.opt.get("remap", 1) == 1:
                a("s_and_b32 s3, s2, 7"); a("s_cmp_ge_u32 s3, 4"); a("s_cselect_b32 s60, 3, 0"); a("s_xor_b32 s60, s3, s60")
                a("s_lshl_b32 s60, s60, 3"); a("s_lshr_b32 s2, s2, 3"); a("s_or_b32 s2, s2, s60")
            self.front()
            self.role_m()
        self.attention(mid)
        if self.opt.get("f3"): self.role_f3()
        elif self.opt.get("f2"): self.role_f2()
        else: self.role_f()
        if self.opt.get("mw"): self.role_mw()
        L = hz.fix(a.l)
        if self.opt.get("touch", 1) and self.opt.get("pg", 1): L = self.breaks(L)
        L2 = []
        for ln in L:
            if ln.strip().startswith("; TOUCH"):
                hs = self.holes[ln.split()[-1]]; assert len(hs) <= 16
                for k, h in enumerate(hs): L2 += [f"    s_cmp_eq_u32 s{S_WAVE}, {15-k}", f"    s_cbranch_scc1 {h}"]
            elif ln.strip().startswith("; GRP"): pass
            else: L2.append(ln)
        body = "\n".join(L2) + "\n"
        return wrap([(NAME + "_kernel", body, 128, 102, 128)], [(NAME + "_kernel", 256, 1024, LDS)])


if __name__ == "__main__":
    import json
    variants = json.loads(sys.argv[1]) if len(sys.argv) > 1 else {"g": {}}
    for nm, o in variants.items():
        thr = o.get("thr", 2)
        open(nm + "_st.s", "w").write(G(stamps=True, thr=thr, opt=o).build())
        open(nm + ".s", "w").write(G(stamps=False, thr=thr, opt=o).build())
```

```python
import re
TRANS = ("v_exp_f32", "v_log_f32", "v_rcp_f32", "v_rsq_f32", "v_sqrt_f32", "v_sin_f32", "v_cos_f32", "v_rcp_iflag_f32", "v_exp_f16", "v_rcp_f16")
def regs(op):
    op = op.strip()
    op = re.sub(r"^-?\|?|\|$", "", op)
    if op.startswith("neg(") or op.startswith("abs("): op = op[4:-1]
    m = re.fullmatch(r"([vsa])\[(\d+):(\d+)\]", op)
    if m: return {f"{m.group(1)}{i}" for i in range(int(m.group(2)), int(m.group(3)) + 1)}
    m = re.fullmatch(r"([vsa])(\d+)", op)
    if m: return {op}
    if op in ("vcc", "vcc_lo", "vcc_hi"): return {"vcc"}
    if op in ("exec", "exec_lo", "exec_hi"): return {"exec"}
    if op == "m0": return {"m0"}
    return set()
def split_ops(s):
    out = []; d = 0; cur = ""
    for ch in s:
        if ch == "[": d += 1
        if ch == "]": d -= 1
        if ch == "," and d == 0: out.append(cur); cur = ""
        else: cur += ch
    if cur.strip(): out.append(cur)
    return out
class I:
    def __init__(self, line):
        self.line = line
        t = line.split(";")[0].strip()
        self.label = t.endswith(":")
        self.empty = (t == "" or t.startswith("."))
        self.op = ""; self.dst = set(); self.src = set(); self.mods = ""
        if self.label or self.empty: return
        p = t.split(None, 1); self.op = op = p[0]; rest = p[1] if len(p) > 1 else ""
        ops = split_ops(rest)
        if ops:
            last = ops[-1].strip().split(None, 1)
            ops[-1] = last[0]; self.mods = last[1] if len(last) > 1 else ""
        R = [regs(o) for o in ops]
        self.R = R
        self.valu = op.startswith("v_")
        self.mfma = op.startswith(("v_mfma", "v_smfmac"))
        if op.startswith("v_smfmac"): R = [R[0], R[1], R[2] | R[3], R[0]]; self.R = R
        self.dot = op.startswith("v_dot")
        self.vmem = op.startswith(("buffer_", "global_", "flat_"))
        self.ds = op.startswith("ds_")
        self.salu = op.startswith("s_")
        self.dpp = ("_dpp" in op) or bool(re.search(r"quad_perm|row_sh|row_ro|row_mirror|row_half|row_bcast|row_newbcast|wave_", self.mods))
        self.sdwa = "_sdwa" in op or "op_sel" in self.mods
        base = re.sub(r"_(e32|e64|dpp|sdwa)$", "", op); self.base = base
        allr = set().union(*R) if R else set()
        if self.vmem:
            st = "store" in op or ("atomic" in op and "sc0" not in self.mods)
            lds = re.search(r"\blds\b", self.mods) or "load_lds" in op
            if st or lds: self.src = allr
            elif "atomic" in op and op.startswith("buffer_"): self.dst = R[0]; self.src = allr
            else: self.dst = R[0]; self.src = set().union(*R[1:])
            if lds: self.src |= {"m0"}
            self.lds = bool(lds)
            self.wide = st and re.search(r"x[34]$", op)
            self.data = (R[0] if op.startswith("buffer_") else R[1]) if st else set()
        elif self.ds:
            if re.match(r"ds_(read|bpermute|permute|swizzle)", op) or "_rtn" in op: self.dst = R[0]; self.src = set().union(*R[1:])
            else: self.src = allr
        elif self.valu:
            if base.startswith("v_cmpx"): self.dst = {"exec"} | (R[0] if len(R) == 3 else set()); self.src = allr - self.dst
            elif base.startswith("v_permlane") and "swap" in base or base == "v_swap_b32": self.dst = allr; self.src = allr
            elif re.match(r"v_(add|sub|subrev)_co_u32|v_div_scale", base): self.dst = R[0] | R[1]; self.src = set().union(*R[2:])
            elif re.match(r"v_(addc|subb|subbrev)_co_u32", base): self.dst = R[0] | R[1]; self.src = set().union(*R[2:])
            elif base == "v_nop": pass
            else:
                self.dst = R[0]; self.src = set().union(*R[1:]) if len(R) > 1 else set()
                if re.match(r"v_(fmac|mac|dot2c|dot4c|pk_fmac|writelane)", base) or (self.dpp and not re.search(r"(row_newbcast|quad_perm)\S+ row_mask:0xf bank_mask:0xf", self.mods)) or self.sdwa: self.src |= R[0]
                if base == "v_cndmask_b32" and len(R) == 3: self.src |= {"vcc"}
                if base == "v_div_fmas_f32": self.src |= {"vcc"}
        elif self.salu:
            if re.match(r"s_(cmp|cbranch|branch|waitcnt|nop|barrier|endpgm|setprio|sleep|bitcmp|setreg)", op): self.src = allr
            else:
                self.dst = R[0] if R else set(); self.src = set().union(*R[1:]) if len(R) > 1 else set()
                if "saveexec" in op: self.dst |= {"exec"}
    def passes(self):
        if "32x32x16" in self.op or "32x32x8" in self.op: return 8
        if "16x16x32" in self.op or "16x16x16" in self.op or "smfmac_f32_16x16x64" in self.op: return 4
        if "16x16x4_f32" in self.op or "16x16x4f32" in self.op: return 8
        if "32x32x2" in self.op: return 16
        raise Exception("mfma passes? " + self.op)
def need(p, c):
    n = 0
    pv = {r for r in p.dst if r[0] in "va" and r != "vcc"}
    ps = {r for r in p.dst if r[0] == "s" or r == "vcc"}
    if p.valu and not p.mfma:
        if ps & c.src:
            if c.valu:
                n = max(n, 2)
                if c.base in ("v_readlane_b32", "v_writelane_b32") and ps & c.R[2]: n = max(n, 4)
                if c.base == "v_div_fmas_f32": n = max(n, 4)
            if c.vmem: n = max(n, 5)
        if "exec" in p.dst and c.valu: n = max(n, 5)
        if pv & c.src and c.valu:
            if c.dpp: n = max(n, 2)
            if c.base in ("v_readlane_b32", "v_readfirstlane_b32"): n = max(n, 1)
            if c.base.startswith("v_permlane"): n = max(n, 2)
            if c.mfma: n = max(n, 2)
            if p.base in TRANS: n = max(n, 1)
            if p.sdwa: n = max(n, 1)
        if p.sdwa and pv & c.dst and c.valu: n = max(n, 1)
        if p.base in TRANS and pv & c.src and (c.vmem or c.ds): n = max(n, 1)
        if p.dot and (pv & (c.src | c.dst)):
            same_c = c.dot and c.base == p.base and not (pv & (c.R[1] | c.R[2]))
            if not same_c: n = max(n, 3)
    if p.mfma:
        k = p.passes(); sg = "f32_16x16x4" in p.op or "32x32x2" in p.op
        full = {2: 5, 4: 8, 8: 12, 16: 20}[k] if not sg else {2: 4, 4: 6, 8: 10, 16: 18}[k]
        if c.mfma:
            if pv & (c.R[1] | c.R[2]): n = max(n, full)
            if pv & c.R[3]:
                if not (c.R[3] == p.R[0] and c.passes() == k): n = max(n, {2: 4, 4: 6, 8: 10, 16: 18}[k])
            elif pv & c.dst: n = max(n, full)
        elif pv & (c.src | c.dst): n = max(n, full)
        if not c.mfma and c.valu and (p.R[3] & c.dst): n = max(n, {2: 1, 4: 3, 8: 7, 16: 15}[k])
    if p.vmem and getattr(p, "wide", None) and (p.data & c.dst): n = max(n, 2)
    if p.salu and "m0" in p.dst and "m0" in c.src and not c.salu: n = max(n, 1)
    return n
def maxneed(p):
    if p.mfma: return {2: 5, 4: 8, 8: 12, 16: 20}[p.passes()]
    if p.valu:
        if "exec" in p.dst: return 5
        if any(r[0] == "s" for r in p.dst): return 5
        if p.dot: return 3
        return 2
    if p.vmem and getattr(p, "wide", None): return 2
    if p.salu and "m0" in p.dst: return 1
    return 0
def fix(lines):
    out = []; win = []
    npad = 0
    for ln in lines:
        c = I(ln)
        if c.label or c.empty:
            out.append(ln); continue
        pad = 0
        br = c.op.startswith(("s_cbranch", "s_branch"))
        for p, d in win:
            pad = max(pad, need(p, c) - d)
            if br: pad = max(pad, maxneed(p) - d - 1)
        if pad > 0:
            k = pad
            while k > 0:
                t = min(k, 16); out.append(f"    s_nop {t-1}"); k -= t
            win = [(p, d + pad) for p, d in win]; npad += 1
        st = 1
        if c.op == "s_nop": st = int(c.line.split()[1]) + 1
        win = [(p, d + st) for p, d in win if d + st < 21]
        if c.op in ("s_endpgm", "s_branch"): win = []
        win.append((c, 0))
        out.append(ln)
    return out
```

```python
import sys, json
import gen11
spec = json.load(open(sys.argv[1]))
base = spec["base"]; rep = spec.get("rep", 1); txt = {}
for nm, d in spec["var"].items():
    if "file" in d: txt[nm] = open(d["file"]).read(); continue
    o = dict(base); o.update(d); o = {k: v for k, v in o.items() if v is not None}
    txt[nm] = gen11.G(stamps=False, thr=o.get("thr", 2), opt=o).build()
out = []
for r in range(rep):
    for nm in txt:
        open(f"s_{nm}-{r}.s", "w").write(txt[nm]); out.append(f"s_{nm}-{r}.s")
print(" ".join(out))
```

```python
import sys
from asmlib import *
from mathlib import *
import hz

WS_CR = 0x64000
WS_TK = 0x5800
WS_VOTE, WS_RC, WS_ON = 0x5000, 0x6c000, 0x70000
WS_MOD, WS_Q, WS_ML, WS_O, WS_A, WS_D, WS_SIZE = 0x1000, 0x8000, 0x10000, 0x20000, 0x40000, 0x90000, 0xe0000
SPIN = 30000
NW, NM, NF, NWO = 20, 37, 27, 80
PST = 576
L_CNT = 260
L_RK = 264
L_COEF, L_NEAR, L_TK = 512, 640, 656
L_Q, L_FLAG, L_MAX, L_SUM, L_ST, L_ACT = 0, 256, 320, 384, 512, 768
L_ACC0, L_ACC1, L_ACC2 = 1024, 1024 + 16 * PST, 1024 + 32 * PST
LDS = 1024 + 48 * PST
S_X, S_K, S_V, S_WQ, S_WO, S_WG, S_WU, S_WD, S_C, S_WM, S_OUT, S_WS = 4, 6, 8, 10, 12, 16, 18, 20, 22, 24, 26, 28
S_WAVE, S_T, S_CNT, S_M10 = 30, 31, 34, 35
R_WS, R_A, R_B, R_C, R_D, R_E = 36, 40, 44, 48, 52, 56
S_TMP = 60
S_ST = 80
V_HM, V_L, V_G, V_N, V_M, V_T16, V_T10 = 0, 1, 2, 3, 4, 8, 9
MFMA = "v_mfma_f32_16x16x32_bf16"


class G:
    def __init__(self, stamps=False, thr=2, pat="contig", opt=None):
        self.a = A(); self.stamps = stamps; self.thr = thr; self.pat = pat; self.opt = opt or {}; self.holes = {}

    def stamp(self, i, f=False):
        if self.opt.get("s0") and not f and i in (1, 2, 5, 6, 7): return
        if self.stamps: self.a(f"s_memrealtime s[{S_ST+2*i}:{S_ST+2*i+1}]")

    DBG = dict(W={0: 0, 1: 1, 3: 2, 5: 3, 7: 4, 8: 5}, M={0: 0, 1: 6, 2: 7, 3: 8}, F={0: 0, 3: 9, 4: 10, 6: 11}, A={0: 0, 1: 12, 2: 13, 4: 14})
    def flush_stamps(self, n, first=0, role=None):
        if not self.stamps: return
        a = self.a
        if self.opt.get("dbg"):
            a("s_load_dwordx2 s[60:61], s[0:1], 96")
            a("s_waitcnt lgkmcnt(0)")
            a("v_mov_b32 v10, 0")
            self.setexec(1, 0)
            for j in range(first, n):
                if j not in self.DBG[role]: continue
                a(f"v_mov_b32 v12, s{S_ST+2*j}")
                if j == 0:
                    a(f"global_atomic_umax v10, v12, s[60:61] offset:60")
                    a("v_not_b32 v12, v12")
                a(f"global_atomic_umax v10, v12, s[60:61] offset:{4*self.DBG[role][j]}")
            return
        a("s_waitcnt lgkmcnt(0)")
        a(f"s_lshl_b32 s60, s2, 7"); a(f"s_add_u32 s60, s{S_WS}, s60"); a(f"s_addc_u32 s61, s{S_WS+1}, 0")
        a("s_add_u32 s60, s60, 0x10000000"); a("s_addc_u32 s61, s61, 0")
        a("v_mov_b32 v10, 0")
        for j in range(first, n):
            a(f"v_mov_b32 v12, s{S_ST+2*j}"); a(f"v_mov_b32 v13, s{S_ST+2*j+1}")
            a(f"global_store_dwordx2 v10, v[12:13], s[60:61] offset:{8*j}")

    def pw(self, js):
        if not (self.stamps and self.opt.get("pw")): return
        a = self.a
        a("s_waitcnt lgkmcnt(0)")
        a(f"s_lshl_b32 s60, s2, 9"); a(f"s_lshl_b32 s61, s{S_WAVE}, 5"); a("s_add_u32 s60, s60, s61"); a(f"s_add_u32 s60, s{S_WS}, s60"); a(f"s_addc_u32 s61, s{S_WS+1}, 0")
        a("s_add_u32 s60, s60, 0x10400000"); a("s_addc_u32 s61, s61, 0")
        a("v_mov_b32 v10, 0")
        for k, j in enumerate(js):
            a(f"v_mov_b32 v12, {j}" if isinstance(j, str) else f"v_mov_b32 v12, s{S_ST+2*j}" if j >= 0 else f"v_mov_b32 v12, s{S_CNT}")
            a(f"global_store_dword v10, v12, s[60:61] offset:{4*k}")

    def hole(self, grp, skip=False):
        if not self.opt.get("touch", 1): return
        a = self.a
        l = a.label("H" + grp); self.holes.setdefault(grp, []).append(l)
        if skip: a(f"s_branch {l}x")
        a(f"{l}:"); a(f"s_branch L_ret{grp}")
        if skip: a(f"{l}x:")

    def page(self, grp):
        if self.opt.get("pg", 1): self.a(".p2alignl 12, 0xbf810000")
        self.hole(grp)

    def touch(self, grp):
        if self.opt.get("touch", 1): self.a(f"; TOUCH {grp}"); self.a(f"L_ret{grp}:")

    def setexec(self, lo, hi):
        self.a(f"s_mov_b32 exec_lo, {lo:#x}"); self.a(f"s_mov_b32 exec_hi, {hi:#x}")

    def allexec(self): self.a("s_mov_b64 exec, -1")

    def masks(self, t0):
        a = self.a
        a(f"v_and_b32 v{t0}, 1, v{V_N}"); a(f"v_lshlrev_b32 v{t0}, 4, v{t0}")
        a(f"v_mov_b32 v{t0+1}, 0xffff"); a(f"v_lshlrev_b32 v{V_HM}, v{t0}, v{t0+1}")
        a(f"v_bfe_u32 v{t0+1}, v{V_N}, 1, 2")
        for k in range(4):
            a(f"v_cmp_eq_u32 vcc, {k}, v{t0+1}"); a(f"v_cndmask_b32 v{V_M+k}, 0, 1.0, vcc")

    def spread(self, B, P):
        assert P % 2 == 0 and B % 2 == 0
        for k in (0, 2):
            self.a(f"v_pk_mul_f32 v[{B+k}:{B+k+1}], v[{P}:{P+1}], v[{V_M+k}:{V_M+k+1}] op_sel:[0,0] op_sel_hi:[0,1]")

    def tags(self):
        a = self.a
        a(f"s_add_u32 s{S_T}, s{S_T}, 1")
        a(f"s_and_b32 s32, s{S_T}, 0xffff"); a(f"s_and_b32 s33, s{S_T}, 0x3ff")
        a(f"v_mov_b32 v{V_T16}, s32"); a(f"v_mov_b32 v{V_T10}, s33")
        a(f"s_mov_b32 s{S_M10}, 0x3ff")

    def poll(self, issue, check, name="P", hole=None):
        a = self.a
        lp, dn = a.label(name), a.label(name + "d")
        a(f"s_mov_b32 s{S_CNT}, 0")
        a(f"{lp}:")
        issue()
        a("s_waitcnt vmcnt(0)")
        check()
        a(f"s_cbranch_vccz {dn}")
        a(f"s_add_u32 s{S_CNT}, s{S_CNT}, 1"); a(f"s_cmp_lt_u32 s{S_CNT}, {SPIN}"); a(f"s_cbranch_scc1 {lp}")
        if hole and self.opt.get("touch", 1): a(f"s_branch {dn}"); self.hole(hole)
        a(f"{dn}:")

    def ppoll(self, loads, regs, ms, t, name="P", hole=None):
        a = self.a
        lp, dn = a.label(name), a.label(name + "d")
        a(f"s_mov_b32 s{S_CNT}, 0")
        for m in ms: a(f"s_mov_b64 s[{m}:{m+1}], -1")
        a(f"{lp}:")
        for ld, m in zip(loads, ms):
            l = a.label("SK")
            a(f"s_cmp_eq_u64 s[{m}:{m+1}], 0"); a(f"s_cbranch_scc1 {l}"); a(ld); a(f"{l}:")
        a("s_waitcnt vmcnt(0)")
        for i, r in enumerate(regs): a(f"v_and_b32 v{t+i}, s{S_M10}, v{r}")
        for i, m in enumerate(ms): a(f"v_cmp_ne_u32 s[{m}:{m+1}], v{t+i}, v{V_T10}")
        if len(ms) == 1: a(f"s_cmp_lg_u64 s[{ms[0]}:{ms[0]+1}], 0")
        else:
            a(f"s_or_b64 vcc, s[{ms[0]}:{ms[0]+1}], s[{ms[1]}:{ms[1]+1}]")
            for m in ms[2:]: a(f"s_or_b64 vcc, vcc, s[{m}:{m+1}]")
        a(f"s_cbranch_scc0 {dn}")
        a(f"s_add_u32 s{S_CNT}, s{S_CNT}, 1"); a(f"s_cmp_lt_u32 s{S_CNT}, {SPIN}"); a(f"s_cbranch_scc1 {lp}")
        if hole and self.opt.get("touch", 1): a(f"s_branch {dn}"); self.hole(hole)
        a(f"{dn}:")
        for r in regs: a(f"v_xor_b32 v{r}, v{r}, v{V_T10}")

    def voteld(self, v, t):
        self.a(f"buffer_load_dword v{v}, v{t}, s[{R_WS}:{R_WS+3}], s75 offen sc1")

    def side(self, v, d):
        a = self.a
        sd = self.opt.get("side", 2)
        if sd == 2:
            a(f"s_lshl_b32 s76, s{S_T}, 2"); a("s_or_b32 s77, s76, 1"); a("s_or_b32 s76, s76, 2")
            a(f"v_cmp_eq_u32 vcc, s77, v{v}"); a("s_bcnt1_i32_b64 s77, vcc")
            a(f"v_cmp_eq_u32 vcc, s76, v{v}"); a("s_bcnt1_i32_b64 s76, vcc")
            a("s_cmp_gt_u32 s76, s77"); a("s_cselect_b32 s77, 1, 0")
        else: a(f"s_mov_b32 s77, {sd & 1}")
        a("s_getreg_b32 s76, hwreg(HW_REG_XCC_ID, 2, 1)"); a("s_xor_b32 s76, s76, s77")
        if sd == 3: a("s_mov_b32 s76, 0")
        a(f"s_lshl_b32 s{d}, s76, 13")

    def races(self, t):
        a = self.a
        a(f"s_sub_u32 s60, s2, {13 if self.opt.get('pq') else 40}"); a("s_lshl_b32 s61, s60, 8"); a(f"s_add_u32 s61, s61, {WS_RC}")
        a("s_add_u32 s62, s61, 0x2000"); a("s_add_u32 s63, s61, 0x2080"); a("s_add_u32 s64, s61, 0x80")
        for k in range(2):
            a(f"s_load_dword s65, s[{S_WS}:{S_WS+1}], s{61+2*k}"); a(f"s_load_dword s66, s[{S_WS}:{S_WS+1}], s{62+2*k}")
            a("s_waitcnt lgkmcnt(1)")
            a(f"s_getreg_b32 s{67+k}, hwreg(HW_REG_IB_STS, 8, 1)")
            a("s_waitcnt lgkmcnt(0)")
        a("s_getreg_b32 s65, hwreg(HW_REG_XCC_ID, 2, 1)"); a("s_xor_b32 s66, s65, 1")
        a("s_lshl_b32 s67, s67, s65"); a("s_lshl_b32 s68, s68, s66"); a("s_or_b32 s67, s67, s68")
        a(f"s_lshl_b32 s68, s{S_T}, 2"); a("s_or_b32 s67, s67, s68")
        a("s_lshl_b32 s60, s60, 2"); a(f"s_add_u32 s60, s60, {WS_VOTE}")
        a(f"v_mov_b32 v{t}, s67"); a(f"v_mov_b32 v{t+1}, 0")
        self.setexec(1, 0)
        a(f"buffer_store_dword v{t}, v{t+1}, s[{R_WS}:{R_WS+3}], s60 offen sc1")
        self.allexec()

    def untag(self, regs, tag, t, mask):
        a = self.a
        for r in regs: a(f"v_xor_b32 v{r}, v{r}, v{tag}")
        rs = list(regs)
        if len(rs) == 1: src = rs[0]
        else:
            if len(rs) == 2: a(f"v_or_b32 v{t}, v{rs[0]}, v{rs[1]}"); rest = []
            else: a(f"v_or3_b32 v{t}, v{rs[0]}, v{rs[1]}, v{rs[2]}"); rest = rs[3:]
            while rest:
                if len(rest) == 1: a(f"v_or_b32 v{t}, v{t}, v{rest[0]}"); rest = []
                else: a(f"v_or3_b32 v{t}, v{t}, v{rest[0]}, v{rest[1]}"); rest = rest[2:]
            src = t
        if mask is not None: a(f"v_and_b32 v{t}, {mask:#x}, v{src}"); src = t
        a(f"v_cmp_ne_u32 vcc, 0, v{src}")

    def bprep(self, X, P, B, t):
        a = self.a
        a(f"v_and_b32_dpp v{P}, v{X}, v{V_HM} row_newbcast:{t} row_mask:0xf bank_mask:0x3")
        a(f"v_and_b32_dpp v{P}, v{X}, v{V_HM} row_newbcast:{8+t} row_mask:0xf bank_mask:0xc")
        self.spread(B, P)

    def gemv(self, X, P, B, jobs, n, wait=None, pre=None):
        self.bprep(X, P, B, 0)
        for t in range(n):
            if t + 1 < n: self.bprep(X, P + 2 * ((t + 1) & 1), B + 4 * ((t + 1) & 1), t + 1)
            if wait: self.a(f"s_waitcnt vmcnt({wait(t)})")
            if pre: pre(t)
            for D, W in jobs: self.mfma(D, W[t] if isinstance(W, list) else W + 4 * t, B + 4 * (t & 1), t == 0)

    def mfma(self, D, Areg, B, first):
        self.a(f"{MFMA} v[{D}:{D+3}], v[{Areg}:{Areg+3}], v[{B}:{B+3}], " + ("0" if first else f"v[{D}:{D+3}]"))

    def fold_wide(self, D1, D2, Y):
        a = self.a
        for y in range(2):
            a(f"v_add_f32_dpp v{Y+y}, v{D2+2*y}, v{D1+2*y} row_ror:8 row_mask:0xf bank_mask:0x3")
            a(f"v_add_f32_dpp v{Y+y}, v{D1+2*y+1}, v{D2+2*y+1} row_ror:8 row_mask:0xf bank_mask:0xc")

    def fold_col(self, D1, D2, Y):
        a = self.a
        for D in (D1, D2):
            if D is None: continue
            for y in range(2): a(f"v_permlane32_swap_b32 v{D+2*y}, v{D+2*y+1}")
        for y in range(2):
            a(f"v_add_f32_dpp v{Y+y}, v{D1+2*y+1}, v{D1+2*y} row_ror:8 row_mask:0xf bank_mask:0x3")
            if D2 is not None:
                a(f"v_add_f32_dpp v{Y+y}, v{D2+2*y}, v{D2+2*y+1} row_ror:8 row_mask:0xf bank_mask:0xc")

    def colpos(self, d, col, t):
        a = self.a
        a(f"v_bfe_u32 v{d}, v{col}, 4, 1"); a(f"v_lshlrev_b32 v{d}, 6, v{d}")
        a(f"v_bfe_u32 v{t}, v{col}, 5, 1"); a(f"v_lshl_add_u32 v{d}, v{t}, 4, v{d}")
        a(f"v_bfe_u32 v{t}, v{col}, 3, 1"); a(f"v_lshl_add_u32 v{d}, v{t}, 5, v{d}")
        a(f"v_and_b32 v{t}, 7, v{col}"); a(f"v_add_u32 v{d}, v{d}, v{t}")
        a(f"v_lshlrev_b32 v{d}, 2, v{d}")

    def wraddr(self, d, stride=PST):
        a = self.a
        a(f"s_mul_i32 s79, s{S_WAVE}, {stride}"); a(f"v_lshlrev_b32 v{d}, 2, v{V_L}"); a(f"v_add_u32 v{d}, s79, v{d}")

    def putpart(self, addr, Y, acc):
        self.a(f"ds_write_b32 v{addr}, v{Y} offset:{acc}"); self.a(f"ds_write_b32 v{addr}, v{Y+1} offset:{acc+256}")

    def widerd(self, d, t):
        a = self.a
        a(f"v_and_b32 v{t}, 3, v{V_L}"); a(f"v_mul_u32_u24 v{d}, {PST}, v{t}")
        a(f"v_bfe_u32 v{t}, v{V_L}, 4, 1"); a(f"v_lshl_add_u32 v{d}, v{t}, 8, v{d}")
        a(f"v_bfe_u32 v{t}, v{V_L}, 5, 1"); a(f"v_lshl_add_u32 v{d}, v{t}, 6, v{d}")
        a(f"v_bfe_u32 v{t}, v{V_L}, 2, 2"); a(f"v_lshl_add_u32 v{d}, v{t}, 4, v{d}")
        a(f"s_and_b32 s79, s{S_WAVE}, 1"); a("s_lshl_b32 s79, s79, 7"); a(f"v_add_u32 v{d}, s79, v{d}")

    def colrd(self, d, t):
        a = self.a
        a(f"v_and_b32 v{t+1}, 60, v{V_L}")
        self.colpos(d, t + 1, t)
        a(f"v_and_b32 v{t}, 3, v{V_L}"); a(f"v_mul_u32_u24 v{t}, {PST}, v{t}"); a(f"v_add_u32 v{d}, v{d}, v{t}")

    def publish(self, acc, vrd, voff, soff, t, bf, near=None, dual=False, half=False, one=False, gate=None):
        a = self.a
        for j in range(2 if half else 4): a(f"ds_read_b128 v[{t+4*j}:{t+4*j+3}], v{vrd} offset:{acc+4*j*PST}")
        a(f"s_waitcnt lgkmcnt({0 if half else 2})")
        for i in range(4): a(f"v_add_f32 v{t+i}, v{t+i}, v{t+4+i}")
        if not half:
            a("s_waitcnt lgkmcnt(0)")
            for i in range(4): a(f"v_add_f32 v{t+8+i}, v{t+8+i}, v{t+12+i}")
            for i in range(4): a(f"v_add_f32 v{t+i}, v{t+i}, v{t+8+i}")
        for m in ("quad_perm:[1,0,3,2]", "quad_perm:[2,3,0,1]"):
            for i in range(4): a(f"v_add_f32_dpp v{t+i}, v{t+i}, v{t+i} {m} row_mask:0xf bank_mask:0xf")
        if bf == 2:
            a("s_mov_b32 vcc_lo, 0xaaaaaaaa"); a("s_mov_b32 vcc_hi, 0xaaaaaaaa")
            a(f"v_cndmask_b32 v{t}, v{t}, v{t+2}, vcc"); a(f"v_cndmask_b32 v{t+2}, v{t+1}, v{t+3}, vcc")
            a(f"v_mov_b32 v{t+1}, s{S_T}"); a(f"v_mov_b32 v{t+3}, s{S_T}")
            self.setexec(0x33333333, 0x33333333)
            a(f"buffer_store_dwordx4 v[{t}:{t+3}], v{voff}, s[{R_WS}:{R_WS+3}], s{soff} offen sc1")
            self.allexec()
            return
        if bf:
            for i in range(4): a(f"v_cvt_pk_bf16_f32 v{t+i}, v{t+i}, v{t+i}")
            a("s_mov_b32 s79, 0xffff")
            for i in range(4): a(f"v_bfi_b32 v{t+i}, s79, v{V_T16}, v{t+i}")
        else:
            for i in range(1 if one else 4): a(f"v_bfi_b32 v{t+i}, s{S_M10}, v{V_T10}, v{t+i}")
        m = {0: 0x11111111, 1: 0x33333333, 2: 0xffffffff}[int(dual)]
        if gate: a(f"s_cmp_eq_u32 {gate[0]}, 0"); a(f"s_cbranch_scc1 {gate[1]}")
        self.setexec(m, m)
        if near is not None and self.opt.get("nn") != 1: a(f"buffer_store_dwordx4 v[{t}:{t+3}], v{voff}, s[{R_WS}:{R_WS+3}], s{near} offen" + self.opt.get("ns", ""))
        a(f"buffer_store_dwordx4 v[{t}:{t+3}], v{voff}, s[{R_WS}:{R_WS+3}], s{soff} offen sc1")
        self.allexec()

    def unitoff(self, d):
        self.a(f"v_and_b32 v{d}, 60, v{V_L}"); self.a(f"v_lshlrev_b32 v{d}, 2, v{d}")

    def rowidx(self, d, t, steps):
        a = self.a
        a(f"v_lshrrev_b32 v{t}, 3, v{V_L}"); a(f"v_mul_u32_u24 v{d}, {steps}, v{t}")
        a(f"v_and_b32 v{t}, 7, v{V_L}"); a(f"v_add_u32 v{d}, v{d}, v{t}")

    def colvoff(self, d, stride, t):
        a = self.a
        a(f"v_lshrrev_b32 v{t}, 3, v{V_L}"); a(f"v_mul_u32_u24 v{d}, {stride}, v{t}")
        a(f"v_and_b32 v{t}, 7, v{V_L}"); a(f"v_lshl_add_u32 v{d}, v{t}, 4, v{d}")

    def colloads(self, reg, voff, srd, sbase, stride, n=5, thr=0):
        a = self.a
        for t in range(n):
            if thr: a(f"s_waitcnt vmcnt({thr-1})")
            if t * stride < 4096: so = f"s{sbase} offen offset:{t*stride}"
            else: a(f"s_add_u32 s61, s{sbase}, {t*stride}"); so = "s61 offen"
            a(f"buffer_load_dwordx4 v[{reg+4*t}:{reg+4*t+3}], v{voff}, s[{srd}:{srd+3}], {so} nt")

    def silu(self, x, t):
        a = self.a
        a(f"v_mul_f32 v{t}, {fh(-LOG2E)}, v{x}"); a(f"v_exp_f32 v{t}, v{t}")
        a(f"v_add_f32 v{t}, 1.0, v{t}")
        a(f"v_min_f32 v{t}, {fh(3.0e38)}, v{t}")
        a(f"v_rcp_f32 v{t+1}, v{t}")
        a(f"v_mul_f32 v{t+2}, v{x}, v{t+1}")
        a(f"v_fma_f32 v{t+3}, -v{t+2}, v{t}, v{x}")
        a(f"v_fma_f32 v{x}, v{t+3}, v{t+1}, v{t+2}")
        a(f"v_cvt_pk_bf16_f32 v{x}, v{x}, v{x}")

    def xrow_allred(self, v, t, op):
        a = self.a
        a(f"v_mov_b32 v{t}, v{v}"); a(f"v_permlane32_swap_b32 v{t}, v{v}"); a(f"{op} v{v}, v{v}, v{t}")
        a(f"v_mov_b32 v{t}, v{v}"); a(f"v_permlane16_swap_b32 v{t}, v{v}"); a(f"{op} v{v}, v{v}, v{t}")

    def x2calc(self, vcol4, ga, xv, d, t):
        a = self.a
        if self.opt.get("w2"):
            for i in range(0, 8, 2): a(f"v_pk_add_f32 v[{t+i}:{t+i+1}], v[{t+i}:{t+i+1}], v[{t+8+i}:{t+9+i}]")
        a(f"v_pk_add_f32 v[{t}:{t+1}], v[{t}:{t+1}], v[{t+2}:{t+3}]"); a(f"v_pk_add_f32 v[{t+4}:{t+5}], v[{t+4}:{t+5}], v[{t+6}:{t+7}]")
        a(f"v_pk_add_f32 v[{t}:{t+1}], v[{t}:{t+1}], v[{t+4}:{t+5}]"); a(f"v_add_f32 v{d}, v{t}, v{t+1}")
        bfr(a, d, d)
        a(f"v_mul_f32 v{d}, v{ga}, v{d}"); bfr(a, d, d)
        a(f"v_add_f32 v{d}, v{xv}, v{d}"); bfr(a, d, d)

    def attention(self, mid):
        a = self.a
        n1, n2 = self.opt.get("n1", 4), self.opt.get("n2", 99)
        base = self.thr
        TH = [1 if j < n1 else (base if j < n2 else base + 1) for j in range(22)]
        KR, VR, D1, D2, Q, S = 32, 76, 120, 124, 10, 14
        VO, PQ, T = 20, 22, 24
        dy = self.opt.get("dy", 0); ty = self.opt.get("ty", 21); NB = self.opt.get("nblk", 20)
        if dy: a("s_load_dwordx2 s[52:53], s[0:1], 96")
        a("s_sub_u32 s3, s2, 64")
        a("s_and_b32 s100, s3, 31"); a("s_lshr_b32 s101, s3, 5")
        cnt = self.opt.get("cnt", [171, 171, 171, 171, 170, 170]); assert self.opt.get("xs") or (sum(cnt) == 1024 and max(cnt) <= 176 and min(cnt) > 165)
        lc = sum((c - 165) << (4 * i) for i, c in enumerate(cnt)); ls = sum((sum(cnt[:i]) - 165 * i) << (5 * i) for i in range(6))
        assert all(sum(cnt[:i]) - 165 * i < 32 for i in range(6))
        a("s_mul_i32 s72, s101, 5"); a(f"s_lshr_b32 s72, {ls:#x}, s72"); a("s_and_b32 s72, s72, 31"); a("s_mul_i32 s73, s101, 165"); a("s_add_u32 s72, s72, s73")
        a("s_lshl_b32 s73, s101, 2"); a(f"s_lshr_b32 s73, {lc:#x}, s73"); a("s_and_b32 s73, s73, 15"); a("s_add_u32 s73, s73, 165"); a("s_lshl_b32 s73, s73, 10")
        a("s_lshl_b32 s74, s100, 22"); a("s_lshl_b32 s72, s72, 10"); a("s_add_u32 s74, s74, s72"); a("s_add_u32 s74, s74, %d" % (12288 * 256))
        step = 1024 if self.pat == "contig" else 16384
        pt = self.opt.get("pt")
        a(f"s_sub_u32 s75, 15, s{S_WAVE}")
        if pt:
            sh = pt[0]; ch = 1 << sh; lim = 11 // ch * ch; c2 = 11 - lim
            a(f"s_mul_i32 s60, s100, {pt[1]}"); a(f"s_mul_i32 s61, s{S_WAVE}, {pt[2]}"); a("s_add_u32 s60, s60, s61")
            a(f"s_mul_i32 s61, s101, {pt[3]}"); a("s_add_u32 s60, s60, s61")
            a(f"v_add_u32 v{T}, s60, v{V_L}")
            a(f"v_mul_u32_u24 v{T+1}, 5958, v{T}"); a(f"v_lshrrev_b32 v{T+1}, 16, v{T+1}"); a(f"v_mul_u32_u24 v{T+1}, 11, v{T+1}"); a(f"v_sub_u32 v{T}, v{T}, v{T+1}")
            a(f"s_lshl_b32 s60, s75, {sh}"); a(f"s_mul_i32 s61, s75, {c2}"); a(f"s_add_u32 s61, s61, {15*lim-lim}")
            a(f"s_cmp_eq_u32 s{S_WAVE}, 0"); a(f"s_cselect_b32 s61, 165, s61"); a(f"s_cselect_b32 s62, 0, {lim}")
            a(f"v_lshrrev_b32 v{T+1}, {sh}, v{T}"); a(f"v_mul_u32_u24 v{T+1}, {15*ch}, v{T+1}"); a(f"v_and_b32 v{T+2}, {ch-1}, v{T}")
            a(f"v_add3_u32 v{T+1}, v{T+1}, v{T+2}, s60"); a(f"v_add_u32 v{T+2}, s61, v{T}")
            a(f"v_cmp_gt_u32 vcc, s62, v{T}"); a(f"v_cndmask_b32 v{T+1}, v{T+2}, v{T+1}, vcc"); a(f"v_lshlrev_b32 v{PQ}, 10, v{T+1}")
            a(f"v_lshlrev_b32 v{VO}, 4, v{V_L}"); a("s_mov_b32 s75, s73")
            a(f"v_readlane_b32 s60, v{PQ}, 0")
        else:
            a(f"s_mul_i32 s75, s75, {11*1024 if self.pat == 'contig' else 1024}")
            a(f"v_lshlrev_b32 v{VO}, 4, v{V_L}"); a(f"v_add_u32 v{VO}, s75, v{VO}")
            a("s_sub_u32 s75, s73, s75")
            a(f"s_add_u32 s60, s100, s{S_WAVE}")
            for k in (44, 22, 11): a(f"s_sub_u32 s61, s60, {k}"); a("s_min_u32 s60, s60, s61")
            a(f"s_mul_i32 s60, s60, {step}")
        a("s_waitcnt lgkmcnt(0)")
        a(f"s_load_dword s{S_T}, s[{S_WS}:{S_WS+1}], 0")
        a(f"s_add_u32 s{S_K}, s{S_K}, s74"); a(f"s_addc_u32 s{S_K+1}, s{S_K+1}, 0")
        srd(a, R_A, S_K, "s73")
        bj = self.opt.get("bj", 0); bt = {int(k): v for k, v in self.opt.get("bt", {}).items()}
        bo = self.opt.get("bo", 0); assert all(j < 12 or j >= 12 + bo for j in bt)
        def thr(j, n, rd):
            if j in bt:
                if rd: a(f"ds_read_b32 v{T}, v21 offset:{L_RK}")
                a(f"s_waitcnt vmcnt({n-1+bo}) lgkmcnt(0)")
                if rd: a(f"v_readfirstlane_b32 s54, v{T}")
                l = a.label("BT")
                if self.opt.get("bx"): a(f"s_bitcmp0_b32 {bt[j]}, s54")
                else: a(f"s_cmp_lt_u32 s54, {bt[j]}")
                a(f"s_cbranch_scc0 {l}"); a(f"s_waitcnt vmcnt({n-1 if bo else 0})"); a(f"{l}:")
            else: a(f"s_waitcnt vmcnt({n-1})")
        def ld(j, mark=True):
            i = j % 11; r = (KR if j < 11 else VR) + 4 * i; sr = R_A if j < 11 else R_B
            a(f"buffer_load_dwordx4 v[{r}:{r+3}], v{VO}, s[{sr}:{sr+3}], s{60+i} offen nt")
            if bj and mark and (j == bj or (j == bj + 2 and mark != 2)):
                l = a.label("BK")
                a(f"s_cmp_lg_u32 s{S_WAVE}, 1"); a(f"s_cbranch_scc1 {l}")
                if j == bj: a("s_mov_b64 exec, 1"); a(f"global_atomic_inc v{D1}, v{D1+1}, v{D1}, s[52:53] sc0 sc1"); a("s_mov_b64 exec, -1")
                else: a("s_waitcnt vmcnt(2)"); a("s_mov_b64 exec, 1"); a(f"ds_write_b32 v21, v{D1} offset:{L_RK}"); a("s_mov_b64 exec, -1")
                a(f"{l}:")
            if dy and mark and j == ty:
                l = a.label("TK")
                a(f"s_cmp_lg_u32 s{S_WAVE}, 1"); a(f"s_cbranch_scc1 {l}")
                a("s_mov_b64 exec, 1"); a(f"global_atomic_inc v{PQ}, v{PQ+1}, v{PQ}, s[52:53] sc0 sc1"); a("s_mov_b64 exec, -1")
                a(f"{l}:")
        def nxt(i):
            if pt: a(f"v_readlane_b32 s{60+i}, v{PQ}, {i}"); return
            a(f"s_add_u32 s{60+i}, s{59+i}, {step}"); a(f"s_sub_u32 s71, s{60+i}, {11*step}"); a(f"s_min_u32 s{60+i}, s{60+i}, s71")
        n0 = TH[0] if n1 else base
        ld(0)
        e2 = self.opt.get("e2", 1); n0 = max(n0, e2, self.opt.get("e3", 0))
        for i in range(1, e2): nxt(i); ld(i)
        if self.opt.get("s0"): self.stamp(1, True)
        self.touch("A")
        a("s_branch L_att")
        mid()
        a("; GRP A")
        self.hole("A")
        a("L_att:")
        for i in range(e2, 11):
            nxt(i)
            if i < n0: ld(i)
        for i in range(self.opt.get("xs", 0)): a(f"s_mov_b32 s{70-i}, 0x40000000")
        a(f"s_add_u32 s{S_V}, s{S_V}, s74"); a(f"s_addc_u32 s{S_V+1}, s{S_V+1}, 0")
        srd(a, R_B, S_V, "s73"); srd(a, R_WS, S_WS, WS_SIZE)
        a("v_mov_b32 v21, 0")
        a(f"ds_write_b32 v21, v21 offset:{L_FLAG}")
        a(f"ds_write_b32 v21, v21 offset:{L_CNT}")
        dc = self.opt.get("dc", 0)
        if dc: a(f"ds_write_b32 v21, v21 offset:{L_NEAR}")
        if bj:
            a(f"v_mov_b32 v{D1}, -1"); a(f"ds_write_b32 v21, v{21 if bo else D1} offset:{L_RK}")
            bm = self.opt.get("bm", 0)
            if bm == 0: a("s_and_b32 s71, s101, 1"); a("s_lshl_b32 s71, s71, 7"); a("s_add_u32 s71, s71, 4")
            else: a("s_and_b32 s71, s3, 7"); a("s_lshl_b32 s71, s71, 5"); a("s_add_u32 s71, s71, 4")
            a(f"v_mov_b32 v{D1+1}, s71")
        elif bt:
            a("s_getreg_b32 s54, hwreg(HW_REG_XCC_ID, 0, 4)"); a(f"v_mov_b32 v{D1}, s54"); a(f"ds_write_b32 v21, v{D1} offset:{L_RK}")
        if dy: a(f"v_mov_b32 v{PQ}, {63 if self.opt.get('tt') == 1 else 23}"); a("s_and_b32 s71, s3, 7"); a("s_lshl_b32 s71, s71, 5"); a(f"v_mov_b32 v{PQ+1}, s71")
        self.masks(T)
        a("s_waitcnt lgkmcnt(0)")
        self.tags()
        a("s_barrier")
        jp = max(n0, self.opt.get("jp", n1))
        def flagchk(target):
            a(f"ds_read_b32 v{T}, v21 offset:{L_FLAG}"); a("s_waitcnt lgkmcnt(0)")
            a(f"v_cmp_ne_u32 vcc, 0, v{T}"); a(f"s_cbranch_vccnz {target}")
        chk_j = [j for j in range(22) if j - TH[j] >= 10]
        for j in range(n0, 22):
            if j == jp:
                a(f"s_cmp_eq_u32 s{S_WAVE}, 0"); a("s_cbranch_scc1 L_att_w0")
            a(f"L_att_a{j}:")
            if self.opt.get("s0") and j == 1: self.stamp(2, True)
            thr(j, TH[j], True)
            if self.opt.get("s0") and j in (1, 2, 3): self.stamp(4 + j, True)
            ld(j)
            if j in chk_j and j < 21: flagchk(f"L_att_b{j}")
        a("L_att_a22:")
        a(f"s_mov_b32 s76, 21")
        a(f"s_mov_b32 s{S_CNT}, 0")
        a("L_att_spin:")
        flagchk("L_att_qk")
        a(f"s_add_u32 s{S_CNT}, s{S_CNT}, 1"); a(f"s_cmp_lt_u32 s{S_CNT}, {SPIN*16}"); a("s_cbranch_scc1 L_att_spin")
        a("s_branch L_att_qk")
        self.hole("A")
        bq = self.opt.get("bq", 2)
        for j in chk_j[:-1]:
            a(f"L_att_b{j}:")
            for j2 in range(j + 1, min(j + bq, 21) + 1): ld(j2, 2)
            a(f"s_mov_b32 s76, {min(j + bq, 21)}"); a("s_branch L_att_qk")
        a("L_att_w0:")
        a("s_setprio 3")
        a(f"v_lshlrev_b32 v{T+2}, 3, v{V_L}"); a("s_lshl_b32 s76, s100, 9"); a(f"s_add_u32 s76, s76, {WS_Q}")
        a(f"v_lshlrev_b32 v{T+3}, 2, v{V_L}"); a(f"v_mov_b32 v{T+4}, 1"); a("s_mov_b32 s77, 0x07060302")
        def pq(): a(f"buffer_load_dwordx2 v[{PQ}:{PQ+1}], v{T+2}, s[{R_WS}:{R_WS+3}], s76 offen sc1")
        def chk():
            self.untag([PQ, PQ + 1], V_T16, T, 0xffff)
            if self.opt.get("xq"): a("s_mov_b64 vcc, 0")
        ps = self.opt.get("ps", 3)
        slots = list(range(jp, 22, ps))
        for j in slots:
            if j > jp:
                a(f"s_waitcnt vmcnt({ps})"); chk(); a(f"s_cbranch_vccz L_att_got{j}")
            else: a(f"s_waitcnt vmcnt({TH[j]-1})")
            pq()
            for j2 in range(j, min(j + ps, 22)): ld(j2, False)
        self.poll(pq, chk, "PQ")
        for j in [22] + slots[1:]:
            a(f"L_att_got{j}:")
            a(f"v_perm_b32 v{PQ}, v{PQ+1}, v{PQ}, s77")
            a(f"ds_write_b32 v{T+3}, v{PQ} offset:{L_Q}"); a(f"ds_write_b32 v21, v{T+4} offset:{L_FLAG}")
            a("s_setprio 0")
            self.stamp(1)
            a(f"s_branch L_att_a{j}")
        self.hole("A")
        a("L_att_qk:")
        swa = self.opt.get("swa", 0); aw = self.opt.get("aw", 0)
        if swa: self.stamp(1)
        if aw: self.stamp(8)
        a(f"v_lshlrev_b32 v{T}, 4, v{V_N}")
        a(f"ds_read_b128 v[{Q}:{Q+3}], v{T} offset:{L_Q}")
        a("s_waitcnt lgkmcnt(0)")
        for t in range(6):
            pa, pb = 2 * t, 2 * t + 1
            for d in range(4):
                for i, acc in ((pa, T), (pb, T + 1)):
                    if i > 10: continue
                    a(f"v_dot2_f32_bf16 v{acc}, v{KR+4*i+d}, v{Q+d}, " + ("0" if d == 0 else f"v{acc}"))
            a(f"v_add_f32_dpp v{S+t}, v{T}, v{T} row_ror:8 row_mask:0xf bank_mask:{'0x3' if pb <= 10 else '0xf'}")
            if pb <= 10: a(f"v_add_f32_dpp v{S+t}, v{T+1}, v{T+1} row_ror:8 row_mask:0xf bank_mask:0xc")
        for m in ("quad_perm:[1,0,3,2]", "quad_perm:[2,3,0,1]", "row_half_mirror"):
            for t in range(6): a(f"v_add_f32_dpp v{S+t}, v{S+t}, v{S+t} {m} row_mask:0xf bank_mask:0xf")
        a(f"v_mov_b32 v{T+1}, 0xff800000")
        for t in range(6): bfr(a, S + t, S + t)
        for t in range(6): a(f"v_mul_f32 v{S+t}, {fh(128 ** -0.5)}, v{S+t}")
        for t in range(6): bfr(a, S + t, S + t)
        l = a.label("MK")
        a(f"s_cmp_lg_u32 s{S_WAVE}, 0"); a(f"s_cbranch_scc1 {l}")
        assert self.pat == "contig"
        for t in range(6):
            a(f"s_cmp_lt_u32 s{60+2*t}, s75"); a("s_cselect_b32 s78, 0x00ff00ff, 0")
            if 2 * t + 1 <= 10:
                a(f"s_cmp_lt_u32 s{61+2*t}, s75"); a("s_cselect_b32 s79, 0xff00ff00, 0"); a("s_or_b32 s78, s78, s79")
            a("s_mov_b32 vcc_lo, s78"); a("s_mov_b32 vcc_hi, s78")
            a(f"v_cndmask_b32 v{S+t}, v{T+1}, v{S+t}, vcc")
        if self.opt.get("touch", 1): a(f"s_branch {l}"); self.hole("A")
        a(f"{l}:")
        MW = T + 6
        a(f"v_max3_f32 v{MW}, v{S}, v{S+1}, v{S+2}"); a(f"v_max3_f32 v{MW}, v{MW}, v{S+3}, v{S+4}"); a(f"v_max_f32 v{MW}, v{MW}, v{S+5}")
        a(f"v_mov_b32_dpp v{S+5}, v{T+1} quad_perm:[0,1,2,3] row_mask:0xf bank_mask:0xc")
        a(f"v_max_f32_dpp v{MW}, v{MW}, v{MW} row_ror:8 row_mask:0xf bank_mask:0xf")
        self.xrow_allred(MW, T + 1, "v_max_f32")
        for t in range(6): a(f"v_sub_f32 v{S+t}, v{S+t}, v{MW}")
        for t in range(6): a(f"v_mul_f32 v{S+t}, {fh(LOG2E)}, v{S+t}")
        for t in range(6): a(f"v_exp_f32 v{S+t}, v{S+t}")
        a(f"s_lshl_b32 s78, s{S_WAVE}, 3"); a(f"v_mov_b32 v{T+5}, s78")
        a(f"v_add_f32 v{MW+1}, v{S}, v{S+1}"); a(f"v_add_f32 v{T+1}, v{S+2}, v{S+3}"); a(f"v_add_f32 v{T+2}, v{S+4}, v{S+5}")
        a(f"v_add_f32 v{MW+1}, v{MW+1}, v{T+1}"); a(f"v_add_f32 v{MW+1}, v{MW+1}, v{T+2}")
        for t in range(6): a(f"v_cvt_pk_bf16_f32 v{S+t}, v{S+t}, v{S+t}")
        a(f"v_add_f32_dpp v{MW+1}, v{MW+1}, v{MW+1} row_ror:8 row_mask:0xf bank_mask:0xf")
        for t in range(6): a(f"v_and_b32 v{KR+24+2*t}, v{S+t}, v{V_HM}")
        for t in range(6): self.spread(KR + 4 * t, KR + 24 + 2 * t)
        self.xrow_allred(MW + 1, T + 2, "v_add_f32")
        a(f"ds_write_b64 v{T+5}, v[{MW}:{MW+1}] offset:{L_MAX}")
        a(f"v_mov_b32 v{T+1}, 1")
        self.setexec(1, 0)
        a(f"ds_add_u32 v21, v{T+1} offset:{L_CNT}")
        self.allexec()
        self.stamp(5)
        if bj:
            l = a.label("BQ")
            a(f"s_cmp_lg_u32 s{S_WAVE}, 1"); a(f"s_cbranch_scc1 {l}")
            a(f"s_sub_u32 s77, s76, {bj+2}"); a(f"s_cmp_ge_u32 s77, {bq}"); a(f"s_cbranch_scc1 {l}")
            a("s_waitcnt vmcnt(2)"); a("s_mov_b64 exec, 1"); a(f"ds_write_b32 v21, v{D1} offset:{L_RK}"); a("s_mov_b64 exec, -1")
            a(f"{l}:")
        j0 = min(chk_j[0] + bq, 21)
        tq = self.opt.get("tq", 0)
        for j in range(21, j0, -1):
            a(f"s_cmp_eq_u32 s76, {j}"); a(f"s_cbranch_scc1 L_att_c{j+1}")
        if self.opt.get("touch", 1): a(f"s_branch L_att_c{j0+1}"); self.hole("A")
        for j in range(j0 + 1, 22):
            a(f"L_att_c{j}:")
            thr(j, tq or TH[j], True)
            ld(j)
        a("L_att_c22:")
        if swa: self.stamp(2)
        if aw: self.stamp(9)
        self.wraddr(T + 2)
        self.widerd(T + 3, T + 4)
        self.unitoff(T + 4)
        a(f"v_lshlrev_b32 v{T+5}, 3, v{V_N}")
        a("s_mul_i32 s76, s100, 6"); a("s_add_u32 s76, s76, s101"); a("s_lshl_b32 s76, s76, 1")
        if dc: a(f"s_and_b32 s77, s{S_WAVE}, 1"); a("s_add_u32 s76, s76, s77")
        else: a(f"s_add_u32 s76, s76, s{S_WAVE}")
        a("s_lshl_b32 s76, s76, 8"); a(f"s_add_u32 s76, s76, {WS_O}")
        a(f"s_add_u32 s72, s76, {WS_ON-WS_O}")
        WO = KR + 24
        self.colvoff(VO, 4 * 1280, T)
        w2 = self.opt.get("w2", 0); NWO = 160 if w2 else 80
        a("s_and_b32 s64, s3, 7")
        if not dy: a("s_lshr_b32 s65, s3, 3")
        if dy: a(f"s_bfe_u32 s73, s{S_WAVE}, 0x10002")
        elif w2:
            a("s_cmp_ge_u32 s65, 10"); a("s_cselect_b32 s79, 1, 0"); a("s_cselect_b32 s73, 10, 0"); a("s_sub_u32 s65, s65, s73")
            a(f"s_bfe_u32 s73, s{S_WAVE}, 0x10002"); a("s_lshl1_add_u32 s73, s79, s73")
        else: a(f"s_lshr_b32 s73, s{S_WAVE}, 2")
        a("s_lshl_b32 s68, s73, 3"); a("s_add_u32 s68, s68, s64")
        a(f"s_and_b32 s71, s{S_WAVE}, 3"); a("s_lshl_b32 s66, s68, 2"); a("s_add_u32 s66, s66, s71")
        a(f"s_mul_i32 s60, s66, {32*1280}")
        if dy: a(f"s_cmp_ge_u32 s{S_WAVE}, 8"); a(f"s_cselect_b32 s67, {4096*640*2}, 0")
        else:
            a("s_lshl_b32 s61, s65, 7"); a("s_add_u32 s60, s60, s61")
            a(f"s_cmp_lt_u32 s3, {NWO}"); a(f"s_cselect_b32 s67, {0 if self.opt.get('xw') else 4096*640*2}, 0")
            if w2: a(f"s_cmp_ge_u32 s{S_WAVE}, 8"); a("s_cselect_b32 s67, s67, 0")
        srd(a, R_C, S_WO, "s67")
        xc = self.opt.get("xc", 0); wst = 1280
        if xc & 1:
            a(f"v_lshlrev_b32 v{VO}, 4, v{V_L}"); a(f"s_lshl_b32 s60, s3, 3"); a(f"s_add_u32 s60, s60, s{S_WAVE}"); a("s_sub_u32 s60, s60, 8"); a("s_lshl_b32 s60, s60, 12"); wst = 1024
        a("s_lshl_b32 s69, s64, 7"); a(f"s_add_u32 s69, s69, {WS_ML}")
        a("s_mul_i32 s70, s68, 3072"); a("s_lshl_b32 s71, s71, 7"); a("s_add_u32 s70, s70, s71"); a(f"s_add_u32 s70, s70, {WS_O-1 if dc else WS_O}")
        if dy: a("s_lshl_b32 s62, s64, 14")
        else:
            if w2: a("s_lshl_b32 s62, s64, 14"); a("s_mul_i32 s63, s79, 2560")
            else: a("s_lshr_b32 s62, s64, 1"); a("s_lshl_b32 s62, s62, 14"); a("s_and_b32 s63, s64, 1"); a("s_mul_i32 s63, s63, 2560")
            a("s_add_u32 s62, s62, s63"); a("s_lshl_b32 s63, s65, 8")
            a("s_add_u32 s62, s62, s63")
        a(f"s_add_u32 s62, s62, {WS_A}")
        ML, O, X, P, B, Y, C, AD = 76, 88, 14, 16, 92, 22, 10, 80
        w1 = self.opt.get("w1", 2)
        hy = self.opt.get("hy", 0); WO2 = [72, 100, 104, 108]; wx = w1 + (4 if hy else 0)
        def wold(lo, hi):
            for t in range(lo, hi):
                a(f"buffer_load_dwordx4 v[{WO+4*t}:{WO+4*t+3}], v{VO}, s[{R_C}:{R_C+3}], s60 offen offset:{wst*t} nt")
                if hy: a(f"buffer_load_dwordx4 v[{WO2[t]}:{WO2[t]+3}], v{ML+3}, s[{R_C}:{R_C+3}], s60 offen offset:{wst*t} nt")
        def addr():
            t0, t1, t5, t6 = 86, 87, 78, 79
            a(f"v_bfe_u32 v{t0}, v{V_N}, 2, 1"); a(f"v_mul_u32_u24 v{t0}, 3, v{t0}"); a(f"v_lshrrev_b32 v{t1}, 3, v{V_N}")
            a("s_lshl_b32 s77, s73, 5")
            a(f"v_lshl_add_u32 v{AD+1}, v{t0}, 2, s77"); a(f"v_lshl_add_u32 v{AD}, v{t1}, 2, v{AD+1}")
            a(f"v_and_b32 v{t5}, 3, v{V_N}"); a(f"v_lshlrev_b32 v{t5}, 2, v{t5}")
            a(f"v_lshrrev_b32 v{t6}, 3, v{V_L}"); a(f"v_lshl_add_u32 v{t5}, v{t6}, 4, v{t5}")
            a(f"v_lshl_add_u32 v{AD+4}, v{t0}, 9, v{t5}"); a(f"v_lshl_add_u32 v{AD+2}, v{t1}, 9, v{AD+4}")
            a(f"v_xor_b32 v{t1}, 1, v{t1}"); a(f"v_lshl_add_u32 v{AD+3}, v{t1}, 9, v{AD+4}"); a(f"v_lshl_add_u32 v{AD+5}, v{t1}, 2, v{AD+1}")
        def isso():
            for j in range(3): a(f"buffer_load_dword v{O+j}, v{AD+2+j}, s[{R_WS}:{R_WS+3}], s70 offen offset:{1024 if j == 2 else 0} sc1")
        def scale():
            a(f"v_mov_b32 v{T}, v{Q}")
            row_red(a, T, "v_max_f32")
            a(f"v_sub_f32 v{MW}, v{MW}, v{T}"); a(f"v_mul_f32 v{MW}, {fh(LOG2E)}, v{MW}"); a(f"v_exp_f32 v{MW}, v{MW}")
        def fold():
            self.fold_wide(D1, D2, S)
            a(f"v_mul_f32 v{S}, v{S}, v{MW}"); a(f"v_mul_f32 v{S+1}, v{S+1}, v{MW}")
            self.putpart(T + 2, S, L_ACC0)
        dp = "row_mask:0xf bank_mask:0xf"
        nb = self.opt.get("nb", 9)
        for i in range(11):
            a(f"s_waitcnt vmcnt({10-i+(wx if i >= nb else 0)})")
            self.mfma(D1 if i % 2 == 0 else D2, VR + 4 * i, KR + 4 * (i // 2), i < 2)
            if i == nb - 1:
                self.stamp(6)
                addr()
                l = a.label("ML")
                a(f"s_cmp_lg_u32 s{S_WAVE}, 0"); a(f"s_cbranch_scc1 {l}")
                a("s_waitcnt vmcnt(0)")
                for i2 in range(nb, 11): self.mfma(D1 if i2 % 2 == 0 else D2, VR + 4 * i2, KR + 4 * (i2 // 2), False)
                a("s_lshl_b32 s77, s100, 7"); a("s_lshl_b32 s78, s101, 4"); a("s_add_u32 s77, s77, s78"); a(f"s_add_u32 s77, s77, {WS_ML}")
                a("s_getreg_b32 s74, hwreg(HW_REG_XCC_ID, 0, 4)"); a("s_lshl_b32 s74, s74, 10")
                lp, dn = a.label("CL"), a.label("CD")
                a(f"s_mov_b32 s{S_CNT}, 0")
                a(f"{lp}:")
                a(f"ds_read_b32 v{T}, v21 offset:{L_CNT}"); a(f"ds_read_b64 v[{Q}:{Q+1}], v{T+5} offset:{L_MAX}"); a("s_waitcnt lgkmcnt(0)")
                a(f"v_cmp_eq_u32 vcc, 16, v{T}"); a(f"s_cbranch_vccnz {dn}")
                a(f"s_add_u32 s{S_CNT}, s{S_CNT}, 1"); a(f"s_cmp_lt_u32 s{S_CNT}, {SPIN*16}"); a(f"s_cbranch_scc1 {lp}")
                if self.opt.get("touch", 1): a(f"s_branch {dn}"); self.hole("A")
                a(f"{dn}:")
                scale()
                a(f"v_sub_f32 v{Q}, v{Q}, v{T}"); a(f"v_mul_f32 v{Q}, {fh(LOG2E)}, v{Q}"); a(f"v_exp_f32 v{Q}, v{Q}")
                a(f"v_or_b32 v{Q+2}, s74, v{V_T10}"); a(f"v_mov_b32 v{Q+3}, v{V_T10}")
                a(f"v_mul_f32 v{Q+1}, v{Q+1}, v{Q}")
                a(f"v_bfi_b32 v{Q}, s{S_M10}, v{V_T10}, v{T}")
                row_red(a, Q + 1)
                a(f"v_bfi_b32 v{Q+1}, s{S_M10}, v{V_T10}, v{Q+1}")
                self.setexec(1, 0)
                a(f"buffer_store_dwordx4 v[{Q}:{Q+3}], v21, s[{R_WS}:{R_WS+3}], s77 offen sc1")
                self.allexec()
                self.stamp(2)
                fold()
                RA, VA = O, O + 1
                a(f"v_and_b32 v{T}, 7, v{V_L}"); a(f"v_cmp_gt_u32 vcc, 6, v{T}"); a(f"v_cndmask_b32 v{VA}, 0, 1.0, vcc")
                a(f"v_min_u32 v{T}, 5, v{T}"); a(f"v_lshlrev_b32 v{T}, 4, v{T}")
                if dc:
                    a(f"v_bfe_u32 v{T+1}, v{V_L}, 3, 1"); a(f"v_add_u32 v{T+1}, s73, v{T+1}")
                    a("s_lshl_b32 s77, s73, 5"); a(f"v_lshl_add_u32 v{O+2}, v{V_N}, 2, s77")
                else: a(f"v_bfe_u32 v{T+1}, v{V_L}, 3, 2")
                a(f"v_lshl_add_u32 v{RA}, v{T+1}, 10, v{T}")
                a("s_setprio 3")
                if dc: a("s_waitcnt lgkmcnt(0)")
                a("s_barrier")
                self.stamp(7)
                if dy:
                    a(f"ds_read_b32 v{T}, v21 offset:{L_TK+8}"); a("s_waitcnt lgkmcnt(0)"); a(f"v_readfirstlane_b32 s65, v{T}")
                    a(f"s_cmp_ge_u32 s65, {NB}"); a(f"s_cbranch_scc1 {'L_w_f0' if self.stamps else 'L_end'}")
                    a("s_cmp_ge_u32 s65, 10"); a("s_cselect_b32 s65, 2048, 0"); a(f"s_cselect_b32 s66, {16*3072+1}, 1"); a("s_add_u32 s69, s69, s65")
                else: a(f"s_cmp_ge_u32 s3, {NWO}"); a(f"s_cbranch_scc1 {('L_w_f0' if self.stamps else 'L_end') if dc else 'L_att_fin'}")
                def issm(): a(f"buffer_load_dwordx4 v[{ML}:{ML+3}], v{RA}, s[{R_WS}:{R_WS+3}], s69 offen sc1")
                def chkm(): self.untag(list(range(ML, ML + 4)), V_T10, T, 0x3ff)
                issm()
                if dc: a("s_barrier"); a("s_waitcnt vmcnt(0)")
                else:
                    wold(0, w1)
                    a(f"s_waitcnt vmcnt({w1})")
                chkm()
                a("s_cbranch_vccz L_w_c")
                self.poll(issm, chkm, "PM")
                a("L_w_c:")
                r8 = ("quad_perm:[1,0,3,2]", "quad_perm:[2,3,0,1]", "row_half_mirror")
                a(f"v_max_f32_dpp v{T}, v{ML}, v{ML} {r8[0]} {dp}")
                a(f"v_cmp_ne_u32 vcc, s74, v{ML+2}")
                for m in r8[1:]: a(f"v_max_f32_dpp v{T}, v{T}, v{T} {m} {dp}")
                a(f"v_mul_f32 v{ML+1}, v{ML+1}, v{VA}")
                a(f"v_sub_f32 v{ML}, v{ML}, v{T}"); a(f"v_mul_f32 v{ML}, {fh(LOG2E)}, v{ML}"); a(f"v_exp_f32 v{ML}, v{ML}")
                if dy: a("s_cmp_eq_u64 vcc, 0"); a(f"s_cselect_b32 s77, {0 if self.opt.get('nn') == 1 else WS_ON-WS_O}, 0"); a("s_add_u32 s77, s77, s66")
                else: a("s_cmp_eq_u64 vcc, 0"); a(f"s_cselect_b32 s77, {(WS_ON-WS_O if self.opt.get('near', 1) else 0)+dc}, {dc}")
                a(f"v_mov_b32 v{T+1}, s77")
                if not dc: a(f"ds_write_b32 v21, v{T+1} offset:{L_NEAR}")
                a(f"v_mul_f32 v{T}, v{ML}, v{ML+1}")
                for m in r8: a(f"v_add_f32_dpp v{T}, v{T}, v{T} {m} {dp}")
                a(f"v_rcp_f32 v{T}, v{T}")
                if not dc: a(f"v_and_b32 v{T+1}, 31, v{V_L}"); a(f"v_lshlrev_b32 v{T+1}, 2, v{T+1}")
                a(f"v_mul_f32 v{ML}, v{ML}, v{T}")
                if dc:
                    a(f"ds_write_b32 v{O+2}, v{ML} offset:{L_COEF}"); a(f"ds_write_b32 v21, v{T+1} offset:{L_NEAR}")
                    a("s_waitcnt lgkmcnt(0)")
                    if self.stamps:
                        a("L_w_f1:"); self.flush_stamps(3, role='A'); self.flush_stamps(8, 5, role='A')
                    a("s_endpgm")
                    if self.stamps: a("L_w_f0:"); a("s_barrier"); a("s_branch L_w_f1")
                else:
                    a(f"ds_write_b32 v{T+1}, v{ML} offset:{L_COEF}")
                    a("s_branch L_att_fin")
                self.hole("A")
                a(f"{l}:")
                if dy:
                    l = a.label("TW")
                    a(f"s_cmp_lg_u32 s{S_WAVE}, 1"); a(f"s_cbranch_scc1 {l}")
                    a(f"s_waitcnt vmcnt({21-ty})"); a(f"v_readfirstlane_b32 s65, v{PQ}")
                    mw = self.opt.get("mw", 0)
                    if mw:
                        assert not hy
                        a("s_lshr_b32 s77, s65, 1"); a("s_and_b32 s65, s65, 1"); a("s_mul_i32 s65, s65, 10")
                        a("s_add_u32 s65, s65, s77"); a(f"s_cmp_ge_u32 s77, {10-mw}"); a("s_cselect_b32 s65, 63, s65")
                    if hy:
                        a("s_lshr_b32 s77, s65, 1"); a("s_and_b32 s65, s65, 1"); a("s_mul_i32 s65, s65, 10")
                        a(f"s_cmp_lt_u32 s77, {hy}"); a(f"s_cselect_b32 s66, s77, {hy}"); a("s_cselect_b32 s78, 128, 0x40000000"); a("s_add_u32 s77, s77, s66")
                        a("s_add_u32 s65, s65, s77"); a("s_cmp_ge_u32 s77, 10"); a("s_cselect_b32 s65, 63, s65"); a(f"v_mov_b32 v{ML+3}, s78")
                    a("s_cmp_ge_u32 s65, 10"); a(f"s_cselect_b32 s66, {16*128*1280-1280}, 0")
                    a("s_lshl_b32 s77, s65, 7"); a("s_add_u32 s66, s66, s77"); a("s_lshl_b32 s77, s65, 8")
                    a(f"s_cmp_ge_u32 s65, {NB}"); a("s_cselect_b32 s66, 0x40000000, s66")
                    a(f"v_mov_b32 v{ML}, s66"); a(f"v_mov_b32 v{ML+1}, s77"); a(f"v_mov_b32 v{ML+2}, s65")
                    if hy: a(f"ds_write_b128 v21, v[{ML}:{ML+3}] offset:{L_TK}")
                    else: a(f"ds_write_b96 v21, v[{ML}:{ML+2}] offset:{L_TK}")
                    a("s_waitcnt lgkmcnt(0)")
                    a(f"{l}:")
                a("s_barrier")
                sk = self.opt.get("sk", 0)
                if sk:
                    assert dy
                    ls, lj = a.label("WS"), a.label("WJ")
                    a(f"ds_read_b64 v[{Q}:{Q+1}], v{T+5} offset:{L_MAX}")
                    a(f"s_cmp_lt_u32 s{S_WAVE}, 8"); a(f"s_cbranch_scc1 {ls}")
                    if hy: a(f"ds_read_b128 v[{ML}:{ML+3}], v21 offset:{L_TK}")
                    else: a(f"ds_read_b96 v[{ML}:{ML+2}], v21 offset:{L_TK}")
                    a("s_waitcnt lgkmcnt(0)"); a(f"v_readfirstlane_b32 s65, v{ML+2}"); a(f"v_add_u32 v{VO}, v{VO}, v{ML}")
                    a(f"s_cmp_ge_u32 s65, {NB}"); a(f"s_cbranch_scc1 {ls}")
                    for t in range(4): a(f"buffer_load_dwordx4 v[{WO+4*t}:{WO+4*t+3}], v{VO}, s[{R_C}:{R_C+3}], s60 offen offset:{wst*t} nt")
                    a(f"v_readfirstlane_b32 s63, v{ML+1}"); a("s_add_u32 s62, s62, s63")
                    if hy:
                        l2 = a.label("WD")
                        a(f"v_readfirstlane_b32 s79, v{ML+3}")
                        a(f"s_and_b32 s63, s{S_WAVE}, 1"); a("s_lshl_b32 s78, s63, 5"); a("s_lshl_b32 s63, s63, 8"); a("s_add_u32 s62, s62, s63")
                        a("s_cmp_eq_u32 s79, 128"); a("s_cselect_b32 s79, 10, 9"); a(f"s_cbranch_scc1 {l2}")
                        scale(); a("s_waitcnt vmcnt(4)"); a(f"s_branch {lj}")
                        a(f"{l2}:")
                        for t in range(4): a(f"buffer_load_dwordx4 v[{WO2[t]}:{WO2[t]+3}], v{VO}, s[{R_C}:{R_C+3}], s60 offen offset:{wst*t+128} nt")
                    scale()
                    a(f"s_branch {lj}")
                    a(f"{ls}:"); a("s_waitcnt lgkmcnt(0)"); scale(); a("s_waitcnt vmcnt(0)")
                    a(f"{lj}:")
                    continue
                else:
                    if hy: a(f"ds_read_b128 v[{ML}:{ML+3}], v21 offset:{L_TK}")
                    elif dy: a(f"ds_read_b96 v[{ML}:{ML+2}], v21 offset:{L_TK}")
                    a(f"ds_read_b64 v[{Q}:{Q+1}], v{T+5} offset:{L_MAX}")
                    if dy: a("s_waitcnt lgkmcnt(1)"); a(f"v_add_u32 v{VO}, v{VO}, v{ML}")
                    if hy: a(f"v_readfirstlane_b32 s79, v{ML+3}"); a(f"v_add_u32 v{ML+3}, v{ML+3}, v{VO}")
                    wold(0, w1)
                    if dy: a(f"v_readfirstlane_b32 s63, v{ML+1}"); a(f"v_readfirstlane_b32 s65, v{ML+2}"); a("s_add_u32 s62, s62, s63")
                    if hy:
                        a("s_cmp_eq_u32 s79, 128"); a("s_cselect_b32 s79, 10, 9")
                        a(f"s_and_b32 s63, s{S_WAVE}, 1"); a("s_lshl_b32 s78, s63, 5"); a("s_lshl_b32 s63, s63, 8"); a("s_add_u32 s62, s62, s63")
                a("s_waitcnt lgkmcnt(0)")
                scale()
        fold()
        a("L_att_fin:")
        if aw:
            self.stamp(3); a("s_mov_b64 s[74:75], s[60:61]"); self.pw([8, 9, 6, 3, -1]); a("s_mov_b64 s[60:61], s[74:75]")
        if swa: self.stamp(3)
        a("s_waitcnt lgkmcnt(0)"); a("s_barrier")
        if swa: self.stamp(4)
        if dc:
            a(f"s_cmp_ge_u32 s{S_WAVE}, 8"); a("s_cbranch_scc1 L_w")
            tt = self.opt.get("tt", 0) == 2
            a(f"s_lshr_b32 s77, s{S_WAVE}, 1"); a("s_cmp_lg_u32 s77, 1"); a(f"s_cbranch_scc1 {'L_flag' if tt else 'L_end'}")
            a("s_setprio 3")
            self.stamp(3)
            self.publish(L_ACC0, T + 3, T + 4, 76, KR, False, near=72)
            self.stamp(4)
            if self.stamps:
                a(f"s_cmp_lg_u32 s{S_WAVE}, 2"); a("s_cbranch_scc1 L_end"); self.flush_stamps(5, 3, role='A')
            a("s_endpgm")
            if tt:
                a("L_flag:")
                a(f"s_cmp_lg_u32 s{S_WAVE}, 1"); a("s_cbranch_scc1 L_end")
                a("s_lshl_b32 s65, s65, 3"); a("s_add_u32 s65, s65, s64"); a("s_lshl_b32 s65, s65, 2"); a(f"s_add_u32 s65, s65, {WS_TK}")
                a(f"v_mov_b32 v{T}, s{S_T}"); a("s_mov_b64 exec, 1")
                a(f"buffer_store_dword v{T}, v21, s[{R_WS}:{R_WS+3}], s65 offen sc1")
                a("s_endpgm")
            a("L_w:")
            if dy: a(f"s_cmp_ge_u32 s65, {NB}"); a(f"s_cbranch_scc1 {'L_w_sk' if self.stamps else 'L_end'}")
            else: a(f"s_cmp_ge_u32 s3, {NWO}"); a(f"s_cbranch_scc1 L_end")
            a(f"s_mov_b32 s{S_CNT}, 0")
            a("L_w_sp:")
            a(f"ds_read_b32 v{T}, v21 offset:{L_NEAR}")
            a(f"s_add_u32 s{S_CNT}, s{S_CNT}, 1"); a(f"s_cmp_ge_u32 s{S_CNT}, {SPIN*64}"); a(f"s_cbranch_scc1 L_end")
            a("s_waitcnt lgkmcnt(0)")
            a(f"v_cmp_eq_u32 vcc, 0, v{T}"); a("s_cbranch_vccnz L_w_sp")
            a(f"ds_read_b32 v{C}, v{AD} offset:{L_COEF}"); a(f"ds_read_b32 v{C+1}, v{AD+5} offset:{L_COEF}"); a(f"ds_read_b32 v{C+2}, v{AD+1} offset:{L_COEF+8}")
        else:
            a(f"s_cmp_gt_u32 s{S_WAVE}, 1"); a("s_cbranch_scc1 L_w")
            self.stamp(3)
            self.publish(L_ACC0, T + 3, T + 4, 76, KR, False, near=72)
            self.stamp(4)
            a("L_w:")
            a(f"s_cmp_ge_u32 s3, {NWO}"); a(f"s_cbranch_scc1 {'L_w_fl' if self.stamps else 'L_end'}")
            if w2:
                assert w1 == 4
                a(f"s_cmp_lt_u32 s{S_WAVE}, 8"); a(f"s_cbranch_scc1 {'L_w_fl' if self.stamps else 'L_end'}")
            a(f"ds_read_b32 v{T}, v21 offset:{L_NEAR}")
            a(f"ds_read_b32 v{C}, v{AD} offset:{L_COEF}"); a(f"ds_read_b32 v{C+1}, v{AD+5} offset:{L_COEF}"); a(f"ds_read_b32 v{C+2}, v{AD+1} offset:{L_COEF+8}")
        if w1 < 4:
            a("s_barrier")
            wold(w1, 4)
        if not dc: a("s_waitcnt lgkmcnt(3)")
        a(f"v_readfirstlane_b32 s77, v{T}"); a("s_add_u32 s70, s70, s77")
        if self.opt.get("pw"): self.stamp(7); a(f"s_mov_b32 s{S_CNT}, -1")
        isso()
        a(f"v_and_b32 v{T+1}, 1, v{V_L}"); a(f"v_lshl_add_u32 v{T+4}, v{T+1}, 13, v{T+4}")
        qa = self.opt.get("qa", 0)
        if qa: a(f"v_and_b32 v{T+1}, 2, v{V_L}"); a(f"v_lshl_add_u32 v{T+4}, v{T+1}, 18, v{T+4}")
        self.colrd(T + 3, T)
        if hy: a(f"v_add_u32 v{T+3}, s78, v{T+3}")
        if self.opt.get("ws") and self.stamps: a("s_waitcnt vmcnt(3)"); self.stamp(5)
        a("s_waitcnt vmcnt(0) lgkmcnt(0)")
        self.untag(list(range(O, O + 3)), V_T10, T + 1, 0x3ff)
        a("s_cbranch_vccz L_w_go")
        self.poll(isso, lambda: self.untag(list(range(O, O + 3)), V_T10, T + 1, 0x3ff), "PO", hole="A")
        a("L_w_go:")
        self.stamp(8)
        a(f"v_mul_f32 v{X}, v{C}, v{O}"); a(f"v_fmac_f32 v{X}, v{C+1}, v{O+1}"); a(f"v_fmac_f32 v{X}, v{C+2}, v{O+2}")
        a(f"v_add_f32_dpp v{X}, v{X}, v{X} row_shl:4 row_mask:0xf bank_mask:0x5")
        a(f"v_cvt_pk_bf16_f32 v{X}, v{X}, v{X}")
        self.gemv(X, P, B, [(D1, WO), (D2, WO2)] if hy else [(D1, WO)], 4)
        self.fold_col(D1, D2 if hy else None, Y)
        self.putpart(T + 2, Y, L_ACC1)
        if swa: self.stamp(9)
        if self.opt.get("pw"): self.stamp(6)
        a("s_waitcnt lgkmcnt(0)"); a("s_barrier")
        if self.opt.get("pw") and not self.opt.get("ws"): self.stamp(5)
        a(f"s_cmp_ge_u32 s{S_WAVE}, s79" if hy else f"s_cmp_lg_u32 s{S_WAVE}, {8 if w2 else 0}"); a(f"s_cbranch_scc1 {('L_w_pw' if self.opt.get('pw') else 'L_w_fl') if self.stamps else 'L_end'}")
        self.publish(L_ACC1 + (8 * PST if w2 else 0), T + 3, T + 4, 62, KR, False, dual=2 if qa else 1, half=w2, one=self.opt.get("f3"))
        self.stamp(9)
        if self.stamps and w2:
            if hy: a(f"s_cmp_lg_u32 s{S_WAVE}, 8"); a(f"s_cbranch_scc1 L_w_pw")
            self.flush_stamps(10, 8, role='A')
            a("L_w_pw:")
            if not aw: self.pw([7, 8, 6, 5, -1, "s65"])
            a("s_endpgm")
            if dy:
                a("L_w_sk:")
                for j in (5, 6, 7, 8, 9): self.stamp(j)
                a(f"s_mov_b32 s{S_CNT}, 777")
                a(f"s_cmp_lg_u32 s{S_WAVE}, 8"); a("s_cbranch_scc1 L_w_pw"); self.flush_stamps(10, 8, role='A'); a("s_branch L_w_pw")
            a("L_w_fl:")
            if not dc:
                a(f"s_cmp_lg_u32 s{S_WAVE}, {swa}"); a("s_cbranch_scc1 L_end")
                self.flush_stamps(8, role='A')
        elif self.stamps:
            a("L_w_fl:")
            a(f"s_cmp_lg_u32 s{S_WAVE}, {swa}"); a("s_cbranch_scc1 L_end")
            self.flush_stamps(10, role='A')
        a("s_endpgm")

    ROW, VO, X, B, D1, D2, Y, T = 10, 11, 12, 14, 22, 26, 30, 32
    XO, ADD, CPOS, UOFF, P = 44, 45, 46, 47, 48
    def front(self):
        a = self.a
        ROW, VO, X, B, D1, D2, Y, T, XO, ADD, CPOS, UOFF, P = self.ROW, self.VO, self.X, self.B, self.D1, self.D2, self.Y, self.T, self.XO, self.ADD, self.CPOS, self.UOFF, self.P
        CR, WQ, XS, CV, VQ = 52, 64, 84, 94, 95
        pq = self.opt.get("pq", 0); WQ2 = 96; pc = self.opt.get("pc", 0); SC = "s3" if pq or pc else "s2"
        if pc:
            self.roleidx(2)
            a("s_lshl_b32 s60, s2, 1"); a("s_add_u32 s3, s60, 7"); a(f"s_sub_u32 s61, s60, 34"); a(f"s_sub_u32 s62, s60, {2*NM-1}")
            a(f"s_cmp_ge_u32 s2, 17"); a("s_cselect_b32 s3, s61, s3")
            a(f"s_cmp_ge_u32 s2, {NM}"); a("s_cselect_b32 s3, s62, s3")
            a(f"s_cmp_ge_u32 s2, 40"); a("s_cselect_b32 s3, s2, s3")
            if pc == 2: a("s_mov_b32 s3, s2")
        if pq:
            self.roleidx(2)
            a("s_lshl_b32 s60, s2, 1"); a("s_add_u32 s3, s60, 15"); a(f"s_sub_u32 s61, s60, {2*NM}"); a(f"s_sub_u32 s62, s60, {2*NM+39}")
            a(f"s_cmp_ge_u32 s2, {NM}"); a("s_cselect_b32 s3, s61, s3"); a(f"s_cselect_b32 s76, 0, {640*4096*2}")
            a(f"s_cmp_ge_u32 s2, {NM+20}"); a("s_cselect_b32 s3, s62, s3")
        a(f"s_and_b32 s64, {SC}, 1"); a(f"s_lshr_b32 s65, {SC}, 1")
        a("s_cmp_eq_u32 s64, 0"); a("s_cselect_b32 s66, 24, 16"); a("s_cselect_b32 s67, 0, 384"); a(f"s_cselect_b32 s68, {2*7680}, 0x40000000")
        a("s_cselect_b32 s73, 3, 2"); a("s_mul_i32 s72, s73, 7680")
        self.colvoff(VO, "s72", T)
        a(f"s_mul_i32 s66, s66, s{S_WAVE}"); a("s_add_u32 s66, s66, s67")
        a("s_mul_i32 s62, s66, 7680"); a("s_lshl_b32 s63, s65, 7"); a("s_add_u32 s62, s62, s63")
        a(f"s_add_u32 s63, s62, 7680"); a("s_add_u32 s68, s68, s62")
        a(f"s_cmp_lt_u32 {SC}, 40"); a(f"s_cselect_b32 s69, {640*3840*2}, 0")
        self.rowidx(CV, T, "s73")
        a(f"v_add_u32 v{CV}, s66, v{CV}"); a(f"v_lshlrev_b32 v{CV}, 1, v{CV}")
        self.colvoff(VQ, 5 * 8192, T)
        if pq:
            a("s_sub_u32 s71, s2, 8"); a("s_mul_i32 s71, s71, 43"); a("s_lshr_b32 s71, s71, 7"); a("s_min_u32 s71, s71, 5"); a("s_add_u32 s71, s71, s2"); a("s_sub_u32 s71, s71, 10"); a("s_lshl_b32 s71, s71, 1")
            a("s_lshr_b32 s70, s2, 1"); a("s_lshl_b32 s70, s70, 3"); a("s_and_b32 s101, s2, 1"); a("s_add_u32 s70, s70, s101"); a("s_add_u32 s70, s70, 2")
            a("s_cmp_lt_u32 s2, 10"); a("s_cselect_b32 s101, s70, s71"); a("s_cselect_b32 s77, 0x40000000, 128"); a("s_cselect_b32 s78, 1, 2")
        else:
            a("s_cmp_ge_u32 s2, 48"); a("s_cselect_b32 s71, 8, 0"); a("s_sub_u32 s71, s2, s71")
            a("s_add_u32 s70, s71, 4"); a("s_mul_i32 s70, s70, 37"); a("s_lshr_b32 s70, s70, 8"); a("s_add_u32 s71, s71, s70")
            a("s_lshl_b32 s70, s2, 3"); a("s_sub_u32 s70, s70, 317"); a("s_lshr_b32 s101, s2, 3"); a("s_cmp_eq_u32 s101, 5"); a("s_cselect_b32 s101, s70, s71")
        a(f"s_mul_i32 s70, s{S_WAVE}, {40*8192}"); a("s_lshl_b32 s71, s101, 7"); a("s_add_u32 s70, s70, s71")
        xc = self.opt.get("xc", 0); qst = 8192
        if xc & 8:
            a(f"v_lshlrev_b32 v{VQ}, 4, v{V_L}"); a(f"s_lshl_b32 s70, s101, 4"); a(f"s_add_u32 s70, s70, s{S_WAVE}"); a("s_mul_i32 s70, s70, 5120"); qst = 1024
        if xc & 16:
            a(f"v_lshlrev_b32 v{VO}, 4, v{V_L}"); a(f"s_lshl_b32 s62, s65, 4"); a(f"s_add_u32 s62, s62, s{S_WAVE}"); a("s_mul_i32 s62, s62, 5120")
            a("s_mul_i32 s63, s64, 3072"); a("s_add_u32 s62, s62, s63"); a("s_add_u32 s63, s62, 1024")
            a("s_cmp_eq_u32 s64, 0"); a(f"s_cselect_b32 s68, 2048, 0x40000000"); a("s_add_u32 s68, s68, s62")
        self.rowidx(ROW, T, 5)
        a(f"s_mul_i32 s74, s{S_WAVE}, 40"); a(f"v_add_u32 v{ROW}, s74, v{ROW}"); a(f"v_min_u32 v{ROW}, 639, v{ROW}")
        a(f"v_lshlrev_b32 v{T}, 1, v{ROW}"); a(f"v_lshlrev_b32 v{ADD}, 2, v{V_L}")
        a("s_waitcnt lgkmcnt(0)")
        a(f"s_load_dword s{S_T}, s[{S_WS}:{S_WS+1}], 0")
        srd(a, R_C, S_C, 1280); srd(a, R_A, S_WM, "s69")
        def cld(t): a(f"buffer_load_dwordx4 v[{CR+4*t}:{CR+4*t+3}], v{VO}, s[{R_A}:{R_A+3}], s{(62, 63, 68)[t]} offen nt")
        def wld(t):
            if pq:
                u, t = t & 1, t >> 1
                if t and not u: a(f"s_add_u32 s70, s70, {qst}")
                if u: a(f"s_add_u32 s61, s70, s77")
                r = (WQ2 if u else WQ) + 4 * t
                a(f"buffer_load_dwordx4 v[{r}:{r+3}], v{VQ}, s[{R_B}:{R_B+3}], s{61 if u else 70} offen nt")
                return
            if t: a(f"s_add_u32 s61, s70, {t*qst}")
            a(f"buffer_load_dwordx4 v[{WQ+4*t}:{WQ+4*t+3}], v{VQ}, s[{R_B}:{R_B+3}], s{61 if t else 70} offen nt")
        NQ = 10 if pq else 5
        lnc, lx = a.label("NC"), a.label("NX")
        a(f"s_cmp_ge_u32 {SC}, 40"); a(f"s_cbranch_scc1 {lx}")
        a(f"buffer_load_ushort v{CV}, v{CV}, s[{R_C}:{R_C+3}], 0 offen")
        cb = self.opt.get("cb", 0)
        cld(0); cld(1)
        if cb: cld(2)
        a(f"{lx}:")
        srd(a, R_D, S_X, 1280); srd(a, R_B, S_WQ, "s76" if pq else 640 * 4096 * 2)
        for i in range(5): a(f"buffer_load_dword v{XS+i}, v{ADD}, s[{R_D}:{R_D+3}], 0 offen offset:{256*i}")
        a(f"buffer_load_ushort v{XO}, v{T}, s[{R_D}:{R_D+3}], 0 offen")
        l = a.label("NW")
        a(f"s_cmp_lt_u32 {SC}, 40"); a(f"s_cbranch_scc1 {l}")
        for t in range(NQ): wld(t)
        a(f"{l}:")
        srd(a, R_WS, S_WS, WS_SIZE)
        self.masks(T)
        self.colrd(CPOS, T)
        self.wraddr(ADD)
        self.unitoff(UOFF)
        a(f"v_lshlrev_b32 v{ROW}, 2, v{ROW}")
        a("s_waitcnt lgkmcnt(0)")
        self.tags()
        a(f"s_cmp_ge_u32 {SC}, 40"); a(f"s_cbranch_scc1 {lnc}")
        a(f"s_waitcnt vmcnt({8+cb})")
        a(f"v_lshlrev_b32 v{X}, 16, v{CV}")
        self.silu(X, T)
        def cwait(t):
            if t == 0:
                a(f"s_waitcnt vmcnt({7+cb})")
                if not cb: cld(2)
            elif t == 1: a("s_waitcnt vmcnt(7)"); wld(0)
            else: a(f"s_waitcnt vmcnt({7 if cb else 1})"); wld(1)
        self.gemv(X, P, B, [(D1, CR)], 3, pre=cwait)
        self.fold_col(D1, None, Y)
        self.putpart(ADD, Y, L_ACC1)
        a("s_waitcnt lgkmcnt(0)"); a("s_barrier")
        a(f"s_cmp_lg_u32 s{S_WAVE}, 0"); a(f"s_cbranch_scc1 {lnc}")
        a("s_mul_i32 s62, s64, 10240"); a("s_lshl_b32 s63, s65, 9"); a("s_add_u32 s62, s62, s63"); a(f"s_add_u32 s62, s62, {WS_CR}")
        a(f"v_and_b32 v{T}, 1, v{V_L}"); a(f"v_lshlrev_b32 v{T}, 4, v{T}"); a(f"v_lshl_add_u32 v{T}, v{UOFF}, 1, v{T}")
        self.publish(L_ACC1, CPOS, T, 62, B, 2)
        self.stamp(1)
        a(f"{lnc}:")
        if cb:
            l = a.label("XW")
            a(f"s_cmp_ge_u32 {SC}, 40"); a(f"s_cbranch_scc1 {l}"); a("s_waitcnt vmcnt(2)"); a(f"{l}:")
        a(f"s_waitcnt vmcnt({NQ})")
        for i in range(5):
            a(f"v_and_b32 v{XS+5+i}, 0xffff0000, v{XS+i}"); a(f"v_lshlrev_b32 v{XS+i}, 16, v{XS+i}")
        a(f"v_lshlrev_b32 v{XO}, 16, v{XO}")
        m, v, r, u, w = T, T + 1, T + 2, T + 3, T + 4
        xs = list(range(XS, XS + 10))
        a(f"v_add_f32 v{m}, v{xs[0]}, v{xs[1]}")
        for x in xs[2:]: a(f"v_add_f32 v{m}, v{m}, v{x}")
        row_red(a, m); self.xrow_allred(m, u, "v_add_f32")
        a(f"v_mul_f32 v{m}, {fh(1.0/640)}, v{m}")
        a(f"v_sub_f32 v{u}, v{xs[0]}, v{m}"); a(f"v_mul_f32 v{v}, v{u}, v{u}")
        for x in xs[1:]: a(f"v_sub_f32 v{u}, v{x}, v{m}"); a(f"v_fmac_f32 v{v}, v{u}, v{u}")
        row_red(a, v); self.xrow_allred(v, u, "v_add_f32")
        a(f"v_mul_f32 v{v}, {fh(1.0/640)}, v{v}")
        bfr(a, m, m); bfr(a, v, v)
        a(f"v_add_f32 v{v}, {fh(1e-5)}, v{v}"); bfr(a, v, v)
        a(f"v_readfirstlane_b32 s100, v{m}")
        a(f"v_sqrt_f32 v{v}, v{v}"); bfr(a, v, v)
        a(f"v_rcp_f32 v{r}, v{v}")
        a(f"v_sub_f32 v{u}, v{XO}, v{m}"); bfr(a, u, u)
        fdiv_r(a, X, u, v, r, w); bfr(a, X, X)
        l = a.label("NR")
        a(f"s_cmp_ge_u32 {SC}, 40"); a(f"s_cbranch_scc1 {l}")
        tw = self.opt.get("tw", 2)
        for t in range(2, NQ):
            if tw: a(f"s_waitcnt vmcnt({tw-1})")
            wld(t)
        l2 = a.label("NV")
        a(f"s_branch {l2}")
        a(f"{l}:")
        a(f"s_cmp_eq_u32 s{S_WAVE}, 1"); a(f"s_cbranch_scc1 L_race")
        a(f"{l2}:"); self.l_back = l2
        self.touch("F")
        if pq: a(f"s_cmp_ge_u32 s2, {NM}"); a("s_cbranch_scc1 L_f")
        for i in range(4): a(f"s_mov_b32 s{70+i}, {WS_CR+5120*i}")
        H = B
        a(f"v_lshlrev_b32 v{T+1}, 1, v{ROW}"); a(f"v_mov_b32 v{T+2}, s{S_T}")
        def iss():
            for i in range(4):
                a(f"buffer_load_dwordx2 v[{H+2*i}:{H+2*i+1}], v{T+1}, s[{R_WS}:{R_WS+3}], s{70+i} offen sc1")
        chkh = lambda: self.untag(list(range(H + 1, H + 8, 2)), T + 2, T, None)
        ne = self.opt.get("ne", 0)
        nl = self.opt.get("nl", 0); hh = self.opt.get("hh", 0)
        if nl:
            assert pc and ne
            a("s_mov_b32 s3, s2"); a(f"s_sub_u32 s69, s3, {NM}")
            self.gu_row(T + 3); self.gu_addr(T + 3)
            self.poll(iss, chkh, "PH", hole="F" if hh else None)
            self.stamp(9)
            le = a.label("NE")
            a(f"s_cmp_lt_u32 s3, {NM}"); a(f"s_cbranch_scc1 {le}")
            a(f"s_cmp_ge_u32 s{S_WAVE}, 10"); a(f"s_cbranch_scc1 {le}")
            for j in range(ne): self.gu_ld(j, False)
            a(f"{le}:")
        else:
            if ne:
                iss()
                if pc: a("s_mov_b32 s3, s2")
                else: self.roleidx(3)
                le, lj = a.label("NE"), a.label("NJ")
                a(f"s_sub_u32 s69, s3, {NM}")
                self.gu_row(T + 3); self.gu_addr(T + 3)
                a(f"s_cmp_lt_u32 s3, {NM}"); a(f"s_cbranch_scc1 {le}")
                a(f"s_cmp_ge_u32 s{S_WAVE}, 10"); a(f"s_cbranch_scc1 {le}")
                for j in range(ne): self.gu_ld(j, False)
                a(f"s_waitcnt vmcnt({ne})"); a(f"s_branch {lj}")
                a(f"{le}:"); a("s_waitcnt vmcnt(0)")
                a(f"{lj}:")
                chkh()
                a("s_cbranch_vccz L_hgo")
            self.poll(iss, chkh, "PH", hole="F" if hh else None)
            a("L_hgo:")
            self.stamp(9)
        a(f"v_add_f32 v{H}, v{H}, v{H+4}"); a(f"v_add_f32 v{H+1}, v{H+2}, v{H+6}")
        bfr(a, H, H); bfr(a, H + 1, H + 1)
        a(f"v_add_f32 v{H+1}, 1.0, v{H+1}"); bfr(a, H + 1, H + 1)
        a(f"v_mul_f32 v{X}, v{X}, v{H+1}"); bfr(a, X, X)
        a(f"v_add_f32 v{X}, v{X}, v{H}"); a(f"v_cvt_pk_bf16_f32 v{X}, v{X}, v{X}")
        if pq:
            self.gemv(X, P, B, [(D1, WQ), (D2, WQ2)], 5)
            self.fold_col(D1, D2, Y)
        else:
            self.gemv(X, P, B, [(D1, WQ)], 5)
            if hh > 1: self.hole("F", True)
            self.fold_col(D1, None, Y)
        self.putpart(ADD, Y, L_ACC0)
        a("s_waitcnt lgkmcnt(0)"); a("s_barrier")
        l = a.label("QP")
        if pq:
            a(f"s_cmp_ge_u32 s{S_WAVE}, s78"); a(f"s_cbranch_scc1 {l}")
            a(f"s_add_u32 s70, s101, s{S_WAVE}"); a("s_lshl_b32 s70, s70, 8"); a(f"s_add_u32 s70, s70, {WS_Q}")
            a(f"s_lshl_b32 s71, s{S_WAVE}, 5"); a(f"v_add_u32 v{T+1}, s71, v{CPOS}")
            self.publish(L_ACC0, T + 1, UOFF, 70, B, True)
        else:
            a(f"s_cmp_lg_u32 s{S_WAVE}, 0"); a(f"s_cbranch_scc1 {l}")
            a("s_lshl_b32 s70, s101, 8"); a(f"s_add_u32 s70, s70, {WS_Q}")
            self.publish(L_ACC0, CPOS, UOFF, 70, B, True)
        self.stamp(2)
        a(f"{l}:")
        if pq: a("s_branch L_m")
        else:
            if ne: a("s_mov_b32 s2, s3")
            elif not pc: self.roleidx(2)
            xa = self.opt.get("xa")
            if xa:
                srd(a, R_E, S_K, 0x8000000)
                a("s_lshr_b32 s60, s2, 1"); a("s_lshl_b32 s60, s60, 22"); a("s_and_b32 s61, s2, 1"); a("s_lshl_b32 s61, s61, 18"); a("s_add_u32 s60, s60, s61"); a("s_add_u32 s60, s60, 0x200000"); a(f"s_lshl_b32 s61, s{S_WAVE}, 14"); a("s_add_u32 s60, s60, s61")
                a(f"s_cmp_lt_u32 s2, {NM}"); a(f"s_cselect_b32 s61, {xa[0]}, {xa[1]}")
                a(f"v_lshlrev_b32 v{T}, 4, v{V_L}")
                lx, ly = a.label("XA"), a.label("XB")
                a("s_cmp_eq_u32 s61, 0"); a(f"s_cbranch_scc1 {ly}")
                a(f"{lx}:")
                a(f"s_waitcnt vmcnt({xa[2]-1})")
                a(f"buffer_load_dwordx4 v[96:99], v{T}, s[{R_E}:{R_E+3}], s60 offen nt")
                a("s_add_u32 s60, s60, 1024"); a("s_sub_u32 s61, s61, 1"); a("s_cmp_lg_u32 s61, 0"); a(f"s_cbranch_scc1 {lx}")
                if len(xa) < 4: a("s_waitcnt vmcnt(0)"); a("s_barrier")
                a(f"{ly}:")
            a(f"s_cmp_lt_u32 s2, {NM}"); a("s_cbranch_scc1 L_m"); a("s_branch L_f")
        self.page("F")
        a("L_m:")

    def roleidx(self, d):
        a = self.a
        nf = self.opt.get("nf")
        if nf:
            assert sum(nf) == NF
            nm = [8 - v for v in nf]; pm = [sum(nm[:i]) for i in range(8)]
            lutn = sum(nm[i] << (4 * i) for i in range(8))
            lo = sum(pm[i] << (8 * i) for i in range(4)); hi = sum(pm[4 + i] << (8 * i) for i in range(4))
            a("s_lshr_b32 s60, s2, 3"); a("s_and_b32 s61, s2, 7")
            a("s_lshl_b32 s62, s60, 2"); a(f"s_lshr_b32 s62, {lutn:#x}, s62"); a("s_and_b32 s62, s62, 15")
            a(f"s_mov_b32 s64, {lo:#x}"); a(f"s_mov_b32 s65, {hi:#x}"); a("s_lshl_b32 s63, s60, 3"); a("s_lshr_b64 s[64:65], s[64:65], s63"); a("s_and_b32 s64, s64, 255")
            a("s_add_u32 s65, s64, s61")
            a("s_sub_u32 s66, s2, s64"); a("s_sub_u32 s66, s66, s62"); a(f"s_add_u32 s66, s66, {NM}")
            if self.opt.get("pf"):
                s2nm = "s63"
                a("s_lshl_b32 s63, s62, 1"); a("s_sub_u32 s63, s63, 8")
                a("s_sub_u32 s3, s2, s64"); a("s_sub_u32 s3, s3, s63")
                a("s_cmp_ge_u32 s61, s63"); a(f"s_cselect_b32 s101, {640*1728*2}, 0")
            a("s_cmp_lt_u32 s61, s62"); a(f"s_cselect_b32 s{d}, s65, s66")

    def role_m(self):
        a = self.a
        ROW, VO, X, B, D1, D2, Y, T, XO, ADD, CPOS, UOFF, P = self.ROW, self.VO, self.X, self.B, self.D1, self.D2, self.Y, self.T, self.XO, self.ADD, self.CPOS, self.UOFF, self.P
        WB = 88
        tm = self.opt.get("tm", 2)
        dbl = self.opt.get("dbl")
        if dbl:
            mk = sum(1 << i for i in dbl); assert len(dbl) == 3
            a(f"s_mov_b32 s64, {mk & 0xffffffff:#x}"); a(f"s_mov_b32 s65, {mk >> 32:#x}")
            a("s_bfm_b64 s[66:67], s2, 0"); a("s_and_b64 s[66:67], s[66:67], s[64:65]"); a("s_bcnt1_i32_b64 s66, s[66:67]")
            a("s_lshl_b32 s68, s66, 1"); a("s_add_u32 s68, s68, 54"); a("s_sub_u32 s69, s2, s66"); a("s_add_u32 s69, s69, 20")
            a("s_bitcmp1_b64 s[64:65], s2")
        else:
            a("s_lshl_b32 s68, s2, 1"); a("s_add_u32 s68, s68, 54"); a("s_add_u32 s69, s2, 17")
            a("s_cmp_lt_u32 s2, 3")
        mw = self.opt.get("mw", 0); rd = self.opt.get("rd", 0)
        if rd:
            u0 = self.opt.get("u0", 0)
            srd(a, R_A, S_WM, 640 * 3840 * 2); srd(a, R_E, S_OUT, 1280); srd(a, R_B, S_WD, 640 * 1728 * 2)
            if rd == 2:
                rm = self.opt["rm"]; u1 = [i for i in range(NM) if i not in rm or i in self.opt.get("ru", [])]
                u3 = self.opt.get("u3", []); assert len(u1) + len(u3) == 30
                a("s_mov_b32 s3, 0")
                self.member(u1, 68, "L_rd")
                if u3: a("s_cmp_lt_u32 s68, 20"); a("s_cselect_b32 s69, 30, 0"); a("s_add_u32 s68, s68, s69")
                else: a("s_add_u32 s68, s68, 20")
                a("L_mu:")
            else:
                a(f"s_sub_u32 s68, s2, {u0}"); a("s_cmp_ge_u32 s68, 30"); a("s_cbranch_scc1 L_rd")
                a("s_add_u32 s68, s68, 20")
            a(f"v_lshrrev_b32 v{T}, 1, v{ROW}")
            a(f"buffer_load_ushort v{X}, v{T}, s[{R_C}:{R_C+3}], 0 offen")
            self.colvoff(VO, 5 * 7680, T)
            a(f"s_mul_i32 s62, s{S_WAVE}, {40*7680}"); a("s_lshl_b32 s63, s68, 7"); a("s_add_u32 s62, s62, s63")
            self.colloads(WB, VO, R_A, 62, 7680, thr=tm)
            a(f"s_waitcnt vmcnt(5)")
            a(f"v_lshlrev_b32 v{X}, 16, v{X}")
            self.silu(X, T)
            self.gemv(X, P, B, [(D1, WB)], 5, wait=lambda t: 4 - t)
            self.fold_col(D1, None, Y)
            self.putpart(ADD, Y, L_ACC1)
            a("s_waitcnt lgkmcnt(0)"); a("s_barrier")
            a(f"s_cmp_lg_u32 s{S_WAVE}, 0"); a(f"s_cbranch_scc1 L_rd")
            a("s_lshl_b32 s70, s68, 8"); a(f"s_add_u32 s70, s70, {WS_MOD}")
            self.publish(L_ACC1, CPOS, UOFF, 70, WB, True)
            a("L_rd:")
            if self.stamps:
                l = a.label("MS")
                a(f"s_cmp_lg_u32 s{S_WAVE}, 0"); a(f"s_cbranch_scc1 {l}")
                if rd == 2:
                    l2 = a.label("MT")
                    a(f"s_cmp_eq_u32 s3, 0"); a(f"s_cbranch_scc1 {l2}")
                    self.stamp(9); self.flush_stamps(10, 9, role='M'); a("s_endpgm")
                    a(f"{l2}:")
                self.stamp(3); a("v_mov_b32 v63, v10"); self.flush_stamps(4, role='M'); a("v_mov_b32 v10, v63")
                a(f"{l}:")
            if rd == 2:
                u2 = self.opt["u2"]; assert len(u2) == 10 and not set(u2) & set(rm) and not set(u3) & set(rm) and not set(u3) & set(u2)
                a("s_cmp_lg_u32 s3, 0"); a("s_cbranch_scc1 L_end")
                a("s_mov_b32 s3, 1")
                l = a.label("MG")
                if u3:
                    l3 = a.label("MH")
                    self.member(u3, 68, l3)
                    a(f"s_add_u32 s68, s68, {30-len(u3)}"); a(f"s_branch {l}")
                    a(f"{l3}:")
                self.member(u2, 68, "L_rd2")
                a("s_add_u32 s68, s68, 50")
                a(f"s_cmp_lg_u32 s{S_WAVE}, 3"); a(f"s_cbranch_scc1 {l}")
                self.otrig(self.opt.get("gj", 0), T)
                a(f"{l}:")
                a("s_barrier")
                a("s_branch L_mu")
                a("L_rd2:")
                self.role_rd2()
            else: self.role_rd()
        elif mw:
            WO, VW = 64, 61
            a("s_cselect_b32 s68, s68, s69"); a("s_cselect_b32 s69, 2, 1")
            srd(a, R_A, S_WM, 640 * 3840 * 2); srd(a, R_E, S_OUT, 1280)
            a(f"v_lshrrev_b32 v{T}, 1, v{ROW}")
            a(f"buffer_load_ushort v{X}, v{T}, s[{R_C}:{R_C+3}], 0 offen")
            self.colvoff(VO, 5 * 7680, T)
            a(f"s_mul_i32 s62, s{S_WAVE}, {40*7680}"); a("s_lshl_b32 s63, s68, 7"); a("s_add_u32 s62, s62, s63"); a("s_add_u32 s64, s62, 128")
            self.colloads(WB, VO, R_A, 62, 7680, thr=tm)
            nm = [8 - v for v in self.opt["nf"]]; pm = [sum(nm[:i]) for i in range(8)]; mk = sum(1 << p for p in pm)
            a(f"s_mov_b32 s76, {mk & 0xffffffff:#x}"); a(f"s_mov_b32 s77, {mk >> 32:#x}")
            a("s_add_u32 s72, s2, 1"); a("s_bfm_b64 s[66:67], s72, 0"); a("s_and_b64 s[66:67], s[66:67], s[76:77]")
            a("s_bcnt1_i32_b64 s72, s[66:67]"); a("s_sub_u32 s72, s72, 1"); a("s_flbit_i32_b64 s73, s[66:67]")
            a("s_add_u32 s73, s73, s2"); a(f"s_sub_u32 s73, s73, {63-10+mw}")
            a("s_cmp_ge_u32 s72, 4"); a("s_cselect_b32 s74, 3, 0"); a("s_xor_b32 s72, s72, s74")
            a("s_cmp_lt_u32 s73, 10"); a(f"s_cselect_b32 s67, {4096*640*2}, 0")
            srd(a, R_B, S_WO, "s67")
            a(f"s_lshr_b32 s74, s{S_WAVE}, 2"); a("s_lshl_b32 s74, s74, 3"); a("s_add_u32 s74, s74, s72")
            a(f"s_and_b32 s75, s{S_WAVE}, 3"); a("s_lshl_b32 s66, s74, 2"); a("s_add_u32 s66, s66, s75")
            a(f"s_mul_i32 s66, s66, {32*1280}"); a("s_lshl_b32 s67, s73, 7"); a("s_add_u32 s66, s66, s67")
            self.colvoff(VW, 4 * 1280, T)
            pn = self.opt.get("pn", 2)
            def wl(lo, hi, thr):
                for t in range(lo, hi):
                    if thr: a(f"s_waitcnt vmcnt({thr-1})")
                    a(f"buffer_load_dwordx4 v[{WO+4*t}:{WO+4*t+3}], v{VW}, s[{R_B}:{R_B+3}], s66 offen offset:{1280*t} nt")
            l = a.label("MD")
            a("s_cmp_eq_u32 s69, 1"); a(f"s_cbranch_scc1 {l}")
            self.colloads(WB + 20, VO, R_A, 64, 7680, thr=tm)
            a("s_waitcnt vmcnt(0)")
            a(f"{l}:")
            wl(0, pn, tm)
            a(f"s_waitcnt vmcnt({5+pn})")
            a(f"v_lshlrev_b32 v{X}, 16, v{X}")
            self.silu(X, T)
            self.gemv(X, P, B, [(D1, WB), (D2, WB + 20)], 5, wait=lambda t: 4 - t + pn)
            self.fold_col(D1, D2, Y)
            self.putpart(ADD, Y, L_ACC1)
            wl(pn, 4, 0)
            a("s_waitcnt lgkmcnt(0)"); a("s_barrier")
            l = a.label("MP")
            a(f"s_cmp_ge_u32 s{S_WAVE}, s69"); a(f"s_cbranch_scc1 {l}")
            a(f"s_add_u32 s70, s68, s{S_WAVE}"); a("s_lshl_b32 s70, s70, 8"); a(f"s_add_u32 s70, s70, {WS_MOD}")
            a(f"s_lshl_b32 s71, s{S_WAVE}, 5"); a(f"v_add_u32 v{T+1}, s71, v{CPOS}")
            self.publish(L_ACC1, T + 1, UOFF, 70, WB, True)
            if self.stamps:
                a(f"s_cmp_lg_u32 s{S_WAVE}, 0"); a(f"s_cbranch_scc1 {l}")
                self.stamp(3); self.flush_stamps(4, role='M'); self.flush_stamps(10, 9, role='M')
            a(f"{l}:")
            a("s_cmp_lt_u32 s73, 10"); a("s_cbranch_scc1 L_mw")
            a(f"s_cmp_eq_u32 s{S_WAVE}, 2"); a("s_cbranch_scc1 L_red")
            a("s_endpgm")
        else:
            a(f"s_cselect_b32 s67, {640*3840*2}, 0"); a("s_cselect_b32 s68, s68, s69"); a("s_cselect_b32 s69, 2, 1")
            if self.opt.get("xg"):
                a("s_cmp_ge_u32 s68, 50"); a(f"s_cselect_b32 s67, 0, {640*3840*2}")
                srd(a, R_A, S_WM, "s67"); srd(a, R_B, S_WM, 0); srd(a, R_E, S_OUT, 1280)
            else:
                srd(a, R_A, S_WM, 0 if self.opt.get("xm") else 640 * 3840 * 2); srd(a, R_B, S_WM, 0 if self.opt.get("xm") else "s67"); srd(a, R_E, S_OUT, 1280)
            a(f"v_lshrrev_b32 v{T}, 1, v{ROW}")
            a(f"buffer_load_ushort v{X}, v{T}, s[{R_C}:{R_C+3}], 0 offen")
            self.colvoff(VO, 5 * 7680, T)
            a(f"s_mul_i32 s62, s{S_WAVE}, {40*7680}"); a("s_lshl_b32 s63, s68, 7"); a("s_add_u32 s62, s62, s63"); a("s_add_u32 s64, s62, 128")
            md = self.opt.get("md")
            if md:
                l = a.label("MG")
                a(f"s_cmp_lg_u32 s{S_WAVE}, 3"); a(f"s_cbranch_scc1 {l}")
                par = [((128, 16, WS_ML), (3072, 512, WS_O))[md[k]] + (md[k + 1],) for k in (0, 2)]
                a("s_cmp_ge_u32 s68, 50")
                for i in range(4): a(f"s_mov_b32 s{72+i}, {par[0][i]}"); a(f"s_cselect_b32 s{72+i}, {par[1][i]}, s{72+i}")
                a(f"v_and_b32 v{T}, 31, v{V_L}"); a(f"v_mul_u32_u24 v{T}, s72, v{T}")
                a(f"v_lshrrev_b32 v{T+1}, 5, v{V_L}"); a(f"v_and_b32 v{T+2}, 1, v{V_L}"); a(f"v_lshl_add_u32 v{T+1}, v{T+1}, 1, v{T+2}")
                a(f"v_mul_u32_u24 v{T+1}, s73, v{T+1}"); a(f"v_add_u32 v{T}, v{T}, v{T+1}")
                lp = a.label("MQ")
                a(f"s_mov_b32 s{S_CNT}, 0")
                a("s_cmp_eq_u32 s75, 0"); a(f"s_cbranch_scc1 {l}")
                a(f"{lp}:")
                a(f"buffer_load_dword v{T+1}, v{T}, s[{R_WS}:{R_WS+3}], s74 offen sc1")
                a("s_waitcnt vmcnt(0)")
                a(f"v_and_b32 v{T+1}, s{S_M10}, v{T+1}"); a(f"v_cmp_eq_u32 vcc, v{T+1}, v{V_T10}")
                a("s_bcnt1_i32_b64 s72, vcc"); a("s_cmp_ge_u32 s72, s75"); a(f"s_cbranch_scc1 {l}")
                a(f"s_add_u32 s{S_CNT}, s{S_CNT}, 1"); a(f"s_cmp_lt_u32 s{S_CNT}, {SPIN}"); a(f"s_cbranch_scc1 {lp}")
                a(f"{l}:")
                a("s_barrier")
                self.stamp(9)
            if self.opt.get("xc", 0) & 4:
                a(f"v_lshlrev_b32 v{VO}, 4, v{V_L}"); a(f"s_lshl_b32 s62, s68, 4"); a(f"s_add_u32 s62, s62, s{S_WAVE}"); a("s_mul_i32 s62, s62, 5120"); a(f"s_add_u32 s64, s62, {16*5120}")
                self.colloads(WB, VO, R_A, 62, 1024, thr=tm)
                self.colloads(WB + 20, VO, R_B, 64, 1024, thr=tm)
            elif self.opt.get("pf"):
                self.colloads(WB + 20, VO, R_B, 64, 7680, thr=tm)
                self.colloads(WB, VO, R_A, 62, 7680, thr=tm)
            else:
                self.colloads(WB, VO, R_A, 62, 7680, thr=tm)
                self.colloads(WB + 20, VO, R_B, 64, 7680, thr=tm)
            pf = self.opt.get("pf", 0); pn = self.opt.get("pn", 2) if pf else 0
            def pfld(lo, hi, thr):
                for i in range(lo, hi):
                    if thr: a(f"s_waitcnt vmcnt({thr-1})")
                    a(f"buffer_load_dwordx4 v[{64+4*i}:{64+4*i+3}], v{VO}, s[{R_B}:{R_B+3}], s62 offen offset:{1024*(i%4)}" + (" nt" if pf == 2 else ""))
                    if i == 3: a("s_add_u32 s62, s62, 4096")
            if pf:
                srd(a, R_B, S_WD, "s101")
                a(f"s_mul_i32 s62, s3, {64*1280}"); a(f"s_mul_i32 s63, s{S_WAVE}, 5120"); a("s_add_u32 s62, s62, s63")
                a(f"v_lshlrev_b32 v{VO}, 4, v{V_L}")
                pfld(0, pn, tm)
            a(f"s_waitcnt vmcnt({10+pn})")
            a(f"v_lshlrev_b32 v{X}, 16, v{X}")
            self.silu(X, T)
            self.gemv(X, P, B, [(D1, WB), (D2, WB + 20)], 5, wait=lambda t: 4 - t + pn)
            self.fold_col(D1, D2, Y)
            self.putpart(ADD, Y, L_ACC1)
            if pf: pfld(pn, 5, 0)
            a("s_waitcnt lgkmcnt(0)"); a("s_barrier")
            a(f"s_cmp_eq_u32 s{S_WAVE}, 2"); a("s_cbranch_scc1 L_red")
            a(f"s_cmp_ge_u32 s{S_WAVE}, s69"); a(f"s_cbranch_scc1 L_end")
            a(f"s_add_u32 s70, s68, s{S_WAVE}"); a("s_lshl_b32 s70, s70, 8"); a(f"s_add_u32 s70, s70, {WS_MOD}")
            a(f"s_lshl_b32 s71, s{S_WAVE}, 5"); a(f"v_add_u32 v{T+1}, s71, v{CPOS}")
            self.publish(L_ACC1, T + 1, UOFF, 70, WB, True)
            if self.stamps:
                a(f"s_cmp_lg_u32 s{S_WAVE}, 0"); a("s_cbranch_scc1 L_end")
                self.stamp(3); self.flush_stamps(4, role='M'); self.flush_stamps(10, 9, role='M')
            a("s_endpgm")
        a("L_race:")
        self.races(T)
        a(f"s_branch {self.l_back}")
        self.hole("F")
        a("L_red:")
        if not rd: a(f"s_cmp_ge_u32 s2, {NW}"); a("s_cbranch_scc1 L_end")
        COL, GA, GB, XV, A4, R = 10, 11, 12, 13, 14, 64
        f3 = self.opt.get("f3")
        if f3:
            a(f"v_and_b32 v{T}, 3, v{V_N}"); a(f"v_lshlrev_b32 v{T}, 3, v{T}"); a(f"v_and_or_b32 v{T+6}, v{V_N}, 4, v{T}"); a(f"v_add_u32 v{COL}, v{T+6}, v{V_G}")
        else: a(f"v_and_b32 v{T}, 7, v{V_N}"); a(f"v_lshl_add_u32 v{COL}, v{V_G}, 3, v{T}")
        a("s_lshl_b32 s62, s2, 5"); a(f"v_add_u32 v{COL}, s62, v{COL}")
        a(f"v_lshlrev_b32 v{T+1}, 1, v{COL}"); a(f"v_lshlrev_b32 v{COL}, 2, v{COL}")
        a(f"buffer_load_ushort v{XV}, v{T+1}, s[{R_D}:{R_D+3}], 0 offen")
        if self.opt.get("ot"): a(f"buffer_load_ushort v{R}, v{T+1}, s[{R_E}:{R_E+3}], 0 offen")
        a(f"s_mov_b32 s63, {WS_MOD+1280*4}"); a(f"s_mov_b32 s64, {WS_MOD+3200*4}")
        a(f"s_mov_b32 s75, {WS_VOTE}"); a(f"v_lshlrev_b32 v{T+3}, 2, v{V_L}")
        self.voteld(T + 4, T + 3)
        def iss3():
            a(f"buffer_load_dword v{GA}, v{COL}, s[{R_WS}:{R_WS+3}], s63 offen sc1")
            if not rd: a(f"buffer_load_dword v{GB}, v{COL}, s[{R_WS}:{R_WS+3}], s64 offen sc1")
        self.poll(iss3, lambda: self.untag([GA] if rd else [GA, GB], V_T16, T + 2, 0xffff), "PG")
        self.side(T + 4, 74)
        if rd == 1:
            l, lp = a.label("RG"), a.label("RQ")
            a(f"v_and_b32 v{T+2}, 31, v{V_L}"); a(f"v_mul_u32_u24 v{T+2}, 3072, v{T+2}")
            a(f"v_lshrrev_b32 v{T+3}, 5, v{V_L}"); a(f"v_mul_u32_u24 v{T+3}, 3, v{T+3}"); a(f"v_and_b32 v{T+4}, 1, v{V_L}"); a(f"v_add_u32 v{T+3}, v{T+3}, v{T+4}")
            a(f"v_lshl_add_u32 v{T+2}, v{T+3}, 9, v{T+2}")
            a(f"s_mov_b32 s{S_CNT}, 0"); a(f"s_mov_b32 s72, {WS_O}")
            a(f"v_mov_b32 v{A4}, 0"); a(f"v_mov_b32 v{A4+1}, 0"); a(f"v_lshlrev_b32 v{T+4}, 3, v{V_L}")
            if self.opt.get("rj", 16):
                a(f"{lp}:")
                a(f"buffer_load_dword v{T+3}, v{T+2}, s[{R_WS}:{R_WS+3}], s72 offen sc1")
                a("s_waitcnt vmcnt(0)")
                a(f"v_and_b32 v{T+3}, s{S_M10}, v{T+3}"); a(f"v_cmp_eq_u32 vcc, v{T+3}, v{V_T10}")
                a("s_bcnt1_i32_b64 s73, vcc"); a(f"s_cmp_ge_u32 s73, {self.opt.get('rj', 16)}"); a(f"s_cbranch_scc1 {l}")
                a(f"s_add_u32 s{S_CNT}, s{S_CNT}, 1"); a(f"s_cmp_lt_u32 s{S_CNT}, {SPIN}"); a(f"s_cbranch_scc1 {lp}")
                a(f"{l}:")
            a("s_barrier")
            self.stamp(4)
            a(f"ds_write_b64 v{T+4}, v[{A4}:{A4+1}] offset:{L_ACC0+15*512}")
            a("s_waitcnt lgkmcnt(0)")
        def red8(R):
            a(f"v_permlane32_swap_b32 v{R}, v{R+2}"); a(f"v_permlane32_swap_b32 v{R+1}, v{R+3}")
            a(f"v_add_f32 v{R}, v{R}, v{R+2}"); a(f"v_add_f32 v{R+1}, v{R+1}, v{R+3}")
            a(f"v_permlane16_swap_b32 v{R}, v{R+1}")
            a(f"v_add_f32 v{R}, v{R}, v{R+1}")
            a(f"v_add_f32_dpp v{R}, v{R}, v{R} row_ror:8 row_mask:0xf bank_mask:0xf")
            bfr(a, R, R)
        if f3:
            assert self.opt.get("w2")
            a("s_lshl_b32 s65, s2, 7"); a("s_add_u32 s65, s65, s74"); a(f"s_add_u32 s65, s65, {WS_A}"); a("s_add_u32 s66, s65, 0x10000")
            a(f"v_lshlrev_b32 v{T+6}, 2, v{T+6}"); a(f"v_lshl_add_u32 v{T+6}, v{V_G}, 14, v{T+6}")
            a(f"v_lshrrev_b32 v{T+2}, 3, v{V_N}"); a(f"v_mul_u32_u24 v{T+2}, 2560, v{T+2}"); a(f"v_add_u32 v{T+6}, v{T+6}, v{T+2}")
            def iss4():
                for i in range(2): a(f"buffer_load_dwordx4 v[{A4+4*i}:{A4+4*i+3}], v{T+6}, s[{R_WS}:{R_WS+3}], s{65+i} offen sc1")
            self.poll(iss4, lambda: self.untag([A4, A4 + 4], V_T10, T + 2, 0x3ff), "PA", hole="F")
            a(f"v_lshlrev_b32 v{XV}, 16, v{XV}")
            for i in range(4): a(f"v_add_f32 v{A4+i}, v{A4+i}, v{A4+4+i}")
            red8(A4)
            a(f"v_mul_f32 v{A4}, v{GA}, v{A4}"); bfr(a, A4, A4)
            a(f"v_add_f32 v{A4}, v{XV}, v{A4}"); bfr(a, A4, A4)
        else:
            for i in range(4): a(f"s_add_u32 s{65+i}, s74, {WS_A+16384*i}")
            NP = 16 if self.opt.get("w2") else 8
            if NP == 16: a(f"v_add_u32 v{T+6}, 0x10000, v{COL}")
            def iss4():
                for i in range(NP):
                    a(f"buffer_load_dword v{A4+i}, v{COL if i < 8 else T+6}, s[{R_WS}:{R_WS+3}], s{65+((i>>1)&3)} offen offset:{2560*(i&1)} sc1")
            self.poll(iss4, lambda: self.untag(list(range(A4, A4 + NP)), V_T10, T + 2, 0x3ff), "PA", hole="F")
            a(f"v_lshlrev_b32 v{XV}, 16, v{XV}")
            self.x2calc(COL, GA, XV, A4, A4)
        self.stamp(6)
        a(f"v_lshlrev_b32 v{T+2}, 4, v{V_L}")
        if rd:
            R = 64
            def lsum(acc, n):
                for i in range(n): a(f"ds_read_b128 v[{R+4*i}:{R+4*i+3}], v{T+2} offset:{acc+1024*i}")
                def ad(x, y):
                    for i in (0, 2): a(f"v_pk_add_f32 v[{R+4*x+i}:{R+4*x+i+1}], v[{R+4*x+i}:{R+4*x+i+1}], v[{R+4*y+i}:{R+4*y+i+1}]")
                for x in range(0, n - 1, 2):
                    a(f"s_waitcnt lgkmcnt({n-x-2})"); ad(x, x + 1)
                    if x % 4 == 2: ad(x - 2, x)
                if n % 2: a("s_waitcnt lgkmcnt(0)")
                if n == 7: ad(4, 6)
                ad(0, 4)
                red8(R)
            if rd == 2:
                if self.opt.get("rb"): a("s_barrier")
                self.poll(lambda: a(f"buffer_load_dword v{GB}, v{COL}, s[{R_WS}:{R_WS+3}], s64 offen sc1"), lambda: self.untag([GB], V_T16, T + 3, 0xffff), "PB")
                self.stamp(5)
                a("s_and_b32 s62, s2, 1"); a(f"s_mul_i32 s62, s62, {7*1024}"); a(f"v_add_u32 v{T+2}, s62, v{T+2}")
            else:
                a("s_barrier")
                self.stamp(5)
                lsum(L_ACC2, 5)
                a(f"v_mov_b32 v{GB}, v{R}")
            a("s_setprio 3")
            self.hole("F", True)
            a("s_barrier")
            self.stamp(7)
            lsum(L_ACC0, 8 if rd == 1 else 7)
        else: self.red_gather(red8)
        R = self.R
        a(f"v_mul_f32 v{R}, v{GB}, v{R}"); bfr(a, R, R)
        a(f"v_add_f32 v{R}, v{A4}, v{R}")
        a(f"v_cvt_pk_bf16_f32 v{R}, v{R}, v{R}")
        self.setexec(0x00ff00ff, 0x00ff00ff)
        a(f"buffer_store_short v{R}, v{T+1}, s[{R_E}:{R_E+3}], 0 offen" + self.opt.get("os", ""))
        self.allexec()
        self.stamp(8)
        ep = self.opt.get("ep", 0)
        if ep < 2:
            l = a.label("EP")
            a("s_cmp_lg_u32 s2, 0"); a(f"s_cbranch_scc1 {l}")
            a(f"v_mov_b32 v{T}, s{S_T}"); a(f"v_mov_b32 v{T+1}, 0")
            self.setexec(1, 0)
            a(f"buffer_store_dword v{T}, v{T+1}, s[{R_WS}:{R_WS+3}], 0 offen" + ("" if ep else " sc1"))
            self.allexec()
            a(f"{l}:")
        if rd == 2: a(f"s_mov_b32 s{S_WAVE}, 2")
        self.pw([6, 7, 8, 8, -1])
        self.flush_stamps(9, 4 if rd else 6, role='W')
        a("s_endpgm")

    def member(self, lst, d, out):
        a = self.a; mk = sum(1 << i for i in lst)
        a(f"s_mov_b32 s64, {mk & 0xffffffff:#x}"); a(f"s_mov_b32 s65, {mk >> 32:#x}")
        a("s_bitcmp0_b64 s[64:65], s2"); a(f"s_cbranch_scc1 {out}")
        a("s_bfm_b64 s[66:67], s2, 0"); a("s_and_b64 s[66:67], s[66:67], s[64:65]"); a(f"s_bcnt1_i32_b64 s{d}, s[66:67]")

    def otrig(self, n, T):
        a = self.a
        if not n: return
        l, lp = a.label("RG"), a.label("RQ")
        if self.opt.get("tt") == 2:
            a(f"v_and_b32 v{T+2}, 7, v{V_L}"); a(f"v_lshlrev_b32 v{T+2}, 2, v{T+2}")
            a(f"s_mov_b32 s{S_CNT}, 0"); a(f"s_mov_b32 s72, {WS_TK+32*n[0]}"); a("s_mov_b64 exec, 0xff")
            a(f"{lp}:")
            a(f"buffer_load_dword v{T+3}, v{T+2}, s[{R_WS}:{R_WS+3}], s72 offen sc1")
            a("s_waitcnt vmcnt(0)")
            a(f"v_cmp_eq_u32 vcc, s{S_T}, v{T+3}")
            a("s_bcnt1_i32_b64 s73, vcc"); a(f"s_cmp_ge_u32 s73, {n[1]}"); a(f"s_cbranch_scc1 {l}")
            a(f"s_add_u32 s{S_CNT}, s{S_CNT}, 1"); a(f"s_cmp_lt_u32 s{S_CNT}, {SPIN}"); a(f"s_cbranch_scc1 {lp}")
            a(f"{l}:")
            a("s_mov_b64 exec, -1")
            return
        if self.opt.get("tt"):
            dp = "row_mask:0xf bank_mask:0xf"
            a("s_load_dwordx2 s[66:67], s[0:1], 96")
            a(f"v_and_b32 v{T+2}, 7, v{V_L}"); a(f"v_lshlrev_b32 v{T+2}, 5, v{T+2}")
            a(f"s_mov_b32 s{S_CNT}, 0"); a("s_waitcnt lgkmcnt(0)")
            a(f"{lp}:")
            a(f"global_load_dword v{T+3}, v{T+2}, s[66:67] sc0 sc1")
            a("s_waitcnt vmcnt(0)")
            for m in ("quad_perm:[1,0,3,2]", "quad_perm:[2,3,0,1]", "row_half_mirror"): a(f"v_add_u32_dpp v{T+3}, v{T+3}, v{T+3} {m} {dp}")
            a(f"v_readfirstlane_b32 s73, v{T+3}"); a(f"s_cmp_ge_u32 s73, {n}"); a(f"s_cbranch_scc1 {l}")
            a(f"s_add_u32 s{S_CNT}, s{S_CNT}, 1"); a(f"s_cmp_lt_u32 s{S_CNT}, {SPIN}"); a(f"s_cbranch_scc1 {lp}")
            a(f"{l}:")
            return
        a(f"v_and_b32 v{T+2}, 31, v{V_L}"); a(f"v_mul_u32_u24 v{T+2}, 3072, v{T+2}")
        a(f"v_lshrrev_b32 v{T+3}, 5, v{V_L}"); a(f"v_mul_u32_u24 v{T+3}, 3, v{T+3}"); a(f"v_and_b32 v{T+4}, 1, v{V_L}"); a(f"v_add_u32 v{T+3}, v{T+3}, v{T+4}")
        a(f"v_lshl_add_u32 v{T+2}, v{T+3}, 9, v{T+2}")
        a(f"s_mov_b32 s{S_CNT}, 0"); a(f"s_mov_b32 s72, {WS_O}")
        a(f"{lp}:")
        a(f"buffer_load_dword v{T+3}, v{T+2}, s[{R_WS}:{R_WS+3}], s72 offen sc1")
        a("s_waitcnt vmcnt(0)")
        a(f"v_and_b32 v{T+3}, s{S_M10}, v{T+3}"); a(f"v_cmp_eq_u32 vcc, v{T+3}, v{V_T10}")
        a("s_bcnt1_i32_b64 s73, vcc"); a(f"s_cmp_ge_u32 s73, {n}"); a(f"s_cbranch_scc1 {l}")
        a(f"s_add_u32 s{S_CNT}, s{S_CNT}, 1"); a(f"s_cmp_lt_u32 s{S_CNT}, {SPIN}"); a(f"s_cbranch_scc1 {lp}")
        a(f"{l}:")

    def role_rd2(self):
        a = self.a
        VO, AR, T = self.VO, self.B, self.T
        IDX, PS, D, WB, LA, PA = 13, 22, 48, 64, 44, 45
        self.member(self.opt["rm"], 2, "L_end")
        a("s_lshl_b32 s60, s2, 7"); a("s_lshl_b32 s2, s2, 1")
        a(f"s_sub_u32 s73, s{S_WAVE}, 2"); a("s_cmp_lt_u32 s73, 2"); a(f"s_cbranch_scc0 L_rdw")
        a("s_add_u32 s2, s2, s73")
        rk = self.opt.get("rk", 0)
        if rk:
            l = a.label("RK")
            a("s_cmp_eq_u32 s73, 0"); a(f"s_cbranch_scc1 {l}")
            self.otrig(self.opt["rj"], T)
            a(f"{l}:")
            a("s_barrier")
            self.stamp(4)
        a("s_branch L_red")
        a("L_rdw:")
        a(f"s_min_u32 s73, s73, s{S_WAVE}")
        self.gu_row(T)
        a(f"v_and_b32 v{T}, 8, v{V_N}"); a(f"v_lshl_add_u32 v{T+1}, v{T}, 1, v{T+1}"); a(f"v_and_b32 v{T+2}, 7, v{V_N}")
        a(f"v_mul_u32_u24 v{VO}, 1280, v{T+1}"); a(f"v_lshl_add_u32 v{VO}, v{T+2}, 4, v{VO}")
        a(f"s_mul_i32 s62, s73, {128*1280}"); a("s_add_u32 s62, s62, s60")
        a(f"s_mov_b32 s75, {WS_VOTE}"); a(f"v_lshlrev_b32 v{PA}, 2, v{V_L}")
        self.voteld(PS, PA)
        rt = self.opt.get("rt", 2); rt = rt if isinstance(rt, list) else [rt] * 16
        for j in range(16):
            if j and j % 2 == 0: a(f"s_add_u32 s62, s62, {(4 if j % 4 else 28)*1280}")
            if rk and j == rk: a("s_barrier")
            if j >= rt[j]: a(f"s_waitcnt vmcnt({rt[j]-1})")
            a(f"buffer_load_dwordx4 v[{WB+4*j}:{WB+4*j+3}], v{VO}, s[{R_B}:{R_B+3}], s62 offen offset:{2560*(j&1)} nt")
        a(f"v_and_b32 v{T+2}, 3, v{V_N}"); a(f"v_mul_u32_u24 v{IDX}, 0x5555, v{T+2}")
        a(f"v_bfe_u32 v{T}, v{V_N}, 2, 1"); a(f"v_mul_u32_u24 v{LA}, {7*1024}, v{T}"); a(f"v_lshl_add_u32 v{LA}, v{V_G}, 7, v{LA}"); a(f"v_lshl_add_u32 v{LA}, v{T+2}, 4, v{LA}")
        a("s_lshl_b32 s62, s73, 9"); a(f"v_add_u32 v{LA}, s62, v{LA}")
        for i in range(16): a(f"v_mov_b32 v{D+i}, 0")
        self.side(PS, 74)
        a("s_add_u32 s70, s62, s74"); a(f"s_add_u32 s70, s70, {WS_D}"); a("s_cmp_lt_u32 s73, 13"); a("s_cselect_b32 s71, 256, 0"); a("s_add_u32 s71, s71, s70")
        a("s_mov_b32 s76, 0xff0000ff"); a("s_mov_b32 s77, 0"); a("s_mov_b32 s78, 0"); a("s_mov_b32 s79, 0xff0000ff")
        a("s_waitcnt vmcnt(0)")
        self.stamp(4)
        self.regroup(WB)
        if self.opt.get("rb"): a("s_barrier")
        self.stamp(5)
        def bc(dst, src):
            for d in range(4): a(f"v_mov_b32_dpp v{dst+d}, v{src} quad_perm:[{d},{d},{d},{d}] row_mask:0xf bank_mask:0xf")
        ns = self.opt.get("rs", 1)
        def iss(k):
            for i in range(2): a(f"buffer_load_dword v{PS+2*k+i}, v{PA}, s[{R_WS}:{R_WS+3}], s{70+i} offen sc1")
        for k in range(ns): iss(k)
        a(f"s_mov_b32 s{S_CNT}, 0")
        a("L_pd:")
        for k in range(ns):
            a(f"s_waitcnt vmcnt({2*(ns-1)})")
            self.untag([PS + 2 * k, PS + 2 * k + 1], V_T16, T, 0xffff)
            a(f"s_cbranch_vccz L_pd{k}")
            iss(k)
        a(f"s_add_u32 s{S_CNT}, s{S_CNT}, 1"); a(f"s_cmp_lt_u32 s{S_CNT}, {SPIN}"); a(f"s_cbranch_scc1 L_pd")
        a("s_branch L_pd0"); self.hole("F")
        for k in range(ns):
            a(f"L_pd{k}:")
            bc(AR, PS + 2 * k); bc(AR + 4, PS + 2 * k + 1)
            if k < ns - 1: a("s_branch L_pdx")
        a("L_pdx:")
        self.stamp(6)
        for t in range(4):
            for h in range(2):
                d = D + 8 * (t & 1) + 4 * h; A_ = AR + 4 * (t >> 1); W = WB + 16 * t + 8 * h
                a(f"v_smfmac_f32_16x16x64_bf16 v[{d}:{d+3}], v[{A_}:{A_+3}], v[{W}:{W+7}], v{IDX}")
        for hb in range(2):
            a(f"s_mov_b64 exec, s[{76+2*hb}:{77+2*hb}]")
            for h in range(2): a(f"ds_write_b128 v{LA}, v[{D+8*hb+4*h}:{D+8*hb+4*h+3}] offset:{L_ACC0+64*h}")
        a("s_waitcnt lgkmcnt(0)"); a("s_barrier")
        if self.stamps:
            self.allexec()
            self.stamp(7)
            self.pw([4, 5, 6, 7, -1])
        a("s_endpgm")

    R = 64
    def role_rd(self):
        a = self.a
        VO, X, AR, T = self.VO, self.X, self.B, self.T
        IDX, VG, PS, D, WB, LA, PA = 13, 10, 22, 48, 64, 44, 45
        rm = self.opt.get("rm", list(range(20))); assert len(rm) == 20
        mk = sum(1 << i for i in rm)
        a(f"s_mov_b32 s64, {mk & 0xffffffff:#x}"); a(f"s_mov_b32 s65, {mk >> 32:#x}")
        a("s_bitcmp0_b64 s[64:65], s2"); a("s_cbranch_scc1 L_end")
        a("s_bfm_b64 s[66:67], s2, 0"); a("s_and_b64 s[66:67], s[66:67], s[64:65]"); a("s_bcnt1_i32_b64 s2, s[66:67]")
        a(f"s_cmp_eq_u32 s{S_WAVE}, 2"); a("s_cbranch_scc1 L_red")
        a(f"s_cmp_gt_u32 s{S_WAVE}, 2"); a(f"s_subb_u32 s73, s{S_WAVE}, 0")
        a(f"s_mov_b32 s75, {WS_VOTE}"); a(f"v_lshlrev_b32 v{PA}, 2, v{V_L}")
        self.voteld(PS, PA)
        a("s_max_u32 s72, s73, 5"); a("s_sub_u32 s72, s72, 5")
        a(f"v_lshl_add_u32 v{T}, v{V_N}, 2, v{V_G}"); a(f"v_lshlrev_b32 v{T}, 1, v{T}"); a("s_lshl_b32 s62, s72, 7")
        a(f"buffer_load_ushort v{X}, v{T}, s[{R_C}:{R_C+3}], s62 offen")
        a(f"v_and_b32 v{T+2}, 3, v{V_N}"); a(f"v_mul_u32_u24 v{IDX}, 0x5555, v{T+2}")
        self.gu_row(T)
        a(f"v_and_b32 v{T}, 12, v{V_N}"); a(f"v_lshl_add_u32 v{T+1}, v{T}, 2, v{T+1}")
        a(f"v_mul_u32_u24 v{VO}, 1280, v{T+1}"); a(f"v_lshl_add_u32 v{VO}, v{T+2}, 4, v{VO}")
        a(f"v_mul_u32_u24 v{VG}, 7680, v{T+1}"); a(f"v_lshl_add_u32 v{VG}, v{T+2}, 4, v{VG}")
        a(f"v_lshlrev_b32 v{LA}, 7, v{V_G}"); a(f"v_lshl_add_u32 v{LA}, v{T+2}, 4, v{LA}"); a("s_lshl_b32 s62, s73, 9"); a(f"v_add_u32 v{LA}, s62, v{LA}")
        a("s_lshl_b32 s60, s2, 6")
        a(f"s_mul_i32 s62, s73, {64*1280}"); a("s_add_u32 s62, s62, s60"); a("s_add_u32 s63, s62, 5120")
        a("s_cmp_lt_u32 s73, 12"); a(f"s_cselect_b32 s64, {15*64*1280}, 0x40000000"); a(f"s_cselect_b32 s71, {15*256}, 0")
        a("s_add_u32 s65, s64, s63"); a("s_add_u32 s64, s64, s62")
        a(f"s_mul_i32 s66, s72, {64*7680}"); a("s_add_u32 s66, s66, s60"); a("s_add_u32 s66, s66, 6400")
        for i in range(3): a(f"s_add_u32 s{67+i}, s{66+i}, {2*7680}")
        for i in range(8): a(f"v_mov_b32 v{D+i}, 0")
        a("s_waitcnt vmcnt(0)")
        self.side(PS, 74)
        a("s_lshl_b32 s70, s73, 8"); a("s_add_u32 s70, s70, s74"); a(f"s_add_u32 s70, s70, {WS_D}"); a("s_add_u32 s71, s71, s70")
        a(f"v_lshlrev_b32 v{X}, 16, v{X}")
        self.silu(X, T)
        a(f"v_and_b32 v{X}, 0xffff0000, v{X}")
        def bc(dst, src):
            for d in range(4): a(f"v_mov_b32_dpp v{dst+d}, v{src} quad_perm:[{d},{d},{d},{d}] row_mask:0xf bank_mask:0xf")
        def rg(W):
            for x, y in ((2, 8), (3, 9), (6, 12), (7, 13)): a(f"v_swap_b32 v{W+x}, v{W+y}")
        def mm(A_, W):
            for h in range(2): a(f"v_smfmac_f32_16x16x64_bf16 v[{D+4*h}:{D+4*h+3}], v[{A_}:{A_+3}], v[{W+8*h}:{W+8*h+7}], v{IDX}")
        def put(acc):
            self.setexec(0x00f0000f, 0xf0000f00)
            for h in range(2): a(f"ds_write_b128 v{LA}, v[{D+4*h}:{D+4*h+3}] offset:{acc+64*h}")
        bc(AR, X)
        rt = self.opt.get("rt", 0); nt = " nt" if self.opt.get("rn", 1) else ""
        def wd():
            for j in range(8):
                if rt: a(f"s_waitcnt vmcnt({rt-1})")
                a(f"buffer_load_dwordx4 v[{WB+4*j}:{WB+4*j+3}], v{VO}, s[{R_B}:{R_B+3}], s{62+(j>>1)} offen offset:{2560*(j&1)}{nt}")
        l, l2 = a.label("RN"), a.label("RM")
        a("s_cmp_lt_u32 s73, 5")
        a("s_barrier")
        a(f"s_cbranch_scc1 {l}")
        for j in range(4):
            if rt: a(f"s_waitcnt vmcnt({rt-1})")
            a(f"buffer_load_dwordx4 v[{WB+32+4*j}:{WB+32+4*j+3}], v{VG}, s[{R_A}:{R_A+3}], s{66+j} offen{nt}")
        a(f"{l}:")
        wd()
        a(f"s_cbranch_scc1 {l2}")
        a("s_waitcnt vmcnt(8)")
        rg(WB + 32); mm(AR, WB + 32); put(L_ACC2 - 5 * 512)
        self.allexec()
        a("s_waitcnt lgkmcnt(0)")
        for i in range(8): a(f"v_mov_b32 v{D+i}, 0")
        a(f"{l2}:")
        a("s_waitcnt vmcnt(0)")
        self.stamp(4)
        rg(WB); rg(WB + 16)
        a("s_barrier")
        self.stamp(5)
        ns = self.opt.get("rs", 1)
        def iss(k):
            for i in range(2): a(f"buffer_load_dword v{PS+2*k+i}, v{PA}, s[{R_WS}:{R_WS+3}], s{70+i} offen sc1")
        for k in range(ns): iss(k)
        a(f"s_mov_b32 s{S_CNT}, 0")
        a("L_pd:")
        for k in range(ns):
            a(f"s_waitcnt vmcnt({2*(ns-1)})")
            self.untag([PS + 2 * k, PS + 2 * k + 1], V_T16, T, 0xffff)
            a(f"s_cbranch_vccz L_pd{k}")
            iss(k)
        a(f"s_add_u32 s{S_CNT}, s{S_CNT}, 1"); a(f"s_cmp_lt_u32 s{S_CNT}, {SPIN}"); a(f"s_cbranch_scc1 L_pd")
        a("s_branch L_pd0"); self.hole("F")
        for k in range(ns):
            a(f"L_pd{k}:")
            bc(AR, PS + 2 * k); bc(AR + 4, PS + 2 * k + 1)
            if k < ns - 1: a("s_branch L_pdx")
        a("L_pdx:")
        self.stamp(6)
        mm(AR, WB); mm(AR + 4, WB + 16)
        put(L_ACC0)
        a("s_waitcnt lgkmcnt(0)"); a("s_barrier")
        if self.stamps:
            self.allexec()
            self.stamp(7)
            self.pw([4, 5, 6, 7, -1])
        a("s_endpgm")

    def red_gather(self, red8):
        a = self.a; T = self.T; R = 64; f3 = self.opt.get("f3")
        a(f"v_min_u32 v{T+3}, {2*128+112}, v{T+2}")
        a(f"v_cmp_gt_u32 vcc, 24, v{V_L}"); a(f"v_cndmask_b32 v{T+4}, 0, 1.0, vcc")
        a("s_lshr_b32 s62, s2, 1"); a("s_mul_i32 s62, s62, 16512"); a("s_and_b32 s63, s2, 1"); a("s_mul_i32 s63, s63, 3456"); a("s_add_u32 s62, s62, s63")
        a("s_add_u32 s62, s62, s74"); a(f"s_add_u32 s62, s62, {WS_D}")
        def iss5(R=R):
            for i in range(4):
                a(f"buffer_load_dwordx4 v[{R+4*i}:{R+4*i+3}], v{T+2 if i < 3 else T+3}, s[{R_WS}:{R_WS+3}], s62 offen offset:{1024*i} sc1")
        ns = self.opt.get("rs", 1)
        if ns > 1:
            sets = [48 + 16 * k for k in range(ns)]; R = 22
            for S_ in sets: iss5(S_)
            a(f"s_mov_b32 s{S_CNT}, 0")
            a("L_pd:")
            for k, S_ in enumerate(sets):
                a(f"s_waitcnt vmcnt({4*(ns-1)})")
                self.untag(list(range(S_, S_ + 16, 4)), V_T10, T + 5, 0x3ff)
                a(f"s_cbranch_vccz L_pd{k}")
                iss5(S_)
            a(f"s_add_u32 s{S_CNT}, s{S_CNT}, 1"); a(f"s_cmp_lt_u32 s{S_CNT}, {SPIN}"); a(f"s_cbranch_scc1 L_pd")
            a("s_branch L_pd0"); self.hole("F")
            for k, S_ in enumerate(sets):
                a(f"L_pd{k}:")
                for i in range(4): a(f"v_add_f32 v{R+i}, v{S_+i}, v{S_+4+i}")
                for i in range(4): a(f"v_fma_f32 v{R+4+i}, v{S_+12+i}, v{T+4}, v{S_+8+i}")
                if k < ns - 1: a("s_branch L_pdx")
            a("L_pdx:")
            self.stamp(7)
            for i in range(4): a(f"v_add_f32 v{R+i}, v{R+i}, v{R+4+i}")
        else:
            self.poll(iss5, lambda: self.untag(list(range(R, R + 16, 4 if f3 else 1)), V_T10, T + 5, 0x3ff), "PD")
            self.stamp(7)
            for i in range(4): a(f"v_add_f32 v{R+i}, v{R+i}, v{R+4+i}")
            for i in range(4): a(f"v_fma_f32 v{R+8+i}, v{R+12+i}, v{T+4}, v{R+8+i}")
            for i in range(4): a(f"v_add_f32 v{R+i}, v{R+i}, v{R+8+i}")
        red8(R)
        self.R = R

    def role_f(self):
        a = self.a
        ROW, VO, X, B, D1, D2, Y, T, XO, ADD, CPOS, UOFF, P = self.ROW, self.VO, self.X, self.B, self.D1, self.D2, self.Y, self.T, self.XO, self.ADD, self.CPOS, self.UOFF, self.P
        WA, WB = 56, 88
        tf = self.opt.get("tf", 2)
        a("; GRP F")
        self.hole("F")
        a("L_f:")
        a(f"s_sub_u32 s69, s2, {NM}")
        fsz = 0 if self.opt.get("xf") else 640 * 1728 * 2
        srd(a, R_C, S_WG, fsz); srd(a, R_E, S_WU, fsz); srd(a, R_A, S_WD, fsz)
        self.colvoff(VO, 5 * 3456, T)
        a(f"s_mul_i32 s62, s{S_WAVE}, {40*3456}"); a("s_lshl_b32 s63, s69, 7"); a("s_add_u32 s62, s62, s63")
        for t in range(5):
            if t: a(f"s_add_u32 s62, s62, 3456")
            for h, sr in enumerate((R_C, R_E)):
                th = 1 if 2 * t + h <= self.opt.get("f1", 0) else tf
                if th: a(f"s_waitcnt vmcnt({th-1})")
                a(f"buffer_load_dwordx4 v[{WB+20*h+4*t}:{WB+20*h+4*t+3}], v{VO}, s[{sr}:{sr+3}], s62 offen nt")
        def downloads(thr, vo):
            l = a.label("FD")
            a(f"s_cmp_ge_u32 s{S_WAVE}, 10"); a(f"s_cbranch_scc1 {l}")
            self.colvoff(vo, 8 * 1280, T)
            a(f"s_mul_i32 s62, s69, {64*1280}"); a(f"s_lshl_b32 s74, s{S_WAVE}, 7"); a("s_add_u32 s62, s62, s74")
            self.colloads(WA, vo, R_A, 62, 1280, n=8, thr=thr)
            a(f"{l}:")
        fd = self.opt.get("fd", 0)
        if not fd: downloads(tf, VO)
        GA, SB, CB, A4, VAL = T + 5, T + 6, T + 7, T + 8, UOFF
        GPOS, DOFF, SRD_, SWR = 52, 53, 54, 55
        AWR, G1 = VO, 13
        a(f"v_lshlrev_b32 v{GPOS}, 2, v{V_L}")
        GST = 528
        self.wraddr(ADD, GST)
        a(f"s_lshl_b32 s73, s{S_WAVE}, 4"); a(f"v_lshlrev_b32 v{T+1}, 2, v{V_G}"); a(f"v_add_u32 v{T+1}, s73, v{T+1}")
        self.colpos(CPOS, T + 1, T)
        a(f"v_mul_u32_u24 v{T}, {GST}, v{V_N}"); a(f"v_add_u32 v{CPOS}, v{CPOS}, v{T}")
        a(f"s_lshl_b32 s73, s{S_WAVE}, 6"); a(f"v_and_b32 v{AWR}, 60, v{V_L}"); a(f"v_add_u32 v{AWR}, s73, v{AWR}")
        a(f"v_mul_u32_u24 v{DOFF}, 3456, v{V_G}"); a(f"v_lshl_add_u32 v{DOFF}, v{V_N}, 4, v{DOFF}")
        a("s_lshl_b32 s72, s69, 7"); a(f"s_mul_i32 s73, s{S_WAVE}, 16512"); a("s_add_u32 s72, s72, s73"); a(f"s_add_u32 s72, s72, {WS_D}"); a("s_add_u32 s71, s72, 8192")
        a(f"v_and_b32 v{T}, 7, v{V_N}"); a(f"v_cmp_gt_u32 vcc, 5, v{T}"); a(f"v_cndmask_b32 v{VAL}, 0, 1.0, vcc")
        a(f"v_lshlrev_b32 v{SRD_}, 3, v{V_N}")
        a(f"s_lshl_b32 s73, s{S_WAVE}, 3"); a(f"v_mov_b32 v{SWR}, s73")
        a(f"s_mov_b32 s63, {WS_MOD+1280*4}"); a(f"s_mov_b32 s64, {WS_MOD+2560*4}")
        a(f"s_mov_b32 s75, {WS_VOTE}")
        self.voteld(A4, GPOS)
        def iss3():
            a(f"buffer_load_dword v{GA}, v{ROW}, s[{R_WS}:{R_WS+3}], s63 offen sc1")
            a(f"buffer_load_dword v{SB}, v{ROW}, s[{R_WS}:{R_WS+3}], s63 offen offset:2560 sc1")
            a(f"buffer_load_dword v{CB}, v{ROW}, s[{R_WS}:{R_WS+3}], s64 offen sc1")
        self.poll(iss3, lambda: self.untag([GA, SB, CB], V_T16, T, 0xffff), "PG", hole="F")
        self.stamp(3)
        if fd == 1: downloads(0, T + 1)
        self.side(A4, 70)
        for i in range(4): a(f"s_add_u32 s{65+i}, s70, {WS_A+16384*i}")
        a(f"v_add_f32 v{CB}, 1.0, v{CB}"); bfr(a, CB, CB)
        def colred(acc, Z):
            a(f"ds_read_b128 v[{D1}:{D1+3}], v{CPOS} offset:{acc}"); a(f"ds_read_b128 v[{D2}:{D2+3}], v{CPOS} offset:{acc+32}")
            yield
            for D, R in ((D1, B), (D2, B + 2)):
                for j in range(2): a(f"v_add_f32_dpp v{R+j}, v{D+j}, v{D+j} row_ror:8 row_mask:0xf bank_mask:0x3")
            for D, R in ((D1, B), (D2, B + 2)):
                for j in range(2): a(f"v_add_f32_dpp v{R+j}, v{D+2+j}, v{D+2+j} row_ror:8 row_mask:0xf bank_mask:0xc")
            yield
            for R, z in ((B, Z), (B + 2, Z + 1)): a(f"v_add_f32_dpp v{z}, v{R}, v{R} row_shl:4 row_mask:0xf bank_mask:0x5")
            yield
            for R, z in ((B, Z), (B + 2, Z + 1)): a(f"v_add_f32_dpp v{z}, v{R+1}, v{R+1} row_shr:4 row_mask:0xf bank_mask:0xa")
            for md in ("quad_perm:[1,0,3,2]", "quad_perm:[2,3,0,1]"):
                yield
                for z in (Z, Z + 1): a(f"v_add_f32_dpp v{z}, v{z}, v{z} {md} row_mask:0xf bank_mask:0xf")
        for src, acc in ((CB, L_ACC1), (SB, L_ACC2)):
            a(f"v_cvt_pk_bf16_f32 v{X}, v{src}, v{src}")
            self.gemv(X, P, B, [(D1, WB), (D2, WB + 20)], 5)
            self.fold_col(D1, D2, Y)
            self.putpart(ADD, Y, acc)
        self.hole("F", True)
        a("s_waitcnt lgkmcnt(0)"); a("s_barrier")
        C1, C2 = B + 4, B + 6
        l = a.label("FC")
        a(f"s_cmp_ge_u32 s{S_WAVE}, 4"); a(f"s_cbranch_scc1 {l}")
        for acc, Z in ((L_ACC1, T), (L_ACC2, T + 2)):
            for i, _ in enumerate(colred(acc, Z)):
                if i == 0: a("s_waitcnt lgkmcnt(0)")
        K1G, K1U, K2G, K2U = SB, G1, V_G, V_N
        a(f"v_mov_b32 v{K1G}, v{T}"); a(f"v_mov_b32 v{K1U}, v{T+1}"); a(f"v_mov_b32 v{K2G}, v{T+2}"); a(f"v_mov_b32 v{K2U}, v{T+3}")
        a(f"{l}:")
        if fd == 2: downloads(self.opt.get("td", 0), T + 1)
        self.stamp(7)
        NP = 16 if self.opt.get("w2") else 8
        if NP == 16: a(f"v_add_u32 v{T+1}, 0x10000, v{ROW}")
        def iss4():
            for i in range(NP):
                a(f"buffer_load_dword v{B+i}, v{ROW if i < 8 else T+1}, s[{R_WS}:{R_WS+3}], s{65+((i>>1)&3)} offen offset:{2560*(i&1)} sc1")
        self.poll(iss4, lambda: self.untag(list(range(B, B + NP)), V_T10, T, 0x3ff), "PA", hole="F")
        self.stamp(4)
        m, v, r, u, w = T, T + 1, T + 2, T + 3, T + 4
        self.x2calc(ROW, GA, XO, A4, B)
        a(f"v_subrev_f32 v{m}, s100, v{A4}")
        a(f"v_mul_f32 v{X}, v{m}, v{CB}"); a(f"v_cvt_pk_bf16_f32 v{X}, v{X}, v{X}")
        a(f"v_mul_f32 v{m}, v{m}, v{VAL}")
        self.gemv(X, P, B, [(D1, WB), (D2, WB + 20)], 5)
        a(f"v_mul_f32 v{v}, v{m}, v{m}")
        a(f"v_permlane32_swap_b32 v{m}, v{v}"); a(f"v_add_f32 v{m}, v{m}, v{v}")
        row_red(a, m)
        a(f"v_mov_b32 v{v}, v{m}"); a(f"v_permlane16_swap_b32 v{v}, v{m}"); a(f"v_add_f32 v{m}, v{m}, v{v}")
        self.fold_col(D1, D2, Y)
        self.setexec(1, 1)
        a(f"v_lshrrev_b32 v{v}, 3, v{V_L}"); a(f"v_add_u32 v{v}, v{v}, v{SWR}")
        a(f"ds_write_b32 v{v}, v{m} offset:{L_ST}")
        self.allexec()
        self.putpart(ADD, Y, L_ACC0)
        self.stamp(8)
        a("s_waitcnt lgkmcnt(0)"); a("s_barrier")
        a(f"s_cmp_ge_u32 s{S_WAVE}, 10"); a("s_cbranch_scc1 L_end")
        self.stamp(1)
        l = a.label("FA")
        a(f"s_cmp_ge_u32 s{S_WAVE}, 4"); a(f"s_cbranch_scc1 {l}")
        a(f"ds_read_b64 v[{m}:{v}], v{SRD_} offset:{L_ST}")
        Z = A4
        cr = colred(L_ACC0, Z); next(cr)
        a("s_waitcnt lgkmcnt(2)")
        mds = ("quad_perm:[1,0,3,2]", "quad_perm:[2,3,0,1]", "row_half_mirror", "row_mirror")
        st = []
        for md in mds: st.append([f"v_add_f32_dpp v{q}, v{q}, v{q} {md} row_mask:0xf bank_mask:0xf" for q in (m, v)])
        st.append([f"v_mul_f32 v{m}, {fh(1.0/640)}, v{m}", f"v_mul_f32 v{v}, {fh(1.0/640)}, v{v}", f"v_fma_f32 v{v}, -v{m}, v{m}, v{v}",
                   f"v_add_f32 v{m}, s100, v{m}", f"v_max_f32 v{v}, 0, v{v}", f"v_cvt_pk_bf16_f32 v{m}, 0, v{m}", f"v_cvt_pk_bf16_f32 v{v}, 0, v{v}"])
        st.append([f"v_add_f32 v{v}, {fh(1e-5)}, v{v}", f"v_sub_f32 v{m}, s100, v{m}", f"v_cvt_pk_bf16_f32 v{v}, 0, v{v}", f"v_sqrt_f32 v{v}, v{v}"])
        st.append([f"v_cvt_pk_bf16_f32 v{v}, 0, v{v}", f"v_rcp_f32 v{r}, v{v}"])
        for x in st[0] + st[1]: a(x)
        a("s_waitcnt lgkmcnt(0)")
        for grp in st[2:]:
            next(cr, None)
            for x in grp: a(x)
        for _ in cr: pass
        a(f"v_fmac_f32 v{Z}, v{m}, v{K1G}"); a(f"v_fmac_f32 v{Z+1}, v{m}, v{K1U}")
        a(f"v_fma_f32 v{Z}, v{Z}, v{r}, v{K2G}"); a(f"v_fma_f32 v{Z+1}, v{Z+1}, v{r}, v{K2U}")
        bfr(a, Z, Z); bfr(a, Z + 1, Z + 1)
        gelu(a, X, Z, T + 2, T + 3, T + 4); bfr(a, X, X)
        a(f"v_mul_f32 v{X}, v{X}, v{Z+1}"); a(f"v_cvt_pk_bf16_f32 v{X}, v{X}, v{X}")
        a(f"ds_write_b32 v{AWR}, v{X} offset:{L_ACT}")
        self.hole("F", True)
        a("s_waitcnt lgkmcnt(0)")
        a(f"{l}:")
        a("s_barrier")
        self.stamp(5)
        a(f"ds_read_b32 v{X}, v{GPOS} offset:{L_ACT}")
        a("s_waitcnt lgkmcnt(0)")
        if self.opt.get("fs"): self.stamp(9)
        self.gemv(X, P, B, [(D1, WA)], 8)
        for r_ in range(4): a(f"v_permlane32_swap_b32 v{D1+r_}, v{D2+r_}")
        for r_ in range(4): a(f"v_add_f32_dpp v{D1+r_}, v{D2+r_}, v{D1+r_} row_ror:8 row_mask:0xf bank_mask:0xf")
        for r_ in range(4): a(f"v_bfi_b32 v{D1+r_}, s{S_M10}, v{V_T10}, v{D1+r_}")
        if self.opt.get("fs"): a(f"v_readfirstlane_b32 s79, v{D1+3}"); self.stamp(2)
        self.setexec(0x00ff00ff, 0)
        a(f"buffer_store_dwordx4 v[{D1}:{D1+3}], v{DOFF}, s[{R_WS}:{R_WS+3}], s72 offen sc1")
        a(f"buffer_store_dwordx4 v[{D1}:{D1+3}], v{DOFF}, s[{R_WS}:{R_WS+3}], s71 offen sc1")
        self.allexec()
        if self.stamps:
            a(f"s_cmp_lg_u32 s{S_WAVE}, {self.opt.get('sw', 0)}"); a("s_cbranch_scc1 L_end")
            self.stamp(6); self.flush_stamps(10, role='F')
        a("s_endpgm")

    def role_f2(self):
        a = self.a
        ROW, VO, X, B, D1, D2, Y, T, XO, ADD, CPOS, UOFF, P = self.ROW, self.VO, self.X, self.B, self.D1, self.D2, self.Y, self.T, self.XO, self.ADD, self.CPOS, self.UOFF, self.P
        WB = 64
        tf = self.opt.get("tf", 3); td = self.opt.get("td", 6)
        GST = 528
        a("; GRP F")
        self.hole("F")
        a("L_f:")
        a(f"s_sub_u32 s69, s2, {NM}")
        fsz = 0 if self.opt.get("xf") else 640 * 1728 * 2
        a(f"s_cmp_ge_u32 s{S_WAVE}, 10"); a("s_cbranch_scc1 L_fd")
        srd(a, R_C, S_WG, fsz); srd(a, R_E, S_WU, fsz)
        a(f"v_bfe_u32 v{T}, v{V_L}, 3, 1"); a(f"v_lshl_add_u32 v{T}, v{T}, 5, v{V_G}"); a(f"v_mul_u32_u24 v{VO}, 3456, v{T}")
        a(f"v_and_b32 v{T}, 7, v{V_L}"); a(f"v_lshl_add_u32 v{VO}, v{T}, 4, v{VO}")
        a(f"s_mul_i32 s62, s{S_WAVE}, {64*3456}"); a("s_lshl_b32 s63, s69, 7"); a("s_add_u32 s62, s62, s63")
        a(f"s_lshl_b32 s73, s{S_WAVE}, 6"); a(f"v_lshl_add_u32 v{ROW}, v{V_N}, 2, v{V_G}"); a(f"v_add_u32 v{ROW}, s73, v{ROW}")
        a(f"v_lshlrev_b32 v{T}, 1, v{ROW}"); a(f"v_lshlrev_b32 v{ROW}, 2, v{ROW}")
        a(f"buffer_load_ushort v{XO}, v{T}, s[{R_D}:{R_D+3}], 0 offen")
        for t in range(8):
            if t: a(f"s_add_u32 s62, s62, {4*3456}")
            for h, sr in enumerate((R_C, R_E)):
                a(f"s_waitcnt vmcnt({tf-1})")
                a(f"buffer_load_dwordx4 v[{WB+32*h+4*t}:{WB+32*h+4*t+3}], v{VO}, s[{sr}:{sr+3}], s62 offen nt")
                if 2 * t + h == self.opt.get("fb", 15): a("s_barrier")
        GA, SB, CB, A4 = T + 5, T + 6, T + 7, T + 8
        GPOS, PAD, SRD_, SWR = 52, 53, 54, 55
        AWR, G1 = VO, 13
        a(f"v_lshlrev_b32 v{GPOS}, 2, v{V_L}")
        self.wraddr(ADD, GST)
        a(f"s_lshl_b32 s73, s{S_WAVE}, 4"); a(f"v_lshlrev_b32 v{T+1}, 2, v{V_G}"); a(f"v_add_u32 v{T+1}, s73, v{T+1}")
        self.colpos(CPOS, T + 1, T)
        a(f"v_mul_u32_u24 v{T}, {GST}, v{V_N}"); a(f"v_add_u32 v{CPOS}, v{CPOS}, v{T}")
        a(f"s_lshl_b32 s73, s{S_WAVE}, 6"); a(f"v_and_b32 v{AWR}, 60, v{V_L}"); a(f"v_add_u32 v{AWR}, s73, v{AWR}")
        a(f"v_and_b32 v{T}, 1, v{V_G}"); a(f"v_mul_u32_u24 v{PAD}, 2560, v{T}"); a(f"v_lshrrev_b32 v{T}, 1, v{V_G}"); a(f"v_lshl_add_u32 v{PAD}, v{T}, 14, v{PAD}")
        a(f"v_lshl_add_u32 v{PAD}, v{V_N}, 4, v{PAD}")
        a(f"v_lshlrev_b32 v{SRD_}, 3, v{V_N}")
        a(f"s_lshl_b32 s73, s{S_WAVE}, 3"); a(f"v_lshrrev_b32 v{SWR}, 3, v{V_L}"); a(f"v_add_u32 v{SWR}, s73, v{SWR}")
        a(f"s_mov_b32 s63, {WS_MOD+1280*4}"); a(f"s_mov_b32 s64, {WS_MOD+2560*4}")
        a(f"s_mov_b32 s75, {WS_VOTE}")
        self.voteld(A4, GPOS)
        def iss3():
            a(f"buffer_load_dword v{GA}, v{ROW}, s[{R_WS}:{R_WS+3}], s63 offen sc1")
            a(f"buffer_load_dword v{SB}, v{ROW}, s[{R_WS}:{R_WS+3}], s63 offen offset:2560 sc1")
            a(f"buffer_load_dword v{CB}, v{ROW}, s[{R_WS}:{R_WS+3}], s64 offen sc1")
        self.poll(iss3, lambda: self.untag([GA, SB, CB], V_T16, T, 0xffff), "PG", hole="F")
        self.stamp(3)
        self.side(A4, 70)
        NJ = 4 if self.opt.get("w2") else 2
        a(f"s_lshl_b32 s73, s{S_WAVE}, 8"); a("s_add_u32 s70, s70, s73")
        for i in range(NJ): a(f"s_add_u32 s{65+i}, s70, {WS_A+32768*i}")
        a(f"v_add_f32 v{CB}, 1.0, v{CB}"); bfr(a, CB, CB)
        a(f"v_lshlrev_b32 v{XO}, 16, v{XO}")
        def colred(acc, Z):
            a(f"ds_read_b128 v[{D1}:{D1+3}], v{CPOS} offset:{acc}"); a(f"ds_read_b128 v[{D2}:{D2+3}], v{CPOS} offset:{acc+32}")
            yield
            for D, R in ((D1, B), (D2, B + 2)):
                for j in range(2): a(f"v_add_f32_dpp v{R+j}, v{D+j}, v{D+j} row_ror:8 row_mask:0xf bank_mask:0x3")
            for D, R in ((D1, B), (D2, B + 2)):
                for j in range(2): a(f"v_add_f32_dpp v{R+j}, v{D+2+j}, v{D+2+j} row_ror:8 row_mask:0xf bank_mask:0xc")
            yield
            for R, z in ((B, Z), (B + 2, Z + 1)): a(f"v_add_f32_dpp v{z}, v{R}, v{R} row_shl:4 row_mask:0xf bank_mask:0x5")
            yield
            for R, z in ((B, Z), (B + 2, Z + 1)): a(f"v_add_f32_dpp v{z}, v{R+1}, v{R+1} row_shr:4 row_mask:0xf bank_mask:0xa")
            for md in ("quad_perm:[1,0,3,2]", "quad_perm:[2,3,0,1]"):
                yield
                for z in (Z, Z + 1): a(f"v_add_f32_dpp v{z}, v{z}, v{z} {md} row_mask:0xf bank_mask:0xf")
        a(f"v_cvt_pk_bf16_f32 v{X}, v{CB}, v{CB}"); a(f"v_add_u32 v{T}, {L_ACC1}, v{ADD}"); a("s_mov_b32 s73, 0")
        a("L_fp:")
        self.gemv(X, P, B, [(D1, WB), (D2, WB + 32)], 8)
        self.fold_col(D1, D2, Y)
        self.putpart(T, Y, 0)
        a(f"v_cvt_pk_bf16_f32 v{X}, v{SB}, v{SB}"); a(f"v_add_u32 v{T}, {L_ACC2}, v{ADD}")
        a("s_add_u32 s73, s73, 1"); a("s_cmp_lt_u32 s73, 2"); a("s_cbranch_scc1 L_fp")
        self.hole("F", True)
        a("s_waitcnt lgkmcnt(0)"); a("s_barrier")
        l = a.label("FC")
        a(f"s_cmp_ge_u32 s{S_WAVE}, 4"); a(f"s_cbranch_scc1 {l}")
        for acc, Z in ((L_ACC1, T), (L_ACC2, T + 2)):
            for i, _ in enumerate(colred(acc, Z)):
                if i == 0: a("s_waitcnt lgkmcnt(0)")
        K1G, K1U, K2G, K2U = 56, 57, 58, 59
        a(f"v_mov_b32 v{K1G}, v{T}"); a(f"v_mov_b32 v{K1U}, v{T+1}"); a(f"v_mov_b32 v{K2G}, v{T+2}"); a(f"v_mov_b32 v{K2U}, v{T+3}")
        a(f"{l}:")
        self.stamp(7)
        def iss4():
            for i in range(NJ):
                a(f"buffer_load_dwordx4 v[{B+4*i}:{B+4*i+3}], v{PAD}, s[{R_WS}:{R_WS+3}], s{65+i} offen sc1")
        self.poll(iss4, lambda: self.untag(list(range(B, B + 4 * NJ)), V_T10, T, 0x3ff), "PA", hole="F")
        self.stamp(4)
        m, v, r, u, w = T, T + 1, T + 2, T + 3, T + 4
        if NJ == 4:
            for i in range(0, 8, 2): a(f"v_pk_add_f32 v[{B+i}:{B+i+1}], v[{B+i}:{B+i+1}], v[{B+8+i}:{B+9+i}]")
        for i in (0, 2): a(f"v_pk_add_f32 v[{B+i}:{B+i+1}], v[{B+i}:{B+i+1}], v[{B+4+i}:{B+5+i}]")
        a(f"v_permlane32_swap_b32 v{B}, v{B+2}"); a(f"v_permlane32_swap_b32 v{B+1}, v{B+3}")
        a(f"v_pk_add_f32 v[{B}:{B+1}], v[{B}:{B+1}], v[{B+2}:{B+3}]")
        a(f"v_permlane16_swap_b32 v{B}, v{B+1}")
        a(f"v_add_f32 v{A4}, v{B}, v{B+1}")
        bfr(a, A4, A4)
        a(f"v_mul_f32 v{A4}, v{GA}, v{A4}"); bfr(a, A4, A4)
        a(f"v_add_f32 v{A4}, v{XO}, v{A4}"); bfr(a, A4, A4)
        a(f"v_subrev_f32 v{m}, s100, v{A4}")
        a(f"v_mul_f32 v{X}, v{m}, v{CB}"); a(f"v_cvt_pk_bf16_f32 v{X}, v{X}, v{X}")
        st = [f"v_mul_f32 v{v}, v{m}, v{m}", f"v_permlane32_swap_b32 v{m}, v{v}", f"v_add_f32 v{m}, v{m}, v{v}"]
        st += [f"v_add_f32_dpp v{m}, v{m}, v{m} {md} row_mask:0xf bank_mask:0xf" for md in ("quad_perm:[1,0,3,2]", "quad_perm:[2,3,0,1]", "row_half_mirror", "row_mirror")]
        st += [f"v_mov_b32 v{v}, v{m}"]
        self.gemv(X, P, B, [(D1, WB), (D2, WB + 32)], 8, pre=lambda t: a(st[t]))
        a(f"v_permlane16_swap_b32 v{v}, v{m}"); a(f"v_add_f32 v{m}, v{m}, v{v}")
        self.setexec(1, 1)
        a(f"ds_write_b32 v{SWR}, v{m} offset:{L_ST}")
        self.allexec()
        self.fold_col(D1, D2, Y)
        self.putpart(ADD, Y, L_ACC0)
        self.stamp(8)
        a("s_waitcnt lgkmcnt(0)"); a("s_barrier")
        self.stamp(1)
        a(f"s_cmp_ge_u32 s{S_WAVE}, 4"); a(f"s_cbranch_scc1 {'L_fpw' if self.stamps and self.opt.get('pw') else 'L_end'}")
        a(f"ds_read_b64 v[{m}:{v}], v{SRD_} offset:{L_ST}")
        Z = A4
        cr = colred(L_ACC0, Z); next(cr)
        a("s_waitcnt lgkmcnt(2)")
        mds = ("quad_perm:[1,0,3,2]", "quad_perm:[2,3,0,1]", "row_half_mirror", "row_mirror")
        st = []
        for md in mds: st.append([f"v_add_f32_dpp v{q}, v{q}, v{q} {md} row_mask:0xf bank_mask:0xf" for q in (m, v)])
        st.append([f"v_mul_f32 v{m}, {fh(1.0/640)}, v{m}", f"v_mul_f32 v{v}, {fh(1.0/640)}, v{v}", f"v_fma_f32 v{v}, -v{m}, v{m}, v{v}",
                   f"v_add_f32 v{m}, s100, v{m}", f"v_max_f32 v{v}, 0, v{v}", f"v_cvt_pk_bf16_f32 v{m}, 0, v{m}", f"v_cvt_pk_bf16_f32 v{v}, 0, v{v}"])
        st.append([f"v_add_f32 v{v}, {fh(1e-5)}, v{v}", f"v_sub_f32 v{m}, s100, v{m}", f"v_cvt_pk_bf16_f32 v{v}, 0, v{v}", f"v_sqrt_f32 v{v}, v{v}"])
        st.append([f"v_cvt_pk_bf16_f32 v{v}, 0, v{v}", f"v_rcp_f32 v{r}, v{v}"])
        for x in st[0] + st[1]: a(x)
        a("s_waitcnt lgkmcnt(0)")
        for grp in st[2:]:
            next(cr, None)
            for x in grp: a(x)
        for _ in cr: pass
        a(f"v_fmac_f32 v{Z}, v{m}, v{K1G}"); a(f"v_fmac_f32 v{Z+1}, v{m}, v{K1U}")
        a(f"v_fma_f32 v{Z}, v{Z}, v{r}, v{K2G}"); a(f"v_fma_f32 v{Z+1}, v{Z+1}, v{r}, v{K2U}")
        bfr(a, Z, Z); bfr(a, Z + 1, Z + 1)
        gelu(a, X, Z, T + 2, T + 3, T + 4); bfr(a, X, X)
        a(f"v_mul_f32 v{X}, v{X}, v{Z+1}"); a(f"v_cvt_pk_bf16_f32 v{X}, v{X}, v{X}")
        a(f"ds_write_b32 v{AWR}, v{X} offset:{L_ACT}")
        a("s_waitcnt lgkmcnt(0)")
        a("s_barrier")
        if self.stamps:
            a("L_fpw:")
            self.pw([7, 4, 8, 1, -1])
            a(f"s_cmp_lg_u32 s{S_WAVE}, 0"); a("s_cbranch_scc1 L_end")
            self.flush_stamps(5, role='F'); self.flush_stamps(10, 7, role='F')
        a("s_endpgm")
        self.hole("F")
        a("L_fd:")
        DOFF = 53
        a(f"s_cmp_lt_u32 s{S_WAVE}, 15"); a(f"s_cselect_b32 s67, {fsz}, 0")
        srd(a, R_A, S_WD, "s67")
        self.wraddr(ADD, GST)
        a(f"v_mov_b32 v{Y}, 0"); a(f"v_mov_b32 v{Y+1}, 0")
        self.putpart(ADD, Y, L_ACC1); self.putpart(ADD, Y, L_ACC2)
        a(f"s_lshl_b32 s73, s{S_WAVE}, 3"); a(f"v_mov_b32 v{T}, s73"); a(f"ds_write_b64 v{T}, v[{Y}:{Y+1}] offset:{L_ST}")
        a(f"s_sub_u32 s74, s{S_WAVE}, 10")
        self.colvoff(VO, 8 * 1280, T)
        a(f"s_mul_i32 s62, s69, {64*1280}"); a(f"s_lshl_b32 s63, s74, 8"); a("s_add_u32 s62, s62, s63")
        a(f"v_lshlrev_b32 v{GPOS}, 2, v{V_L}")
        a(f"v_and_b32 v{T}, 1, v{V_G}"); a(f"v_mul_u32_u24 v{DOFF}, 3456, v{T}"); a(f"v_lshrrev_b32 v{T}, 1, v{V_G}"); a(f"v_mul_u32_u24 v{T}, 16512, v{T}")
        a(f"v_add_u32 v{DOFF}, v{DOFF}, v{T}"); a(f"v_lshl_add_u32 v{DOFF}, v{V_N}, 4, v{DOFF}")
        a("s_lshl_b32 s72, s69, 7"); a(f"s_mul_i32 s73, s74, {2*16512}"); a("s_add_u32 s72, s72, s73"); a(f"s_add_u32 s72, s72, {WS_D}"); a("s_add_u32 s71, s72, 8192")
        a("s_barrier")
        for t in range(8):
            if t == 3 or t == 6: a(f"s_add_u32 s62, s62, {3*1280}")
            for h in range(2):
                if 2 * t + h >= td: a(f"s_waitcnt vmcnt({td-1})")
                a(f"buffer_load_dwordx4 v[{WB+32*h+4*t}:{WB+32*h+4*t+3}], v{VO}, s[{R_A}:{R_A+3}], s62 offen offset:{1280*(t%3)+128*h} nt")
        a("s_waitcnt lgkmcnt(0)"); a("s_barrier")
        self.putpart(ADD, Y, L_ACC0)
        a("s_waitcnt lgkmcnt(0)")
        a(f"s_cmp_eq_u32 s{S_WAVE}, 15"); a("s_cbranch_scc1 L_end")
        if self.opt.get("fs"): a("s_waitcnt vmcnt(0)"); self.stamp(5)
        a("s_barrier"); a("s_barrier")
        if not self.opt.get("fs"): self.stamp(5)
        a(f"ds_read_b32 v{X}, v{GPOS} offset:{L_ACT}")
        a("s_waitcnt vmcnt(0) lgkmcnt(0)")
        self.gemv(X, P, B, [(D1, WB), (D2, WB + 32)], 8)
        for r_ in range(4): a(f"v_permlane32_swap_b32 v{D1+r_}, v{D2+r_}")
        for r_ in range(4): a(f"v_add_f32_dpp v{D1+r_}, v{D2+r_}, v{D1+r_} row_ror:8 row_mask:0xf bank_mask:0xf")
        for r_ in range(4): a(f"v_bfi_b32 v{D1+r_}, s{S_M10}, v{V_T10}, v{D1+r_}")
        self.setexec(0x00ff00ff, 0x00ff00ff)
        a(f"buffer_store_dwordx4 v[{D1}:{D1+3}], v{DOFF}, s[{R_WS}:{R_WS+3}], s72 offen sc1")
        a(f"buffer_store_dwordx4 v[{D1}:{D1+3}], v{DOFF}, s[{R_WS}:{R_WS+3}], s71 offen sc1")
        self.allexec()
        if self.stamps:
            self.stamp(6)
            self.pw([5, 5, 6, 6, -1])
            a(f"s_cmp_lg_u32 s{S_WAVE}, {self.opt.get('sw', 14)}"); a("s_cbranch_scc1 L_end")
            self.flush_stamps(7, 5, role='F')
        a("s_endpgm")

    def regroup(self, WB):
        for t in range(4):
            for x, y in ((2, 8), (3, 9), (6, 12), (7, 13)): self.a(f"v_swap_b32 v{WB+16*t+x}, v{WB+16*t+y}")

    def sgemv(self, srcs, AR, D, WB, IDX, fill=()):
        a = self.a; fill = list(fill)
        def prep(t, ds):
            for src, bm in srcs:
                for d in ds: a(f"v_mov_b32_dpp v{AR+4*t+d}, v{src} row_newbcast:{4*t+d} row_mask:0xf bank_mask:{bm:#x}")
        prep(0, range(4)); prep(1, (0, 1))
        for t in range(4):
            for h in range(2):
                a(f"v_smfmac_f32_16x16x64_bf16 v[{D+4*h}:{D+4*h+3}], v[{AR+4*t}:{AR+4*t+3}], v[{WB+16*t+8*h}:{WB+16*t+8*h+7}], v{IDX}")
                k = 2 * t + h + 3
                if k < 8: prep(k >> 1, (2 * (k & 1), 2 * (k & 1) + 1))
                for _ in range(1 if k < 8 else 2):
                    if fill: a(fill.pop(0))
        for x in fill: a(x)

    def gu_row(self, T):
        a = self.a
        a(f"v_and_b32 v{T}, 1, v{V_G}"); a(f"v_lshrrev_b32 v{T+1}, 1, v{V_G}"); a(f"v_lshl_add_u32 v{T+1}, v{T}, 3, v{T+1}")

    def gu_addr(self, T):
        a = self.a; VO, AD = self.VO, 56
        r0 = 32 if self.opt.get("ne") else 0
        a(f"v_mul_u32_u24 v{VO}, 3456, v{T+1}"); a(f"v_and_b32 v{T}, 7, v{V_N}"); a(f"v_lshl_add_u32 v{VO}, v{T}, 4, v{VO}")
        a(f"s_mul_i32 s62, s{S_WAVE}, {64*3456}"); a("s_lshl_b32 s63, s69, 7"); a("s_add_u32 s62, s62, s63"); a(f"s_add_u32 s62, s62, {(r0+1)*3456}")
        a(f"v_add_u32 v{VO}, s62, v{VO}")
        if self.opt.get("xc", 0) & 2:
            a(f"v_lshlrev_b32 v{VO}, 7, v{V_G}"); a(f"v_lshl_add_u32 v{VO}, v{T}, 4, v{VO}")
            a("s_mul_i32 s62, s69, 10"); a(f"s_add_u32 s62, s62, s{S_WAVE}"); a("s_lshl_b32 s62, s62, 13"); a("s_add_u32 s62, s62, 256"); a(f"v_add_u32 v{VO}, s62, v{VO}")
        a(f"v_mov_b32 v{AD}, s{S_WG}"); a(f"v_mov_b32 v{AD+1}, s{S_WG+1}"); a(f"v_mov_b32 v{T}, s{S_WU}"); a(f"v_mov_b32 v{T+1}, s{S_WU+1}")
        a(f"v_cmp_lt_u32 vcc, 7, v{V_N}"); a(f"v_cndmask_b32 v{AD}, v{AD}, v{T}, vcc"); a(f"v_cndmask_b32 v{AD+1}, v{AD+1}, v{T+1}, vcc")
        a(f"v_add_co_u32 v{AD}, vcc, v{AD}, v{VO}"); a(f"v_addc_co_u32 v{AD+1}, vcc, 0, v{AD+1}, vcc")
        a(f"s_mov_b32 s64, {4*3456}"); a("s_mov_b32 s65, 0"); a(f"s_mov_b32 s66, {12*3456}"); a("s_mov_b32 s67, 0")
        if self.opt.get("xc", 0) & 2: a(f"s_mov_b32 s64, 1024"); a(f"s_mov_b32 s66, 1024")

    def gu_ld(self, j, thr):
        a = self.a; AD, WB = 56, 64
        ne = self.opt.get("ne", 0); tf = self.opt.get("tf", 3)
        if ne and j == 8:
            a(f"s_mov_b32 s62, {-52*3456}"); a("s_mov_b32 s63, -1")
            a(f"v_lshl_add_u64 v[{AD}:{AD+1}], v[{AD}:{AD+1}], 0, s[62:63]")
        elif j and j % 2 == 0: a(f"v_lshl_add_u64 v[{AD}:{AD+1}], v[{AD}:{AD+1}], 0, s[{64 if j % 4 else 66}:{65 if j % 4 else 67}]")
        if isinstance(tf, list): tf = tf[j]
        if thr: a(f"s_waitcnt vmcnt({tf-1})")
        r = WB + 4 * ((j + 8) % 16 if ne else j)
        if self.opt.get("xf"): return
        a(f"global_load_dwordx4 v[{r}:{r+3}], v[{AD}:{AD+1}], off offset:{(1 if j & 1 else -1) * (256 if self.opt.get('xc', 0) & 2 else 3456)} nt")

    def role_f3(self):
        a = self.a
        ROW, VO, X, B, T, XO, ADD = self.ROW, self.VO, self.X, self.B, self.T, self.XO, self.ADD
        WB, IDX, D, AD, PAD, SWR, GPOS = 64, 13, 48, 56, 58, 59, 60
        tf = self.opt.get("tf", 3); td = self.opt.get("td", 6)
        GST = 512
        dp = "row_mask:0xf bank_mask:0xf"
        a("; GRP F")
        self.hole("F")
        a("L_f:")
        a(f"s_sub_u32 s69, s2, {NM}")
        a(f"v_and_b32 v{T}, 3, v{V_N}"); a(f"v_mul_u32_u24 v{IDX}, 0x5555, v{T}")
        self.gu_row(T)
        for i in range(8): a(f"v_mov_b32 v{D+i}, 0")
        a(f"s_cmp_ge_u32 s{S_WAVE}, 10"); a("s_cbranch_scc1 L_fd")
        ne = self.opt.get("ne", 0); fw = self.opt.get("fw", 0)
        if not ne: self.gu_addr(T)
        a(f"s_lshl_b32 s73, s{S_WAVE}, 6"); a(f"v_lshl_add_u32 v{ROW}, v{V_N}, 2, v{V_G}"); a(f"v_add_u32 v{ROW}, s73, v{ROW}")
        a(f"v_lshlrev_b32 v{T}, 1, v{ROW}"); a(f"v_lshlrev_b32 v{ROW}, 2, v{ROW}")
        a(f"buffer_load_ushort v{XO}, v{T}, s[{R_D}:{R_D+3}], 0 offen")
        for j in range(ne, 16):
            self.gu_ld(j, True)
            if j == self.opt.get("fb", 15):
                if fw: self.stamp(5)
                a("s_barrier")
        GA, SB, CB, A4 = T + 5, T + 6, T + 7, T + 8
        a(f"v_lshlrev_b32 v{GPOS}, 2, v{V_L}")
        a(f"s_lshl_b32 s79, s{S_WAVE}, 9"); a(f"v_lshl_add_u32 v{ADD}, v{V_N}, 5, s79")
        a(f"v_lshrrev_b32 v{T}, 1, v{V_G}"); a(f"v_mul_u32_u24 v{VO}, {L_ACC2-L_ACC1}, v{T}"); a(f"v_add_u32 v{VO}, v{VO}, v{ADD}")
        a(f"v_and_b32 v{T+1}, 1, v{V_G}"); a(f"v_mul_u32_u24 v{PAD}, 2560, v{T+1}"); a(f"v_lshl_add_u32 v{PAD}, v{T}, 14, v{PAD}")
        a(f"v_lshl_add_u32 v{PAD}, v{V_N}, 4, v{PAD}")
        a(f"s_lshl_b32 s73, s{S_WAVE}, 3"); a(f"v_lshrrev_b32 v{SWR}, 3, v{V_L}"); a(f"v_add_u32 v{SWR}, s73, v{SWR}")
        a(f"s_mov_b32 s63, {WS_MOD+1280*4}"); a(f"s_mov_b32 s64, {WS_MOD+2560*4}")
        a(f"s_mov_b32 s75, {WS_VOTE}")
        self.voteld(A4, GPOS)
        gs = self.opt.get("gs", 0)
        def iss3():
            if not gs: a(f"buffer_load_dword v{GA}, v{ROW}, s[{R_WS}:{R_WS+3}], s63 offen sc1")
            a(f"buffer_load_dword v{SB}, v{ROW}, s[{R_WS}:{R_WS+3}], s63 offen offset:2560 sc1")
            a(f"buffer_load_dword v{CB}, v{ROW}, s[{R_WS}:{R_WS+3}], s64 offen sc1")
        self.poll(iss3, lambda: self.untag([SB, CB] if gs else [GA, SB, CB], V_T16, T, 0xffff), "PG", hole="F")
        self.stamp(3)
        if fw and self.stamps: a(f"s_mov_b32 s{S_ST+16}, s{S_CNT}")
        self.side(A4, 70)
        a(f"s_lshl_b32 s73, s{S_WAVE}, 8"); a("s_add_u32 s70, s70, s73")
        if self.opt.get("qa") == 1: a("s_and_b32 s73, s69, 1"); a("s_lshl_b32 s73, s73, 19"); a("s_add_u32 s70, s70, s73")
        for i in range(4): a(f"s_add_u32 s{65+i}, s70, {WS_A+32768*i}")
        a(f"v_add_f32 v{CB}, 1.0, v{CB}"); bfr(a, CB, CB)
        a(f"v_lshlrev_b32 v{XO}, 16, v{XO}")
        self.regroup(WB)
        self.sgemv([(CB, 0x3), (SB, 0xc)], B, D, WB, IDX)
        a(f"v_mov_b32 v{T}, 0"); a(f"v_mov_b32 v{T+1}, 1")
        self.setexec(0xffff, 0xffff)
        for h in range(2): a(f"ds_write_b128 v{VO}, v[{D+4*h}:{D+4*h+3}] offset:{L_ACC1+16*h}")
        pb = self.opt.get("pb", 0)
        if not pb:
            self.setexec(1, 0)
            a(f"ds_add_u32 v{T}, v{T+1} offset:{L_CNT}")
        self.allexec()
        a("s_waitcnt lgkmcnt(0)")
        for i in range(8): a(f"v_mov_b32 v{D+i}, 0")
        la = self.opt.get("la", 0); L_S2 = 640
        if la:
            a(f"v_lshrrev_b32 v{T}, 2, v{V_N}"); a(f"v_mul_u32_u24 v{IDX}, 0x5555, v{T}")
            a(f"v_lshrrev_b32 v{SWR}, 5, v{V_L}"); a(f"v_lshlrev_b32 v{SWR}, 2, v{SWR}")
        if fw: self.stamp(6)
        if pb: a("s_barrier")
        if gs: self.poll(lambda: a(f"buffer_load_dword v{GA}, v{ROW}, s[{R_WS}:{R_WS+3}], s63 offen sc1"), lambda: self.untag([GA], V_T16, T, 0xffff), "PH")
        self.stamp(7)
        lds4 = [f"buffer_load_dwordx4 v[{B+4*i}:{B+4*i+3}], v{PAD}, s[{R_WS}:{R_WS+3}], s{65+i} offen sc1" for i in range(4)]
        def iss4():
            for x in lds4: a(x)
        if self.opt.get("pp"): self.ppoll(lds4, list(range(B, B + 16, 4)), [60, 62, 72, 78], T, "PA", hole="F")
        else: self.poll(iss4, lambda: self.untag(list(range(B, B + 16, 4)), V_T10, T, 0x3ff), "PA", hole="F")
        self.stamp(4)
        m, v, r, u, w = T, T + 1, T + 2, T + 3, T + 4
        for i in range(8): a(f"v_add_f32 v{B+i}, v{B+i}, v{B+8+i}")
        for i in (0, 2, 1, 3): a(f"v_add_f32 v{B+i}, v{B+i}, v{B+4+i}")
        a(f"v_permlane32_swap_b32 v{B}, v{B+2}"); a(f"v_permlane32_swap_b32 v{B+1}, v{B+3}")
        a(f"v_add_f32 v{B}, v{B}, v{B+2}"); a(f"v_add_f32 v{B+1}, v{B+1}, v{B+3}")
        a(f"v_permlane16_swap_b32 v{B}, v{B+1}")
        a(f"v_add_f32 v{A4}, v{B}, v{B+1}")
        bfr(a, A4, A4)
        a(f"v_mul_f32 v{A4}, v{GA}, v{A4}"); bfr(a, A4, A4)
        a(f"v_add_f32 v{A4}, v{XO}, v{A4}"); bfr(a, A4, A4)
        a(f"v_subrev_f32 v{m}, s100, v{A4}")
        a(f"v_mul_f32 v{X}, v{m}, v{CB}"); bfr(a, X, X)
        a(f"v_mul_f32 v{v}, v{m}, v{m}")
        st = [f"v_permlane32_swap_b32 v{m}, v{v}", f"v_add_f32 v{m}, v{m}, v{v}"]
        st += [f"v_add_f32_dpp v{m}, v{m}, v{m} {md} {dp}" for md in ("quad_perm:[1,0,3,2]", "quad_perm:[2,3,0,1]", "row_half_mirror", "row_mirror")]
        if la:
            st += [f"v_mul_f32 v{m}, {fh(1.0/640)}, v{m}", "s_mov_b32 s76, 0x10001", "s_mov_b32 s77, 0x10001", "s_mov_b64 exec, s[76:77]", f"ds_add_f32 v{SWR}, v{m} offset:{L_S2}", "s_mov_b64 exec, -1"]
            self.sgemv([(X, 0xf)], B, D, WB, IDX, st)
            for h in range(2): a(f"ds_add_f32 v{GPOS}, v{D+4*h} offset:{288*h}")
        else:
            st += [f"v_mov_b32 v{v}, v{m}", "s_mov_b32 s76, 1", f"v_permlane16_swap_b32 v{v}, v{m}", "s_mov_b32 s77, 1", f"v_add_f32 v{m}, v{m}, v{v}"]
            self.sgemv([(X, 0xf)], B, D, WB, IDX, st)
            a("s_mov_b64 exec, s[76:77]")
            a(f"ds_write_b32 v{SWR}, v{m} offset:{L_ST}")
            a("s_mov_b64 exec, 0xffff")
            for h in range(2): a(f"ds_write_b128 v{ADD}, v[{D+4*h}:{D+4*h+3}] offset:{L_ACC0+16*h}")
        if not fw: self.stamp(8)
        a("s_waitcnt lgkmcnt(0)"); a("s_barrier")
        if self.opt.get("ep", 0) >= 2:
            l = a.label("EP")
            a(f"s_or_b32 s62, s69, s{S_WAVE}"); a("s_cmp_lg_u32 s62, 0"); a(f"s_cbranch_scc1 {l}")
            a(f"v_mov_b32 v{T}, s{S_T}"); a(f"v_mov_b32 v{T+1}, 0")
            self.setexec(1, 0)
            a(f"buffer_store_dword v{T}, v{T+1}, s[{R_WS}:{R_WS+3}], 0 offen" + (" sc1" if self.opt["ep"] == 2 else ""))
            a(f"{l}:")
        if self.stamps:
            self.allexec()
            self.stamp(1)
            self.pw([5, 3, 6, 7, 8] if fw else [7, 4, 8, 1, -1])
            a(f"s_cmp_lg_u32 s{S_WAVE}, 0"); a("s_cbranch_scc1 L_end")
            self.flush_stamps(5, role='F'); self.flush_stamps(10, 7, role='F')
        a("s_endpgm")
        self.hole("F")
        a("L_fd:")
        DOFF, RD, SRD_, K = 58, 59, 60, 44
        Q = B
        rd = self.opt.get("rd", 0)
        a(f"s_cmp_ge_u32 s{S_WAVE}, {11 if rd else 15}"); a("s_cbranch_scc1 L_end")
        if not rd: srd(a, R_A, S_WD, 0 if self.opt.get("xd") else 640 * 1728 * 2)
        a(f"v_lshlrev_b32 v{SRD_}, 3, v{V_N}")
        if la:
            assert pb
            a(f"v_lshlrev_b32 v{T}, 4, v{V_L}"); a(f"ds_write_b128 v{T}, v[{D}:{D+3}]")
            a(f"v_and_b32 v{T}, 1, v{V_N}"); a(f"v_mul_u32_u24 v{SRD_}, 288, v{T}"); a(f"v_lshl_add_u32 v{SRD_}, v{V_G}, 6, v{SRD_}")
            a(f"v_lshrrev_b32 v{T}, 1, v{V_N}"); a(f"v_lshl_add_u32 v{SRD_}, v{T}, 2, v{SRD_}")
        else: a(f"ds_write_b64 v{SRD_}, v[{D}:{D+1}] offset:{L_ST}"); a(f"ds_write_b32 v{D}, v{D} offset:{L_CNT}")
        if rd:
            a(f"v_lshlrev_b32 v{DOFF}, 2, v{V_L}"); a("s_lshl_b32 s72, s69, 8"); a(f"s_add_u32 s72, s72, {WS_D}"); a("s_add_u32 s73, s72, 8192")
        else:
            a(f"s_sub_u32 s74, s{S_WAVE}, 10")
            a(f"v_mul_u32_u24 v{VO}, 1280, v{T+1}"); a(f"v_lshl_add_u32 v{VO}, v{V_N}, 4, v{VO}")
            a(f"s_mul_i32 s62, s69, {64*1280}"); a(f"s_lshl_b32 s63, s74, 8"); a("s_add_u32 s62, s62, s63")
            a(f"v_lshrrev_b32 v{T}, 3, v{V_N}"); a(f"v_mul_u32_u24 v{DOFF}, 16512, v{T}"); a(f"v_bfe_u32 v{T}, v{V_N}, 2, 1"); a(f"v_mul_u32_u24 v{T}, 3456, v{T}")
            a(f"v_add_u32 v{DOFF}, v{DOFF}, v{T}"); a(f"v_and_b32 v{T}, 3, v{V_N}"); a(f"v_lshl_add_u32 v{DOFF}, v{T}, 4, v{DOFF}"); a(f"v_lshl_add_u32 v{DOFF}, v{V_G}, 13, v{DOFF}")
            a("s_lshl_b32 s72, s69, 7"); a(f"s_mul_i32 s73, s74, {2*16512}"); a("s_add_u32 s72, s72, s73"); a(f"s_add_u32 s72, s72, {WS_D}")
        a(f"v_lshrrev_b32 v{T}, 1, v{V_G}"); a(f"v_mul_u32_u24 v{RD}, {5*GST-512}, v{T}"); a(f"v_lshl_add_u32 v{RD}, v{V_L}, 4, v{RD}")
        if rd and self.opt.get("fj"):
            a("s_mov_b32 s70, s72"); a("s_mov_b32 s71, s73")
            self.otrig(self.opt["fj"], T)
            a("s_mov_b32 s72, s70"); a("s_mov_b32 s73, s71")
        a("s_waitcnt lgkmcnt(0)"); a("s_barrier")
        if fw: self.stamp(1)
        for j in range(0 if rd else 16):
            if j and j % 2 == 0: a(f"s_add_u32 s62, s62, {(4 if j % 4 else 12)*1280}")
            if j >= td: a(f"s_waitcnt vmcnt({td-1})")
            a(f"buffer_load_dwordx4 v[{WB+4*j}:{WB+4*j+3}], v{VO}, s[{R_A}:{R_A+3}], s62 offen offset:{2560*(j&1)} nt")
        if fw: self.stamp(3)
        def colsum(acc, Z):
            for i in range(5): a(f"ds_read_b128 v[{Q+4*i}:{Q+4*i+3}], v{RD} offset:{acc+GST*i}")
            yield
            a("s_waitcnt lgkmcnt(3)")
            for i in (0, 2): a(f"v_pk_add_f32 v[{Q+i}:{Q+i+1}], v[{Q+i}:{Q+i+1}], v[{Q+4+i}:{Q+5+i}]")
            yield
            a("s_waitcnt lgkmcnt(1)")
            for i in (0, 2): a(f"v_pk_add_f32 v[{Q+8+i}:{Q+9+i}], v[{Q+8+i}:{Q+9+i}], v[{Q+12+i}:{Q+13+i}]")
            a("s_waitcnt lgkmcnt(0)")
            for i in (0, 2): a(f"v_pk_add_f32 v[{Q+i}:{Q+i+1}], v[{Q+i}:{Q+i+1}], v[{Q+16+i}:{Q+17+i}]")
            for i in (0, 2): a(f"v_pk_add_f32 v[{Q+i}:{Q+i+1}], v[{Q+i}:{Q+i+1}], v[{Q+8+i}:{Q+9+i}]")
            yield
            a(f"v_permlane32_swap_b32 v{Q}, v{Q+2}"); a(f"v_permlane32_swap_b32 v{Q+1}, v{Q+3}")
            yield
            a(f"v_pk_add_f32 v[{Z}:{Z+1}], v[{Q}:{Q+1}], v[{Q+2}:{Q+3}]")
            yield
            a(f"v_permlane16_swap_b32 v{Z}, v{Z+1}")
        if pb:
            a(f"s_waitcnt vmcnt({self.opt.get('pk', 0)})")
            if fw: self.stamp(4)
            a("s_barrier")
        else:
            lp, dn = a.label("CL"), a.label("CD")
            a(f"s_mov_b32 s{S_CNT}, 0")
            a(f"{lp}:")
            a(f"ds_read_b32 v{T+2}, v{D} offset:{L_CNT}"); a("s_waitcnt lgkmcnt(0)")
            a(f"v_cmp_eq_u32 vcc, 10, v{T+2}"); a(f"s_cbranch_vccnz {dn}")
            a(f"s_add_u32 s{S_CNT}, s{S_CNT}, 1"); a(f"s_cmp_lt_u32 s{S_CNT}, {SPIN*16}"); a(f"s_cbranch_scc1 {lp}")
            if self.opt.get("touch", 1): a(f"s_branch {dn}"); self.hole("F")
            a(f"{dn}:")
        for acc, Z in ((L_ACC1, K), (L_ACC2, K + 2)):
            for _ in colsum(acc, Z): pass
        a("s_waitcnt vmcnt(0)")
        if rd: a("s_mov_b32 s79, 0xffff")
        else: self.regroup(WB)
        lx = self.opt.get("lx", 0)
        if lx:
            a(f"v_lshlrev_b32 v61, 2, v{V_L}"); a(f"v_mov_b32 v{X}, 1"); a(f"ds_write_b32 v61, v{X} offset:{L_ACT}")
            a(f"s_mov_b32 s{S_CNT}, 0"); a(f"s_cmp_ge_u32 s{S_WAVE}, {lx}"); a("s_waitcnt lgkmcnt(0)")
        self.stamp(9)
        self.hole("F", True)
        a("s_barrier")
        self.stamp(5)
        if lx:
            a("s_cbranch_scc0 L_lxn")
            a("L_lxs:")
            a(f"ds_read_b32 v{X}, v61 offset:{L_ACT}")
            a(f"s_add_u32 s{S_CNT}, s{S_CNT}, 1"); a(f"s_cmp_ge_u32 s{S_CNT}, {SPIN*16}"); a("s_cbranch_scc1 L_lxd")
            a("s_waitcnt lgkmcnt(0)")
            a(f"v_cmp_eq_u32 vcc, 1, v{X}"); a("s_cbranch_vccnz L_lxs")
            a("s_branch L_lxd")
            a("L_lxn:")
        if self.opt.get("x14"): a(f"s_cmp_ge_u32 s{S_WAVE}, {self.opt['x14']}"); a("s_cbranch_scc1 L_x14")
        m, v, r = T + 2, T + 3, T + 4
        Z = T + 8
        if la:
            t1, t3, t4 = T + 5, T + 6, T + 7
            kk = -2 * 0.7978845608028654 * LOG2E
            a(f"ds_read_b64 v[{m}:{v}], v{D} offset:{L_S2}")
            a(f"ds_read2_b32 v[{Z}:{Z+1}], v{SRD_} offset0:0 offset1:8")
            a("s_waitcnt lgkmcnt(1)")
            a(f"v_fma_f32 v{v}, -v{m}, v{m}, v{v}"); a(f"v_add_f32 v{m}, s100, v{m}")
            a(f"v_cvt_pk_bf16_f32 v{v}, 0, |v{v}|"); a(f"v_cvt_pk_bf16_f32 v{m}, 0, v{m}")
            a(f"v_add_f32 v{v}, {fh(1e-5)}, v{v}"); a(f"v_sub_f32 v{m}, s100, v{m}")
            a(f"v_cvt_pk_bf16_f32 v{v}, 0, v{v}"); a(f"v_sqrt_f32 v{v}, v{v}")
            a("s_waitcnt lgkmcnt(0)")
            a(f"v_fmac_f32 v{Z}, v{m}, v{K}")
            a(f"v_cvt_pk_bf16_f32 v{v}, 0, v{v}"); a(f"v_rcp_f32 v{r}, v{v}")
            a(f"v_fmac_f32 v{Z+1}, v{m}, v{K+1}")
            a(f"v_fma_f32 v{Z}, v{Z}, v{r}, v{K+2}")
            bfr(a, Z, Z)
            a(f"v_mul_f32 v{t3}, v{Z}, v{Z}"); a(f"v_mul_f32 v{t4}, {fh(kk*0.044715)}, v{Z}"); a(f"v_mul_f32 v{t1}, {fh(kk)}, v{Z}")
            a(f"v_fmac_f32 v{t1}, v{t4}, v{t3}")
        else:
            a(f"ds_read_b64 v[{m}:{v}], v{SRD_} offset:{L_ST}")
            cr = colsum(L_ACC0, Z); next(cr)
            a("s_waitcnt lgkmcnt(5)")
            mds = ("quad_perm:[1,0,3,2]", "quad_perm:[2,3,0,1]", "row_half_mirror", "row_mirror")
            st = []
            for md in mds: st.append([f"v_add_f32_dpp v{q}, v{q}, v{q} {md} {dp}" for q in (m, v)])
            st.append([f"v_mul_f32 v{m}, {fh(1.0/640)}, v{m}", f"v_mul_f32 v{v}, {fh(1.0/640)}, v{v}"])
            st.append([f"v_fma_f32 v{v}, -v{m}, v{m}, v{v}", f"v_add_f32 v{m}, s100, v{m}", f"v_max_f32 v{v}, 0, v{v}"])
            st.append([f"v_cvt_pk_bf16_f32 v{m}, 0, v{m}", f"v_cvt_pk_bf16_f32 v{v}, 0, v{v}",
                       f"v_add_f32 v{v}, {fh(1e-5)}, v{v}", f"v_sub_f32 v{m}, s100, v{m}", f"v_cvt_pk_bf16_f32 v{v}, 0, v{v}", f"v_sqrt_f32 v{v}, v{v}"])
            for x in st[0]: a(x)
            for grp in st[1:]:
                next(cr, None)
                for x in grp: a(x)
            for _ in cr: pass
            a(f"v_fmac_f32 v{Z}, v{m}, v{K}")
            a(f"v_cvt_pk_bf16_f32 v{v}, 0, v{v}"); a(f"v_rcp_f32 v{r}, v{v}")
            a(f"v_fmac_f32 v{Z+1}, v{m}, v{K+1}")
            a(f"v_fma_f32 v{Z}, v{Z}, v{r}, v{K+2}")
            bfr(a, Z, Z)
            t1, t3 = T + 5, T + 6
            kk = -2 * 0.7978845608028654 * LOG2E
            a(f"v_mul_f32 v{t3}, v{Z}, v{Z}")
            a(f"v_mul_f32 v{t1}, {fh(kk)}, v{Z}")
            a(f"v_fmaak_f32 v{t3}, s71, v{t3}, 1.0") if False else None
            a(f"v_mul_f32 v{t3}, {fh(0.044715)}, v{t3}")
            a(f"v_fmac_f32 v{t1}, v{t1}, v{t3}")
        a(f"v_exp_f32 v{t1}, v{t1}")
        a(f"v_fma_f32 v{Z+1}, v{Z+1}, v{r}, v{K+3}")
        a(f"v_add_f32 v{t1}, 1.0, v{t1}")
        a(f"v_rcp_f32 v{t1}, v{t1}")
        bfr(a, Z + 1, Z + 1)
        a(f"v_mul_f32 v{X}, v{Z}, v{t1}"); bfr(a, X, X)
        a(f"v_mul_f32 v{X}, v{X}, v{Z+1}"); bfr(a, X, X)
        if lx: a(f"ds_write_b32 v61, v{X} offset:{L_ACT}"); a("L_lxd:")
        if self.opt.get("x14"): a("L_x14:")
        if self.opt.get("pw"): self.stamp(2)
        if rd:
            a(f"v_or_b32 v{X}, v{X}, v{V_T16}")
            for h in range(2): a(f"buffer_store_dword v{X}, v{DOFF}, s[{R_WS}:{R_WS+3}], s{72+h} offen sc1")
        else:
            self.sgemv([(X, 0xf)], B, D, WB, IDX)
            a("s_mov_b32 exec_hi, 0")
            for h in range(2):
                a(f"v_bfi_b32 v{D+4*h}, s{S_M10}, v{V_T10}, v{D+4*h}")
                a(f"buffer_store_dwordx4 v[{D+4*h}:{D+4*h+3}], v{DOFF}, s[{R_WS}:{R_WS+3}], s72 offen offset:{64*h} sc1")
        if self.stamps:
            self.allexec()
            self.stamp(6)
            self.pw([1, 3, 4, 9, -1] if fw else [5, 2, 6, 9, -1])
            a(f"s_cmp_lg_u32 s{S_WAVE}, {self.opt.get('sw', 10 if rd else 14)}"); a("s_cbranch_scc1 L_end")
            self.flush_stamps(7, 5, role='F')
        a("s_endpgm")

    def role_mw(self):
        a = self.a
        X, B, D1, Y, T, ADD, CPOS, UOFF, P = self.X, self.B, self.D1, self.Y, self.T, self.ADD, self.CPOS, self.UOFF, self.P
        WO, AD, C, ML, O, RA, VA, CW = 64, 52, 58, 80, 84, 62, 63, 87
        dp = "row_mask:0xf bank_mask:0xf"
        self.hole("F")
        a("L_mw:")
        t0, t1, t5, t6 = T, T + 1, T + 2, T + 3
        a(f"v_bfe_u32 v{t0}, v{V_N}, 2, 1"); a(f"v_mul_u32_u24 v{t0}, 3, v{t0}"); a(f"v_lshrrev_b32 v{t1}, 3, v{V_N}")
        a(f"s_lshl_b32 s77, s{S_WAVE}, 5")
        a(f"v_lshl_add_u32 v{AD+1}, v{t0}, 2, s77"); a(f"v_lshl_add_u32 v{AD}, v{t1}, 2, v{AD+1}")
        a(f"v_and_b32 v{t5}, 3, v{V_N}"); a(f"v_lshlrev_b32 v{t5}, 2, v{t5}")
        a(f"v_lshrrev_b32 v{t6}, 3, v{V_L}"); a(f"v_lshl_add_u32 v{t5}, v{t6}, 4, v{t5}")
        a(f"v_lshl_add_u32 v{AD+4}, v{t0}, 9, v{t5}"); a(f"v_lshl_add_u32 v{AD+2}, v{t1}, 9, v{AD+4}")
        a(f"v_xor_b32 v{t1}, 1, v{t1}"); a(f"v_lshl_add_u32 v{AD+3}, v{t1}, 9, v{AD+4}"); a(f"v_lshl_add_u32 v{AD+5}, v{t1}, 2, v{AD+1}")
        a(f"v_and_b32 v{T}, 7, v{V_L}"); a(f"v_cmp_gt_u32 vcc, 6, v{T}"); a(f"v_cndmask_b32 v{VA}, 0, 1.0, vcc")
        a(f"v_lshl_add_u32 v{CW}, v{T}, 2, s77")
        a(f"v_min_u32 v{T}, 5, v{T}"); a(f"v_lshlrev_b32 v{RA}, 4, v{T}")
        a("s_lshl_b32 s69, s74, 7"); a(f"s_add_u32 s69, s69, {WS_ML}")
        a("s_mul_i32 s70, s74, 3072"); a("s_lshl_b32 s75, s75, 7"); a("s_add_u32 s70, s70, s75"); a(f"s_add_u32 s70, s70, {WS_O}")
        a(f"s_lshr_b32 s63, s{S_WAVE}, 3"); a("s_mul_i32 s64, s63, 2560"); a(f"s_mul_i32 s63, s63, {8*PST}"); a(f"v_add_u32 v{CPOS}, s63, v{CPOS}")
        a("s_lshl_b32 s62, s72, 14"); a("s_add_u32 s62, s62, s64"); a("s_lshl_b32 s64, s73, 8"); a("s_add_u32 s62, s62, s64"); a(f"s_add_u32 s62, s62, {WS_A}")
        a(f"v_and_b32 v{T}, 1, v{V_L}"); a(f"v_lshl_add_u32 v{UOFF}, v{T}, 13, v{UOFF}")
        a("s_getreg_b32 s68, hwreg(HW_REG_XCC_ID, 0, 4)"); a("s_lshl_b32 s68, s68, 10")
        a(f"s_and_b32 s71, s{S_WAVE}, 7"); a("s_mov_b32 s75, 0")
        a("s_branch L_mw_go")
        a("L_mw_real:")
        a("s_mov_b32 s75, 1")
        if self.stamps and self.opt.get("pw"): a("s_waitcnt vmcnt(0)"); self.stamp(5)
        self.poll(lambda: a(f"buffer_load_dwordx4 v[{ML}:{ML+3}], v{RA}, s[{R_WS}:{R_WS+3}], s69 offen sc1"), lambda: self.untag(list(range(ML, ML + 4)), V_T10, T, 0x3ff), "PM")
        r8 = ("quad_perm:[1,0,3,2]", "quad_perm:[2,3,0,1]", "row_half_mirror")
        a(f"v_max_f32_dpp v{T}, v{ML}, v{ML} {r8[0]} {dp}")
        a(f"v_cmp_ne_u32 vcc, s68, v{ML+2}")
        for m in r8[1:]: a(f"v_max_f32_dpp v{T}, v{T}, v{T} {m} {dp}")
        a(f"v_mul_f32 v{ML+1}, v{ML+1}, v{VA}")
        a(f"v_sub_f32 v{ML}, v{ML}, v{T}"); a(f"v_mul_f32 v{ML}, {fh(LOG2E)}, v{ML}"); a(f"v_exp_f32 v{ML}, v{ML}")
        a("s_cmp_eq_u64 vcc, 0"); a(f"s_cselect_b32 s77, {WS_ON-WS_O}, 0"); a("s_add_u32 s70, s70, s77")
        a(f"v_mul_f32 v{T}, v{ML}, v{ML+1}")
        for m in r8: a(f"v_add_f32_dpp v{T}, v{T}, v{T} {m} {dp}")
        a(f"v_rcp_f32 v{T}, v{T}")
        a(f"v_mul_f32 v{ML}, v{ML}, v{T}")
        a(f"ds_write_b32 v{CW}, v{ML}")
        a(f"ds_read_b32 v{C}, v{AD}"); a(f"ds_read_b32 v{C+1}, v{AD+5}"); a(f"ds_read_b32 v{C+2}, v{AD+1} offset:8")
        self.stamp(7)
        def isso():
            for j in range(3): a(f"buffer_load_dword v{O+j}, v{AD+2+j}, s[{R_WS}:{R_WS+3}], s70 offen offset:{1024 if j == 2 else 0} sc1")
        self.poll(isso, lambda: self.untag(list(range(O, O + 3)), V_T10, T + 1, 0x3ff), "PO")
        a("s_waitcnt lgkmcnt(0)")
        self.stamp(8)
        a("L_mw_go:")
        a(f"v_mul_f32 v{X}, v{C}, v{O}"); a(f"v_fmac_f32 v{X}, v{C+1}, v{O+1}"); a(f"v_fmac_f32 v{X}, v{C+2}, v{O+2}")
        a(f"v_add_f32_dpp v{X}, v{X}, v{X} row_shl:4 row_mask:0xf bank_mask:0x5")
        a(f"v_cvt_pk_bf16_f32 v{X}, v{X}, v{X}")
        self.gemv(X, P, B, [(D1, WO)], 4)
        self.fold_col(D1, None, Y)
        self.putpart(ADD, Y, L_ACC2)
        a("s_waitcnt lgkmcnt(0)"); a("s_barrier")
        a("s_cmp_lg_u32 s71, 0"); a("s_cbranch_scc1 L_mw_n")
        self.publish(L_ACC2, CPOS, UOFF, 62, 88, False, dual=True, half=True, one=True, gate=("s75", "L_mw_real"))
        self.stamp(6)
        a("L_mw_n:")
        a("s_cmp_eq_u32 s75, 0"); a("s_cbranch_scc1 L_mw_real")
        a(f"s_cmp_eq_u32 s{S_WAVE}, 2"); a("s_cbranch_scc1 L_red")
        self.pw([7, 8, 6, 5, -1, "s72"])
        a("s_endpgm")

    def breaks(self, L):
        import subprocess, re
        txt = "\n".join(l for l in L if not l.strip().startswith((".", ";"))) + "\n"
        o = subprocess.run(["llvm-mc", "-arch=amdgcn", "-mcpu=gfx950", "-show-encoding"], input=txt, capture_output=True, text=True)
        assert o.returncode == 0, o.stderr
        sz = [len(m.split(",")) for m in re.findall(r"encoding: \[([^\]]*)\]", o.stdout)]
        out = []; pos = None; k = 0; grp = "F"; prev = ""; pend = []
        for ln in L:
            t = ln.strip()
            if t.startswith(".p2alignl"): pos = 0; out.append(ln); continue
            if t.startswith("; GRP"): grp = t.split()[-1]
            if t.startswith((".", ";")) or not t:
                (pend if pend else out).append(ln); continue
            if t.endswith(":"): pend.append(ln); continue
            n = sz[k]; k += 1
            if pos is not None:
                term = prev.startswith(("s_branch", "s_endpgm"))
                last = t.startswith(("s_branch", "s_endpgm"))
                if pos + n + (0 if last else 4) > 4096 or (term and pos + 60 > 4096):
                    ishole = t.startswith("s_branch L_ret")
                    l = self.a.label("B" + grp)
                    if not term: out.append(f"    s_branch {l}x")
                    out.append("    .p2alignl 12, 0xbf810000"); pos = 0
                    if not ishole:
                        self.holes[grp].append(l); out += [f"{l}:", f"    s_branch L_ret{grp}"]; pos = 4
                    if not term: out.append(f"{l}x:")
                pos += n
            out += pend; pend = []
            out.append(ln); prev = t
        assert k == len(sz) and not pend
        return out

    def build(self):
        a = self.a
        a("s_cmp_ge_u32 s2, 256"); a("s_cbranch_scc1 L_end")
        a("s_load_dwordx16 s[4:19], s[0:1], 0"); a("s_load_dwordx8 s[20:27], s[0:1], 64"); a("s_load_dwordx2 s[28:29], s[0:1], 104")
        self.stamp(0)
        a("v_lshrrev_b32 v2, 6, v0"); a(f"v_and_b32 v{V_L}, 63, v0"); a(f"v_readfirstlane_b32 s{S_WAVE}, v2")
        a(f"v_bfe_u32 v{V_G}, v0, 4, 2"); a(f"v_and_b32 v{V_N}, 15, v0")
        if self.opt.get("remap", 1) == 2:
            order = self.opt.get("xo", [5, 4, 0, 1, 2, 3, 7, 6])
            lut = sum(order.index(x) << (4 * x) for x in range(8))
            a("s_and_b32 s3, s2, 7"); a("s_lshl_b32 s3, s3, 2"); a(f"s_lshr_b32 s3, {lut:#x}, s3"); a("s_and_b32 s3, s3, 7")
            a("s_lshl_b32 s3, s3, 5"); a("s_lshr_b32 s2, s2, 3"); a("s_or_b32 s2, s2, s3")
        a("s_cmp_lt_u32 s2, 64"); a("s_cbranch_scc1 L_front")
        def mid():
            a("L_end:"); a("s_endpgm")
            a("L_front:")
            if self.opt.get("remap", 1) == 1:
                a("s_and_b32 s3, s2, 7"); a("s_cmp_ge_u32 s3, 4"); a("s_cselect_b32 s60, 3, 0"); a("s_xor_b32 s60, s3, s60")
                a("s_lshl_b32 s60, s60, 3"); a("s_lshr_b32 s2, s2, 3"); a("s_or_b32 s2, s2, s60")
            self.front()
            self.role_m()
        self.attention(mid)
        if self.opt.get("f3"): self.role_f3()
        elif self.opt.get("f2"): self.role_f2()
        else: self.role_f()
        if self.opt.get("mw"): self.role_mw()
        L = hz.fix(a.l)
        if self.opt.get("touch", 1) and self.opt.get("pg", 1): L = self.breaks(L)
        L2 = []
        for ln in L:
            if ln.strip().startswith("; TOUCH"):
                hs = self.holes[ln.split()[-1]]; assert len(hs) <= 16
                for k, h in enumerate(hs): L2 += [f"    s_cmp_eq_u32 s{S_WAVE}, {15-k}", f"    s_cbranch_scc1 {h}"]
            elif ln.strip().startswith("; GRP"): pass
            else: L2.append(ln)
        body = "\n".join(L2) + "\n"
        return wrap([(NAME + "_kernel", body, 128, 102, 128)], [(NAME + "_kernel", 256, 1024, LDS)])


if __name__ == "__main__":
    import json
    variants = json.loads(sys.argv[1]) if len(sys.argv) > 1 else {"g": {}}
    for nm, o in variants.items():
        thr = o.get("thr", 2)
        open(nm + "_st.s", "w").write(G(stamps=True, thr=thr, opt=o).build())
        open(nm + ".s", "w").write(G(stamps=False, thr=thr, opt=o).build())
```

```python
import sys
from asmlib import *
from mathlib import *
import hz

WS_CR = 0x64000
WS_TK = 0x5800
WS_VOTE, WS_RC, WS_ON = 0x5000, 0x6c000, 0x70000
WS_MOD, WS_Q, WS_ML, WS_O, WS_A, WS_D, WS_SIZE = 0x1000, 0x8000, 0x10000, 0x20000, 0x40000, 0x90000, 0x100000
WS_C2 = 0xe0000
SPIN = 30000
NW, NM, NF, NWO = 20, 37, 27, 80
PST = 576
L_CNT = 260
L_RK = 264
L_COEF, L_NEAR, L_TK = 512, 640, 656
L_Q, L_FLAG, L_MAX, L_SUM, L_ST, L_ACT = 0, 256, 320, 384, 512, 768
L_ACC0, L_ACC1, L_ACC2 = 1024, 1024 + 16 * PST, 1024 + 32 * PST
LDS = 1024 + 48 * PST
S_X, S_K, S_V, S_WQ, S_WO, S_WG, S_WU, S_WD, S_C, S_WM, S_OUT, S_WS = 4, 6, 8, 10, 12, 16, 18, 20, 22, 24, 26, 28
S_WAVE, S_T, S_CNT, S_M10 = 30, 31, 34, 35
R_WS, R_A, R_B, R_C, R_D, R_E = 36, 40, 44, 48, 52, 56
S_TMP = 60
S_ST = 80
V_HM, V_L, V_G, V_N, V_M, V_T16, V_T10 = 0, 1, 2, 3, 4, 8, 9
MFMA = "v_mfma_f32_16x16x32_bf16"


class G:
    def __init__(self, stamps=False, thr=2, pat="contig", opt=None):
        self.a = A(); self.stamps = stamps; self.thr = thr; self.pat = pat; self.opt = opt or {}; self.holes = {}

    def stamp(self, i, f=False):
        if self.opt.get("s0") and not f and i in (1, 2, 5, 6, 7): return
        if self.opt.get("xp") and not f and i in (5, 6): return
        if self.stamps: self.a(f"s_memrealtime s[{S_ST+2*i}:{S_ST+2*i+1}]")

    DBG = dict(W={0: 0, 1: 1, 3: 2, 5: 3, 7: 4, 8: 5}, M={0: 0, 1: 6, 2: 7, 3: 8}, F={0: 0, 3: 9, 4: 10, 6: 11}, A={0: 0, 1: 12, 2: 13, 4: 14})
    def flush_stamps(self, n, first=0, role=None):
        if not self.stamps: return
        a = self.a
        if self.opt.get("dbg"):
            a("s_load_dwordx2 s[60:61], s[0:1], 96")
            a("s_waitcnt lgkmcnt(0)")
            a("v_mov_b32 v10, 0")
            self.setexec(1, 0)
            for j in range(first, n):
                if j not in self.DBG[role]: continue
                a(f"v_mov_b32 v12, s{S_ST+2*j}")
                if j == 0:
                    a(f"global_atomic_umax v10, v12, s[60:61] offset:60")
                    a("v_not_b32 v12, v12")
                a(f"global_atomic_umax v10, v12, s[60:61] offset:{4*self.DBG[role][j]}")
            return
        a("s_waitcnt lgkmcnt(0)")
        a(f"s_lshl_b32 s60, s2, 7"); a(f"s_add_u32 s60, s{S_WS}, s60"); a(f"s_addc_u32 s61, s{S_WS+1}, 0")
        a("s_add_u32 s60, s60, 0x10000000"); a("s_addc_u32 s61, s61, 0")
        a("v_mov_b32 v10, 0")
        for j in range(first, n):
            a(f"v_mov_b32 v12, s{S_ST+2*j}"); a(f"v_mov_b32 v13, s{S_ST+2*j+1}")
            a(f"global_store_dwordx2 v10, v[12:13], s[60:61] offset:{8*j}")

    def pw(self, js):
        if not (self.stamps and self.opt.get("pw")): return
        a = self.a
        a("s_waitcnt lgkmcnt(0)")
        a(f"s_lshl_b32 s60, s2, 9"); a(f"s_lshl_b32 s61, s{S_WAVE}, 5"); a("s_add_u32 s60, s60, s61"); a(f"s_add_u32 s60, s{S_WS}, s60"); a(f"s_addc_u32 s61, s{S_WS+1}, 0")
        a("s_add_u32 s60, s60, 0x10400000"); a("s_addc_u32 s61, s61, 0")
        a("v_mov_b32 v10, 0")
        for k, j in enumerate(js):
            a(f"v_mov_b32 v12, {j}" if isinstance(j, str) else f"v_mov_b32 v12, s{S_ST+2*j}" if j >= 0 else f"v_mov_b32 v12, s{S_CNT}")
            a(f"global_store_dword v10, v12, s[60:61] offset:{4*k}")

    def hole(self, grp, skip=False):
        if not self.opt.get("touch", 1): return
        a = self.a
        l = a.label("H" + grp); self.holes.setdefault(grp, []).append(l)
        if skip: a(f"s_branch {l}x")
        a(f"{l}:"); a(f"s_branch L_ret{grp}")
        if skip: a(f"{l}x:")

    def page(self, grp):
        if self.opt.get("pg", 1): self.a(".p2alignl 12, 0xbf810000")
        self.hole(grp)

    def touch(self, grp):
        if self.opt.get("touch", 1): self.a(f"; TOUCH {grp}"); self.a(f"L_ret{grp}:")

    def setexec(self, lo, hi):
        self.a(f"s_mov_b32 exec_lo, {lo:#x}"); self.a(f"s_mov_b32 exec_hi, {hi:#x}")

    def allexec(self): self.a("s_mov_b64 exec, -1")

    def masks(self, t0):
        a = self.a
        a(f"v_and_b32 v{t0}, 1, v{V_N}"); a(f"v_lshlrev_b32 v{t0}, 4, v{t0}")
        a(f"v_mov_b32 v{t0+1}, 0xffff"); a(f"v_lshlrev_b32 v{V_HM}, v{t0}, v{t0+1}")
        a(f"v_bfe_u32 v{t0+1}, v{V_N}, 1, 2")
        for k in range(4):
            a(f"v_cmp_eq_u32 vcc, {k}, v{t0+1}"); a(f"v_cndmask_b32 v{V_M+k}, 0, 1.0, vcc")

    def spread(self, B, P):
        assert P % 2 == 0 and B % 2 == 0
        for k in (0, 2):
            self.a(f"v_pk_mul_f32 v[{B+k}:{B+k+1}], v[{P}:{P+1}], v[{V_M+k}:{V_M+k+1}] op_sel:[0,0] op_sel_hi:[0,1]")

    def tags(self):
        a = self.a
        a(f"s_add_u32 s{S_T}, s{S_T}, 1")
        a(f"s_and_b32 s32, s{S_T}, 0xffff"); a(f"s_and_b32 s33, s{S_T}, 0x3ff")
        a(f"v_mov_b32 v{V_T16}, s32"); a(f"v_mov_b32 v{V_T10}, s33")
        a(f"s_mov_b32 s{S_M10}, 0x3ff")

    def poll(self, issue, check, name="P", hole=None):
        a = self.a
        lp, dn = a.label(name), a.label(name + "d")
        a(f"s_mov_b32 s{S_CNT}, 0")
        a(f"{lp}:")
        issue()
        a("s_waitcnt vmcnt(0)")
        check()
        a(f"s_cbranch_vccz {dn}")
        a(f"s_add_u32 s{S_CNT}, s{S_CNT}, 1"); a(f"s_cmp_lt_u32 s{S_CNT}, {SPIN}"); a(f"s_cbranch_scc1 {lp}")
        if hole and self.opt.get("touch", 1): a(f"s_branch {dn}"); self.hole(hole)
        a(f"{dn}:")

    def ppoll(self, loads, regs, ms, t, name="P", hole=None):
        a = self.a
        lp, dn = a.label(name), a.label(name + "d")
        a(f"s_mov_b32 s{S_CNT}, 0")
        for m in ms: a(f"s_mov_b64 s[{m}:{m+1}], -1")
        a(f"{lp}:")
        for ld, m in zip(loads, ms):
            l = a.label("SK")
            a(f"s_cmp_eq_u64 s[{m}:{m+1}], 0"); a(f"s_cbranch_scc1 {l}"); a(ld); a(f"{l}:")
        a("s_waitcnt vmcnt(0)")
        for i, r in enumerate(regs): a(f"v_and_b32 v{t+i}, s{S_M10}, v{r}")
        for i, m in enumerate(ms): a(f"v_cmp_ne_u32 s[{m}:{m+1}], v{t+i}, v{V_T10}")
        if len(ms) == 1: a(f"s_cmp_lg_u64 s[{ms[0]}:{ms[0]+1}], 0")
        else:
            a(f"s_or_b64 vcc, s[{ms[0]}:{ms[0]+1}], s[{ms[1]}:{ms[1]+1}]")
            for m in ms[2:]: a(f"s_or_b64 vcc, vcc, s[{m}:{m+1}]")
        a(f"s_cbranch_scc0 {dn}")
        a(f"s_add_u32 s{S_CNT}, s{S_CNT}, 1"); a(f"s_cmp_lt_u32 s{S_CNT}, {SPIN}"); a(f"s_cbranch_scc1 {lp}")
        if hole and self.opt.get("touch", 1): a(f"s_branch {dn}"); self.hole(hole)
        a(f"{dn}:")
        for r in regs: a(f"v_xor_b32 v{r}, v{r}, v{V_T10}")

    def voteld(self, v, t):
        self.a(f"buffer_load_dword v{v}, v{t}, s[{R_WS}:{R_WS+3}], s75 offen sc1")

    def side(self, v, d):
        a = self.a
        sd = self.opt.get("side", 2)
        if sd == 2:
            a(f"s_lshl_b32 s76, s{S_T}, 2"); a("s_or_b32 s77, s76, 1"); a("s_or_b32 s76, s76, 2")
            a(f"v_cmp_eq_u32 vcc, s77, v{v}"); a("s_bcnt1_i32_b64 s77, vcc")
            a(f"v_cmp_eq_u32 vcc, s76, v{v}"); a("s_bcnt1_i32_b64 s76, vcc")
            a("s_cmp_gt_u32 s76, s77"); a("s_cselect_b32 s77, 1, 0")
        else: a(f"s_mov_b32 s77, {sd & 1}")
        a("s_getreg_b32 s76, hwreg(HW_REG_XCC_ID, 2, 1)"); a("s_xor_b32 s76, s76, s77")
        if sd == 3: a("s_mov_b32 s76, 0")
        a(f"s_lshl_b32 s{d}, s76, 13")

    def races(self, t):
        a = self.a
        if self.opt.get("rv"): a("s_mov_b32 s60, s69")
        else: a(f"s_sub_u32 s60, {'s3' if self.opt.get('fp', 0) & 2 else 's2'}, {13 if self.opt.get('pq') else 40}")
        a("s_lshl_b32 s61, s60, 8"); a(f"s_add_u32 s61, s61, {WS_RC}")
        a("s_add_u32 s62, s61, 0x2000"); a("s_add_u32 s63, s61, 0x2080"); a("s_add_u32 s64, s61, 0x80")
        for k in range(2):
            a(f"s_load_dword s65, s[{S_WS}:{S_WS+1}], s{61+2*k}"); a(f"s_load_dword s66, s[{S_WS}:{S_WS+1}], s{62+2*k}")
            a("s_waitcnt lgkmcnt(1)")
            a(f"s_getreg_b32 s{67+k}, hwreg(HW_REG_IB_STS, 8, 1)")
            a("s_waitcnt lgkmcnt(0)")
        a("s_getreg_b32 s65, hwreg(HW_REG_XCC_ID, 2, 1)"); a("s_xor_b32 s66, s65, 1")
        a("s_lshl_b32 s67, s67, s65"); a("s_lshl_b32 s68, s68, s66"); a("s_or_b32 s67, s67, s68")
        a(f"s_lshl_b32 s68, s{S_T}, 2"); a("s_or_b32 s67, s67, s68")
        a("s_lshl_b32 s60, s60, 2"); a(f"s_add_u32 s60, s60, {WS_VOTE}")
        a(f"v_mov_b32 v{t}, s67"); a(f"v_mov_b32 v{t+1}, 0")
        self.setexec(1, 0)
        a(f"buffer_store_dword v{t}, v{t+1}, s[{R_WS}:{R_WS+3}], s60 offen sc1")
        self.allexec()

    def untag(self, regs, tag, t, mask):
        a = self.a
        for r in regs: a(f"v_xor_b32 v{r}, v{r}, v{tag}")
        rs = list(regs)
        if len(rs) == 1: src = rs[0]
        else:
            if len(rs) == 2: a(f"v_or_b32 v{t}, v{rs[0]}, v{rs[1]}"); rest = []
            else: a(f"v_or3_b32 v{t}, v{rs[0]}, v{rs[1]}, v{rs[2]}"); rest = rs[3:]
            while rest:
                if len(rest) == 1: a(f"v_or_b32 v{t}, v{t}, v{rest[0]}"); rest = []
                else: a(f"v_or3_b32 v{t}, v{t}, v{rest[0]}, v{rest[1]}"); rest = rest[2:]
            src = t
        if mask is not None: a(f"v_and_b32 v{t}, {mask:#x}, v{src}"); src = t
        a(f"v_cmp_ne_u32 vcc, 0, v{src}")

    def bprep(self, X, P, B, t):
        a = self.a
        a(f"v_and_b32_dpp v{P}, v{X}, v{V_HM} row_newbcast:{t} row_mask:0xf bank_mask:0x3")
        a(f"v_and_b32_dpp v{P}, v{X}, v{V_HM} row_newbcast:{8+t} row_mask:0xf bank_mask:0xc")
        self.spread(B, P)

    def gemv(self, X, P, B, jobs, n, wait=None, pre=None):
        self.bprep(X, P, B, 0)
        for t in range(n):
            if t + 1 < n: self.bprep(X, P + 2 * ((t + 1) & 1), B + 4 * ((t + 1) & 1), t + 1)
            if wait: self.a(f"s_waitcnt vmcnt({wait(t)})")
            if pre: pre(t)
            for D, W in jobs: self.mfma(D, W[t] if isinstance(W, list) else W + 4 * t, B + 4 * (t & 1), t == 0)

    def mfma(self, D, Areg, B, first):
        self.a(f"{MFMA} v[{D}:{D+3}], v[{Areg}:{Areg+3}], v[{B}:{B+3}], " + ("0" if first else f"v[{D}:{D+3}]"))

    def fold_wide(self, D1, D2, Y):
        a = self.a
        for y in range(2):
            a(f"v_add_f32_dpp v{Y+y}, v{D2+2*y}, v{D1+2*y} row_ror:8 row_mask:0xf bank_mask:0x3")
            a(f"v_add_f32_dpp v{Y+y}, v{D1+2*y+1}, v{D2+2*y+1} row_ror:8 row_mask:0xf bank_mask:0xc")

    def fold_col(self, D1, D2, Y):
        a = self.a
        for D in (D1, D2):
            if D is None: continue
            for y in range(2): a(f"v_permlane32_swap_b32 v{D+2*y}, v{D+2*y+1}")
        for y in range(2):
            a(f"v_add_f32_dpp v{Y+y}, v{D1+2*y+1}, v{D1+2*y} row_ror:8 row_mask:0xf bank_mask:0x3")
            if D2 is not None:
                a(f"v_add_f32_dpp v{Y+y}, v{D2+2*y}, v{D2+2*y+1} row_ror:8 row_mask:0xf bank_mask:0xc")

    def colpos(self, d, col, t):
        a = self.a
        a(f"v_bfe_u32 v{d}, v{col}, 4, 1"); a(f"v_lshlrev_b32 v{d}, 6, v{d}")
        a(f"v_bfe_u32 v{t}, v{col}, 5, 1"); a(f"v_lshl_add_u32 v{d}, v{t}, 4, v{d}")
        a(f"v_bfe_u32 v{t}, v{col}, 3, 1"); a(f"v_lshl_add_u32 v{d}, v{t}, 5, v{d}")
        a(f"v_and_b32 v{t}, 7, v{col}"); a(f"v_add_u32 v{d}, v{d}, v{t}")
        a(f"v_lshlrev_b32 v{d}, 2, v{d}")

    def wraddr(self, d, stride=PST):
        a = self.a
        a(f"s_mul_i32 s79, s{S_WAVE}, {stride}"); a(f"v_lshlrev_b32 v{d}, 2, v{V_L}"); a(f"v_add_u32 v{d}, s79, v{d}")

    def putpart(self, addr, Y, acc):
        self.a(f"ds_write_b32 v{addr}, v{Y} offset:{acc}"); self.a(f"ds_write_b32 v{addr}, v{Y+1} offset:{acc+256}")

    def widerd(self, d, t):
        a = self.a
        a(f"v_and_b32 v{t}, 3, v{V_L}"); a(f"v_mul_u32_u24 v{d}, {PST}, v{t}")
        a(f"v_bfe_u32 v{t}, v{V_L}, 4, 1"); a(f"v_lshl_add_u32 v{d}, v{t}, 8, v{d}")
        a(f"v_bfe_u32 v{t}, v{V_L}, 5, 1"); a(f"v_lshl_add_u32 v{d}, v{t}, 6, v{d}")
        a(f"v_bfe_u32 v{t}, v{V_L}, 2, 2"); a(f"v_lshl_add_u32 v{d}, v{t}, 4, v{d}")
        a(f"s_and_b32 s79, s{S_WAVE}, 1"); a("s_lshl_b32 s79, s79, 7"); a(f"v_add_u32 v{d}, s79, v{d}")

    def colrd(self, d, t):
        a = self.a
        a(f"v_and_b32 v{t+1}, 60, v{V_L}")
        self.colpos(d, t + 1, t)
        a(f"v_and_b32 v{t}, 3, v{V_L}"); a(f"v_mul_u32_u24 v{t}, {PST}, v{t}"); a(f"v_add_u32 v{d}, v{d}, v{t}")

    def publish(self, acc, vrd, voff, soff, t, bf, near=None, dual=False, half=False, one=False, gate=None, holes=0):
        a = self.a
        for j in range(2 if half else 4): a(f"ds_read_b128 v[{t+4*j}:{t+4*j+3}], v{vrd} offset:{acc+4*j*PST}")
        if holes & 2: self.hole("F", True)
        if bf == 3: a("s_mov_b32 vcc_lo, 0xaaaaaaaa"); a("s_mov_b32 vcc_hi, 0xaaaaaaaa"); a("s_mov_b32 s78, 0xcccccccc"); a("s_mov_b32 s79, 0xcccccccc")
        a(f"s_waitcnt lgkmcnt({0 if half else 2})")
        for i in range(4): a(f"v_add_f32 v{t+i}, v{t+i}, v{t+4+i}")
        if not half:
            a("s_waitcnt lgkmcnt(0)")
            for i in range(4): a(f"v_add_f32 v{t+8+i}, v{t+8+i}, v{t+12+i}")
            for i in range(4): a(f"v_add_f32 v{t+i}, v{t+i}, v{t+8+i}")
        for m in ("quad_perm:[1,0,3,2]", "quad_perm:[2,3,0,1]"):
            for i in range(4): a(f"v_add_f32_dpp v{t+i}, v{t+i}, v{t+i} {m} row_mask:0xf bank_mask:0xf")
            if holes & 4 and m[11] == "1": self.hole("F", True)
        if bf == 3:
            a(f"v_cndmask_b32 v{t}, v{t}, v{t+1}, vcc"); a(f"v_cndmask_b32 v{t+2}, v{t+2}, v{t+3}, vcc")
            a(f"v_cndmask_b32 v{t}, v{t}, v{t+2}, s[78:79]")
            a(f"v_add_u32 v{t}, 0x200, v{t}"); a(f"v_bfi_b32 v{t}, s{S_M10}, v{V_T10}, v{t}")
            a(f"buffer_store_dword v{t}, v{voff}, s[{R_WS}:{R_WS+3}], s{soff} offen sc1")
            return
        if bf == 2:
            a("s_mov_b32 vcc_lo, 0xaaaaaaaa"); a("s_mov_b32 vcc_hi, 0xaaaaaaaa")
            a(f"v_cndmask_b32 v{t}, v{t}, v{t+2}, vcc"); a(f"v_cndmask_b32 v{t+2}, v{t+1}, v{t+3}, vcc")
            a(f"v_mov_b32 v{t+1}, s{S_T}"); a(f"v_mov_b32 v{t+3}, s{S_T}")
            hr = self.opt.get("hr", 1)
            if hr == 1: self.setexec(0x33333333, 0x33333333)
            a(f"buffer_store_dwordx4 v[{t}:{t+3}], v{voff}, s[{R_WS}:{R_WS+3}], s{soff} offen sc1")
            if hr == 4:
                a(f"s_add_u32 s{soff}, s{soff}, {2*self.opt.get('hs', 0x6100)}")
                a(f"buffer_store_dwordx4 v[{t}:{t+3}], v{voff}, s[{R_WS}:{R_WS+3}], s{soff} offen sc1")
            if hr == 1: self.allexec()
            return
        if bf:
            for i in range(4): a(f"v_cvt_pk_bf16_f32 v{t+i}, v{t+i}, v{t+i}")
            a("s_mov_b32 s79, 0xffff")
            for i in range(4): a(f"v_bfi_b32 v{t+i}, s79, v{V_T16}, v{t+i}")
        else:
            for i in range(1 if one else 4): a(f"v_bfi_b32 v{t+i}, s{S_M10}, v{V_T10}, v{t+i}")
        m = {0: 0x11111111, 1: 0x33333333, 2: 0xffffffff}[int(dual)]
        if gate: a(f"s_cmp_eq_u32 {gate[0]}, 0"); a(f"s_cbranch_scc1 {gate[1]}")
        self.setexec(m, m)
        if near is not None and self.opt.get("nn") != 1: a(f"buffer_store_dwordx4 v[{t}:{t+3}], v{voff}, s[{R_WS}:{R_WS+3}], s{near} offen" + self.opt.get("ns", ""))
        a(f"buffer_store_dwordx4 v[{t}:{t+3}], v{voff}, s[{R_WS}:{R_WS+3}], s{soff} offen sc1")
        self.allexec()

    def unitoff(self, d):
        self.a(f"v_and_b32 v{d}, 60, v{V_L}"); self.a(f"v_lshlrev_b32 v{d}, 2, v{d}")

    def rowidx(self, d, t, steps):
        a = self.a
        a(f"v_lshrrev_b32 v{t}, 3, v{V_L}"); a(f"v_mul_u32_u24 v{d}, {steps}, v{t}")
        a(f"v_and_b32 v{t}, 7, v{V_L}"); a(f"v_add_u32 v{d}, v{d}, v{t}")

    def colvoff(self, d, stride, t):
        a = self.a
        a(f"v_lshrrev_b32 v{t}, 3, v{V_L}"); a(f"v_mul_u32_u24 v{d}, {stride}, v{t}")
        a(f"v_and_b32 v{t}, 7, v{V_L}"); a(f"v_lshl_add_u32 v{d}, v{t}, 4, v{d}")

    def colloads(self, reg, voff, srd, sbase, stride, n=5, thr=0, lo=0):
        a = self.a
        for t in range(lo, n):
            if thr: a(f"s_waitcnt vmcnt({thr-1})")
            if t * stride < 4096: so = f"s{sbase} offen offset:{t*stride}"
            else: a(f"s_add_u32 s61, s{sbase}, {t*stride}"); so = "s61 offen"
            a(f"buffer_load_dwordx4 v[{reg+4*t}:{reg+4*t+3}], v{voff}, s[{srd}:{srd+3}], {so} nt")

    def silu(self, x, t):
        a = self.a
        a(f"v_mul_f32 v{t}, {fh(-LOG2E)}, v{x}"); a(f"v_exp_f32 v{t}, v{t}")
        a(f"v_add_f32 v{t}, 1.0, v{t}")
        a(f"v_min_f32 v{t}, {fh(3.0e38)}, v{t}")
        a(f"v_rcp_f32 v{t+1}, v{t}")
        a(f"v_mul_f32 v{t+2}, v{x}, v{t+1}")
        a(f"v_fma_f32 v{t+3}, -v{t+2}, v{t}, v{x}")
        a(f"v_fma_f32 v{x}, v{t+3}, v{t+1}, v{t+2}")
        a(f"v_cvt_pk_bf16_f32 v{x}, v{x}, v{x}")

    def xrow_allred(self, v, t, op):
        a = self.a
        a(f"v_mov_b32 v{t}, v{v}"); a(f"v_permlane32_swap_b32 v{t}, v{v}"); a(f"{op} v{v}, v{v}, v{t}")
        a(f"v_mov_b32 v{t}, v{v}"); a(f"v_permlane16_swap_b32 v{t}, v{v}"); a(f"{op} v{v}, v{v}, v{t}")

    def x2calc(self, vcol4, ga, xv, d, t):
        a = self.a
        if self.opt.get("w2"):
            for i in range(0, 8, 2): a(f"v_pk_add_f32 v[{t+i}:{t+i+1}], v[{t+i}:{t+i+1}], v[{t+8+i}:{t+9+i}]")
        a(f"v_pk_add_f32 v[{t}:{t+1}], v[{t}:{t+1}], v[{t+2}:{t+3}]"); a(f"v_pk_add_f32 v[{t+4}:{t+5}], v[{t+4}:{t+5}], v[{t+6}:{t+7}]")
        a(f"v_pk_add_f32 v[{t}:{t+1}], v[{t}:{t+1}], v[{t+4}:{t+5}]"); a(f"v_add_f32 v{d}, v{t}, v{t+1}")
        bfr(a, d, d)
        a(f"v_mul_f32 v{d}, v{ga}, v{d}"); bfr(a, d, d)
        a(f"v_add_f32 v{d}, v{xv}, v{d}"); bfr(a, d, d)

    def attention(self, mid):
        a = self.a
        n1, n2 = self.opt.get("n1", 4), self.opt.get("n2", 99)
        base = self.thr
        TH = [1 if j < n1 else (base if j < n2 else base + 1) for j in range(22)]
        KR, VR, D1, D2, Q, S = 32, 76, 120, 124, 10, 14
        VO, PQ, T = 20, 22, 24
        dy = self.opt.get("dy", 0); ty = self.opt.get("ty", 21); NB = self.opt.get("nblk", 20)
        fp = self.opt.get("fp", 0); step = 1024; pt = None
        if fp & 1:
            rw = self.opt.get("rw", 0); dz = self.opt.get("dz"); zt = dz.get("st", 0) if dz else 0; za = dz.get("a", 0) if dz else 0; NS = 10 if za else 11; PER = (15 * NS + zt) * 1024 if dz else 174764
            a(f"s_load_dwordx2 s[{R_A}:{R_A+1}], s[0:1], 8"); a(f"s_load_dwordx2 s[{R_WS}:{R_WS+1}], s[0:1], 104")
            if self.opt.get("aq"): a(f"s_load_dwordx2 s[{R_E}:{R_E+1}], s[0:1], 24")
            a("v_lshrrev_b32 v2, 6, v0")
            a("s_lshr_b32 s101, s2, 5"); a("s_and_b32 s100, s2, 31")
            if self.opt.get("hx"): a("s_bitcmp1_b32 s2, 5"); a(f"s_cselect_b32 s72, {self.opt['hx']}, 0"); a("s_xor_b32 s100, s100, s72")
            if rw in (1, 2): a(f"v_readfirstlane_b32 s{S_WAVE}, v2")
            if rw == 4: a("v_add_u32 v4, s100, v2"); a(f"v_mul_u32_u24 v5, {103 if za else 94}, v4")
            a(f"s_mul_i32 s72, s101, {PER}"); a("s_lshl_b32 s74, s100, 22")
            a(f"v_mul_u32_u24 v3, {(NS + 1) * 1024}, v2")
            if za: a(f"s_add_u32 s{R_A+2}, s74, {16384 * 256}")
            a("s_add_u32 s72, s72, s74")
            if rw == 4: a("v_lshrrev_b32 v5, 10, v5"); a(f"v_mad_i32_i24 v4, v5, {-NS}, v4")
            if zt: a("v_min_u32 v4, v4, v3")
            c0 = 12288 * 256 + (0 if dz else 680) - 2 * PER
            a(f"s_add_u32 s74, s72, {c0 + 15 * NS * 1024}")
            if not dz: a("s_and_b32 s74, s74, 0xfffffc00")
            if not za: a(f"s_add_u32 s{R_A+2}, s72, {c0 + PER}")
            a(f"v_lshl_add_u32 v{VO}, v0, 4, s74")
            if not dz: a(f"s_and_b32 s{R_A+2}, s{R_A+2}, 0xfffffc00")
            if rw == 0: a("s_mul_i32 s60, s100, 352"); a("s_and_b32 s60, s60, 0x3c00")
            elif rw == 1: a(f"s_add_u32 s60, s100, s{S_WAVE}"); a("s_and_b32 s60, s60, 7"); a("s_lshl_b32 s60, s60, 10")
            elif rw == 2:
                a(f"s_add_u32 s60, s100, s{S_WAVE}")
                for k in (44, 22, 11): a(f"s_sub_u32 s61, s60, {k}"); a("s_min_u32 s60, s60, s61")
                a("s_lshl_b32 s60, s60, 10")
            elif rw == 3: a("s_and_b32 s60, s100, 7"); a("s_lshl_b32 s60, s60, 10")
            a(f"v_sub_u32 v{VO}, v{VO}, v3")
            a(f"s_mov_b32 s{R_A+3}, 0x20000")
            if rw == 4: a(f"v_lshl_add_u32 v5, v4, 10, v{VO}")
            a("s_cmp_ge_u32 s2, 256"); a("s_cbranch_scc1 L_quit")
            a("s_waitcnt lgkmcnt(0)")
        else:
            if fp: a("s_cmp_ge_u32 s2, 256"); a("s_cbranch_scc1 L_end"); self.entry()
            if dy: a("s_load_dwordx2 s[52:53], s[0:1], 96")
            a("s_sub_u32 s3, s2, 64")
            a("s_and_b32 s100, s3, 31"); a("s_lshr_b32 s101, s3, 5")
            cnt = self.opt.get("cnt", [171, 171, 171, 171, 170, 170]); assert self.opt.get("xs") or (sum(cnt) == 1024 and max(cnt) <= 176 and min(cnt) > 165)
            lc = sum((c - 165) << (4 * i) for i, c in enumerate(cnt)); ls = sum((sum(cnt[:i]) - 165 * i) << (5 * i) for i in range(6))
            assert all(sum(cnt[:i]) - 165 * i < 32 for i in range(6))
            a("s_mul_i32 s72, s101, 5"); a(f"s_lshr_b32 s72, {ls:#x}, s72"); a("s_and_b32 s72, s72, 31"); a("s_mul_i32 s73, s101, 165"); a("s_add_u32 s72, s72, s73")
            a("s_lshl_b32 s73, s101, 2"); a(f"s_lshr_b32 s73, {lc:#x}, s73"); a("s_and_b32 s73, s73, 15"); a("s_add_u32 s73, s73, 165"); a("s_lshl_b32 s73, s73, 10")
            a("s_lshl_b32 s74, s100, 22"); a("s_lshl_b32 s72, s72, 10"); a("s_add_u32 s74, s74, s72"); a("s_add_u32 s74, s74, %d" % (12288 * 256))
            step = 1024 if self.pat == "contig" else 16384
            pt = self.opt.get("pt")
            a(f"s_sub_u32 s75, 15, s{S_WAVE}")
            if pt:
                sh = pt[0]; ch = 1 << sh; lim = 11 // ch * ch; c2 = 11 - lim
                a(f"s_mul_i32 s60, s100, {pt[1]}"); a(f"s_mul_i32 s61, s{S_WAVE}, {pt[2]}"); a("s_add_u32 s60, s60, s61")
                a(f"s_mul_i32 s61, s101, {pt[3]}"); a("s_add_u32 s60, s60, s61")
                a(f"v_add_u32 v{T}, s60, v{V_L}")
                a(f"v_mul_u32_u24 v{T+1}, 5958, v{T}"); a(f"v_lshrrev_b32 v{T+1}, 16, v{T+1}"); a(f"v_mul_u32_u24 v{T+1}, 11, v{T+1}"); a(f"v_sub_u32 v{T}, v{T}, v{T+1}")
                a(f"s_lshl_b32 s60, s75, {sh}"); a(f"s_mul_i32 s61, s75, {c2}"); a(f"s_add_u32 s61, s61, {15*lim-lim}")
                a(f"s_cmp_eq_u32 s{S_WAVE}, 0"); a(f"s_cselect_b32 s61, 165, s61"); a(f"s_cselect_b32 s62, 0, {lim}")
                a(f"v_lshrrev_b32 v{T+1}, {sh}, v{T}"); a(f"v_mul_u32_u24 v{T+1}, {15*ch}, v{T+1}"); a(f"v_and_b32 v{T+2}, {ch-1}, v{T}")
                a(f"v_add3_u32 v{T+1}, v{T+1}, v{T+2}, s60"); a(f"v_add_u32 v{T+2}, s61, v{T}")
                a(f"v_cmp_gt_u32 vcc, s62, v{T}"); a(f"v_cndmask_b32 v{T+1}, v{T+2}, v{T+1}, vcc"); a(f"v_lshlrev_b32 v{PQ}, 10, v{T+1}")
                a(f"v_lshlrev_b32 v{VO}, 4, v{V_L}"); a("s_mov_b32 s75, s73")
                a(f"v_readlane_b32 s60, v{PQ}, 0")
            else:
                a(f"s_mul_i32 s75, s75, {11*1024 if self.pat == 'contig' else 1024}")
                a(f"v_lshlrev_b32 v{VO}, 4, v{V_L}"); a(f"v_add_u32 v{VO}, s75, v{VO}")
                a("s_sub_u32 s75, s73, s75")
                a(f"s_add_u32 s60, s100, s{S_WAVE}")
                for k in (44, 22, 11): a(f"s_sub_u32 s61, s60, {k}"); a("s_min_u32 s60, s60, s61")
                a(f"s_mul_i32 s60, s60, {step}")
            a("s_waitcnt lgkmcnt(0)")
            a(f"s_load_dword s{S_T}, s[{S_WS}:{S_WS+1}], 0")
            a(f"s_add_u32 s{S_K}, s{S_K}, s74"); a(f"s_addc_u32 s{S_K+1}, s{S_K+1}, 0")
            srd(a, R_A, S_K, "s73")
        bj = self.opt.get("bj", 0); bt = {int(k): v for k, v in self.opt.get("bt", {}).items()}
        bo = self.opt.get("bo", 0); assert all(j < 12 or j >= 12 + bo for j in bt)
        def thr(j, n, rd):
            if j in bt:
                if rd: a(f"ds_read_b32 v{T}, v21 offset:{L_RK}")
                a(f"s_waitcnt vmcnt({n-1+bo}) lgkmcnt(0)")
                if rd: a(f"v_readfirstlane_b32 s54, v{T}")
                l = a.label("BT")
                if self.opt.get("bx"): a(f"s_bitcmp0_b32 {bt[j]}, s54")
                else: a(f"s_cmp_lt_u32 s54, {bt[j]}")
                a(f"s_cbranch_scc0 {l}"); a(f"s_waitcnt vmcnt({n-1 if bo else 0})"); a(f"{l}:")
            else: a(f"s_waitcnt vmcnt({n-1})")
        kp = za or 10
        ORD = list(range(10)) + list(range(11, 11 + kp - 10)) + [10] + list(range(11 + kp - 10, 22))
        def ld(j, mark=True):
            pc = ORD[j] if mark else j
            i = pc % 11; r = (KR if pc < 11 else VR) + 4 * i; sr = R_A if pc < 11 else R_B
            if za and mark and j == kp:
                lp, dn = a.label("YL"), a.label("YD")
                a(f"s_mov_b32 s{S_CNT}, 0")
                a(f"{lp}:")
                a(f"ds_read_b64 v[{T}:{T+1}], v21 offset:{L_RK+8}"); a("s_waitcnt lgkmcnt(0)")
                a(f"v_readfirstlane_b32 s54, v{T}"); a(f"v_readfirstlane_b32 s55, v{T+1}")
                a("s_cmp_lg_u32 s54, 0"); a(f"s_cbranch_scc1 {dn}")
                a(f"s_add_u32 s{S_CNT}, s{S_CNT}, 1"); a(f"s_cmp_lt_u32 s{S_CNT}, {SPIN*16}"); a(f"s_cbranch_scc1 {lp}")
                a(f"{dn}:")
                a("s_add_u32 s70, s70, s54"); a(f"s_cmp_le_u32 s{S_WAVE}, s55"); a("s_cselect_b32 s70, s70, s75")
            a(f"buffer_load_dwordx4 v[{r}:{r+3}], v{VO}, s[{sr}:{sr+3}], s{60+i} offen nt")
            if bj and mark and (j == bj or (j == bj + 2 and mark != 2)):
                l = a.label("BK")
                a(f"s_cmp_lg_u32 s{S_WAVE}, 1"); a(f"s_cbranch_scc1 {l}")
                if j == bj: a("s_mov_b64 exec, 1"); a(f"global_atomic_inc v{D1}, v{D1+1}, v{D1}, s[52:53] sc0 sc1"); a("s_mov_b64 exec, -1")
                else: a("s_waitcnt vmcnt(2)"); a("s_mov_b64 exec, 1"); a(f"ds_write_b32 v21, v{D1} offset:{L_RK}"); a("s_mov_b64 exec, -1")
                a(f"{l}:")
            if dz and mark and j == dz["j"]:
                a("s_mov_b64 exec, 1"); a(f"ds_add_u32 v21, v{D1} offset:{L_RK}"); a("s_mov_b64 exec, -1")
            if dy and mark and j == ty:
                l = a.label("TK")
                a(f"s_cmp_lg_u32 s{S_WAVE}, 1"); a(f"s_cbranch_scc1 {l}")
                a("s_mov_b64 exec, 1"); a(f"global_atomic_inc v{PQ}, v{PQ+1}, v{PQ}, s[52:53] sc0 sc1"); a("s_mov_b64 exec, -1")
                a(f"{l}:")
        def nxt(i):
            if pt: a(f"v_readlane_b32 s{60+i}, v{PQ}, {i}"); return
            if za and i == 10: a(f"s_mul_i32 s70, s{S_WAVE}, {11*1024}"); return
            a(f"s_add_u32 s{60+i}, s{59+i}, {step}"); a(f"s_sub_u32 s71, s{60+i}, {NS*step}"); a(f"s_min_u32 s{60+i}, s{60+i}, s71")
        n0 = TH[0] if n1 else base
        if fp & 1 and rw == 4:
            a(f"buffer_load_dwordx4 v[{KR}:{KR+3}], v5, s[{R_A}:{R_A+3}], 0 offen nt")
            a("v_readfirstlane_b32 s60, v4"); a("s_lshl_b32 s60, s60, 10")
        else: ld(0)
        e2 = self.opt.get("e2", 1); n0 = max(n0, e2, self.opt.get("e3", 0))
        for i in range(1, e2): nxt(i); ld(i)
        if self.opt.get("s0"): self.stamp(1, True)
        if fp & 1:
            a(f"s_load_dword s{S_T}, s[{R_WS}:{R_WS+1}], 0")
            if rw not in (1, 2): a(f"v_readfirstlane_b32 s{S_WAVE}, v2")
            a(f"s_load_dwordx2 s[{R_B}:{R_B+1}], s[0:1], 16"); a(f"s_load_dwordx2 s[{S_WO}:{S_WO+1}], s[0:1], 32"); a("s_load_dwordx2 s[52:53], s[0:1], 96")
        le = self.opt.get("le", 0)
        if le: assert e2 == 1 and n0 == 1; nxt(1)
        aq = self.opt.get("aq", 0)
        def aqld():
            am = self.opt.get("am", 0xff)
            if am != 0xffffffff: a(f"s_mov_b32 exec_lo, {am:#x}")
            a(f"buffer_load_dwordx4 v[{D1}:{D1+3}], v{D2}, s[{R_E}:{R_E+3}], s54 offen" + self.opt.get("an", " nt"))
            if am != 0xffffffff: a("s_mov_b32 exec_lo, -1")
        if aq:
            assert le
            a("s_lshr_b32 s54, s2, 3"); a(f"s_lshl4_add_u32 s54, s54, s{S_WAVE}"); a("s_sub_u32 s54, s54, 128")
            a("s_mul_i32 s55, s54, 171"); a("s_lshr_b32 s55, s55, 9"); a("s_lshl1_add_u32 s54, s55, s54")
            a("s_and_b32 s55, s2, 7"); a("s_lshl3_add_u32 s54, s54, s55"); a("s_lshl_b32 s54, s54, 10"); a("s_add_u32 s54, s54, 16384")
            a(f"v_and_b32 v{D2}, 63, v0"); a(f"v_lshlrev_b32 v{D2}, 4, v{D2}")
            a(f"s_mov_b32 s{R_E+2}, {640*4096*2}"); a(f"s_mov_b32 s{R_E+3}, 0x20000")
            if aq == 2: aqld()
        self.touch("A")
        if le:
            if self.opt.get("s0"): self.stamp(2, True)
            a(f"s_waitcnt vmcnt({1 if aq == 2 else 0})")
            if self.opt.get("s0"): self.stamp(5, True)
            if aq == 1: aqld()
            ld(1); e2 = n0 = 2
            if aq == 3: aqld()
        a("s_branch L_att")
        mid()
        a("; GRP A")
        self.hole("A")
        a("L_att:")
        for i in range(e2, 11):
            nxt(i)
            if i < n0: ld(i)
        for i in range(self.opt.get("xs", 0)): a(f"s_mov_b32 s{70-i}, 0x40000000")
        if fp & 1:
            a(f"v_and_b32 v{V_L}, 63, v0"); a(f"v_bfe_u32 v{V_G}, v0, 4, 2"); a(f"v_and_b32 v{V_N}, 15, v0")
            a("s_sub_u32 s3, s2, 64"); a("s_sub_u32 s101, s101, 2"); a("s_mov_b32 s75, 0x40000000" if za else f"s_sub_u32 s75, s{R_A+2}, s74")
            a(f"s_mov_b32 s{R_B+2}, s{R_A+2}"); a(f"s_mov_b32 s{R_B+3}, 0x20000"); a(f"s_mov_b32 s{R_WS+2}, {WS_SIZE}"); a(f"s_mov_b32 s{R_WS+3}, 0x20000")
            if self.stamps: a(f"s_mov_b64 s[{S_WS}:{S_WS+1}], s[{R_WS}:{R_WS+1}]")
        else:
            a(f"s_add_u32 s{S_V}, s{S_V}, s74"); a(f"s_addc_u32 s{S_V+1}, s{S_V+1}, 0")
            srd(a, R_B, S_V, "s73"); srd(a, R_WS, S_WS, WS_SIZE)
        a("v_mov_b32 v21, 0")
        a(f"ds_write_b32 v21, v21 offset:{L_FLAG}")
        a(f"ds_write_b32 v21, v21 offset:{L_CNT}")
        dc = self.opt.get("dc", 0)
        if dc: a(f"ds_write_b32 v21, v21 offset:{L_NEAR}")
        if dz: a(f"v_mov_b32 v{D1}, 1"); a(f"ds_write_b32 v21, v21 offset:{L_RK}")
        if za: a(f"ds_write_b32 v21, v21 offset:{L_RK+8}")
        if bj:
            a(f"v_mov_b32 v{D1}, -1"); a(f"ds_write_b32 v21, v{21 if bo else D1} offset:{L_RK}")
            bm = self.opt.get("bm", 0)
            if bm == 0: a("s_and_b32 s71, s101, 1"); a("s_lshl_b32 s71, s71, 7"); a("s_add_u32 s71, s71, 4")
            else: a("s_and_b32 s71, s3, 7"); a("s_lshl_b32 s71, s71, 5"); a("s_add_u32 s71, s71, 4")
            a(f"v_mov_b32 v{D1+1}, s71")
        elif bt:
            a("s_getreg_b32 s54, hwreg(HW_REG_XCC_ID, 0, 4)"); a(f"v_mov_b32 v{D1}, s54"); a(f"ds_write_b32 v21, v{D1} offset:{L_RK}")
        if dy: a(f"v_mov_b32 v{PQ}, {63 if self.opt.get('tt') == 1 else 23}"); a("s_and_b32 s71, s3, 7"); a("s_lshl_b32 s71, s71, 5"); a(f"v_mov_b32 v{PQ+1}, s71")
        self.masks(T)
        for j in range(self.opt.get("lb", 0)):
            if self.opt.get("s0") and n0 == 1: self.stamp(2, True)
            thr(n0, TH[n0], True)
            if self.opt.get("s0") and n0 in (1, 2, 3): self.stamp(4 + n0, True)
            ld(n0); n0 += 1
        a("s_waitcnt lgkmcnt(0)")
        self.tags()
        a("s_barrier")
        jp = n0 if dz else max(n0, self.opt.get("jp", n1))
        def flagchk(target):
            a(f"ds_read_b32 v{T}, v21 offset:{L_FLAG}"); a("s_waitcnt lgkmcnt(0)")
            a(f"v_cmp_ne_u32 vcc, 0, v{T}"); a(f"s_cbranch_vccnz {target}")
        chk_j = [j for j in range(22) if j - TH[j] >= kp]
        sq = self.opt.get("sq"); sql = []
        if sq:
            a(f"s_mul_i32 s54, s{S_WAVE}, 11264"); a("s_sub_u32 s54, s74, s54")
            sql = [(p, k) for p in sq["p"] for k in range(0, 1024, sq.get("st", 128))]
        def sqld(j):
            if not sq or j < sq["j0"]: return
            for _ in range(sq["n"]):
                if not sql: return
                p, k = sql.pop(0); sr = R_A if p < 11 else R_B
                if k == 0: a(f"s_add_u32 s55, s54, s{60+p%11}")
                if sq.get("w", 1) == 1: a(f"s_buffer_load_dword s56, s[{sr}:{sr+3}], s55 offset:{k}")
                else: a(f"s_buffer_load_dwordx2 s[56:57], s[{sr}:{sr+3}], s55 offset:{k+60}")
        for j in range(n0, 22):
            if j == jp:
                a(f"s_cmp_eq_u32 s{S_WAVE}, 0"); a("s_cbranch_scc1 L_att_w0")
            a(f"L_att_a{j}:")
            if self.opt.get("s0") and j == 1: self.stamp(2, True)
            thr(j, TH[j], True)
            if self.opt.get("s0") and j in (1, 2, 3): self.stamp(4 + j, True)
            ld(j)
            sqld(j)
            if j in chk_j and j < 21: flagchk(f"L_att_b{j}")
        a("L_att_a22:")
        a(f"s_mov_b32 s76, 21")
        a(f"s_mov_b32 s{S_CNT}, 0")
        a("L_att_spin:")
        flagchk("L_att_qk")
        a(f"s_add_u32 s{S_CNT}, s{S_CNT}, 1"); a(f"s_cmp_lt_u32 s{S_CNT}, {SPIN*16}"); a("s_cbranch_scc1 L_att_spin")
        a("s_branch L_att_qk")
        self.hole("A")
        bq = self.opt.get("bq", 2)
        for j in chk_j[:-1]:
            a(f"L_att_b{j}:")
            for j2 in range(j + 1, min(j + bq, 21) + 1): ld(j2, 2)
            a(f"s_mov_b32 s76, {min(j + bq, 21)}"); a("s_branch L_att_qk")
        a("L_att_w0:")
        if not dz: a("s_setprio 3")
        qh = self.opt.get("qh", 0)
        if qh:
            a(f"v_lshlrev_b32 v{T+2}, 4, v{V_L}"); a("s_lshl_b32 s76, s100, 10"); a(f"s_add_u32 s76, s76, {WS_Q}")
            a(f"v_and_b32 v{T+3}, 31, v{V_L}"); a(f"v_lshrrev_b32 v{T+1}, 5, v{V_L}"); a(f"v_lshl_add_u32 v{T+3}, v{T+3}, 1, v{T+1}")
            a(f"v_lshlrev_b32 v{T+3}, 2, v{T+3}"); a(f"v_mov_b32 v{PQ+1}, 1")
        else:
            a(f"v_lshlrev_b32 v{T+2}, 3, v{V_L}"); a("s_lshl_b32 s76, s100, 9"); a(f"s_add_u32 s76, s76, {WS_Q}")
            a(f"v_lshlrev_b32 v{T+3}, 2, v{V_L}"); a(f"v_mov_b32 v{T+4}, 1"); a("s_mov_b32 s77, 0x07060302")
        def pq():
            if qh: a(f"buffer_load_dwordx4 v[{T+4}:{T+7}], v{T+2}, s[{R_WS}:{R_WS+3}], s76 offen sc1")
            else: a(f"buffer_load_dwordx2 v[{PQ}:{PQ+1}], v{T+2}, s[{R_WS}:{R_WS+3}], s76 offen sc1")
        def chk():
            if qh: self.untag(list(range(T + 4, T + 8)), V_T10, T, 0x3ff)
            else: self.untag([PQ, PQ + 1], V_T16, T, 0xffff)
            if self.opt.get("xq"): a("s_mov_b64 vcc, 0")
        def qput():
            if qh:
                a(f"v_permlane32_swap_b32 v{T+4}, v{T+6}"); a(f"v_permlane32_swap_b32 v{T+5}, v{T+7}")
                a(f"v_add_f32 v{T+4}, v{T+4}, v{T+6}"); a(f"v_add_f32 v{T+5}, v{T+5}, v{T+7}")
                a(f"v_cvt_pk_bf16_f32 v{PQ}, v{T+4}, v{T+5}")
            else: a(f"v_perm_b32 v{PQ}, v{PQ+1}, v{PQ}, s77")
            a(f"ds_write_b32 v{T+3}, v{PQ} offset:{L_Q}"); a(f"ds_write_b32 v21, v{PQ+1 if qh else T+4} offset:{L_FLAG}")
        ps = self.opt.get("ps", 3)
        slots = list(range(jp, 22, ps))
        w0 = self.opt.get("w0", 0)
        if dz:
            cs = dz["c"]; assert not w0 and zt != 1
            if za: assert zt and sum(cs) == 124 - 6 * zt and max(cs) <= 26 - zt and dz["j"] < kp
            else: assert sum(cs) == 34 - 6 * zt and min(cs) + zt >= 1 and max(cs) <= 11 - zt and sum(cs[1:5]) < 32
            for j in list(range(2, zt)) + list(range(11, 11 + zt)): a(f"s_waitcnt vmcnt({dz.get('t', 1) - 1})"); ld(j, False)
            tc = sum(c << (4 * i) for i, c in enumerate(cs)); to = sum(sum(cs[1:i]) << (5 * i) for i in range(1, 6))
            lp, dn = a.label("ZL"), a.label("ZD")
            a(f"s_mov_b32 s{S_CNT}, 0")
            a("s_and_b32 s71, s100, 7"); a("s_lshl_b32 s71, s71, 3"); a("s_lshr_b32 s78, s100, 3"); a("s_add_u32 s71, s71, s78"); a("s_lshl_b32 s71, s71, 2"); a("s_add_u32 s71, s71, 4")
            a(f"v_mov_b32 v{D1+1}, s71"); a(f"v_mov_b32 v{D1}, 5")
            zp = dz.get("p", 0)
            if zp:
                l1, l2 = a.label("ZP"), a.label("ZG")
                a("s_mov_b32 s54, 0")
                a(f"{l1}:")
                pq(); a("s_waitcnt vmcnt(0)"); a(f"ds_read_b32 v{T+1}, v21 offset:{L_RK}"); chk(); a(f"s_cbranch_vccz {l2}")
                a("s_waitcnt lgkmcnt(0)")
                a(f"v_cmp_le_u32 vcc, {dz.get('n', 8)}, v{T+1}"); a(f"s_cbranch_vccnz {dn}")
                a(f"s_add_u32 s{S_CNT}, s{S_CNT}, 1"); a(f"s_cmp_lt_u32 s{S_CNT}, {SPIN}"); a(f"s_cbranch_scc1 {l1}")
                a(f"{l2}:")
                qput(); self.stamp(1); a("s_mov_b32 s54, 1")
            a(f"{lp}:")
            a(f"ds_read_b32 v{T}, v21 offset:{L_RK}"); a("s_waitcnt lgkmcnt(0)")
            a(f"v_cmp_le_u32 vcc, {dz.get('n', 8)}, v{T}"); a(f"s_cbranch_vccnz {dn}")
            a(f"s_add_u32 s{S_CNT}, s{S_CNT}, 1"); a(f"s_cmp_lt_u32 s{S_CNT}, {SPIN*16}"); a(f"s_cbranch_scc1 {lp}")
            a(f"{dn}:")
            a("s_setprio 3")
            a("s_mov_b64 exec, 1"); a(f"global_atomic_inc v{D1}, v{D1+1}, v{D1}, s[52:53] sc0 sc1"); a("s_mov_b64 exec, -1")
            pq()
            a("s_lshl_b32 s78, s100, 22"); a(f"s_add_u32 s78, s78, {12288*256 + (90 * NS + 6 * zt)*1024}")
            if za:
                to = sum(sum(cs[:i]) << (8 * i) for i in range(7))
                a(f"s_mov_b32 s56, {to & 0xffffffff:#x}"); a(f"s_mov_b32 s57, {to >> 32:#x}")
            a("s_waitcnt vmcnt(1)")
            a(f"v_readfirstlane_b32 s71, v{D1}"); a("s_min_u32 s71, s71, 5")
            if dz.get("fix"): a("s_mov_b32 s71, s101")
            if za:
                a("s_lshl_b32 s79, s71, 3"); a("s_lshr_b64 s[56:57], s[56:57], s79"); a("s_and_b32 s79, s56, 0xff"); a("s_bfe_u32 s75, s56, 0x80008")
                a("s_sub_u32 s71, s75, s79"); a("s_lshl_b32 s79, s79, 10"); a("s_lshl_b32 s75, s75, 10")
                a(f"s_add_u32 s{R_A+2}, s78, s75"); a("s_add_u32 s78, s78, s79"); a("s_sub_u32 s79, s78, s74"); a("s_sub_u32 s79, s79, 1024")
                a(f"v_mov_b32 v{T}, s79"); a(f"v_mov_b32 v{T+1}, s71"); a(f"ds_write_b64 v21, v[{T}:{T+1}] offset:{L_RK+8}")
                a(f"s_add_u32 s78, s78, {15*1024}"); a(f"s_mov_b32 s{R_B+2}, s{R_A+2}")
            else:
                a("s_lshl_b32 s79, s71, 2"); a(f"s_lshr_b32 s75, {tc:#x}, s79"); a("s_and_b32 s75, s75, 15"); a("s_lshl_b32 s75, s75, 10")
                a("s_mul_i32 s79, s71, 5"); a(f"s_lshr_b32 s79, {to:#x}, s79"); a("s_and_b32 s79, s79, 31")
                a("s_cmp_eq_u32 s71, 0"); a(f"s_cselect_b32 s71, 0, {cs[0]}"); a("s_add_u32 s79, s79, s71"); a("s_lshl_b32 s79, s79, 10")
                a("s_add_u32 s78, s78, s79"); a(f"s_add_u32 s{R_A+2}, s78, s75"); a(f"s_mov_b32 s{R_B+2}, s{R_A+2}")
            if zt:
                a(f"s_sub_u32 s75, s{R_A+2}, s74"); a("s_sub_u32 s78, s78, s74")
                for i in range(zt, 11): a(f"s_add_u32 s{60+i}, s78, {(i - zt) * 1024}")
            else: a(f"v_lshl_add_u32 v{VO}, v{V_L}, 4, s78")
            od = list(range(zt, 11)) + list(range(11 + zt, 22)); NZ = len(od)
            zs = dz.get("s", 4); ze = dz.get("e", NZ); sl = list(range(0, ze, zs))
            if zp: a("s_cmp_lg_u32 s54, 0"); a("s_cbranch_scc1 L_att_y0")
            for j in sl:
                if j: pq()
                for j2 in range(j, min(j + zs, ze)): ld(od[j2], False)
                a(f"s_waitcnt vmcnt({min(j + zs, ze) - j})"); chk(); a(f"s_cbranch_vccz L_att_z{min(j + zs, ze)}")
            self.poll(pq, chk, "PQ")
            for j in sl[::-1]:
                a(f"L_att_z{min(j + zs, ze)}:"); qput(); self.stamp(1); a(f"s_branch L_att_y{min(j + zs, ze)}")
            for j in range(0 if zp else zs, NZ + 1):
                if j in sl and j < dz.get("b", NZ // 2) and j > zs: a(f"s_waitcnt vmcnt({zs})")
                if j in sl or j == ze: a(f"L_att_y{j}:")
                if j < NZ: ld(od[j], False)
            a(f"s_waitcnt vmcnt({NZ // 2})")
            a("s_setprio 0")
            a("s_mov_b32 s76, 21"); a("s_branch L_att_qk")
            slots = []; w0 = -1
        elif w0:
            slots = []
            for j in range(jp, w0): a(f"s_waitcnt vmcnt({self.opt.get('t0', TH[j])-1})"); ld(j, False)
            if self.opt.get("xp"): a("s_waitcnt vmcnt(0)"); self.stamp(5, True)
            self.poll(pq, chk, "PQ")
            qput()
            self.stamp(1)
            if self.opt.get("xp") and self.stamps: a(f"s_mul_i32 s54, s{S_CNT}, 100"); a(f"s_add_u32 s{S_ST+12}, s{S_ST}, s54"); a(f"s_addc_u32 s{S_ST+13}, s{S_ST+1}, 0")
            for j in range(w0, 22): ld(j, False)
            a("s_setprio 0")
            a("s_mov_b32 s76, 21"); a("s_branch L_att_qk")
        for j in slots:
            if j > jp:
                a(f"s_waitcnt vmcnt({ps})"); chk(); a(f"s_cbranch_vccz L_att_got{j}")
            else: a(f"s_waitcnt vmcnt({TH[j]-1})")
            pq()
            for j2 in range(j, min(j + ps, 22)): ld(j2, False)
        if not w0: self.poll(pq, chk, "PQ")
        for j in [] if w0 else [22] + slots[1:]:
            a(f"L_att_got{j}:")
            qput()
            a("s_setprio 0")
            self.stamp(1)
            a(f"s_branch L_att_a{j}")
        self.hole("A")
        a("L_att_qk:")
        if self.stamps and self.opt.get("sw0"):
            a("s_getreg_b32 s54, hwreg(HW_REG_HW_ID)"); a("s_getreg_b32 s55, hwreg(HW_REG_XCC_ID, 0, 4)")
            a("s_mov_b64 s[56:57], s[60:61]"); a("v_mov_b32 v126, v10"); a("v_mov_b32 v127, v12")
            self.pw([0, 1, 2, 5, 6, "s54", "s55", 7]); a("s_mov_b64 s[60:61], s[56:57]"); a("s_waitcnt vmcnt(0)")
            self.opt["pw"] = 0
        swa = self.opt.get("swa", 0); aw = self.opt.get("aw", 0)
        if swa: self.stamp(1)
        if aw: self.stamp(8)
        a(f"v_lshlrev_b32 v{T}, 4, v{V_N}")
        a(f"ds_read_b128 v[{Q}:{Q+3}], v{T} offset:{L_Q}")
        a("s_waitcnt lgkmcnt(0)")
        for t in range(6):
            pa, pb = 2 * t, 2 * t + 1
            for d in range(4):
                for i, acc in ((pa, T), (pb, T + 1)):
                    if i > 10: continue
                    a(f"v_dot2_f32_bf16 v{acc}, v{KR+4*i+d}, v{Q+d}, " + ("0" if d == 0 else f"v{acc}"))
            a(f"v_add_f32_dpp v{S+t}, v{T}, v{T} row_ror:8 row_mask:0xf bank_mask:{'0x3' if pb <= 10 else '0xf'}")
            if pb <= 10: a(f"v_add_f32_dpp v{S+t}, v{T+1}, v{T+1} row_ror:8 row_mask:0xf bank_mask:0xc")
        for m in ("quad_perm:[1,0,3,2]", "quad_perm:[2,3,0,1]", "row_half_mirror"):
            for t in range(6): a(f"v_add_f32_dpp v{S+t}, v{S+t}, v{S+t} {m} row_mask:0xf bank_mask:0xf")
        a(f"v_mov_b32 v{T+1}, 0xff800000")
        for t in range(6): bfr(a, S + t, S + t)
        for t in range(6): a(f"v_mul_f32 v{S+t}, {fh(128 ** -0.5)}, v{S+t}")
        for t in range(6): bfr(a, S + t, S + t)
        l = a.label("MK")
        a(f"s_cmp_lg_u32 s{S_WAVE}, 0"); a(f"s_cbranch_scc1 {l}")
        assert self.pat == "contig"
        for t in range(6):
            if za and t == 5:
                if self.opt.get("touch", 1): a(f"s_branch {l}"); self.hole("A")
                a(f"{l}:")
            a(f"s_cmp_lt_u32 s{60+2*t}, s75"); a("s_cselect_b32 s78, 0x00ff00ff, 0")
            if 2 * t + 1 <= 10:
                a(f"s_cmp_lt_u32 s{61+2*t}, s75"); a("s_cselect_b32 s79, 0xff00ff00, 0"); a("s_or_b32 s78, s78, s79")
            a("s_mov_b32 vcc_lo, s78"); a("s_mov_b32 vcc_hi, s78")
            a(f"v_cndmask_b32 v{S+t}, v{T+1}, v{S+t}, vcc")
        if not za:
            if self.opt.get("touch", 1): a(f"s_branch {l}"); self.hole("A")
            a(f"{l}:")
        MW = T + 6
        a(f"v_max3_f32 v{MW}, v{S}, v{S+1}, v{S+2}"); a(f"v_max3_f32 v{MW}, v{MW}, v{S+3}, v{S+4}"); a(f"v_max_f32 v{MW}, v{MW}, v{S+5}")
        a(f"v_mov_b32_dpp v{S+5}, v{T+1} quad_perm:[0,1,2,3] row_mask:0xf bank_mask:0xc")
        a(f"v_max_f32_dpp v{MW}, v{MW}, v{MW} row_ror:8 row_mask:0xf bank_mask:0xf")
        self.xrow_allred(MW, T + 1, "v_max_f32")
        for t in range(6): a(f"v_sub_f32 v{S+t}, v{S+t}, v{MW}")
        for t in range(6): a(f"v_mul_f32 v{S+t}, {fh(LOG2E)}, v{S+t}")
        for t in range(6): a(f"v_exp_f32 v{S+t}, v{S+t}")
        a(f"s_lshl_b32 s78, s{S_WAVE}, 3"); a(f"v_mov_b32 v{T+5}, s78")
        a(f"v_add_f32 v{MW+1}, v{S}, v{S+1}"); a(f"v_add_f32 v{T+1}, v{S+2}, v{S+3}"); a(f"v_add_f32 v{T+2}, v{S+4}, v{S+5}")
        a(f"v_add_f32 v{MW+1}, v{MW+1}, v{T+1}"); a(f"v_add_f32 v{MW+1}, v{MW+1}, v{T+2}")
        for t in range(6): a(f"v_cvt_pk_bf16_f32 v{S+t}, v{S+t}, v{S+t}")
        a(f"v_add_f32_dpp v{MW+1}, v{MW+1}, v{MW+1} row_ror:8 row_mask:0xf bank_mask:0xf")
        for t in range(6): a(f"v_and_b32 v{KR+24+2*t}, v{S+t}, v{V_HM}")
        for t in range(6): self.spread(KR + 4 * t, KR + 24 + 2 * t)
        self.xrow_allred(MW + 1, T + 2, "v_add_f32")
        a(f"ds_write_b64 v{T+5}, v[{MW}:{MW+1}] offset:{L_MAX}")
        a(f"v_mov_b32 v{T+1}, 1")
        self.setexec(1, 0)
        a(f"ds_add_u32 v21, v{T+1} offset:{L_CNT}")
        self.allexec()
        self.stamp(5)
        if bj:
            l = a.label("BQ")
            a(f"s_cmp_lg_u32 s{S_WAVE}, 1"); a(f"s_cbranch_scc1 {l}")
            a(f"s_sub_u32 s77, s76, {bj+2}"); a(f"s_cmp_ge_u32 s77, {bq}"); a(f"s_cbranch_scc1 {l}")
            a("s_waitcnt vmcnt(2)"); a("s_mov_b64 exec, 1"); a(f"ds_write_b32 v21, v{D1} offset:{L_RK}"); a("s_mov_b64 exec, -1")
            a(f"{l}:")
        j0 = min(chk_j[0] + bq, 21)
        tq = self.opt.get("tq", 0)
        for j in range(21, j0, -1):
            a(f"s_cmp_eq_u32 s76, {j}"); a(f"s_cbranch_scc1 L_att_c{j+1}")
        if self.opt.get("touch", 1): a(f"s_branch L_att_c{j0+1}"); self.hole("A")
        for j in range(j0 + 1, 22):
            a(f"L_att_c{j}:")
            thr(j, tq or TH[j], True)
            ld(j)
        a("L_att_c22:")
        if swa: self.stamp(2)
        if aw: self.stamp(9)
        self.wraddr(T + 2)
        self.widerd(T + 3, T + 4)
        self.unitoff(T + 4)
        a(f"v_lshlrev_b32 v{T+5}, 3, v{V_N}")
        a("s_mul_i32 s76, s100, 6"); a("s_add_u32 s76, s76, s101"); a("s_lshl_b32 s76, s76, 1")
        if dc: a(f"s_and_b32 s77, s{S_WAVE}, 1"); a("s_add_u32 s76, s76, s77")
        else: a(f"s_add_u32 s76, s76, s{S_WAVE}")
        a("s_lshl_b32 s76, s76, 8"); a(f"s_add_u32 s76, s76, {WS_O}")
        a(f"s_add_u32 s72, s76, {WS_ON-WS_O}")
        WO = KR + 24
        self.colvoff(VO, 4 * 1280, T)
        w2 = self.opt.get("w2", 0); NWO = 160 if w2 else 80
        a("s_and_b32 s64, s3, 7")
        if not dy: a("s_lshr_b32 s65, s3, 3")
        if dy: a(f"s_bfe_u32 s73, s{S_WAVE}, 0x10002")
        elif w2:
            a("s_cmp_ge_u32 s65, 10"); a("s_cselect_b32 s79, 1, 0"); a("s_cselect_b32 s73, 10, 0"); a("s_sub_u32 s65, s65, s73")
            a(f"s_bfe_u32 s73, s{S_WAVE}, 0x10002"); a("s_lshl1_add_u32 s73, s79, s73")
        else: a(f"s_lshr_b32 s73, s{S_WAVE}, 2")
        a("s_lshl_b32 s68, s73, 3"); a("s_add_u32 s68, s68, s64")
        a(f"s_and_b32 s71, s{S_WAVE}, 3"); a("s_lshl_b32 s66, s68, 2"); a("s_add_u32 s66, s66, s71")
        a(f"s_mul_i32 s60, s66, {32*1280}")
        if dy: a(f"s_cmp_ge_u32 s{S_WAVE}, 8"); a(f"s_cselect_b32 s67, {4096*640*2}, 0")
        else:
            a("s_lshl_b32 s61, s65, 7"); a("s_add_u32 s60, s60, s61")
            a(f"s_cmp_lt_u32 s3, {NWO}"); a(f"s_cselect_b32 s67, {0 if self.opt.get('xw') else 4096*640*2}, 0")
            if w2: a(f"s_cmp_ge_u32 s{S_WAVE}, 8"); a("s_cselect_b32 s67, s67, 0")
        srd(a, R_C, S_WO, "s67")
        xc = self.opt.get("xc", 0); wst = 1280
        if xc & 1:
            a(f"v_lshlrev_b32 v{VO}, 4, v{V_L}"); a(f"s_lshl_b32 s60, s{64 if dy else 3}, 3"); a(f"s_add_u32 s60, s60, s{S_WAVE}"); a("s_sub_u32 s60, s60, 8"); a("s_lshl_b32 s60, s60, 12"); wst = 1024
        a("s_lshl_b32 s69, s64, 7"); a(f"s_add_u32 s69, s69, {WS_ML}")
        a("s_mul_i32 s70, s68, 3072"); a("s_lshl_b32 s71, s71, 7"); a("s_add_u32 s70, s70, s71"); a(f"s_add_u32 s70, s70, {WS_O-1 if dc else WS_O}")
        if dy: a("s_lshl_b32 s62, s64, 14")
        else:
            if w2: a("s_lshl_b32 s62, s64, 14"); a("s_mul_i32 s63, s79, 2560")
            else: a("s_lshr_b32 s62, s64, 1"); a("s_lshl_b32 s62, s62, 14"); a("s_and_b32 s63, s64, 1"); a("s_mul_i32 s63, s63, 2560")
            a("s_add_u32 s62, s62, s63"); a("s_lshl_b32 s63, s65, 8")
            a("s_add_u32 s62, s62, s63")
        a(f"s_add_u32 s62, s62, {WS_A}")
        ML, O, X, P, B, Y, C, AD = 76, 88, 14, 16, 92, 22, 10, 80
        w1 = self.opt.get("w1", 2)
        hy = self.opt.get("hy", 0); WO2 = [72, 100, 104, 108]; wf = self.opt.get("wf", 0); wx = w1 + (4 if (hy or wf) else 0)
        def wold(lo, hi):
            for t in range(lo, hi):
                a(f"buffer_load_dwordx4 v[{WO+4*t}:{WO+4*t+3}], v{VO}, s[{R_C}:{R_C+3}], s60 offen offset:{wst*t} nt")
                if hy: a(f"buffer_load_dwordx4 v[{WO2[t]}:{WO2[t]+3}], v{ML+3}, s[{R_C}:{R_C+3}], s60 offen offset:{wst*t} nt")
        def addr():
            t0, t1, t5, t6 = 86, 87, 78, 79
            a(f"v_bfe_u32 v{t0}, v{V_N}, 2, 1"); a(f"v_mul_u32_u24 v{t0}, 3, v{t0}"); a(f"v_lshrrev_b32 v{t1}, 3, v{V_N}")
            a("s_lshl_b32 s77, s73, 5")
            a(f"v_lshl_add_u32 v{AD+1}, v{t0}, 2, s77"); a(f"v_lshl_add_u32 v{AD}, v{t1}, 2, v{AD+1}")
            a(f"v_and_b32 v{t5}, 3, v{V_N}"); a(f"v_lshlrev_b32 v{t5}, 2, v{t5}")
            a(f"v_lshrrev_b32 v{t6}, 3, v{V_L}"); a(f"v_lshl_add_u32 v{t5}, v{t6}, 4, v{t5}")
            a(f"v_lshl_add_u32 v{AD+4}, v{t0}, 9, v{t5}"); a(f"v_lshl_add_u32 v{AD+2}, v{t1}, 9, v{AD+4}")
            a(f"v_xor_b32 v{t1}, 1, v{t1}"); a(f"v_lshl_add_u32 v{AD+3}, v{t1}, 9, v{AD+4}"); a(f"v_lshl_add_u32 v{AD+5}, v{t1}, 2, v{AD+1}")
        def isso():
            for j in range(3): a(f"buffer_load_dword v{O+j}, v{AD+2+j}, s[{R_WS}:{R_WS+3}], s70 offen offset:{1024 if j == 2 else 0} sc1")
        def scale():
            a(f"v_mov_b32 v{T}, v{Q}")
            row_red(a, T, "v_max_f32")
            a(f"v_sub_f32 v{MW}, v{MW}, v{T}"); a(f"v_mul_f32 v{MW}, {fh(LOG2E)}, v{MW}"); a(f"v_exp_f32 v{MW}, v{MW}")
        def fold():
            self.fold_wide(D1, D2, S)
            a(f"v_mul_f32 v{S}, v{S}, v{MW}"); a(f"v_mul_f32 v{S+1}, v{S+1}, v{MW}")
            self.putpart(T + 2, S, L_ACC0)
        dp = "row_mask:0xf bank_mask:0xf"
        nb = self.opt.get("nb", 9)
        for i in range(11):
            a(f"s_waitcnt vmcnt({10-i+(wx if i >= nb else 0)})")
            self.mfma(D1 if i % 2 == 0 else D2, VR + 4 * i, KR + 4 * (i // 2), i < 2)
            if i == nb - 1:
                if self.stamps and self.opt.get("hw"): a(f"s_getreg_b32 s{S_ST+12}, hwreg(HW_REG_HW_ID)"); a(f"s_getreg_b32 s{S_ST+13}, hwreg(HW_REG_XCC_ID, 0, 4)")
                else: self.stamp(6)
                addr()
                l = a.label("ML")
                a(f"s_cmp_lg_u32 s{S_WAVE}, 0"); a(f"s_cbranch_scc1 {l}")
                a("s_waitcnt vmcnt(0)")
                for i2 in range(nb, 11): self.mfma(D1 if i2 % 2 == 0 else D2, VR + 4 * i2, KR + 4 * (i2 // 2), False)
                a("s_lshl_b32 s77, s100, 7"); a("s_lshl_b32 s78, s101, 4"); a("s_add_u32 s77, s77, s78"); a(f"s_add_u32 s77, s77, {WS_ML}")
                a("s_getreg_b32 s74, hwreg(HW_REG_XCC_ID, 0, 4)"); a("s_lshl_b32 s74, s74, 10")
                lp, dn = a.label("CL"), a.label("CD")
                a(f"s_mov_b32 s{S_CNT}, 0")
                a(f"{lp}:")
                a(f"ds_read_b32 v{T}, v21 offset:{L_CNT}"); a(f"ds_read_b64 v[{Q}:{Q+1}], v{T+5} offset:{L_MAX}"); a("s_waitcnt lgkmcnt(0)")
                a(f"v_cmp_eq_u32 vcc, 16, v{T}"); a(f"s_cbranch_vccnz {dn}")
                a(f"s_add_u32 s{S_CNT}, s{S_CNT}, 1"); a(f"s_cmp_lt_u32 s{S_CNT}, {SPIN*16}"); a(f"s_cbranch_scc1 {lp}")
                if self.opt.get("touch", 1): a(f"s_branch {dn}"); self.hole("A")
                a(f"{dn}:")
                scale()
                a(f"v_sub_f32 v{Q}, v{Q}, v{T}"); a(f"v_mul_f32 v{Q}, {fh(LOG2E)}, v{Q}"); a(f"v_exp_f32 v{Q}, v{Q}")
                a(f"v_or_b32 v{Q+2}, s74, v{V_T10}"); a(f"v_mov_b32 v{Q+3}, v{V_T10}")
                a(f"v_mul_f32 v{Q+1}, v{Q+1}, v{Q}")
                a(f"v_bfi_b32 v{Q}, s{S_M10}, v{V_T10}, v{T}")
                row_red(a, Q + 1)
                a(f"v_bfi_b32 v{Q+1}, s{S_M10}, v{V_T10}, v{Q+1}")
                self.setexec(1, 0)
                a(f"buffer_store_dwordx4 v[{Q}:{Q+3}], v21, s[{R_WS}:{R_WS+3}], s77 offen sc1")
                self.allexec()
                self.stamp(2)
                fold()
                RA, VA = O, O + 1
                a(f"v_and_b32 v{T}, 7, v{V_L}"); a(f"v_cmp_gt_u32 vcc, 6, v{T}"); a(f"v_cndmask_b32 v{VA}, 0, 1.0, vcc")
                a(f"v_min_u32 v{T}, 5, v{T}"); a(f"v_lshlrev_b32 v{T}, 4, v{T}")
                if dc:
                    a(f"v_bfe_u32 v{T+1}, v{V_L}, 3, 1"); a(f"v_add_u32 v{T+1}, s73, v{T+1}")
                    a("s_lshl_b32 s77, s73, 5"); a(f"v_lshl_add_u32 v{O+2}, v{V_N}, 2, s77")
                else: a(f"v_bfe_u32 v{T+1}, v{V_L}, 3, 2")
                a(f"v_lshl_add_u32 v{RA}, v{T+1}, 10, v{T}")
                a("s_setprio 3")
                if dc: a("s_waitcnt lgkmcnt(0)")
                a("s_barrier")
                self.stamp(7)
                if dy:
                    a(f"ds_read_b32 v{T}, v21 offset:{L_TK+8}"); a("s_waitcnt lgkmcnt(0)"); a(f"v_readfirstlane_b32 s65, v{T}")
                    a(f"s_cmp_ge_u32 s65, {NB}"); a(f"s_cbranch_scc1 {'L_w_f0' if self.stamps else 'L_end'}")
                    a("s_cmp_ge_u32 s65, 10"); a("s_cselect_b32 s65, 2048, 0"); a(f"s_cselect_b32 s66, {16*3072+1}, 1"); a("s_add_u32 s69, s69, s65")
                else: a(f"s_cmp_ge_u32 s3, {NWO}"); a(f"s_cbranch_scc1 {('L_w_f0' if self.stamps else 'L_end') if dc else 'L_att_fin'}")
                def issm(): a(f"buffer_load_dwordx4 v[{ML}:{ML+3}], v{RA}, s[{R_WS}:{R_WS+3}], s69 offen sc1")
                def chkm(): self.untag(list(range(ML, ML + 4)), V_T10, T, 0x3ff)
                issm()
                if dc: a("s_barrier"); a("s_waitcnt vmcnt(0)")
                else:
                    wold(0, w1)
                    a(f"s_waitcnt vmcnt({w1})")
                chkm()
                a("s_cbranch_vccz L_w_c")
                self.poll(issm, chkm, "PM")
                a("L_w_c:")
                r8 = ("quad_perm:[1,0,3,2]", "quad_perm:[2,3,0,1]", "row_half_mirror")
                a(f"v_max_f32_dpp v{T}, v{ML}, v{ML} {r8[0]} {dp}")
                a(f"v_cmp_ne_u32 vcc, s74, v{ML+2}")
                for m in r8[1:]: a(f"v_max_f32_dpp v{T}, v{T}, v{T} {m} {dp}")
                a(f"v_mul_f32 v{ML+1}, v{ML+1}, v{VA}")
                a(f"v_sub_f32 v{ML}, v{ML}, v{T}"); a(f"v_mul_f32 v{ML}, {fh(LOG2E)}, v{ML}"); a(f"v_exp_f32 v{ML}, v{ML}")
                if dy: a("s_cmp_eq_u64 vcc, 0"); a(f"s_cselect_b32 s77, {0 if self.opt.get('nn') == 1 else WS_ON-WS_O}, 0"); a("s_add_u32 s77, s77, s66")
                else: a("s_cmp_eq_u64 vcc, 0"); a(f"s_cselect_b32 s77, {(WS_ON-WS_O if self.opt.get('near', 1) else 0)+dc}, {dc}")
                a(f"v_mov_b32 v{T+1}, s77")
                if not dc: a(f"ds_write_b32 v21, v{T+1} offset:{L_NEAR}")
                a(f"v_mul_f32 v{T}, v{ML}, v{ML+1}")
                for m in r8: a(f"v_add_f32_dpp v{T}, v{T}, v{T} {m} {dp}")
                a(f"v_rcp_f32 v{T}, v{T}")
                if not dc: a(f"v_and_b32 v{T+1}, 31, v{V_L}"); a(f"v_lshlrev_b32 v{T+1}, 2, v{T+1}")
                a(f"v_mul_f32 v{ML}, v{ML}, v{T}")
                if dc:
                    a(f"ds_write_b32 v{O+2}, v{ML} offset:{L_COEF}"); a(f"ds_write_b32 v21, v{T+1} offset:{L_NEAR}")
                    a("s_waitcnt lgkmcnt(0)")
                    if self.stamps:
                        a("L_w_f1:"); self.flush_stamps(3, role='A'); self.flush_stamps(8, 5, role='A')
                    a("s_endpgm")
                    if self.stamps: a("L_w_f0:"); a("s_barrier"); a("s_branch L_w_f1")
                else:
                    a(f"ds_write_b32 v{T+1}, v{ML} offset:{L_COEF}")
                    a("s_branch L_att_fin")
                self.hole("A")
                a(f"{l}:")
                if dy:
                    l = a.label("TW")
                    a(f"s_cmp_lg_u32 s{S_WAVE}, 1"); a(f"s_cbranch_scc1 {l}")
                    a(f"s_waitcnt vmcnt({21-ty})"); a(f"v_readfirstlane_b32 s65, v{PQ}")
                    mw = self.opt.get("mw", 0)
                    if mw:
                        assert not hy
                        a("s_lshr_b32 s77, s65, 1"); a("s_and_b32 s65, s65, 1"); a("s_mul_i32 s65, s65, 10")
                        a("s_add_u32 s65, s65, s77"); a(f"s_cmp_ge_u32 s77, {10-mw}"); a("s_cselect_b32 s65, 63, s65")
                    if hy:
                        a("s_lshr_b32 s77, s65, 1"); a("s_and_b32 s65, s65, 1"); a("s_mul_i32 s65, s65, 10")
                        a(f"s_cmp_lt_u32 s77, {hy}"); a(f"s_cselect_b32 s66, s77, {hy}"); a("s_cselect_b32 s78, 128, 0x40000000"); a("s_add_u32 s77, s77, s66")
                        a("s_add_u32 s65, s65, s77"); a("s_cmp_ge_u32 s77, 10"); a("s_cselect_b32 s65, 63, s65"); a(f"v_mov_b32 v{ML+3}, s78")
                    a("s_cmp_ge_u32 s65, 10"); a(f"s_cselect_b32 s66, {16*128*1280-1280}, 0")
                    a("s_lshl_b32 s77, s65, 7"); a("s_add_u32 s66, s66, s77"); a("s_lshl_b32 s77, s65, 8")
                    if xc & 1: a("s_lshl_b32 s66, s65, 18")
                    a(f"s_cmp_ge_u32 s65, {NB}"); a("s_cselect_b32 s66, 0x40000000, s66")
                    a(f"v_mov_b32 v{ML}, s66"); a(f"v_mov_b32 v{ML+1}, s77"); a(f"v_mov_b32 v{ML+2}, s65")
                    if hy: a(f"ds_write_b128 v21, v[{ML}:{ML+3}] offset:{L_TK}")
                    else: a(f"ds_write_b96 v21, v[{ML}:{ML+2}] offset:{L_TK}")
                    a("s_waitcnt lgkmcnt(0)")
                    a(f"{l}:")
                a("s_barrier")
                sk = self.opt.get("sk", 0)
                if sk:
                    assert dy
                    ls, lj = a.label("WS"), a.label("WJ")
                    a(f"ds_read_b64 v[{Q}:{Q+1}], v{T+5} offset:{L_MAX}")
                    a(f"s_cmp_lt_u32 s{S_WAVE}, 8"); a(f"s_cbranch_scc1 {ls}")
                    if hy: a(f"ds_read_b128 v[{ML}:{ML+3}], v21 offset:{L_TK}")
                    else: a(f"ds_read_b96 v[{ML}:{ML+2}], v21 offset:{L_TK}")
                    a("s_waitcnt lgkmcnt(0)"); a(f"v_readfirstlane_b32 s65, v{ML+2}"); a(f"v_add_u32 v{VO}, v{VO}, v{ML}")
                    a(f"s_cmp_ge_u32 s65, {NB}"); a(f"s_cbranch_scc1 {ls}")
                    for t in range(4): a(f"buffer_load_dwordx4 v[{WO+4*t}:{WO+4*t+3}], v{VO}, s[{R_C}:{R_C+3}], s60 offen offset:{wst*t} nt")
                    a(f"v_readfirstlane_b32 s63, v{ML+1}"); a("s_add_u32 s62, s62, s63")
                    if wf:
                        l2 = a.label("WP")
                        a(f"s_cmp_lt_u32 s65, {wf}"); a(f"s_cbranch_scc1 {l2}")
                        scale(); a("s_waitcnt vmcnt(4)"); a(f"s_branch {lj}")
                        a(f"{l2}:")
                        a("s_lshl_b32 s63, s65, 8"); a("s_sub_u32 s63, s60, s63"); a(f"s_add_u32 s63, s63, {16*128*1280+9*128}")
                        for t in range(4): a(f"buffer_load_dwordx4 v[72:75], v{VO}, s[{R_C}:{R_C+3}], s63 offen offset:{wst*t} nt")
                    if hy:
                        l2 = a.label("WD")
                        a(f"v_readfirstlane_b32 s79, v{ML+3}")
                        a(f"s_and_b32 s63, s{S_WAVE}, 1"); a("s_lshl_b32 s78, s63, 5"); a("s_lshl_b32 s63, s63, 8"); a("s_add_u32 s62, s62, s63")
                        a("s_cmp_eq_u32 s79, 128"); a("s_cselect_b32 s79, 10, 9"); a(f"s_cbranch_scc1 {l2}")
                        scale(); a("s_waitcnt vmcnt(4)"); a(f"s_branch {lj}")
                        a(f"{l2}:")
                        for t in range(4): a(f"buffer_load_dwordx4 v[{WO2[t]}:{WO2[t]+3}], v{VO}, s[{R_C}:{R_C+3}], s60 offen offset:{wst*t+128} nt")
                    scale()
                    a(f"s_branch {lj}")
                    a(f"{ls}:"); a("s_waitcnt lgkmcnt(0)"); scale(); a("s_waitcnt vmcnt(0)")
                    a(f"{lj}:")
                    continue
                else:
                    if hy: a(f"ds_read_b128 v[{ML}:{ML+3}], v21 offset:{L_TK}")
                    elif dy: a(f"ds_read_b96 v[{ML}:{ML+2}], v21 offset:{L_TK}")
                    a(f"ds_read_b64 v[{Q}:{Q+1}], v{T+5} offset:{L_MAX}")
                    if dy: a("s_waitcnt lgkmcnt(1)"); a(f"v_add_u32 v{VO}, v{VO}, v{ML}")
                    if hy: a(f"v_readfirstlane_b32 s79, v{ML+3}"); a(f"v_add_u32 v{ML+3}, v{ML+3}, v{VO}")
                    wold(0, w1)
                    if dy: a(f"v_readfirstlane_b32 s63, v{ML+1}"); a(f"v_readfirstlane_b32 s65, v{ML+2}"); a("s_add_u32 s62, s62, s63")
                    if hy:
                        a("s_cmp_eq_u32 s79, 128"); a("s_cselect_b32 s79, 10, 9")
                        a(f"s_and_b32 s63, s{S_WAVE}, 1"); a("s_lshl_b32 s78, s63, 5"); a("s_lshl_b32 s63, s63, 8"); a("s_add_u32 s62, s62, s63")
                a("s_waitcnt lgkmcnt(0)")
                scale()
        fold()
        a("L_att_fin:")
        if aw:
            self.stamp(3); a("s_mov_b64 s[74:75], s[60:61]"); self.pw([8, 9, 6, 3, -1]); a("s_mov_b64 s[60:61], s[74:75]")
        if swa: self.stamp(3)
        a("s_waitcnt lgkmcnt(0)"); a("s_barrier")
        if swa: self.stamp(4)
        if dc:
            a(f"s_cmp_ge_u32 s{S_WAVE}, 8"); a("s_cbranch_scc1 L_w")
            tt = self.opt.get("tt", 0) == 2
            a(f"s_lshr_b32 s77, s{S_WAVE}, 1"); a("s_cmp_lg_u32 s77, 1"); a(f"s_cbranch_scc1 {'L_flag' if tt else 'L_end'}")
            a("s_setprio 3")
            self.stamp(3)
            self.publish(L_ACC0, T + 3, T + 4, 76, KR, False, near=72)
            self.stamp(4)
            if self.stamps:
                a(f"s_cmp_lg_u32 s{S_WAVE}, 2"); a("s_cbranch_scc1 L_end"); self.flush_stamps(5, 3, role='A')
            a("s_endpgm")
            if tt:
                a("L_flag:")
                a(f"s_cmp_lg_u32 s{S_WAVE}, 1"); a("s_cbranch_scc1 L_end")
                a("s_lshl_b32 s65, s65, 3"); a("s_add_u32 s65, s65, s64"); a("s_lshl_b32 s65, s65, 2"); a(f"s_add_u32 s65, s65, {WS_TK}")
                a(f"v_mov_b32 v{T}, s{S_T}"); a("s_mov_b64 exec, 1")
                a(f"buffer_store_dword v{T}, v21, s[{R_WS}:{R_WS+3}], s65 offen sc1")
                a("s_endpgm")
            a("L_w:")
            if dy: a(f"s_cmp_ge_u32 s65, {NB}"); a(f"s_cbranch_scc1 {'L_w_sk' if self.stamps else 'L_end'}")
            else: a(f"s_cmp_ge_u32 s3, {NWO}"); a(f"s_cbranch_scc1 L_end")
            a(f"s_mov_b32 s{S_CNT}, 0")
            a("L_w_sp:")
            a(f"ds_read_b32 v{T}, v21 offset:{L_NEAR}")
            a(f"s_add_u32 s{S_CNT}, s{S_CNT}, 1"); a(f"s_cmp_ge_u32 s{S_CNT}, {SPIN*64}"); a(f"s_cbranch_scc1 L_end")
            a("s_waitcnt lgkmcnt(0)")
            a(f"v_cmp_eq_u32 vcc, 0, v{T}"); a("s_cbranch_vccnz L_w_sp")
            a(f"ds_read_b32 v{C}, v{AD} offset:{L_COEF}"); a(f"ds_read_b32 v{C+1}, v{AD+5} offset:{L_COEF}"); a(f"ds_read_b32 v{C+2}, v{AD+1} offset:{L_COEF+8}")
        else:
            a(f"s_cmp_gt_u32 s{S_WAVE}, 1"); a("s_cbranch_scc1 L_w")
            self.stamp(3)
            self.publish(L_ACC0, T + 3, T + 4, 76, KR, False, near=72)
            self.stamp(4)
            a("L_w:")
            a(f"s_cmp_ge_u32 s3, {NWO}"); a(f"s_cbranch_scc1 {'L_w_fl' if self.stamps else 'L_end'}")
            if w2:
                assert w1 == 4
                a(f"s_cmp_lt_u32 s{S_WAVE}, 8"); a(f"s_cbranch_scc1 {'L_w_fl' if self.stamps else 'L_end'}")
            a(f"ds_read_b32 v{T}, v21 offset:{L_NEAR}")
            a(f"ds_read_b32 v{C}, v{AD} offset:{L_COEF}"); a(f"ds_read_b32 v{C+1}, v{AD+5} offset:{L_COEF}"); a(f"ds_read_b32 v{C+2}, v{AD+1} offset:{L_COEF+8}")
        if w1 < 4:
            a("s_barrier")
            wold(w1, 4)
        if not dc: a("s_waitcnt lgkmcnt(3)")
        a(f"v_readfirstlane_b32 s77, v{T}"); a("s_add_u32 s70, s70, s77")
        if self.opt.get("pw"): self.stamp(7); a(f"s_mov_b32 s{S_CNT}, -1")
        isso()
        a(f"v_and_b32 v{T+1}, 1, v{V_L}"); a(f"v_lshl_add_u32 v{T+4}, v{T+1}, 13, v{T+4}")
        qa = self.opt.get("qa", 0)
        if qa: a(f"v_and_b32 v{T+1}, 2, v{V_L}"); a(f"v_lshl_add_u32 v{T+4}, v{T+1}, 18, v{T+4}")
        self.colrd(T + 3, T)
        if hy: a(f"v_add_u32 v{T+3}, s78, v{T+3}")
        if self.opt.get("ws") and self.stamps: a("s_waitcnt vmcnt(3)"); self.stamp(5)
        a("s_waitcnt vmcnt(0) lgkmcnt(0)")
        self.untag(list(range(O, O + 3)), V_T10, T + 1, 0x3ff)
        a("s_cbranch_vccz L_w_go")
        self.poll(isso, lambda: self.untag(list(range(O, O + 3)), V_T10, T + 1, 0x3ff), "PO", hole="A")
        a("L_w_go:")
        self.stamp(8)
        a(f"v_mul_f32 v{X}, v{C}, v{O}"); a(f"v_fmac_f32 v{X}, v{C+1}, v{O+1}"); a(f"v_fmac_f32 v{X}, v{C+2}, v{O+2}")
        a(f"v_add_f32_dpp v{X}, v{X}, v{X} row_shl:4 row_mask:0xf bank_mask:0x5")
        a(f"v_cvt_pk_bf16_f32 v{X}, v{X}, v{X}")
        self.gemv(X, P, B, [(D1, WO), (D2, WO2)] if hy else [(D1, WO)], 4)
        self.fold_col(D1, D2 if hy else None, Y)
        self.putpart(T + 2, Y, L_ACC1)
        if swa: self.stamp(9)
        if self.opt.get("pw"): self.stamp(6)
        a("s_waitcnt lgkmcnt(0)"); a("s_barrier")
        if self.opt.get("pw") and not self.opt.get("ws"): self.stamp(5)
        a(f"s_cmp_ge_u32 s{S_WAVE}, s79" if hy else f"s_cmp_lg_u32 s{S_WAVE}, {8 if w2 else 0}"); a(f"s_cbranch_scc1 {('L_w_pw' if self.opt.get('pw') else 'L_w_fl') if self.stamps else 'L_end'}")
        self.publish(L_ACC1 + (8 * PST if w2 else 0), T + 3, T + 4, 62, KR, False, dual=2 if qa else 1, half=w2, one=self.opt.get("f3"))
        self.stamp(9)
        if self.stamps and w2:
            if hy: a(f"s_cmp_lg_u32 s{S_WAVE}, 8"); a(f"s_cbranch_scc1 L_w_pw")
            self.flush_stamps(10, 8, role='A')
            a("L_w_pw:")
            if not aw: self.pw([7, 8, 6, 5, -1, "s65"])
            a("s_endpgm")
            if dy:
                a("L_w_sk:")
                for j in (5, 6, 7, 8, 9): self.stamp(j)
                a(f"s_mov_b32 s{S_CNT}, 777")
                a(f"s_cmp_lg_u32 s{S_WAVE}, 8"); a("s_cbranch_scc1 L_w_pw"); self.flush_stamps(10, 8, role='A'); a("s_branch L_w_pw")
            a("L_w_fl:")
            if not dc:
                a(f"s_cmp_lg_u32 s{S_WAVE}, {swa}"); a("s_cbranch_scc1 L_end")
                self.flush_stamps(8, role='A')
        elif self.stamps:
            a("L_w_fl:")
            a(f"s_cmp_lg_u32 s{S_WAVE}, {swa}"); a("s_cbranch_scc1 L_end")
            self.flush_stamps(10, role='A')
        a("s_endpgm")

    ROW, VO, X, B, D1, D2, Y, T = 10, 11, 12, 14, 22, 26, 30, 32
    XO, ADD, CPOS, UOFF, P = 44, 45, 46, 47, 48
    def front(self):
        a = self.a
        ROW, VO, X, B, D1, D2, Y, T, XO, ADD, CPOS, UOFF, P = self.ROW, self.VO, self.X, self.B, self.D1, self.D2, self.Y, self.T, self.XO, self.ADD, self.CPOS, self.UOFF, self.P
        CR, WQ, XS, CV, VQ = 52, 64, 84, 94, 95
        pq = self.opt.get("pq", 0); WQ2 = 96; pc = self.opt.get("pc", 0); SC = "s3" if pq or pc else "s2"
        fp = self.opt.get("fp", 0) & 2; qst = 8192
        ro = self.opt.get("ro", 0)
        if ro & 2: qst = 8 * 8192
        qh = self.opt.get("qh", 0); HR, WPOS = 13, 52; assert fp or not qh
        if fp:
            assert pc == 1 and not pq
            for r, o in ((R_A, 80), (R_C, 72), (R_D, 0), (R_B, 24), (R_WS, 104)): a(f"s_load_dwordx2 s[{r}:{r+1}], s[0:1], {o}")
            a(f"v_lshrrev_b32 v{T+2}, 3, v0"); a(f"v_and_b32 v{T+3}, 7, v0")
            a("s_mov_b32 s3, s2")
            a(f"s_mov_b32 s{R_C+2}, 1280"); a(f"s_mov_b32 s{R_C+3}, 0x20000")
        else:
            if pc:
                self.roleidx(2)
                a("s_lshl_b32 s60, s2, 1"); a("s_add_u32 s3, s60, 7"); a(f"s_sub_u32 s61, s60, 34"); a(f"s_sub_u32 s62, s60, {2*NM-1}")
                a(f"s_cmp_ge_u32 s2, 17"); a("s_cselect_b32 s3, s61, s3")
                a(f"s_cmp_ge_u32 s2, {NM}"); a("s_cselect_b32 s3, s62, s3")
                a(f"s_cmp_ge_u32 s2, 40"); a("s_cselect_b32 s3, s2, s3")
                if pc == 2: a("s_mov_b32 s3, s2")
            if pq:
                self.roleidx(2)
                a("s_lshl_b32 s60, s2, 1"); a("s_add_u32 s3, s60, 15"); a(f"s_sub_u32 s61, s60, {2*NM}"); a(f"s_sub_u32 s62, s60, {2*NM+39}")
                a(f"s_cmp_ge_u32 s2, {NM}"); a("s_cselect_b32 s3, s61, s3"); a(f"s_cselect_b32 s76, 0, {640*4096*2}")
                a(f"s_cmp_ge_u32 s2, {NM+20}"); a("s_cselect_b32 s3, s62, s3")
            a(f"s_and_b32 s64, {SC}, 1"); a(f"s_lshr_b32 s65, {SC}, 1")
            a("s_cmp_eq_u32 s64, 0"); a("s_cselect_b32 s66, 24, 16"); a("s_cselect_b32 s67, 0, 384"); a(f"s_cselect_b32 s68, {2*7680}, 0x40000000")
            a("s_cselect_b32 s73, 3, 2"); a("s_mul_i32 s72, s73, 7680")
            self.colvoff(VO, "s72", T)
            a(f"s_mul_i32 s66, s66, s{S_WAVE}"); a("s_add_u32 s66, s66, s67")
            a("s_mul_i32 s62, s66, 7680"); a("s_lshl_b32 s63, s65, 7"); a("s_add_u32 s62, s62, s63")
            a(f"s_add_u32 s63, s62, 7680"); a("s_add_u32 s68, s68, s62")
            a(f"s_cmp_lt_u32 {SC}, 40"); a(f"s_cselect_b32 s69, {640*3840*2}, 0")
            self.rowidx(CV, T, "s73")
            a(f"v_add_u32 v{CV}, s66, v{CV}"); a(f"v_lshlrev_b32 v{CV}, 1, v{CV}")
            self.colvoff(VQ, 5 * 8192, T)
            if pq:
                a("s_sub_u32 s71, s2, 8"); a("s_mul_i32 s71, s71, 43"); a("s_lshr_b32 s71, s71, 7"); a("s_min_u32 s71, s71, 5"); a("s_add_u32 s71, s71, s2"); a("s_sub_u32 s71, s71, 10"); a("s_lshl_b32 s71, s71, 1")
                a("s_lshr_b32 s70, s2, 1"); a("s_lshl_b32 s70, s70, 3"); a("s_and_b32 s101, s2, 1"); a("s_add_u32 s70, s70, s101"); a("s_add_u32 s70, s70, 2")
                a("s_cmp_lt_u32 s2, 10"); a("s_cselect_b32 s101, s70, s71"); a("s_cselect_b32 s77, 0x40000000, 128"); a("s_cselect_b32 s78, 1, 2")
            else:
                a("s_cmp_ge_u32 s2, 48"); a("s_cselect_b32 s71, 8, 0"); a("s_sub_u32 s71, s2, s71")
                a("s_add_u32 s70, s71, 4"); a("s_mul_i32 s70, s70, 37"); a("s_lshr_b32 s70, s70, 8"); a("s_add_u32 s71, s71, s70")
                a("s_lshl_b32 s70, s2, 3"); a("s_sub_u32 s70, s70, 317"); a("s_lshr_b32 s101, s2, 3"); a("s_cmp_eq_u32 s101, 5"); a("s_cselect_b32 s101, s70, s71")
            a(f"s_mul_i32 s70, s{S_WAVE}, {40*8192}"); a("s_lshl_b32 s71, s101, 7"); a("s_add_u32 s70, s70, s71")
            xc = self.opt.get("xc", 0); qst = 8192
            if xc & 8:
                a(f"v_lshlrev_b32 v{VQ}, 4, v{V_L}"); a(f"s_lshl_b32 s70, s101, 4"); a(f"s_add_u32 s70, s70, s{S_WAVE}"); a("s_mul_i32 s70, s70, 5120"); qst = 1024
            if xc & 16:
                a(f"v_lshlrev_b32 v{VO}, 4, v{V_L}"); a(f"s_lshl_b32 s62, s65, 4"); a(f"s_add_u32 s62, s62, s{S_WAVE}"); a("s_mul_i32 s62, s62, 5120")
                a("s_mul_i32 s63, s64, 3072"); a("s_add_u32 s62, s62, s63"); a("s_add_u32 s63, s62, 1024")
                a("s_cmp_eq_u32 s64, 0"); a(f"s_cselect_b32 s68, 2048, 0x40000000"); a("s_add_u32 s68, s68, s62")
            self.rowidx(ROW, T, 5)
            a(f"s_mul_i32 s74, s{S_WAVE}, 40"); a(f"v_add_u32 v{ROW}, s74, v{ROW}"); a(f"v_min_u32 v{ROW}, 639, v{ROW}")
            a(f"v_lshlrev_b32 v{T}, 1, v{ROW}"); a(f"v_lshlrev_b32 v{ADD}, 2, v{V_L}")
            a("s_waitcnt lgkmcnt(0)")
            a(f"s_load_dword s{S_T}, s[{S_WS}:{S_WS+1}], 0")
            srd(a, R_C, S_C, 1280); srd(a, R_A, S_WM, "s69")
        def cld(t): a(f"buffer_load_dwordx4 v[{CR+4*t}:{CR+4*t+3}], v{VO}, s[{R_A}:{R_A+3}], s{(62, 63, 68)[t]} offen nt")
        def wld(t):
            if pq:
                u, t = t & 1, t >> 1
                if t and not u: a(f"s_add_u32 s70, s70, {qst}")
                if u: a(f"s_add_u32 s61, s70, s77")
                r = (WQ2 if u else WQ) + 4 * t
                a(f"buffer_load_dwordx4 v[{r}:{r+3}], v{VQ}, s[{R_B}:{R_B+3}], s{61 if u else 70} offen nt")
                return
            if t: a(f"s_add_u32 s61, s70, {t*qst}")
            a(f"buffer_load_dwordx4 v[{WQ+4*t}:{WQ+4*t+3}], v{VQ}, s[{R_B}:{R_B+3}], s{61 if t else 70} offen nt")
        NQ = 10 if pq else 5
        co = self.opt.get("co", 0); assert fp or not co
        lnc, lx = a.label("NC"), a.label("NX")
        a(f"s_cmp_ge_u32 {SC}, 40"); a(f"s_cbranch_scc1 {lx}")
        if fp:
            if co & 1: a("s_setprio 3")
            a(f"s_bitcmp{0 if self.opt.get('bs') else 1}_b32 s2, 2")
            a("s_cselect_b32 s73, 3, 2"); a("s_cselect_b32 s67, 0, 384"); a(f"s_cselect_b32 s68, {(16 if ro & 1 else 2)*7680}, 0x40000000")
            if ro & 1:
                a("s_cselect_b32 s72, 16, 8"); a(f"v_lshrrev_b32 v{CV}, 6, v0"); a(f"v_mad_u32_u24 v{VO}, v{CV}, s72, v{T+2}")
                a(f"v_lshl_add_u32 v{CV}, v{T+3}, 3, v{VO}")
                a("s_mul_i32 s62, s67, 7680")
            else:
                a(f"v_mad_u32_u24 v{CV}, v{T+2}, s73, v{T+3}")
                a("s_mul_i32 s72, s73, 7680"); a("s_mul_i32 s62, s67, 7680")
            a(f"v_add_lshl_u32 v{CV}, v{CV}, s67, 1")
            a("s_lshr_b32 s60, s2, 3"); a("s_and_b32 s65, s2, 3")
            a(f"v_mul_u32_u24 v{VO}, 7680, v{VO}" if ro & 1 else f"v_mul_u32_u24 v{VO}, s72, v{T+2}")
            a("s_lshl2_add_u32 s65, s60, s65"); a("s_lshl_b32 s63, s65, 7")
            a(f"v_lshl_add_u32 v{VO}, v{T+3}, 4, v{VO}")
            a("s_add_u32 s62, s62, s63"); a(f"s_add_u32 s63, s62, {(8 if ro & 1 else 1)*7680}"); a("s_add_u32 s68, s68, s62")
            a(f"s_mov_b32 s{R_A+2}, {640*3840*2}"); a(f"s_mov_b32 s{R_A+3}, 0x20000")
            a("s_waitcnt lgkmcnt(0)")
        a(f"buffer_load_ushort v{CV}, v{CV}, s[{R_C}:{R_C+3}], 0 offen")
        cb = self.opt.get("cb", 0)
        cld(0); cld(1)
        if cb: cld(2)
        cw = self.opt.get("cw", 0) and self.stamps
        if cw: self.stamp(4)
        if co & 1: a("s_setprio 0")
        if fp:
            assert cb
        h4 = self.opt.get("h4", 0)
        if h4:
            a("s_lshl_b32 s69, s73, 3"); a("s_lshl_b32 s63, s65, 10"); a("s_sub_u32 s69, s63, s69")
            a("s_cmp_ge_u32 s65, 10"); a(f"s_cselect_b32 s63, 0, {10240-4}"); a("s_add_u32 s69, s69, s63"); a(f"s_add_u32 s69, s69, {WS_CR+24+4-10240}")
        elif fp:
            a("s_sub_u32 s69, 3, s73"); a("s_mul_i32 s69, s69, 10240"); a("s_lshl_b32 s63, s65, 9"); a("s_add_u32 s69, s69, s63"); a(f"s_add_u32 s69, s69, {WS_C2 if self.opt.get('hr') else WS_CR}")
        a(f"{lx}:")
        if fp:
            a(f"v_and_b32 v{V_L}, 63, v0")
            a("s_lshr_b32 s60, s2, 3"); a("s_and_b32 s101, s2, 7")
            if ro & 2:
                assert not qh and not h4
                a(f"v_lshrrev_b32 v{ROW}, 6, v0"); a(f"v_lshl_add_u32 v{T+2}, v{ROW}, 5, v{T+2}"); a(f"v_min_u32 v{ROW}, 4, v{T+3}")
            elif h4: a(f"v_min_u32 v{ROW}, 4, v{T+3}")
            else: a(f"v_mad_u32_u24 v{ROW}, v{T+2}, 5, v{T+3}")
            a(f"s_xor_b32 s60, s60, {self.opt.get('qx', 4)}"); a("s_lshl3_add_u32 s101, s101, s60")
            a(f"v_lshlrev_b32 v{XS+6 if co >= 2 else ADD}, 2, v{V_L}")
            if co >= 2: a(f"v_lshlrev_b32 v{XS+5}, 4, v{V_L}")
            if qh:
                assert co >= 2
                a("s_and_b32 s60, s101, 1"); a(f"s_mul_i32 s71, s60, {320*8192-128}"); a("s_mul_i32 s60, s60, 320")
                a(f"v_and_b32 v{T+4}, 1, v{T+2}"); a(f"v_lshrrev_b32 v{T+2}, 4, v0")
                a(f"v_lshl_add_u32 v{T+4}, v{T+3}, 1, v{T+4}"); a(f"v_and_b32 v{T+3}, 15, v0")
                a(f"v_min_u32 v{T+4}, 4, v{T+4}")
                a("s_lshl_b32 s70, s101, 7"); a(f"s_mov_b32 s{R_D+2}, 1280"); a("s_add_u32 s70, s70, s71")
                a(f"v_mad_u32_u24 v{T+4}, v{T+2}, 5, v{T+4}")
            else: a("s_lshl_b32 s70, s101, 7"); a(f"s_mov_b32 s{R_D+2}, 1280")
            if ro & 2: a(f"v_lshl_add_u32 v{ROW}, v{ROW}, 3, v{T+2}")
            elif h4: a(f"v_mad_u32_u24 v{ROW}, v{T+2}, 5, v{ROW}")
            else: a(f"v_min_u32 v{ROW}, 639, v{ROW}")
            a(f"s_mov_b32 s{R_D+3}, 0x20000"); a(f"s_mov_b32 s{R_B+2}, {640*4096*2}")
            if qh: a(f"v_add_lshl_u32 v{XO}, v{T+4}, s60, 1"); a(f"v_add_lshl_u32 v{HR}, v{T+4}, s60, 3")
            else: a(f"v_lshlrev_b32 v{XO if co >= 2 else T}, 1, v{ROW}")
            a(f"s_mov_b32 s{R_B+3}, 0x20000")
            a(f"v_mul_u32_u24 v{VQ}, {(1 if ro & 2 else 5)*8192}, v{T+2}"); a(f"v_lshl_add_u32 v{VQ}, v{T+3}, 4, v{VQ}")
            a("s_waitcnt lgkmcnt(0)")
            a(f"s_load_dword s{S_T}, s[{R_WS}:{R_WS+1}], 0")
        else:
            srd(a, R_D, S_X, 1280); srd(a, R_B, S_WQ, "s76" if pq else 640 * 4096 * 2)
        def xld():
            a(f"buffer_load_dwordx4 v[{XS}:{XS+3}], v{XS+5}, s[{R_D}:{R_D+3}], 0 offen")
            a(f"buffer_load_dword v{XS+4}, v{XS+6}, s[{R_D}:{R_D+3}], 0 offen offset:1024")
            a(f"buffer_load_ushort v{XO}, v{XO}, s[{R_D}:{R_D+3}], 0 offen")
        if co < 2:
            for i in range(5): a(f"buffer_load_dword v{XS+i}, v{ADD}, s[{R_D}:{R_D+3}], 0 offen offset:{256*i}")
            a(f"buffer_load_ushort v{XO}, v{T}, s[{R_D}:{R_D+3}], 0 offen")
        l = a.label("NW")
        a(f"s_cmp_lt_u32 {SC}, 40"); a(f"s_cbranch_scc1 {l}")
        if co >= 2: xld()
        for t in range(NQ): wld(t)
        a(f"{l}:")
        if fp:
            self.entry()
            a(f"s_mov_b32 s{R_WS+2}, {WS_SIZE}"); a(f"s_mov_b32 s{R_WS+3}, 0x20000")
            self.remap(); self.roleidx(2)
        else: srd(a, R_WS, S_WS, WS_SIZE)
        self.masks(T)
        self.colrd(CPOS, T)
        self.wraddr(ADD)
        self.unitoff(UOFF)
        a(f"v_lshlrev_b32 v{ROW}, 2, v{ROW}")
        a("s_waitcnt lgkmcnt(0)")
        self.tags()
        a(f"s_cmp_ge_u32 {SC}, 40"); a(f"s_cbranch_scc1 {lnc}")
        if cw: self.stamp(3)
        a(f"s_waitcnt vmcnt({3 if co >= 2 else 8+cb})")
        if cw: self.stamp(5)
        a(f"v_lshlrev_b32 v{X}, 16, v{CV}")
        self.silu(X, T)
        def rest(): xld(); wld(0); wld(1)
        def cwait(t):
            if co >= 2:
                a(f"s_waitcnt vmcnt({2-t})")
                if t == 2 and co >> 1 == 1: rest()
            elif t == 0:
                a(f"s_waitcnt vmcnt({7+cb})")
                if not cb: cld(2)
            elif t == 1: a("s_waitcnt vmcnt(7)"); wld(0)
            else: a(f"s_waitcnt vmcnt({7 if cb else 1})"); wld(1)
            if cw: self.stamp(6 + t)
        self.gemv(X, P, B, [(D1, CR)], 3, pre=cwait)
        self.fold_col(D1, None, Y)
        self.putpart(ADD, Y, L_ACC1)
        if co >> 1 == 2: rest()
        a("s_waitcnt lgkmcnt(0)"); a("s_barrier")
        if co >> 1 == 3: rest()
        if cw:
            self.stamp(9)
            a("v_mov_b32 v126, v10"); a("v_mov_b32 v127, v12"); self.opt["pw"] = 1
            self.pw([0, 4, 3, 5, 6, 7, 8, 9]); self.opt["pw"] = 0
            a("s_waitcnt vmcnt(0)"); a("v_mov_b32 v10, v126"); a("v_mov_b32 v12, v127")
        a(f"s_cmp_lg_u32 s{S_WAVE}, 0"); a(f"s_cbranch_scc1 {lnc}")
        if self.opt.get("hr", 0) > 1: a(f"s_mov_b32 s79, {self.opt.get('hs', 0x6100)//2}")
        if not fp: a("s_mul_i32 s62, s64, 10240"); a("s_lshl_b32 s63, s65, 9"); a("s_add_u32 s62, s62, s63"); a(f"s_add_u32 s62, s62, {WS_CR}")
        if h4: a(f"v_lshlrev_b32 v{T}, 4, v{V_L}")
        else: a(f"v_and_b32 v{T}, 1, v{V_L}"); a(f"v_lshlrev_b32 v{T}, 4, v{T}"); a(f"v_lshl_add_u32 v{T}, v{UOFF}, 1, v{T}")
        hr, hs = self.opt.get("hr", 0), self.opt.get("hs", 0x6100)
        if hr > 1: a(f"v_and_b32 v{T+1}, 2, v{V_L}"); a(f"v_mad_u32_u24 v{T}, v{T+1}, s79, v{T}")
        self.publish(L_ACC1, CPOS, T, 69 if fp else 62, B, 3 if h4 else 2)
        self.stamp(1)
        a(f"{lnc}:")
        if cb:
            l = a.label("XW")
            a(f"s_cmp_ge_u32 {SC}, 40"); a(f"s_cbranch_scc1 {l}"); a("s_waitcnt vmcnt(2)"); a(f"{l}:")
        a(f"s_waitcnt vmcnt({NQ})")
        for i in range(5):
            a(f"v_and_b32 v{XS+5+i}, 0xffff0000, v{XS+i}"); a(f"v_lshlrev_b32 v{XS+i}, 16, v{XS+i}")
        a(f"v_lshlrev_b32 v{XO}, 16, v{XO}")
        m, v, r, u, w = T, T + 1, T + 2, T + 3, T + 4
        xs = list(range(XS, XS + 10))
        a(f"v_add_f32 v{m}, v{xs[0]}, v{xs[1]}")
        for x in xs[2:]: a(f"v_add_f32 v{m}, v{m}, v{x}")
        row_red(a, m); self.xrow_allred(m, u, "v_add_f32")
        a(f"v_mul_f32 v{m}, {fh(1.0/640)}, v{m}")
        a(f"v_sub_f32 v{u}, v{xs[0]}, v{m}"); a(f"v_mul_f32 v{v}, v{u}, v{u}")
        for x in xs[1:]: a(f"v_sub_f32 v{u}, v{x}, v{m}"); a(f"v_fmac_f32 v{v}, v{u}, v{u}")
        row_red(a, v); self.xrow_allred(v, u, "v_add_f32")
        a(f"v_mul_f32 v{v}, {fh(1.0/640)}, v{v}")
        bfr(a, m, m); bfr(a, v, v)
        a(f"v_add_f32 v{v}, {fh(1e-5)}, v{v}"); bfr(a, v, v)
        a(f"v_readfirstlane_b32 s100, v{m}")
        a(f"v_sqrt_f32 v{v}, v{v}"); bfr(a, v, v)
        a(f"v_rcp_f32 v{r}, v{v}")
        a(f"v_sub_f32 v{u}, v{XO}, v{m}"); bfr(a, u, u)
        fdiv_r(a, X, u, v, r, w); bfr(a, X, X)
        l = a.label("NR")
        a(f"s_cmp_ge_u32 {SC}, 40"); a(f"s_cbranch_scc1 {l}")
        tw = self.opt.get("tw", 2)
        for t in range(2, NQ):
            if tw: a(f"s_waitcnt vmcnt({tw-1})")
            wld(t)
        l2 = a.label("NV"); rv = self.opt.get("rv", 0); hb = self.opt.get("hb", 0)
        if not rv: a(f"s_branch {l2}")
        a(f"{l}:")
        if not rv: a(f"s_cmp_eq_u32 s{S_WAVE}, 1"); a(f"s_cbranch_scc1 L_race")
        a(f"{l2}:"); self.l_back = l2
        self.touch("F")
        def hbar():
            if not hb: return
            l = a.label("HB")
            a(f"s_cmp_lt_u32 s74, 40"); a(f"s_cbranch_scc1 {l}")
            if hb > 1: a(f"s_waitcnt vmcnt({hb-2})")
            a("s_barrier"); a(f"{l}:")
        if hb: a(f"s_mov_b32 s74, {SC}")
        if pq: a(f"s_cmp_ge_u32 s2, {NM}"); a("s_cbranch_scc1 L_f")
        if hr > 1:
            a(f"s_bfe_u32 s70, {SC}, {((hr >> 1) << 16) | self.opt.get('hx', 0):#x}"); a(f"s_mul_i32 s70, s70, {hs}")
            for i in (3, 2, 1, 0): a(f"s_add_u32 s{70+i}, s70, {WS_C2+5120*i}")
        else:
            for i in range(1 if h4 else 4): a(f"s_mov_b32 s{70+i}, {(WS_C2 if hr else WS_CR)+5120*i}")
        H = B
        if qh: self.widerd(WPOS, T)
        else: a(f"v_lshlrev_b32 v{T+1}, {2 if h4 else 1}, v{ROW}")
        if not h4: a(f"v_mov_b32 v{T+2}, s{S_T}")
        def iss():
            if h4: a(f"buffer_load_dwordx4 v[{H}:{H+3}], v{T+1}, s[{R_WS}:{R_WS+3}], s70 offen sc1"); return
            for i in range(4):
                a(f"buffer_load_dwordx2 v[{H+2*i}:{H+2*i+1}], v{HR if qh else T+1}, s[{R_WS}:{R_WS+3}], s{70+i} offen sc1")
        chkh = lambda: self.untag(list(range(H + 1, H + 8, 2)), T + 2, T, None)
        if h4: assert not qh and not hr; chkh = lambda: self.untag(list(range(H, H + 4)), V_T10, T, 0x3ff)
        ne = self.opt.get("ne", 0)
        nl = self.opt.get("nl", 0); hh = self.opt.get("hh", 0)
        if nl:
            assert pc and ne
            ml = self.opt.get("ml", 0); lm, lp_ = a.label("ML"), a.label("MP")
            a("s_mov_b32 s3, s2")
            if ml: a(f"s_cmp_lt_u32 s3, {NM}"); a(f"s_cbranch_scc1 {lm}")
            a(f"s_sub_u32 s69, s3, {NM}")
            self.gu_row(T + 3); self.gu_addr(T + 3)
            if ml:
                a(f"s_branch {lp_}")
                a(f"{lm}:")
                self.m_setup(T + 3, 84)
                a(f"{lp_}:")
            hbar()
            xh = self.opt.get("xh") and self.stamps
            if xh:
                self.stamp(7)
                if self.opt["xh"] == 1: a("s_waitcnt vmcnt(0)"); self.stamp(8)
            self.poll(iss, chkh, "PH", hole="F" if hh else None)
            self.stamp(9)
            if xh: a(f"s_mov_b32 s75, s{S_CNT}")
            le, lm = a.label("NE"), a.label("ML")
            a(f"s_cmp_lt_u32 s3, {NM}"); a(f"s_cbranch_scc1 {lm if ml else le}")
            a(f"s_cmp_ge_u32 s{S_WAVE}, 10"); a(f"s_cbranch_scc1 {le}")
            for j in range(ne): self.gu_ld(j, False)
            if ml:
                a(f"s_branch {le}")
                a(f"{lm}:")
                self.colloads(88, VO, R_A, 62, 7680, n=ml)
            a(f"{le}:")
        else:
            if ne:
                iss()
                if pc: a("s_mov_b32 s3, s2")
                else: self.roleidx(3)
                le, lj = a.label("NE"), a.label("NJ")
                a(f"s_sub_u32 s69, s3, {NM}")
                self.gu_row(T + 3); self.gu_addr(T + 3)
                a(f"s_cmp_lt_u32 s3, {NM}"); a(f"s_cbranch_scc1 {le}")
                a(f"s_cmp_ge_u32 s{S_WAVE}, 10"); a(f"s_cbranch_scc1 {le}")
                for j in range(ne): self.gu_ld(j, False)
                a(f"s_waitcnt vmcnt({ne})"); a(f"s_branch {lj}")
                a(f"{le}:"); a("s_waitcnt vmcnt(0)")
                a(f"{lj}:")
                chkh()
                a("s_cbranch_vccz L_hgo")
            self.poll(iss, chkh, "PH", hole="F" if hh else None)
            a("L_hgo:")
            self.stamp(9)
        if h4: a(f"v_add_f32 v{H}, v{H}, v{H+2}"); a(f"v_add_f32 v{H+1}, v{H+1}, v{H+3}")
        else: a(f"v_add_f32 v{H}, v{H}, v{H+4}"); a(f"v_add_f32 v{H+1}, v{H+2}, v{H+6}")
        bfr(a, H, H); bfr(a, H + 1, H + 1)
        a(f"v_add_f32 v{H+1}, 1.0, v{H+1}"); bfr(a, H + 1, H + 1)
        a(f"v_mul_f32 v{X}, v{X}, v{H+1}"); bfr(a, X, X)
        a(f"v_add_f32 v{X}, v{X}, v{H}"); a(f"v_cvt_pk_bf16_f32 v{X}, v{X}, v{X}")
        if hh > 2: self.hole("F", True)
        if pq:
            self.gemv(X, P, B, [(D1, WQ), (D2, WQ2)], 5)
            self.fold_col(D1, D2, Y)
        elif qh:
            self.bprep(X, P, B, 0); self.bprep(X, P + 2, B + 4, 1)
            self.mfma(D1, WQ, B, True); self.mfma(D2, WQ + 4, B, True)
            self.bprep(X, P, T, 2)
            self.mfma(D1, WQ + 8, B + 4, False); self.mfma(D2, WQ + 12, B + 4, False); self.mfma(D1, WQ + 16, T, False)
            if hh > 1: self.hole("F", True)
            self.fold_wide(D1, D2, Y)
        else:
            self.gemv(X, P, B, [(D1, WQ)], 5)
            if hh > 1: self.hole("F", True)
            self.fold_col(D1, None, Y)
        self.putpart(ADD, Y, L_ACC0)
        if self.opt.get("xh") == 2: self.stamp(8)
        a("s_waitcnt lgkmcnt(0)"); a("s_barrier")
        if self.opt.get("xh") == 2: self.stamp(5)
        if hh > 3: self.hole("F", True)
        l = a.label("QP")
        if pq:
            a(f"s_cmp_ge_u32 s{S_WAVE}, s78"); a(f"s_cbranch_scc1 {l}")
            a(f"s_add_u32 s70, s101, s{S_WAVE}"); a("s_lshl_b32 s70, s70, 8"); a(f"s_add_u32 s70, s70, {WS_Q}")
            a(f"s_lshl_b32 s71, s{S_WAVE}, 5"); a(f"v_add_u32 v{T+1}, s71, v{CPOS}")
            self.publish(L_ACC0, T + 1, UOFF, 70, B, True)
        elif qh:
            qw = self.opt.get("qw", 0)
            a(f"s_lshr_b32 s70, s{S_WAVE}, 1"); a(f"s_cmp_lg_u32 s70, {qw >> 1}"); a(f"s_cbranch_scc1 {l}")
            a(f"s_lshl1_add_u32 s70, s101, s{S_WAVE}"); a("s_lshl_b32 s70, s70, 8"); a(f"s_add_u32 s70, s70, {WS_Q - 256 * qw}")
            self.publish(L_ACC0, WPOS, UOFF, 70, B, False, holes=self.opt.get("hq", 0))
        else:
            a(f"s_cmp_lg_u32 s{S_WAVE}, 0"); a(f"s_cbranch_scc1 {l}")
            a("s_lshl_b32 s70, s101, 8"); a(f"s_add_u32 s70, s70, {WS_Q}")
            self.publish(L_ACC0, CPOS, UOFF, 70, B, True, holes=self.opt.get("hq", 0))
        self.stamp(2)
        a(f"{l}:")
        if self.opt.get("xh") and self.stamps:
            self.stamp(6)
            a("v_mov_b32 v126, v10"); a("v_mov_b32 v127, v12"); self.opt["pw"] = 1; a("s_mov_b64 s[76:77], s[60:61]")
            self.pw([0, 1, 7, 8, 9, 6, "s75", 5]); self.opt["pw"] = 0
            a("s_waitcnt vmcnt(0)"); a("v_mov_b32 v10, v126"); a("v_mov_b32 v12, v127"); a("s_mov_b64 s[60:61], s[76:77]")
        if pq: a("s_branch L_m")
        else:
            if ne: a("s_mov_b32 s2, s3")
            elif not pc: self.roleidx(2)
            xa = self.opt.get("xa")
            if xa:
                srd(a, R_E, S_K, 0x8000000)
                a("s_lshr_b32 s60, s2, 1"); a("s_lshl_b32 s60, s60, 22"); a("s_and_b32 s61, s2, 1"); a("s_lshl_b32 s61, s61, 18"); a("s_add_u32 s60, s60, s61"); a("s_add_u32 s60, s60, 0x200000"); a(f"s_lshl_b32 s61, s{S_WAVE}, 14"); a("s_add_u32 s60, s60, s61")
                a(f"s_cmp_lt_u32 s2, {NM}"); a(f"s_cselect_b32 s61, {xa[0]}, {xa[1]}")
                a(f"v_lshlrev_b32 v{T}, 4, v{V_L}")
                lx, ly = a.label("XA"), a.label("XB")
                a("s_cmp_eq_u32 s61, 0"); a(f"s_cbranch_scc1 {ly}")
                a(f"{lx}:")
                a(f"s_waitcnt vmcnt({xa[2]-1})")
                a(f"buffer_load_dwordx4 v[96:99], v{T}, s[{R_E}:{R_E+3}], s60 offen nt")
                a("s_add_u32 s60, s60, 1024"); a("s_sub_u32 s61, s61, 1"); a("s_cmp_lg_u32 s61, 0"); a(f"s_cbranch_scc1 {lx}")
                if len(xa) < 4: a("s_waitcnt vmcnt(0)"); a("s_barrier")
                a(f"{ly}:")
            a(f"s_cmp_lt_u32 s2, {NM}"); a("s_cbranch_scc1 L_m"); a("s_branch L_f")
            if self.opt.get("hq", 0) & 1: self.hole("F")
        self.page("F")
        a("L_m:")

    def roleidx(self, d):
        a = self.a
        nf = self.opt.get("nf")
        if nf:
            assert sum(nf) == NF
            nm = [8 - v for v in nf]; pm = [sum(nm[:i]) for i in range(8)]
            lutn = sum(nm[i] << (4 * i) for i in range(8))
            lo = sum(pm[i] << (8 * i) for i in range(4)); hi = sum(pm[4 + i] << (8 * i) for i in range(4))
            a("s_lshr_b32 s60, s2, 3"); a("s_and_b32 s61, s2, 7")
            a("s_lshl_b32 s62, s60, 2"); a(f"s_lshr_b32 s62, {lutn:#x}, s62"); a("s_and_b32 s62, s62, 15")
            a(f"s_mov_b32 s64, {lo:#x}"); a(f"s_mov_b32 s65, {hi:#x}"); a("s_lshl_b32 s63, s60, 3"); a("s_lshr_b64 s[64:65], s[64:65], s63"); a("s_and_b32 s64, s64, 255")
            a("s_add_u32 s65, s64, s61")
            a("s_sub_u32 s66, s2, s64"); a("s_sub_u32 s66, s66, s62"); a(f"s_add_u32 s66, s66, {NM}")
            if self.opt.get("pf"):
                s2nm = "s63"
                a("s_lshl_b32 s63, s62, 1"); a("s_sub_u32 s63, s63, 8")
                a("s_sub_u32 s3, s2, s64"); a("s_sub_u32 s3, s3, s63")
                a("s_cmp_ge_u32 s61, s63"); a(f"s_cselect_b32 s101, {640*1728*2}, 0")
            a("s_cmp_lt_u32 s61, s62"); a(f"s_cselect_b32 s{d}, s65, s66")

    def m_setup(self, T, c):
        a = self.a
        a("s_lshl_b32 s68, s2, 1"); a("s_add_u32 s68, s68, 54"); a("s_add_u32 s69, s2, 17")
        a("s_cmp_lt_u32 s2, 3")
        a(f"s_cselect_b32 s67, {640*3840*2}, 0"); a("s_cselect_b32 s68, s68, s69"); a("s_cselect_b32 s69, 2, 1")
        srd(a, R_A, S_WM, 640 * 3840 * 2); srd(a, R_B, S_WM, "s67"); srd(a, R_E, S_OUT, 1280)
        a(f"v_lshrrev_b32 v{T}, 1, v{self.ROW}")
        a(f"buffer_load_ushort v{c}, v{T}, s[{R_C}:{R_C+3}], 0 offen")
        self.colvoff(self.VO, 5 * 7680, T)
        a(f"s_mul_i32 s62, s{S_WAVE}, {40*7680}"); a("s_lshl_b32 s63, s68, 7"); a("s_add_u32 s62, s62, s63"); a("s_add_u32 s64, s62, 128")

    def role_m(self):
        a = self.a
        ROW, VO, X, B, D1, D2, Y, T, XO, ADD, CPOS, UOFF, P = self.ROW, self.VO, self.X, self.B, self.D1, self.D2, self.Y, self.T, self.XO, self.ADD, self.CPOS, self.UOFF, self.P
        WB = 88
        tm = self.opt.get("tm", 2)
        dbl = self.opt.get("dbl"); ml = self.opt.get("ml", 0)
        if ml: assert not dbl and self.opt.get("nl")
        elif dbl:
            mk = sum(1 << i for i in dbl); assert len(dbl) == 3
            a(f"s_mov_b32 s64, {mk & 0xffffffff:#x}"); a(f"s_mov_b32 s65, {mk >> 32:#x}")
            a("s_bfm_b64 s[66:67], s2, 0"); a("s_and_b64 s[66:67], s[66:67], s[64:65]"); a("s_bcnt1_i32_b64 s66, s[66:67]")
            a("s_lshl_b32 s68, s66, 1"); a("s_add_u32 s68, s68, 54"); a("s_sub_u32 s69, s2, s66"); a("s_add_u32 s69, s69, 20")
            a("s_bitcmp1_b64 s[64:65], s2")
        else:
            a("s_lshl_b32 s68, s2, 1"); a("s_add_u32 s68, s68, 54"); a("s_add_u32 s69, s2, 17")
            a("s_cmp_lt_u32 s2, 3")
        mw = self.opt.get("mw", 0); rd = self.opt.get("rd", 0)
        if rd:
            u0 = self.opt.get("u0", 0)
            srd(a, R_A, S_WM, 640 * 3840 * 2); srd(a, R_E, S_OUT, 1280); srd(a, R_B, S_WD, 640 * 1728 * 2)
            if rd == 2:
                rm = self.opt["rm"]; u1 = [i for i in range(NM) if i not in rm or i in self.opt.get("ru", [])]
                u3 = self.opt.get("u3", []); assert len(u1) + len(u3) == 30
                a("s_mov_b32 s3, 0")
                self.member(u1, 68, "L_rd")
                if u3: a("s_cmp_lt_u32 s68, 20"); a("s_cselect_b32 s69, 30, 0"); a("s_add_u32 s68, s68, s69")
                else: a("s_add_u32 s68, s68, 20")
                a("L_mu:")
            else:
                a(f"s_sub_u32 s68, s2, {u0}"); a("s_cmp_ge_u32 s68, 30"); a("s_cbranch_scc1 L_rd")
                a("s_add_u32 s68, s68, 20")
            a(f"v_lshrrev_b32 v{T}, 1, v{ROW}")
            a(f"buffer_load_ushort v{X}, v{T}, s[{R_C}:{R_C+3}], 0 offen")
            self.colvoff(VO, 5 * 7680, T)
            a(f"s_mul_i32 s62, s{S_WAVE}, {40*7680}"); a("s_lshl_b32 s63, s68, 7"); a("s_add_u32 s62, s62, s63")
            self.colloads(WB, VO, R_A, 62, 7680, thr=tm)
            a(f"s_waitcnt vmcnt(5)")
            a(f"v_lshlrev_b32 v{X}, 16, v{X}")
            self.silu(X, T)
            self.gemv(X, P, B, [(D1, WB)], 5, wait=lambda t: 4 - t)
            self.fold_col(D1, None, Y)
            self.putpart(ADD, Y, L_ACC1)
            a("s_waitcnt lgkmcnt(0)"); a("s_barrier")
            a(f"s_cmp_lg_u32 s{S_WAVE}, 0"); a(f"s_cbranch_scc1 L_rd")
            a("s_lshl_b32 s70, s68, 8"); a(f"s_add_u32 s70, s70, {WS_MOD}")
            self.publish(L_ACC1, CPOS, UOFF, 70, WB, True)
            a("L_rd:")
            if self.stamps:
                l = a.label("MS")
                a(f"s_cmp_lg_u32 s{S_WAVE}, 0"); a(f"s_cbranch_scc1 {l}")
                if rd == 2:
                    l2 = a.label("MT")
                    a(f"s_cmp_eq_u32 s3, 0"); a(f"s_cbranch_scc1 {l2}")
                    self.stamp(9); self.flush_stamps(10, 9, role='M'); a("s_endpgm")
                    a(f"{l2}:")
                self.stamp(3); a("v_mov_b32 v63, v10"); self.flush_stamps(4, role='M'); a("v_mov_b32 v10, v63")
                a(f"{l}:")
            if rd == 2:
                u2 = self.opt["u2"]; assert len(u2) == 10 and not set(u2) & set(rm) and not set(u3) & set(rm) and not set(u3) & set(u2)
                a("s_cmp_lg_u32 s3, 0"); a("s_cbranch_scc1 L_end")
                a("s_mov_b32 s3, 1")
                l = a.label("MG")
                if u3:
                    l3 = a.label("MH")
                    self.member(u3, 68, l3)
                    a(f"s_add_u32 s68, s68, {30-len(u3)}"); a(f"s_branch {l}")
                    a(f"{l3}:")
                self.member(u2, 68, "L_rd2")
                a("s_add_u32 s68, s68, 50")
                a(f"s_cmp_lg_u32 s{S_WAVE}, 3"); a(f"s_cbranch_scc1 {l}")
                self.otrig(self.opt.get("gj", 0), T)
                a(f"{l}:")
                a("s_barrier")
                a("s_branch L_mu")
                a("L_rd2:")
                self.role_rd2()
            else: self.role_rd()
        elif mw:
            WO, VW = 64, 61
            a("s_cselect_b32 s68, s68, s69"); a("s_cselect_b32 s69, 2, 1")
            srd(a, R_A, S_WM, 640 * 3840 * 2); srd(a, R_E, S_OUT, 1280)
            a(f"v_lshrrev_b32 v{T}, 1, v{ROW}")
            a(f"buffer_load_ushort v{X}, v{T}, s[{R_C}:{R_C+3}], 0 offen")
            self.colvoff(VO, 5 * 7680, T)
            a(f"s_mul_i32 s62, s{S_WAVE}, {40*7680}"); a("s_lshl_b32 s63, s68, 7"); a("s_add_u32 s62, s62, s63"); a("s_add_u32 s64, s62, 128")
            self.colloads(WB, VO, R_A, 62, 7680, thr=tm)
            nm = [8 - v for v in self.opt["nf"]]; pm = [sum(nm[:i]) for i in range(8)]; mk = sum(1 << p for p in pm)
            a(f"s_mov_b32 s76, {mk & 0xffffffff:#x}"); a(f"s_mov_b32 s77, {mk >> 32:#x}")
            a("s_add_u32 s72, s2, 1"); a("s_bfm_b64 s[66:67], s72, 0"); a("s_and_b64 s[66:67], s[66:67], s[76:77]")
            a("s_bcnt1_i32_b64 s72, s[66:67]"); a("s_sub_u32 s72, s72, 1"); a("s_flbit_i32_b64 s73, s[66:67]")
            a("s_add_u32 s73, s73, s2"); a(f"s_sub_u32 s73, s73, {63-10+mw}")
            a("s_cmp_ge_u32 s72, 4"); a("s_cselect_b32 s74, 3, 0"); a("s_xor_b32 s72, s72, s74")
            a("s_cmp_lt_u32 s73, 10"); a(f"s_cselect_b32 s67, {4096*640*2}, 0")
            srd(a, R_B, S_WO, "s67")
            a(f"s_lshr_b32 s74, s{S_WAVE}, 2"); a("s_lshl_b32 s74, s74, 3"); a("s_add_u32 s74, s74, s72")
            a(f"s_and_b32 s75, s{S_WAVE}, 3"); a("s_lshl_b32 s66, s74, 2"); a("s_add_u32 s66, s66, s75")
            a(f"s_mul_i32 s66, s66, {32*1280}"); a("s_lshl_b32 s67, s73, 7"); a("s_add_u32 s66, s66, s67")
            self.colvoff(VW, 4 * 1280, T)
            pn = self.opt.get("pn", 2)
            def wl(lo, hi, thr):
                for t in range(lo, hi):
                    if thr: a(f"s_waitcnt vmcnt({thr-1})")
                    a(f"buffer_load_dwordx4 v[{WO+4*t}:{WO+4*t+3}], v{VW}, s[{R_B}:{R_B+3}], s66 offen offset:{1280*t} nt")
            l = a.label("MD")
            a("s_cmp_eq_u32 s69, 1"); a(f"s_cbranch_scc1 {l}")
            self.colloads(WB + 20, VO, R_A, 64, 7680, thr=tm)
            a("s_waitcnt vmcnt(0)")
            a(f"{l}:")
            wl(0, pn, tm)
            a(f"s_waitcnt vmcnt({5+pn})")
            a(f"v_lshlrev_b32 v{X}, 16, v{X}")
            self.silu(X, T)
            self.gemv(X, P, B, [(D1, WB), (D2, WB + 20)], 5, wait=lambda t: 4 - t + pn)
            self.fold_col(D1, D2, Y)
            self.putpart(ADD, Y, L_ACC1)
            wl(pn, 4, 0)
            a("s_waitcnt lgkmcnt(0)"); a("s_barrier")
            l = a.label("MP")
            a(f"s_cmp_ge_u32 s{S_WAVE}, s69"); a(f"s_cbranch_scc1 {l}")
            a(f"s_add_u32 s70, s68, s{S_WAVE}"); a("s_lshl_b32 s70, s70, 8"); a(f"s_add_u32 s70, s70, {WS_MOD}")
            a(f"s_lshl_b32 s71, s{S_WAVE}, 5"); a(f"v_add_u32 v{T+1}, s71, v{CPOS}")
            self.publish(L_ACC1, T + 1, UOFF, 70, WB, True)
            if self.stamps:
                a(f"s_cmp_lg_u32 s{S_WAVE}, 0"); a(f"s_cbranch_scc1 {l}")
                self.stamp(3); self.flush_stamps(4, role='M'); self.flush_stamps(10, 9, role='M')
            a(f"{l}:")
            a("s_cmp_lt_u32 s73, 10"); a("s_cbranch_scc1 L_mw")
            a(f"s_cmp_eq_u32 s{S_WAVE}, 2"); a("s_cbranch_scc1 L_red")
            a("s_endpgm")
        elif ml:
            self.colloads(WB, VO, R_A, 62, 7680, thr=tm, lo=ml)
            self.colloads(WB + 20, VO, R_B, 64, 7680, thr=tm)
            a(f"v_lshlrev_b32 v{X}, 16, v84")
            self.silu(X, T)
            self.gemv(X, P, B, [(D1, WB), (D2, WB + 20)], 5, wait=lambda t: 4 - t)
            self.fold_col(D1, D2, Y)
            self.putpart(ADD, Y, L_ACC1)
            a("s_waitcnt lgkmcnt(0)"); a("s_barrier")
            a(f"s_cmp_eq_u32 s{S_WAVE}, 2"); a("s_cbranch_scc1 L_red")
            a(f"s_cmp_ge_u32 s{S_WAVE}, s69"); a(f"s_cbranch_scc1 L_end")
            a(f"s_add_u32 s70, s68, s{S_WAVE}"); a("s_lshl_b32 s70, s70, 8"); a(f"s_add_u32 s70, s70, {WS_MOD}")
            a(f"s_lshl_b32 s71, s{S_WAVE}, 5"); a(f"v_add_u32 v{T+1}, s71, v{CPOS}")
            self.publish(L_ACC1, T + 1, UOFF, 70, WB, True)
            if self.stamps:
                a(f"s_cmp_lg_u32 s{S_WAVE}, 0"); a("s_cbranch_scc1 L_end")
                self.stamp(3); self.flush_stamps(4, role='M'); self.flush_stamps(10, 9, role='M')
            a("s_endpgm")
        else:
            mx = self.opt.get("mx")
            if mx:
                assert len(mx) == 20
                srd(a, R_E, S_OUT, 1280)
                self.member(mx, 68, "L_mno")
                a("s_lshl1_add_u32 s68, s68, 20"); a("s_cmp_eq_u32 s2, s2")
            a(f"s_cselect_b32 s67, {640*3840*2}, 0"); a("s_cselect_b32 s68, s68, s69"); a("s_cselect_b32 s69, 2, 1")
            if self.opt.get("xg"):
                a("s_cmp_ge_u32 s68, 50"); a(f"s_cselect_b32 s67, 0, {640*3840*2}")
                srd(a, R_A, S_WM, "s67"); srd(a, R_B, S_WM, 0); srd(a, R_E, S_OUT, 1280)
            else:
                srd(a, R_A, S_WM, 0 if self.opt.get("xm") else 640 * 3840 * 2); srd(a, R_B, S_WM, 0 if self.opt.get("xm") else "s67"); srd(a, R_E, S_OUT, 1280)
            a(f"v_lshrrev_b32 v{T}, 1, v{ROW}")
            a(f"buffer_load_ushort v{X}, v{T}, s[{R_C}:{R_C+3}], 0 offen")
            ro = self.opt.get("ro", 0) & 2; mst = 8 * 7680 if ro else 7680
            self.colvoff(VO, (1 if ro else 5) * 7680, T)
            a(f"s_mul_i32 s62, s{S_WAVE}, {40*7680}"); a("s_lshl_b32 s63, s68, 7"); a("s_add_u32 s62, s62, s63"); a("s_add_u32 s64, s62, 128")
            md = self.opt.get("md")
            if md:
                l = a.label("MG")
                a(f"s_cmp_lg_u32 s{S_WAVE}, 3"); a(f"s_cbranch_scc1 {l}")
                par = [((128, 16, WS_ML), (3072, 512, WS_O))[md[k]] + (md[k + 1],) for k in (0, 2)]
                a("s_cmp_ge_u32 s68, 50")
                for i in range(4): a(f"s_mov_b32 s{72+i}, {par[0][i]}"); a(f"s_cselect_b32 s{72+i}, {par[1][i]}, s{72+i}")
                a(f"v_and_b32 v{T}, 31, v{V_L}"); a(f"v_mul_u32_u24 v{T}, s72, v{T}")
                a(f"v_lshrrev_b32 v{T+1}, 5, v{V_L}"); a(f"v_and_b32 v{T+2}, 1, v{V_L}"); a(f"v_lshl_add_u32 v{T+1}, v{T+1}, 1, v{T+2}")
                a(f"v_mul_u32_u24 v{T+1}, s73, v{T+1}"); a(f"v_add_u32 v{T}, v{T}, v{T+1}")
                lp = a.label("MQ")
                a(f"s_mov_b32 s{S_CNT}, 0")
                a("s_cmp_eq_u32 s75, 0"); a(f"s_cbranch_scc1 {l}")
                a(f"{lp}:")
                a(f"buffer_load_dword v{T+1}, v{T}, s[{R_WS}:{R_WS+3}], s74 offen sc1")
                a("s_waitcnt vmcnt(0)")
                a(f"v_and_b32 v{T+1}, s{S_M10}, v{T+1}"); a(f"v_cmp_eq_u32 vcc, v{T+1}, v{V_T10}")
                a("s_bcnt1_i32_b64 s72, vcc"); a("s_cmp_ge_u32 s72, s75"); a(f"s_cbranch_scc1 {l}")
                a(f"s_add_u32 s{S_CNT}, s{S_CNT}, 1"); a(f"s_cmp_lt_u32 s{S_CNT}, {SPIN}"); a(f"s_cbranch_scc1 {lp}")
                a(f"{l}:")
                a("s_barrier")
                self.stamp(9)
            if self.opt.get("xc", 0) & 4:
                a(f"v_lshlrev_b32 v{VO}, 4, v{V_L}"); a(f"s_lshl_b32 s62, s68, 4"); a(f"s_add_u32 s62, s62, s{S_WAVE}"); a("s_mul_i32 s62, s62, 5120"); a(f"s_add_u32 s64, s62, {16*5120}")
                self.colloads(WB, VO, R_A, 62, 1024, thr=tm)
                self.colloads(WB + 20, VO, R_B, 64, 1024, thr=tm)
            elif self.opt.get("pf") or self.opt.get("wp"):
                self.colloads(WB + 20, VO, R_B, 64, mst, thr=tm)
                self.colloads(WB, VO, R_A, 62, mst, thr=tm)
            else:
                self.colloads(WB, VO, R_A, 62, mst, thr=tm)
                self.colloads(WB + 20, VO, R_B, 64, mst, thr=tm)
            pf = self.opt.get("pf", 0); pn = self.opt.get("pn", 2) if pf else 0
            def pfld(lo, hi, thr):
                for i in range(lo, hi):
                    if thr: a(f"s_waitcnt vmcnt({thr-1})")
                    a(f"buffer_load_dwordx4 v[{64+4*i}:{64+4*i+3}], v{VO}, s[{R_B}:{R_B+3}], s62 offen offset:{1024*(i%4)}" + (" nt" if pf == 2 else ""))
                    if i == 3: a("s_add_u32 s62, s62, 4096")
            if pf:
                srd(a, R_B, S_WD, "s101")
                a(f"s_mul_i32 s62, s3, {64*1280}"); a(f"s_mul_i32 s63, s{S_WAVE}, 5120"); a("s_add_u32 s62, s62, s63")
                a(f"v_lshlrev_b32 v{VO}, 4, v{V_L}")
                pfld(0, pn, tm)
            wp = self.opt.get("wp")
            if wp:
                assert self.opt.get("hb") and not pf
                pn = self.opt.get("pn", 2)
                a("s_lshr_b32 s63, s74, 3"); a("s_cmp_lt_u32 s63, 4"); a(f"s_cselect_b32 s67, {4096*640*2}, 0")
                srd(a, R_B, S_WO, "s67")
                a("s_and_b32 s62, s74, 7"); a("s_lshr_b32 s64, s63, 1"); a("s_lshl3_add_u32 s62, s64, s62"); a("s_and_b32 s63, s63, 1")
                a("s_lshl1_add_u32 s62, s62, s63"); a(f"s_lshl4_add_u32 s62, s62, s{S_WAVE}"); a("s_mul_i32 s62, s62, 5120")
                a(f"v_lshlrev_b32 v{VO}, 4, v{V_L}")
                def wpld(lo, hi, thr):
                    for i in range(lo, hi):
                        o = wp[i // 5] * 8 * 163840 + 1024 * (i % 5)
                        if i % 5 in (0, 4) or i == lo: a(f"s_add_u32 s63, s62, {o - o % 4096}")
                        a(f"s_waitcnt vmcnt({thr-1})")
                        a(f"buffer_load_dwordx4 v[{64+4*(i%5)}:{64+4*(i%5)+3}], v{VO}, s[{R_B}:{R_B+3}], s63 offen offset:{o % 4096} nt")
                wpld(0, pn, tm)
            a(f"s_waitcnt vmcnt({10+pn})")
            a(f"v_lshlrev_b32 v{X}, 16, v{X}")
            self.silu(X, T)
            self.gemv(X, P, B, [(D1, WB), (D2, WB + 20)], 5, wait=lambda t: 4 - t + pn)
            self.fold_col(D1, D2, Y)
            self.putpart(ADD, Y, L_ACC1)
            if pf: pfld(pn, 5, 0)
            a("s_waitcnt lgkmcnt(0)"); a("s_barrier")
            if not wp: a(f"s_cmp_eq_u32 s{S_WAVE}, 2"); a("s_cbranch_scc1 L_red")
            a(f"s_cmp_ge_u32 s{S_WAVE}, s69"); a(f"s_cbranch_scc1 {'L_wp' if wp else 'L_end'}")
            a(f"s_add_u32 s70, s68, s{S_WAVE}"); a("s_lshl_b32 s70, s70, 8"); a(f"s_add_u32 s70, s70, {WS_MOD}")
            a(f"s_lshl_b32 s71, s{S_WAVE}, 5"); a(f"v_add_u32 v{T+1}, s71, v{CPOS}")
            self.publish(L_ACC1, T + 1, UOFF, 70, WB, True)
            if wp:
                self.stamp(3)
                a("L_wp:")
                wpld(pn, 5 * len(wp), self.opt.get("wt", 2))
                a(f"s_cmp_eq_u32 s{S_WAVE}, 2"); a("s_cbranch_scc1 L_red")
                if self.stamps:
                    a(f"s_cmp_lg_u32 s{S_WAVE}, 0"); a("s_cbranch_scc1 L_end"); a("s_waitcnt vmcnt(0)")
                    self.stamp(9); self.flush_stamps(4, role='M'); self.flush_stamps(10, 9, role='M')
            elif self.stamps:
                a(f"s_cmp_lg_u32 s{S_WAVE}, 0"); a("s_cbranch_scc1 L_end")
                self.stamp(3); self.flush_stamps(4, role='M'); self.flush_stamps(10, 9, role='M')
            a("s_endpgm")
            if mx or self.opt.get("mb"):
                a("L_mno:")
                a(f"s_cmp_eq_u32 s{S_WAVE}, 2"); a("s_cbranch_scc1 L_red")
                if self.stamps:
                    a(f"s_cmp_lg_u32 s{S_WAVE}, 0"); a("s_cbranch_scc1 L_end")
                    self.stamp(3); self.flush_stamps(4, role='M'); self.flush_stamps(10, 9, role='M')
                a("s_endpgm")
        a("L_race:")
        self.races(T)
        a("s_endpgm" if self.opt.get("rv") else f"s_branch {self.l_back}")
        self.hole("F")
        a("L_red:")
        if not rd: a(f"s_cmp_ge_u32 s2, {NW}"); a("s_cbranch_scc1 L_end")
        COL, GA, GB, XV, A4, R = 10, 11, 12, 13, 14, 64
        f3 = self.opt.get("f3")
        if f3:
            a(f"v_and_b32 v{T}, 3, v{V_N}"); a(f"v_lshlrev_b32 v{T}, 3, v{T}"); a(f"v_and_or_b32 v{T+6}, v{V_N}, 4, v{T}"); a(f"v_add_u32 v{COL}, v{T+6}, v{V_G}")
        else: a(f"v_and_b32 v{T}, 7, v{V_N}"); a(f"v_lshl_add_u32 v{COL}, v{V_G}, 3, v{T}")
        a("s_lshl_b32 s62, s2, 5"); a(f"v_add_u32 v{COL}, s62, v{COL}")
        a(f"v_lshlrev_b32 v{T+1}, 1, v{COL}"); a(f"v_lshlrev_b32 v{COL}, 2, v{COL}")
        a(f"buffer_load_ushort v{XV}, v{T+1}, s[{R_D}:{R_D+3}], 0 offen")
        if self.opt.get("ot"): a(f"buffer_load_ushort v{R}, v{T+1}, s[{R_E}:{R_E+3}], 0 offen")
        a(f"s_mov_b32 s63, {WS_MOD+1280*4}"); a(f"s_mov_b32 s64, {WS_MOD+3200*4}")
        a(f"s_mov_b32 s75, {WS_VOTE}"); a(f"v_lshlrev_b32 v{T+3}, 2, v{V_L}")
        self.voteld(T + 4, T + 3)
        def iss3():
            a(f"buffer_load_dword v{GA}, v{COL}, s[{R_WS}:{R_WS+3}], s63 offen sc1")
            if not rd: a(f"buffer_load_dword v{GB}, v{COL}, s[{R_WS}:{R_WS+3}], s64 offen sc1")
        self.poll(iss3, lambda: self.untag([GA] if rd else [GA, GB], V_T16, T + 2, 0xffff), "PG")
        self.side(T + 4, 74)
        if rd == 1:
            l, lp = a.label("RG"), a.label("RQ")
            a(f"v_and_b32 v{T+2}, 31, v{V_L}"); a(f"v_mul_u32_u24 v{T+2}, 3072, v{T+2}")
            a(f"v_lshrrev_b32 v{T+3}, 5, v{V_L}"); a(f"v_mul_u32_u24 v{T+3}, 3, v{T+3}"); a(f"v_and_b32 v{T+4}, 1, v{V_L}"); a(f"v_add_u32 v{T+3}, v{T+3}, v{T+4}")
            a(f"v_lshl_add_u32 v{T+2}, v{T+3}, 9, v{T+2}")
            a(f"s_mov_b32 s{S_CNT}, 0"); a(f"s_mov_b32 s72, {WS_O}")
            a(f"v_mov_b32 v{A4}, 0"); a(f"v_mov_b32 v{A4+1}, 0"); a(f"v_lshlrev_b32 v{T+4}, 3, v{V_L}")
            if self.opt.get("rj", 16):
                a(f"{lp}:")
                a(f"buffer_load_dword v{T+3}, v{T+2}, s[{R_WS}:{R_WS+3}], s72 offen sc1")
                a("s_waitcnt vmcnt(0)")
                a(f"v_and_b32 v{T+3}, s{S_M10}, v{T+3}"); a(f"v_cmp_eq_u32 vcc, v{T+3}, v{V_T10}")
                a("s_bcnt1_i32_b64 s73, vcc"); a(f"s_cmp_ge_u32 s73, {self.opt.get('rj', 16)}"); a(f"s_cbranch_scc1 {l}")
                a(f"s_add_u32 s{S_CNT}, s{S_CNT}, 1"); a(f"s_cmp_lt_u32 s{S_CNT}, {SPIN}"); a(f"s_cbranch_scc1 {lp}")
                a(f"{l}:")
            a("s_barrier")
            self.stamp(4)
            a(f"ds_write_b64 v{T+4}, v[{A4}:{A4+1}] offset:{L_ACC0+15*512}")
            a("s_waitcnt lgkmcnt(0)")
        def red8(R):
            a(f"v_permlane32_swap_b32 v{R}, v{R+2}"); a(f"v_permlane32_swap_b32 v{R+1}, v{R+3}")
            a(f"v_add_f32 v{R}, v{R}, v{R+2}"); a(f"v_add_f32 v{R+1}, v{R+1}, v{R+3}")
            a(f"v_permlane16_swap_b32 v{R}, v{R+1}")
            a(f"v_add_f32 v{R}, v{R}, v{R+1}")
            a(f"v_add_f32_dpp v{R}, v{R}, v{R} row_ror:8 row_mask:0xf bank_mask:0xf")
            bfr(a, R, R)
        if f3:
            assert self.opt.get("w2")
            a("s_lshl_b32 s65, s2, 7"); a("s_add_u32 s65, s65, s74"); a(f"s_add_u32 s65, s65, {WS_A}"); a("s_add_u32 s66, s65, 0x10000")
            a(f"v_lshlrev_b32 v{T+6}, 2, v{T+6}"); a(f"v_lshl_add_u32 v{T+6}, v{V_G}, 14, v{T+6}")
            a(f"v_lshrrev_b32 v{T+2}, 3, v{V_N}"); a(f"v_mul_u32_u24 v{T+2}, 2560, v{T+2}"); a(f"v_add_u32 v{T+6}, v{T+6}, v{T+2}")
            def iss4():
                for i in range(2): a(f"buffer_load_dwordx4 v[{A4+4*i}:{A4+4*i+3}], v{T+6}, s[{R_WS}:{R_WS+3}], s{65+i} offen sc1")
            self.poll(iss4, lambda: self.untag([A4, A4 + 4], V_T10, T + 2, 0x3ff), "PA", hole="F")
            a(f"v_lshlrev_b32 v{XV}, 16, v{XV}")
            for i in range(4): a(f"v_add_f32 v{A4+i}, v{A4+i}, v{A4+4+i}")
            red8(A4)
            a(f"v_mul_f32 v{A4}, v{GA}, v{A4}"); bfr(a, A4, A4)
            a(f"v_add_f32 v{A4}, v{XV}, v{A4}"); bfr(a, A4, A4)
        else:
            for i in range(4): a(f"s_add_u32 s{65+i}, s74, {WS_A+16384*i}")
            NP = 16 if self.opt.get("w2") else 8
            if NP == 16: a(f"v_add_u32 v{T+6}, 0x10000, v{COL}")
            def iss4():
                for i in range(NP):
                    a(f"buffer_load_dword v{A4+i}, v{COL if i < 8 else T+6}, s[{R_WS}:{R_WS+3}], s{65+((i>>1)&3)} offen offset:{2560*(i&1)} sc1")
            self.poll(iss4, lambda: self.untag(list(range(A4, A4 + NP)), V_T10, T + 2, 0x3ff), "PA", hole="F")
            a(f"v_lshlrev_b32 v{XV}, 16, v{XV}")
            self.x2calc(COL, GA, XV, A4, A4)
        self.stamp(6)
        a(f"v_lshlrev_b32 v{T+2}, 4, v{V_L}")
        if rd:
            R = 64
            def lsum(acc, n):
                for i in range(n): a(f"ds_read_b128 v[{R+4*i}:{R+4*i+3}], v{T+2} offset:{acc+1024*i}")
                def ad(x, y):
                    for i in (0, 2): a(f"v_pk_add_f32 v[{R+4*x+i}:{R+4*x+i+1}], v[{R+4*x+i}:{R+4*x+i+1}], v[{R+4*y+i}:{R+4*y+i+1}]")
                for x in range(0, n - 1, 2):
                    a(f"s_waitcnt lgkmcnt({n-x-2})"); ad(x, x + 1)
                    if x % 4 == 2: ad(x - 2, x)
                if n % 2: a("s_waitcnt lgkmcnt(0)")
                if n == 7: ad(4, 6)
                ad(0, 4)
                red8(R)
            if rd == 2:
                if self.opt.get("rb"): a("s_barrier")
                self.poll(lambda: a(f"buffer_load_dword v{GB}, v{COL}, s[{R_WS}:{R_WS+3}], s64 offen sc1"), lambda: self.untag([GB], V_T16, T + 3, 0xffff), "PB")
                self.stamp(5)
                a("s_and_b32 s62, s2, 1"); a(f"s_mul_i32 s62, s62, {7*1024}"); a(f"v_add_u32 v{T+2}, s62, v{T+2}")
            else:
                a("s_barrier")
                self.stamp(5)
                lsum(L_ACC2, 5)
                a(f"v_mov_b32 v{GB}, v{R}")
            a("s_setprio 3")
            self.hole("F", True)
            a("s_barrier")
            self.stamp(7)
            lsum(L_ACC0, 8 if rd == 1 else 7)
        else: self.red_gather(red8)
        R = self.R
        a(f"v_mul_f32 v{R}, v{GB}, v{R}"); bfr(a, R, R)
        a(f"v_add_f32 v{R}, v{A4}, v{R}")
        a(f"v_cvt_pk_bf16_f32 v{R}, v{R}, v{R}")
        self.setexec(0x00ff00ff, 0x00ff00ff)
        a(f"buffer_store_short v{R}, v{T+1}, s[{R_E}:{R_E+3}], 0 offen" + self.opt.get("os", ""))
        self.allexec()
        self.stamp(8)
        ep = self.opt.get("ep", 0)
        if ep < 2:
            l = a.label("EP")
            a("s_cmp_lg_u32 s2, 0"); a(f"s_cbranch_scc1 {l}")
            a(f"v_mov_b32 v{T}, s{S_T}"); a(f"v_mov_b32 v{T+1}, 0")
            self.setexec(1, 0)
            a(f"buffer_store_dword v{T}, v{T+1}, s[{R_WS}:{R_WS+3}], 0 offen" + ("" if ep else " sc1"))
            self.allexec()
            a(f"{l}:")
        if rd == 2: a(f"s_mov_b32 s{S_WAVE}, 2")
        self.pw([6, 7, 8, 8, -1])
        self.flush_stamps(9, 4 if rd else 6, role='W')
        a("s_endpgm")

    def member(self, lst, d, out):
        a = self.a; mk = sum(1 << i for i in lst)
        a(f"s_mov_b32 s64, {mk & 0xffffffff:#x}"); a(f"s_mov_b32 s65, {mk >> 32:#x}")
        a("s_bitcmp0_b64 s[64:65], s2"); a(f"s_cbranch_scc1 {out}")
        a("s_bfm_b64 s[66:67], s2, 0"); a("s_and_b64 s[66:67], s[66:67], s[64:65]"); a(f"s_bcnt1_i32_b64 s{d}, s[66:67]")

    def otrig(self, n, T):
        a = self.a
        if not n: return
        l, lp = a.label("RG"), a.label("RQ")
        if self.opt.get("tt") == 2:
            a(f"v_and_b32 v{T+2}, 7, v{V_L}"); a(f"v_lshlrev_b32 v{T+2}, 2, v{T+2}")
            a(f"s_mov_b32 s{S_CNT}, 0"); a(f"s_mov_b32 s72, {WS_TK+32*n[0]}"); a("s_mov_b64 exec, 0xff")
            a(f"{lp}:")
            a(f"buffer_load_dword v{T+3}, v{T+2}, s[{R_WS}:{R_WS+3}], s72 offen sc1")
            a("s_waitcnt vmcnt(0)")
            a(f"v_cmp_eq_u32 vcc, s{S_T}, v{T+3}")
            a("s_bcnt1_i32_b64 s73, vcc"); a(f"s_cmp_ge_u32 s73, {n[1]}"); a(f"s_cbranch_scc1 {l}")
            a(f"s_add_u32 s{S_CNT}, s{S_CNT}, 1"); a(f"s_cmp_lt_u32 s{S_CNT}, {SPIN}"); a(f"s_cbranch_scc1 {lp}")
            a(f"{l}:")
            a("s_mov_b64 exec, -1")
            return
        if self.opt.get("tt"):
            dp = "row_mask:0xf bank_mask:0xf"
            a("s_load_dwordx2 s[66:67], s[0:1], 96")
            a(f"v_and_b32 v{T+2}, 7, v{V_L}"); a(f"v_lshlrev_b32 v{T+2}, 5, v{T+2}")
            a(f"s_mov_b32 s{S_CNT}, 0"); a("s_waitcnt lgkmcnt(0)")
            a(f"{lp}:")
            a(f"global_load_dword v{T+3}, v{T+2}, s[66:67] sc0 sc1")
            a("s_waitcnt vmcnt(0)")
            for m in ("quad_perm:[1,0,3,2]", "quad_perm:[2,3,0,1]", "row_half_mirror"): a(f"v_add_u32_dpp v{T+3}, v{T+3}, v{T+3} {m} {dp}")
            a(f"v_readfirstlane_b32 s73, v{T+3}"); a(f"s_cmp_ge_u32 s73, {n}"); a(f"s_cbranch_scc1 {l}")
            a(f"s_add_u32 s{S_CNT}, s{S_CNT}, 1"); a(f"s_cmp_lt_u32 s{S_CNT}, {SPIN}"); a(f"s_cbranch_scc1 {lp}")
            a(f"{l}:")
            return
        a(f"v_and_b32 v{T+2}, 31, v{V_L}"); a(f"v_mul_u32_u24 v{T+2}, 3072, v{T+2}")
        a(f"v_lshrrev_b32 v{T+3}, 5, v{V_L}"); a(f"v_mul_u32_u24 v{T+3}, 3, v{T+3}"); a(f"v_and_b32 v{T+4}, 1, v{V_L}"); a(f"v_add_u32 v{T+3}, v{T+3}, v{T+4}")
        a(f"v_lshl_add_u32 v{T+2}, v{T+3}, 9, v{T+2}")
        a(f"s_mov_b32 s{S_CNT}, 0"); a(f"s_mov_b32 s72, {WS_O}")
        a(f"{lp}:")
        a(f"buffer_load_dword v{T+3}, v{T+2}, s[{R_WS}:{R_WS+3}], s72 offen sc1")
        a("s_waitcnt vmcnt(0)")
        a(f"v_and_b32 v{T+3}, s{S_M10}, v{T+3}"); a(f"v_cmp_eq_u32 vcc, v{T+3}, v{V_T10}")
        a("s_bcnt1_i32_b64 s73, vcc"); a(f"s_cmp_ge_u32 s73, {n}"); a(f"s_cbranch_scc1 {l}")
        a(f"s_add_u32 s{S_CNT}, s{S_CNT}, 1"); a(f"s_cmp_lt_u32 s{S_CNT}, {SPIN}"); a(f"s_cbranch_scc1 {lp}")
        a(f"{l}:")

    def role_rd2(self):
        a = self.a
        VO, AR, T = self.VO, self.B, self.T
        IDX, PS, D, WB, LA, PA = 13, 22, 48, 64, 44, 45
        self.member(self.opt["rm"], 2, "L_end")
        a("s_lshl_b32 s60, s2, 7"); a("s_lshl_b32 s2, s2, 1")
        a(f"s_sub_u32 s73, s{S_WAVE}, 2"); a("s_cmp_lt_u32 s73, 2"); a(f"s_cbranch_scc0 L_rdw")
        a("s_add_u32 s2, s2, s73")
        rk = self.opt.get("rk", 0)
        if rk:
            l = a.label("RK")
            a("s_cmp_eq_u32 s73, 0"); a(f"s_cbranch_scc1 {l}")
            self.otrig(self.opt["rj"], T)
            a(f"{l}:")
            a("s_barrier")
            self.stamp(4)
        a("s_branch L_red")
        a("L_rdw:")
        a(f"s_min_u32 s73, s73, s{S_WAVE}")
        self.gu_row(T)
        a(f"v_and_b32 v{T}, 8, v{V_N}"); a(f"v_lshl_add_u32 v{T+1}, v{T}, 1, v{T+1}"); a(f"v_and_b32 v{T+2}, 7, v{V_N}")
        a(f"v_mul_u32_u24 v{VO}, 1280, v{T+1}"); a(f"v_lshl_add_u32 v{VO}, v{T+2}, 4, v{VO}")
        a(f"s_mul_i32 s62, s73, {128*1280}"); a("s_add_u32 s62, s62, s60")
        a(f"s_mov_b32 s75, {WS_VOTE}"); a(f"v_lshlrev_b32 v{PA}, 2, v{V_L}")
        self.voteld(PS, PA)
        rt = self.opt.get("rt", 2); rt = rt if isinstance(rt, list) else [rt] * 16
        for j in range(16):
            if j and j % 2 == 0: a(f"s_add_u32 s62, s62, {(4 if j % 4 else 28)*1280}")
            if rk and j == rk: a("s_barrier")
            if j >= rt[j]: a(f"s_waitcnt vmcnt({rt[j]-1})")
            a(f"buffer_load_dwordx4 v[{WB+4*j}:{WB+4*j+3}], v{VO}, s[{R_B}:{R_B+3}], s62 offen offset:{2560*(j&1)} nt")
        a(f"v_and_b32 v{T+2}, 3, v{V_N}"); a(f"v_mul_u32_u24 v{IDX}, 0x5555, v{T+2}")
        a(f"v_bfe_u32 v{T}, v{V_N}, 2, 1"); a(f"v_mul_u32_u24 v{LA}, {7*1024}, v{T}"); a(f"v_lshl_add_u32 v{LA}, v{V_G}, 7, v{LA}"); a(f"v_lshl_add_u32 v{LA}, v{T+2}, 4, v{LA}")
        a("s_lshl_b32 s62, s73, 9"); a(f"v_add_u32 v{LA}, s62, v{LA}")
        for i in range(16): a(f"v_mov_b32 v{D+i}, 0")
        self.side(PS, 74)
        a("s_add_u32 s70, s62, s74"); a(f"s_add_u32 s70, s70, {WS_D}"); a("s_cmp_lt_u32 s73, 13"); a("s_cselect_b32 s71, 256, 0"); a("s_add_u32 s71, s71, s70")
        a("s_mov_b32 s76, 0xff0000ff"); a("s_mov_b32 s77, 0"); a("s_mov_b32 s78, 0"); a("s_mov_b32 s79, 0xff0000ff")
        a("s_waitcnt vmcnt(0)")
        self.stamp(4)
        self.regroup(WB)
        if self.opt.get("rb"): a("s_barrier")
        self.stamp(5)
        def bc(dst, src):
            for d in range(4): a(f"v_mov_b32_dpp v{dst+d}, v{src} quad_perm:[{d},{d},{d},{d}] row_mask:0xf bank_mask:0xf")
        ns = self.opt.get("rs", 1)
        def iss(k):
            for i in range(2): a(f"buffer_load_dword v{PS+2*k+i}, v{PA}, s[{R_WS}:{R_WS+3}], s{70+i} offen sc1")
        for k in range(ns): iss(k)
        a(f"s_mov_b32 s{S_CNT}, 0")
        a("L_pd:")
        for k in range(ns):
            a(f"s_waitcnt vmcnt({2*(ns-1)})")
            self.untag([PS + 2 * k, PS + 2 * k + 1], V_T16, T, 0xffff)
            a(f"s_cbranch_vccz L_pd{k}")
            iss(k)
        a(f"s_add_u32 s{S_CNT}, s{S_CNT}, 1"); a(f"s_cmp_lt_u32 s{S_CNT}, {SPIN}"); a(f"s_cbranch_scc1 L_pd")
        a("s_branch L_pd0"); self.hole("F")
        for k in range(ns):
            a(f"L_pd{k}:")
            bc(AR, PS + 2 * k); bc(AR + 4, PS + 2 * k + 1)
            if k < ns - 1: a("s_branch L_pdx")
        a("L_pdx:")
        self.stamp(6)
        for t in range(4):
            for h in range(2):
                d = D + 8 * (t & 1) + 4 * h; A_ = AR + 4 * (t >> 1); W = WB + 16 * t + 8 * h
                a(f"v_smfmac_f32_16x16x64_bf16 v[{d}:{d+3}], v[{A_}:{A_+3}], v[{W}:{W+7}], v{IDX}")
        for hb in range(2):
            a(f"s_mov_b64 exec, s[{76+2*hb}:{77+2*hb}]")
            for h in range(2): a(f"ds_write_b128 v{LA}, v[{D+8*hb+4*h}:{D+8*hb+4*h+3}] offset:{L_ACC0+64*h}")
        a("s_waitcnt lgkmcnt(0)"); a("s_barrier")
        if self.stamps:
            self.allexec()
            self.stamp(7)
            self.pw([4, 5, 6, 7, -1])
        a("s_endpgm")

    R = 64
    def role_rd(self):
        a = self.a
        VO, X, AR, T = self.VO, self.X, self.B, self.T
        IDX, VG, PS, D, WB, LA, PA = 13, 10, 22, 48, 64, 44, 45
        rm = self.opt.get("rm", list(range(20))); assert len(rm) == 20
        mk = sum(1 << i for i in rm)
        a(f"s_mov_b32 s64, {mk & 0xffffffff:#x}"); a(f"s_mov_b32 s65, {mk >> 32:#x}")
        a("s_bitcmp0_b64 s[64:65], s2"); a("s_cbranch_scc1 L_end")
        a("s_bfm_b64 s[66:67], s2, 0"); a("s_and_b64 s[66:67], s[66:67], s[64:65]"); a("s_bcnt1_i32_b64 s2, s[66:67]")
        a(f"s_cmp_eq_u32 s{S_WAVE}, 2"); a("s_cbranch_scc1 L_red")
        a(f"s_cmp_gt_u32 s{S_WAVE}, 2"); a(f"s_subb_u32 s73, s{S_WAVE}, 0")
        a(f"s_mov_b32 s75, {WS_VOTE}"); a(f"v_lshlrev_b32 v{PA}, 2, v{V_L}")
        self.voteld(PS, PA)
        a("s_max_u32 s72, s73, 5"); a("s_sub_u32 s72, s72, 5")
        a(f"v_lshl_add_u32 v{T}, v{V_N}, 2, v{V_G}"); a(f"v_lshlrev_b32 v{T}, 1, v{T}"); a("s_lshl_b32 s62, s72, 7")
        a(f"buffer_load_ushort v{X}, v{T}, s[{R_C}:{R_C+3}], s62 offen")
        a(f"v_and_b32 v{T+2}, 3, v{V_N}"); a(f"v_mul_u32_u24 v{IDX}, 0x5555, v{T+2}")
        self.gu_row(T)
        a(f"v_and_b32 v{T}, 12, v{V_N}"); a(f"v_lshl_add_u32 v{T+1}, v{T}, 2, v{T+1}")
        a(f"v_mul_u32_u24 v{VO}, 1280, v{T+1}"); a(f"v_lshl_add_u32 v{VO}, v{T+2}, 4, v{VO}")
        a(f"v_mul_u32_u24 v{VG}, 7680, v{T+1}"); a(f"v_lshl_add_u32 v{VG}, v{T+2}, 4, v{VG}")
        a(f"v_lshlrev_b32 v{LA}, 7, v{V_G}"); a(f"v_lshl_add_u32 v{LA}, v{T+2}, 4, v{LA}"); a("s_lshl_b32 s62, s73, 9"); a(f"v_add_u32 v{LA}, s62, v{LA}")
        a("s_lshl_b32 s60, s2, 6")
        a(f"s_mul_i32 s62, s73, {64*1280}"); a("s_add_u32 s62, s62, s60"); a("s_add_u32 s63, s62, 5120")
        a("s_cmp_lt_u32 s73, 12"); a(f"s_cselect_b32 s64, {15*64*1280}, 0x40000000"); a(f"s_cselect_b32 s71, {15*256}, 0")
        a("s_add_u32 s65, s64, s63"); a("s_add_u32 s64, s64, s62")
        a(f"s_mul_i32 s66, s72, {64*7680}"); a("s_add_u32 s66, s66, s60"); a("s_add_u32 s66, s66, 6400")
        for i in range(3): a(f"s_add_u32 s{67+i}, s{66+i}, {2*7680}")
        for i in range(8): a(f"v_mov_b32 v{D+i}, 0")
        a("s_waitcnt vmcnt(0)")
        self.side(PS, 74)
        a("s_lshl_b32 s70, s73, 8"); a("s_add_u32 s70, s70, s74"); a(f"s_add_u32 s70, s70, {WS_D}"); a("s_add_u32 s71, s71, s70")
        a(f"v_lshlrev_b32 v{X}, 16, v{X}")
        self.silu(X, T)
        a(f"v_and_b32 v{X}, 0xffff0000, v{X}")
        def bc(dst, src):
            for d in range(4): a(f"v_mov_b32_dpp v{dst+d}, v{src} quad_perm:[{d},{d},{d},{d}] row_mask:0xf bank_mask:0xf")
        def rg(W):
            for x, y in ((2, 8), (3, 9), (6, 12), (7, 13)): a(f"v_swap_b32 v{W+x}, v{W+y}")
        def mm(A_, W):
            for h in range(2): a(f"v_smfmac_f32_16x16x64_bf16 v[{D+4*h}:{D+4*h+3}], v[{A_}:{A_+3}], v[{W+8*h}:{W+8*h+7}], v{IDX}")
        def put(acc):
            self.setexec(0x00f0000f, 0xf0000f00)
            for h in range(2): a(f"ds_write_b128 v{LA}, v[{D+4*h}:{D+4*h+3}] offset:{acc+64*h}")
        bc(AR, X)
        rt = self.opt.get("rt", 0); nt = " nt" if self.opt.get("rn", 1) else ""
        def wd():
            for j in range(8):
                if rt: a(f"s_waitcnt vmcnt({rt-1})")
                a(f"buffer_load_dwordx4 v[{WB+4*j}:{WB+4*j+3}], v{VO}, s[{R_B}:{R_B+3}], s{62+(j>>1)} offen offset:{2560*(j&1)}{nt}")
        l, l2 = a.label("RN"), a.label("RM")
        a("s_cmp_lt_u32 s73, 5")
        a("s_barrier")
        a(f"s_cbranch_scc1 {l}")
        for j in range(4):
            if rt: a(f"s_waitcnt vmcnt({rt-1})")
            a(f"buffer_load_dwordx4 v[{WB+32+4*j}:{WB+32+4*j+3}], v{VG}, s[{R_A}:{R_A+3}], s{66+j} offen{nt}")
        a(f"{l}:")
        wd()
        a(f"s_cbranch_scc1 {l2}")
        a("s_waitcnt vmcnt(8)")
        rg(WB + 32); mm(AR, WB + 32); put(L_ACC2 - 5 * 512)
        self.allexec()
        a("s_waitcnt lgkmcnt(0)")
        for i in range(8): a(f"v_mov_b32 v{D+i}, 0")
        a(f"{l2}:")
        a("s_waitcnt vmcnt(0)")
        self.stamp(4)
        rg(WB); rg(WB + 16)
        a("s_barrier")
        self.stamp(5)
        ns = self.opt.get("rs", 1)
        def iss(k):
            for i in range(2): a(f"buffer_load_dword v{PS+2*k+i}, v{PA}, s[{R_WS}:{R_WS+3}], s{70+i} offen sc1")
        for k in range(ns): iss(k)
        a(f"s_mov_b32 s{S_CNT}, 0")
        a("L_pd:")
        for k in range(ns):
            a(f"s_waitcnt vmcnt({2*(ns-1)})")
            self.untag([PS + 2 * k, PS + 2 * k + 1], V_T16, T, 0xffff)
            a(f"s_cbranch_vccz L_pd{k}")
            iss(k)
        a(f"s_add_u32 s{S_CNT}, s{S_CNT}, 1"); a(f"s_cmp_lt_u32 s{S_CNT}, {SPIN}"); a(f"s_cbranch_scc1 L_pd")
        a("s_branch L_pd0"); self.hole("F")
        for k in range(ns):
            a(f"L_pd{k}:")
            bc(AR, PS + 2 * k); bc(AR + 4, PS + 2 * k + 1)
            if k < ns - 1: a("s_branch L_pdx")
        a("L_pdx:")
        self.stamp(6)
        mm(AR, WB); mm(AR + 4, WB + 16)
        put(L_ACC0)
        a("s_waitcnt lgkmcnt(0)"); a("s_barrier")
        if self.stamps:
            self.allexec()
            self.stamp(7)
            self.pw([4, 5, 6, 7, -1])
        a("s_endpgm")

    def red_gather(self, red8):
        a = self.a; T = self.T; R = 64; f3 = self.opt.get("f3")
        a(f"v_min_u32 v{T+3}, {2*128+112}, v{T+2}")
        a(f"v_cmp_gt_u32 vcc, 24, v{V_L}"); a(f"v_cndmask_b32 v{T+4}, 0, 1.0, vcc")
        a("s_lshr_b32 s62, s2, 1"); a("s_mul_i32 s62, s62, 16512"); a("s_and_b32 s63, s2, 1"); a("s_mul_i32 s63, s63, 3456"); a("s_add_u32 s62, s62, s63")
        a("s_add_u32 s62, s62, s74"); a(f"s_add_u32 s62, s62, {WS_D}")
        def iss5(R=R):
            for i in range(4):
                a(f"buffer_load_dwordx4 v[{R+4*i}:{R+4*i+3}], v{T+2 if i < 3 else T+3}, s[{R_WS}:{R_WS+3}], s62 offen offset:{1024*i} sc1")
        ns = self.opt.get("rs", 1)
        if ns > 1:
            sets = [48 + 16 * k for k in range(ns)]; R = 22
            for S_ in sets: iss5(S_)
            a(f"s_mov_b32 s{S_CNT}, 0")
            a("L_pd:")
            for k, S_ in enumerate(sets):
                a(f"s_waitcnt vmcnt({4*(ns-1)})")
                self.untag(list(range(S_, S_ + 16, 4)), V_T10, T + 5, 0x3ff)
                a(f"s_cbranch_vccz L_pd{k}")
                iss5(S_)
            a(f"s_add_u32 s{S_CNT}, s{S_CNT}, 1"); a(f"s_cmp_lt_u32 s{S_CNT}, {SPIN}"); a(f"s_cbranch_scc1 L_pd")
            a("s_branch L_pd0"); self.hole("F")
            for k, S_ in enumerate(sets):
                a(f"L_pd{k}:")
                for i in range(4): a(f"v_add_f32 v{R+i}, v{S_+i}, v{S_+4+i}")
                for i in range(4): a(f"v_fma_f32 v{R+4+i}, v{S_+12+i}, v{T+4}, v{S_+8+i}")
                if k < ns - 1: a("s_branch L_pdx")
            a("L_pdx:")
            self.stamp(7)
            for i in range(4): a(f"v_add_f32 v{R+i}, v{R+i}, v{R+4+i}")
        else:
            self.poll(iss5, lambda: self.untag(list(range(R, R + 16, 4 if f3 else 1)), V_T10, T + 5, 0x3ff), "PD")
            self.stamp(7)
            for i in range(4): a(f"v_add_f32 v{R+i}, v{R+i}, v{R+4+i}")
            for i in range(4): a(f"v_fma_f32 v{R+8+i}, v{R+12+i}, v{T+4}, v{R+8+i}")
            for i in range(4): a(f"v_add_f32 v{R+i}, v{R+i}, v{R+8+i}")
        red8(R)
        self.R = R

    def role_f(self):
        a = self.a
        ROW, VO, X, B, D1, D2, Y, T, XO, ADD, CPOS, UOFF, P = self.ROW, self.VO, self.X, self.B, self.D1, self.D2, self.Y, self.T, self.XO, self.ADD, self.CPOS, self.UOFF, self.P
        WA, WB = 56, 88
        tf = self.opt.get("tf", 2)
        a("; GRP F")
        self.hole("F")
        a("L_f:")
        a(f"s_sub_u32 s69, s2, {NM}")
        fsz = 0 if self.opt.get("xf") else 640 * 1728 * 2
        srd(a, R_C, S_WG, fsz); srd(a, R_E, S_WU, fsz); srd(a, R_A, S_WD, fsz)
        self.colvoff(VO, 5 * 3456, T)
        a(f"s_mul_i32 s62, s{S_WAVE}, {40*3456}"); a("s_lshl_b32 s63, s69, 7"); a("s_add_u32 s62, s62, s63")
        for t in range(5):
            if t: a(f"s_add_u32 s62, s62, 3456")
            for h, sr in enumerate((R_C, R_E)):
                th = 1 if 2 * t + h <= self.opt.get("f1", 0) else tf
                if th: a(f"s_waitcnt vmcnt({th-1})")
                a(f"buffer_load_dwordx4 v[{WB+20*h+4*t}:{WB+20*h+4*t+3}], v{VO}, s[{sr}:{sr+3}], s62 offen nt")
        def downloads(thr, vo):
            l = a.label("FD")
            a(f"s_cmp_ge_u32 s{S_WAVE}, 10"); a(f"s_cbranch_scc1 {l}")
            self.colvoff(vo, 8 * 1280, T)
            a(f"s_mul_i32 s62, s69, {64*1280}"); a(f"s_lshl_b32 s74, s{S_WAVE}, 7"); a("s_add_u32 s62, s62, s74")
            self.colloads(WA, vo, R_A, 62, 1280, n=8, thr=thr)
            a(f"{l}:")
        fd = self.opt.get("fd", 0)
        if not fd: downloads(tf, VO)
        GA, SB, CB, A4, VAL = T + 5, T + 6, T + 7, T + 8, UOFF
        GPOS, DOFF, SRD_, SWR = 52, 53, 54, 55
        AWR, G1 = VO, 13
        a(f"v_lshlrev_b32 v{GPOS}, 2, v{V_L}")
        GST = 528
        self.wraddr(ADD, GST)
        a(f"s_lshl_b32 s73, s{S_WAVE}, 4"); a(f"v_lshlrev_b32 v{T+1}, 2, v{V_G}"); a(f"v_add_u32 v{T+1}, s73, v{T+1}")
        self.colpos(CPOS, T + 1, T)
        a(f"v_mul_u32_u24 v{T}, {GST}, v{V_N}"); a(f"v_add_u32 v{CPOS}, v{CPOS}, v{T}")
        a(f"s_lshl_b32 s73, s{S_WAVE}, 6"); a(f"v_and_b32 v{AWR}, 60, v{V_L}"); a(f"v_add_u32 v{AWR}, s73, v{AWR}")
        a(f"v_mul_u32_u24 v{DOFF}, 3456, v{V_G}"); a(f"v_lshl_add_u32 v{DOFF}, v{V_N}, 4, v{DOFF}")
        a("s_lshl_b32 s72, s69, 7"); a(f"s_mul_i32 s73, s{S_WAVE}, 16512"); a("s_add_u32 s72, s72, s73"); a(f"s_add_u32 s72, s72, {WS_D}"); a("s_add_u32 s71, s72, 8192")
        a(f"v_and_b32 v{T}, 7, v{V_N}"); a(f"v_cmp_gt_u32 vcc, 5, v{T}"); a(f"v_cndmask_b32 v{VAL}, 0, 1.0, vcc")
        a(f"v_lshlrev_b32 v{SRD_}, 3, v{V_N}")
        a(f"s_lshl_b32 s73, s{S_WAVE}, 3"); a(f"v_mov_b32 v{SWR}, s73")
        a(f"s_mov_b32 s63, {WS_MOD+1280*4}"); a(f"s_mov_b32 s64, {WS_MOD+2560*4}")
        a(f"s_mov_b32 s75, {WS_VOTE}")
        self.voteld(A4, GPOS)
        def iss3():
            a(f"buffer_load_dword v{GA}, v{ROW}, s[{R_WS}:{R_WS+3}], s63 offen sc1")
            a(f"buffer_load_dword v{SB}, v{ROW}, s[{R_WS}:{R_WS+3}], s63 offen offset:2560 sc1")
            a(f"buffer_load_dword v{CB}, v{ROW}, s[{R_WS}:{R_WS+3}], s64 offen sc1")
        self.poll(iss3, lambda: self.untag([GA, SB, CB], V_T16, T, 0xffff), "PG", hole="F")
        self.stamp(3)
        if fd == 1: downloads(0, T + 1)
        self.side(A4, 70)
        for i in range(4): a(f"s_add_u32 s{65+i}, s70, {WS_A+16384*i}")
        a(f"v_add_f32 v{CB}, 1.0, v{CB}"); bfr(a, CB, CB)
        def colred(acc, Z):
            a(f"ds_read_b128 v[{D1}:{D1+3}], v{CPOS} offset:{acc}"); a(f"ds_read_b128 v[{D2}:{D2+3}], v{CPOS} offset:{acc+32}")
            yield
            for D, R in ((D1, B), (D2, B + 2)):
                for j in range(2): a(f"v_add_f32_dpp v{R+j}, v{D+j}, v{D+j} row_ror:8 row_mask:0xf bank_mask:0x3")
            for D, R in ((D1, B), (D2, B + 2)):
                for j in range(2): a(f"v_add_f32_dpp v{R+j}, v{D+2+j}, v{D+2+j} row_ror:8 row_mask:0xf bank_mask:0xc")
            yield
            for R, z in ((B, Z), (B + 2, Z + 1)): a(f"v_add_f32_dpp v{z}, v{R}, v{R} row_shl:4 row_mask:0xf bank_mask:0x5")
            yield
            for R, z in ((B, Z), (B + 2, Z + 1)): a(f"v_add_f32_dpp v{z}, v{R+1}, v{R+1} row_shr:4 row_mask:0xf bank_mask:0xa")
            for md in ("quad_perm:[1,0,3,2]", "quad_perm:[2,3,0,1]"):
                yield
                for z in (Z, Z + 1): a(f"v_add_f32_dpp v{z}, v{z}, v{z} {md} row_mask:0xf bank_mask:0xf")
        for src, acc in ((CB, L_ACC1), (SB, L_ACC2)):
            a(f"v_cvt_pk_bf16_f32 v{X}, v{src}, v{src}")
            self.gemv(X, P, B, [(D1, WB), (D2, WB + 20)], 5)
            self.fold_col(D1, D2, Y)
            self.putpart(ADD, Y, acc)
        self.hole("F", True)
        a("s_waitcnt lgkmcnt(0)"); a("s_barrier")
        C1, C2 = B + 4, B + 6
        l = a.label("FC")
        a(f"s_cmp_ge_u32 s{S_WAVE}, 4"); a(f"s_cbranch_scc1 {l}")
        for acc, Z in ((L_ACC1, T), (L_ACC2, T + 2)):
            for i, _ in enumerate(colred(acc, Z)):
                if i == 0: a("s_waitcnt lgkmcnt(0)")
        K1G, K1U, K2G, K2U = SB, G1, V_G, V_N
        a(f"v_mov_b32 v{K1G}, v{T}"); a(f"v_mov_b32 v{K1U}, v{T+1}"); a(f"v_mov_b32 v{K2G}, v{T+2}"); a(f"v_mov_b32 v{K2U}, v{T+3}")
        a(f"{l}:")
        if fd == 2: downloads(self.opt.get("td", 0), T + 1)
        self.stamp(7)
        NP = 16 if self.opt.get("w2") else 8
        if NP == 16: a(f"v_add_u32 v{T+1}, 0x10000, v{ROW}")
        def iss4():
            for i in range(NP):
                a(f"buffer_load_dword v{B+i}, v{ROW if i < 8 else T+1}, s[{R_WS}:{R_WS+3}], s{65+((i>>1)&3)} offen offset:{2560*(i&1)} sc1")
        self.poll(iss4, lambda: self.untag(list(range(B, B + NP)), V_T10, T, 0x3ff), "PA", hole="F")
        self.stamp(4)
        m, v, r, u, w = T, T + 1, T + 2, T + 3, T + 4
        self.x2calc(ROW, GA, XO, A4, B)
        a(f"v_subrev_f32 v{m}, s100, v{A4}")
        a(f"v_mul_f32 v{X}, v{m}, v{CB}"); a(f"v_cvt_pk_bf16_f32 v{X}, v{X}, v{X}")
        a(f"v_mul_f32 v{m}, v{m}, v{VAL}")
        self.gemv(X, P, B, [(D1, WB), (D2, WB + 20)], 5)
        a(f"v_mul_f32 v{v}, v{m}, v{m}")
        a(f"v_permlane32_swap_b32 v{m}, v{v}"); a(f"v_add_f32 v{m}, v{m}, v{v}")
        row_red(a, m)
        a(f"v_mov_b32 v{v}, v{m}"); a(f"v_permlane16_swap_b32 v{v}, v{m}"); a(f"v_add_f32 v{m}, v{m}, v{v}")
        self.fold_col(D1, D2, Y)
        self.setexec(1, 1)
        a(f"v_lshrrev_b32 v{v}, 3, v{V_L}"); a(f"v_add_u32 v{v}, v{v}, v{SWR}")
        a(f"ds_write_b32 v{v}, v{m} offset:{L_ST}")
        self.allexec()
        self.putpart(ADD, Y, L_ACC0)
        self.stamp(8)
        a("s_waitcnt lgkmcnt(0)"); a("s_barrier")
        a(f"s_cmp_ge_u32 s{S_WAVE}, 10"); a("s_cbranch_scc1 L_end")
        self.stamp(1)
        l = a.label("FA")
        a(f"s_cmp_ge_u32 s{S_WAVE}, 4"); a(f"s_cbranch_scc1 {l}")
        a(f"ds_read_b64 v[{m}:{v}], v{SRD_} offset:{L_ST}")
        Z = A4
        cr = colred(L_ACC0, Z); next(cr)
        a("s_waitcnt lgkmcnt(2)")
        mds = ("quad_perm:[1,0,3,2]", "quad_perm:[2,3,0,1]", "row_half_mirror", "row_mirror")
        st = []
        for md in mds: st.append([f"v_add_f32_dpp v{q}, v{q}, v{q} {md} row_mask:0xf bank_mask:0xf" for q in (m, v)])
        st.append([f"v_mul_f32 v{m}, {fh(1.0/640)}, v{m}", f"v_mul_f32 v{v}, {fh(1.0/640)}, v{v}", f"v_fma_f32 v{v}, -v{m}, v{m}, v{v}",
                   f"v_add_f32 v{m}, s100, v{m}", f"v_max_f32 v{v}, 0, v{v}", f"v_cvt_pk_bf16_f32 v{m}, 0, v{m}", f"v_cvt_pk_bf16_f32 v{v}, 0, v{v}"])
        st.append([f"v_add_f32 v{v}, {fh(1e-5)}, v{v}", f"v_sub_f32 v{m}, s100, v{m}", f"v_cvt_pk_bf16_f32 v{v}, 0, v{v}", f"v_sqrt_f32 v{v}, v{v}"])
        st.append([f"v_cvt_pk_bf16_f32 v{v}, 0, v{v}", f"v_rcp_f32 v{r}, v{v}"])
        for x in st[0] + st[1]: a(x)
        a("s_waitcnt lgkmcnt(0)")
        for grp in st[2:]:
            next(cr, None)
            for x in grp: a(x)
        for _ in cr: pass
        a(f"v_fmac_f32 v{Z}, v{m}, v{K1G}"); a(f"v_fmac_f32 v{Z+1}, v{m}, v{K1U}")
        a(f"v_fma_f32 v{Z}, v{Z}, v{r}, v{K2G}"); a(f"v_fma_f32 v{Z+1}, v{Z+1}, v{r}, v{K2U}")
        bfr(a, Z, Z); bfr(a, Z + 1, Z + 1)
        gelu(a, X, Z, T + 2, T + 3, T + 4); bfr(a, X, X)
        a(f"v_mul_f32 v{X}, v{X}, v{Z+1}"); a(f"v_cvt_pk_bf16_f32 v{X}, v{X}, v{X}")
        a(f"ds_write_b32 v{AWR}, v{X} offset:{L_ACT}")
        self.hole("F", True)
        a("s_waitcnt lgkmcnt(0)")
        a(f"{l}:")
        a("s_barrier")
        self.stamp(5)
        a(f"ds_read_b32 v{X}, v{GPOS} offset:{L_ACT}")
        a("s_waitcnt lgkmcnt(0)")
        if self.opt.get("fs"): self.stamp(9)
        self.gemv(X, P, B, [(D1, WA)], 8)
        for r_ in range(4): a(f"v_permlane32_swap_b32 v{D1+r_}, v{D2+r_}")
        for r_ in range(4): a(f"v_add_f32_dpp v{D1+r_}, v{D2+r_}, v{D1+r_} row_ror:8 row_mask:0xf bank_mask:0xf")
        for r_ in range(4): a(f"v_bfi_b32 v{D1+r_}, s{S_M10}, v{V_T10}, v{D1+r_}")
        if self.opt.get("fs"): a(f"v_readfirstlane_b32 s79, v{D1+3}"); self.stamp(2)
        self.setexec(0x00ff00ff, 0)
        a(f"buffer_store_dwordx4 v[{D1}:{D1+3}], v{DOFF}, s[{R_WS}:{R_WS+3}], s72 offen sc1")
        a(f"buffer_store_dwordx4 v[{D1}:{D1+3}], v{DOFF}, s[{R_WS}:{R_WS+3}], s71 offen sc1")
        self.allexec()
        if self.stamps:
            a(f"s_cmp_lg_u32 s{S_WAVE}, {self.opt.get('sw', 0)}"); a("s_cbranch_scc1 L_end")
            self.stamp(6); self.flush_stamps(10, role='F')
        a("s_endpgm")

    def role_f2(self):
        a = self.a
        ROW, VO, X, B, D1, D2, Y, T, XO, ADD, CPOS, UOFF, P = self.ROW, self.VO, self.X, self.B, self.D1, self.D2, self.Y, self.T, self.XO, self.ADD, self.CPOS, self.UOFF, self.P
        WB = 64
        tf = self.opt.get("tf", 3); td = self.opt.get("td", 6)
        GST = 528
        a("; GRP F")
        self.hole("F")
        a("L_f:")
        a(f"s_sub_u32 s69, s2, {NM}")
        fsz = 0 if self.opt.get("xf") else 640 * 1728 * 2
        a(f"s_cmp_ge_u32 s{S_WAVE}, 10"); a("s_cbranch_scc1 L_fd")
        srd(a, R_C, S_WG, fsz); srd(a, R_E, S_WU, fsz)
        a(f"v_bfe_u32 v{T}, v{V_L}, 3, 1"); a(f"v_lshl_add_u32 v{T}, v{T}, 5, v{V_G}"); a(f"v_mul_u32_u24 v{VO}, 3456, v{T}")
        a(f"v_and_b32 v{T}, 7, v{V_L}"); a(f"v_lshl_add_u32 v{VO}, v{T}, 4, v{VO}")
        a(f"s_mul_i32 s62, s{S_WAVE}, {64*3456}"); a("s_lshl_b32 s63, s69, 7"); a("s_add_u32 s62, s62, s63")
        a(f"s_lshl_b32 s73, s{S_WAVE}, 6"); a(f"v_lshl_add_u32 v{ROW}, v{V_N}, 2, v{V_G}"); a(f"v_add_u32 v{ROW}, s73, v{ROW}")
        a(f"v_lshlrev_b32 v{T}, 1, v{ROW}"); a(f"v_lshlrev_b32 v{ROW}, 2, v{ROW}")
        a(f"buffer_load_ushort v{XO}, v{T}, s[{R_D}:{R_D+3}], 0 offen")
        for t in range(8):
            if t: a(f"s_add_u32 s62, s62, {4*3456}")
            for h, sr in enumerate((R_C, R_E)):
                a(f"s_waitcnt vmcnt({tf-1})")
                a(f"buffer_load_dwordx4 v[{WB+32*h+4*t}:{WB+32*h+4*t+3}], v{VO}, s[{sr}:{sr+3}], s62 offen nt")
                if 2 * t + h == self.opt.get("fb", 15): a("s_barrier")
        GA, SB, CB, A4 = T + 5, T + 6, T + 7, T + 8
        GPOS, PAD, SRD_, SWR = 52, 53, 54, 55
        AWR, G1 = VO, 13
        a(f"v_lshlrev_b32 v{GPOS}, 2, v{V_L}")
        self.wraddr(ADD, GST)
        a(f"s_lshl_b32 s73, s{S_WAVE}, 4"); a(f"v_lshlrev_b32 v{T+1}, 2, v{V_G}"); a(f"v_add_u32 v{T+1}, s73, v{T+1}")
        self.colpos(CPOS, T + 1, T)
        a(f"v_mul_u32_u24 v{T}, {GST}, v{V_N}"); a(f"v_add_u32 v{CPOS}, v{CPOS}, v{T}")
        a(f"s_lshl_b32 s73, s{S_WAVE}, 6"); a(f"v_and_b32 v{AWR}, 60, v{V_L}"); a(f"v_add_u32 v{AWR}, s73, v{AWR}")
        a(f"v_and_b32 v{T}, 1, v{V_G}"); a(f"v_mul_u32_u24 v{PAD}, 2560, v{T}"); a(f"v_lshrrev_b32 v{T}, 1, v{V_G}"); a(f"v_lshl_add_u32 v{PAD}, v{T}, 14, v{PAD}")
        a(f"v_lshl_add_u32 v{PAD}, v{V_N}, 4, v{PAD}")
        a(f"v_lshlrev_b32 v{SRD_}, 3, v{V_N}")
        a(f"s_lshl_b32 s73, s{S_WAVE}, 3"); a(f"v_lshrrev_b32 v{SWR}, 3, v{V_L}"); a(f"v_add_u32 v{SWR}, s73, v{SWR}")
        a(f"s_mov_b32 s63, {WS_MOD+1280*4}"); a(f"s_mov_b32 s64, {WS_MOD+2560*4}")
        a(f"s_mov_b32 s75, {WS_VOTE}")
        self.voteld(A4, GPOS)
        def iss3():
            a(f"buffer_load_dword v{GA}, v{ROW}, s[{R_WS}:{R_WS+3}], s63 offen sc1")
            a(f"buffer_load_dword v{SB}, v{ROW}, s[{R_WS}:{R_WS+3}], s63 offen offset:2560 sc1")
            a(f"buffer_load_dword v{CB}, v{ROW}, s[{R_WS}:{R_WS+3}], s64 offen sc1")
        self.poll(iss3, lambda: self.untag([GA, SB, CB], V_T16, T, 0xffff), "PG", hole="F")
        self.stamp(3)
        self.side(A4, 70)
        NJ = 4 if self.opt.get("w2") else 2
        a(f"s_lshl_b32 s73, s{S_WAVE}, 8"); a("s_add_u32 s70, s70, s73")
        for i in range(NJ): a(f"s_add_u32 s{65+i}, s70, {WS_A+32768*i}")
        a(f"v_add_f32 v{CB}, 1.0, v{CB}"); bfr(a, CB, CB)
        a(f"v_lshlrev_b32 v{XO}, 16, v{XO}")
        def colred(acc, Z):
            a(f"ds_read_b128 v[{D1}:{D1+3}], v{CPOS} offset:{acc}"); a(f"ds_read_b128 v[{D2}:{D2+3}], v{CPOS} offset:{acc+32}")
            yield
            for D, R in ((D1, B), (D2, B + 2)):
                for j in range(2): a(f"v_add_f32_dpp v{R+j}, v{D+j}, v{D+j} row_ror:8 row_mask:0xf bank_mask:0x3")
            for D, R in ((D1, B), (D2, B + 2)):
                for j in range(2): a(f"v_add_f32_dpp v{R+j}, v{D+2+j}, v{D+2+j} row_ror:8 row_mask:0xf bank_mask:0xc")
            yield
            for R, z in ((B, Z), (B + 2, Z + 1)): a(f"v_add_f32_dpp v{z}, v{R}, v{R} row_shl:4 row_mask:0xf bank_mask:0x5")
            yield
            for R, z in ((B, Z), (B + 2, Z + 1)): a(f"v_add_f32_dpp v{z}, v{R+1}, v{R+1} row_shr:4 row_mask:0xf bank_mask:0xa")
            for md in ("quad_perm:[1,0,3,2]", "quad_perm:[2,3,0,1]"):
                yield
                for z in (Z, Z + 1): a(f"v_add_f32_dpp v{z}, v{z}, v{z} {md} row_mask:0xf bank_mask:0xf")
        a(f"v_cvt_pk_bf16_f32 v{X}, v{CB}, v{CB}"); a(f"v_add_u32 v{T}, {L_ACC1}, v{ADD}"); a("s_mov_b32 s73, 0")
        a("L_fp:")
        self.gemv(X, P, B, [(D1, WB), (D2, WB + 32)], 8)
        self.fold_col(D1, D2, Y)
        self.putpart(T, Y, 0)
        a(f"v_cvt_pk_bf16_f32 v{X}, v{SB}, v{SB}"); a(f"v_add_u32 v{T}, {L_ACC2}, v{ADD}")
        a("s_add_u32 s73, s73, 1"); a("s_cmp_lt_u32 s73, 2"); a("s_cbranch_scc1 L_fp")
        self.hole("F", True)
        a("s_waitcnt lgkmcnt(0)"); a("s_barrier")
        l = a.label("FC")
        a(f"s_cmp_ge_u32 s{S_WAVE}, 4"); a(f"s_cbranch_scc1 {l}")
        for acc, Z in ((L_ACC1, T), (L_ACC2, T + 2)):
            for i, _ in enumerate(colred(acc, Z)):
                if i == 0: a("s_waitcnt lgkmcnt(0)")
        K1G, K1U, K2G, K2U = 56, 57, 58, 59
        a(f"v_mov_b32 v{K1G}, v{T}"); a(f"v_mov_b32 v{K1U}, v{T+1}"); a(f"v_mov_b32 v{K2G}, v{T+2}"); a(f"v_mov_b32 v{K2U}, v{T+3}")
        a(f"{l}:")
        self.stamp(7)
        def iss4():
            for i in range(NJ):
                a(f"buffer_load_dwordx4 v[{B+4*i}:{B+4*i+3}], v{PAD}, s[{R_WS}:{R_WS+3}], s{65+i} offen sc1")
        self.poll(iss4, lambda: self.untag(list(range(B, B + 4 * NJ)), V_T10, T, 0x3ff), "PA", hole="F")
        self.stamp(4)
        m, v, r, u, w = T, T + 1, T + 2, T + 3, T + 4
        if NJ == 4:
            for i in range(0, 8, 2): a(f"v_pk_add_f32 v[{B+i}:{B+i+1}], v[{B+i}:{B+i+1}], v[{B+8+i}:{B+9+i}]")
        for i in (0, 2): a(f"v_pk_add_f32 v[{B+i}:{B+i+1}], v[{B+i}:{B+i+1}], v[{B+4+i}:{B+5+i}]")
        a(f"v_permlane32_swap_b32 v{B}, v{B+2}"); a(f"v_permlane32_swap_b32 v{B+1}, v{B+3}")
        a(f"v_pk_add_f32 v[{B}:{B+1}], v[{B}:{B+1}], v[{B+2}:{B+3}]")
        a(f"v_permlane16_swap_b32 v{B}, v{B+1}")
        a(f"v_add_f32 v{A4}, v{B}, v{B+1}")
        bfr(a, A4, A4)
        a(f"v_mul_f32 v{A4}, v{GA}, v{A4}"); bfr(a, A4, A4)
        a(f"v_add_f32 v{A4}, v{XO}, v{A4}"); bfr(a, A4, A4)
        a(f"v_subrev_f32 v{m}, s100, v{A4}")
        a(f"v_mul_f32 v{X}, v{m}, v{CB}"); a(f"v_cvt_pk_bf16_f32 v{X}, v{X}, v{X}")
        st = [f"v_mul_f32 v{v}, v{m}, v{m}", f"v_permlane32_swap_b32 v{m}, v{v}", f"v_add_f32 v{m}, v{m}, v{v}"]
        st += [f"v_add_f32_dpp v{m}, v{m}, v{m} {md} row_mask:0xf bank_mask:0xf" for md in ("quad_perm:[1,0,3,2]", "quad_perm:[2,3,0,1]", "row_half_mirror", "row_mirror")]
        st += [f"v_mov_b32 v{v}, v{m}"]
        self.gemv(X, P, B, [(D1, WB), (D2, WB + 32)], 8, pre=lambda t: a(st[t]))
        a(f"v_permlane16_swap_b32 v{v}, v{m}"); a(f"v_add_f32 v{m}, v{m}, v{v}")
        self.setexec(1, 1)
        a(f"ds_write_b32 v{SWR}, v{m} offset:{L_ST}")
        self.allexec()
        self.fold_col(D1, D2, Y)
        self.putpart(ADD, Y, L_ACC0)
        self.stamp(8)
        a("s_waitcnt lgkmcnt(0)"); a("s_barrier")
        self.stamp(1)
        a(f"s_cmp_ge_u32 s{S_WAVE}, 4"); a(f"s_cbranch_scc1 {'L_fpw' if self.stamps and self.opt.get('pw') else 'L_end'}")
        a(f"ds_read_b64 v[{m}:{v}], v{SRD_} offset:{L_ST}")
        Z = A4
        cr = colred(L_ACC0, Z); next(cr)
        a("s_waitcnt lgkmcnt(2)")
        mds = ("quad_perm:[1,0,3,2]", "quad_perm:[2,3,0,1]", "row_half_mirror", "row_mirror")
        st = []
        for md in mds: st.append([f"v_add_f32_dpp v{q}, v{q}, v{q} {md} row_mask:0xf bank_mask:0xf" for q in (m, v)])
        st.append([f"v_mul_f32 v{m}, {fh(1.0/640)}, v{m}", f"v_mul_f32 v{v}, {fh(1.0/640)}, v{v}", f"v_fma_f32 v{v}, -v{m}, v{m}, v{v}",
                   f"v_add_f32 v{m}, s100, v{m}", f"v_max_f32 v{v}, 0, v{v}", f"v_cvt_pk_bf16_f32 v{m}, 0, v{m}", f"v_cvt_pk_bf16_f32 v{v}, 0, v{v}"])
        st.append([f"v_add_f32 v{v}, {fh(1e-5)}, v{v}", f"v_sub_f32 v{m}, s100, v{m}", f"v_cvt_pk_bf16_f32 v{v}, 0, v{v}", f"v_sqrt_f32 v{v}, v{v}"])
        st.append([f"v_cvt_pk_bf16_f32 v{v}, 0, v{v}", f"v_rcp_f32 v{r}, v{v}"])
        for x in st[0] + st[1]: a(x)
        a("s_waitcnt lgkmcnt(0)")
        for grp in st[2:]:
            next(cr, None)
            for x in grp: a(x)
        for _ in cr: pass
        a(f"v_fmac_f32 v{Z}, v{m}, v{K1G}"); a(f"v_fmac_f32 v{Z+1}, v{m}, v{K1U}")
        a(f"v_fma_f32 v{Z}, v{Z}, v{r}, v{K2G}"); a(f"v_fma_f32 v{Z+1}, v{Z+1}, v{r}, v{K2U}")
        bfr(a, Z, Z); bfr(a, Z + 1, Z + 1)
        gelu(a, X, Z, T + 2, T + 3, T + 4); bfr(a, X, X)
        a(f"v_mul_f32 v{X}, v{X}, v{Z+1}"); a(f"v_cvt_pk_bf16_f32 v{X}, v{X}, v{X}")
        a(f"ds_write_b32 v{AWR}, v{X} offset:{L_ACT}")
        a("s_waitcnt lgkmcnt(0)")
        a("s_barrier")
        if self.stamps:
            a("L_fpw:")
            self.pw([7, 4, 8, 1, -1])
            a(f"s_cmp_lg_u32 s{S_WAVE}, 0"); a("s_cbranch_scc1 L_end")
            self.flush_stamps(5, role='F'); self.flush_stamps(10, 7, role='F')
        a("s_endpgm")
        self.hole("F")
        a("L_fd:")
        DOFF = 53
        a(f"s_cmp_lt_u32 s{S_WAVE}, 15"); a(f"s_cselect_b32 s67, {fsz}, 0")
        srd(a, R_A, S_WD, "s67")
        self.wraddr(ADD, GST)
        a(f"v_mov_b32 v{Y}, 0"); a(f"v_mov_b32 v{Y+1}, 0")
        self.putpart(ADD, Y, L_ACC1); self.putpart(ADD, Y, L_ACC2)
        a(f"s_lshl_b32 s73, s{S_WAVE}, 3"); a(f"v_mov_b32 v{T}, s73"); a(f"ds_write_b64 v{T}, v[{Y}:{Y+1}] offset:{L_ST}")
        a(f"s_sub_u32 s74, s{S_WAVE}, 10")
        self.colvoff(VO, 8 * 1280, T)
        a(f"s_mul_i32 s62, s69, {64*1280}"); a(f"s_lshl_b32 s63, s74, 8"); a("s_add_u32 s62, s62, s63")
        a(f"v_lshlrev_b32 v{GPOS}, 2, v{V_L}")
        a(f"v_and_b32 v{T}, 1, v{V_G}"); a(f"v_mul_u32_u24 v{DOFF}, 3456, v{T}"); a(f"v_lshrrev_b32 v{T}, 1, v{V_G}"); a(f"v_mul_u32_u24 v{T}, 16512, v{T}")
        a(f"v_add_u32 v{DOFF}, v{DOFF}, v{T}"); a(f"v_lshl_add_u32 v{DOFF}, v{V_N}, 4, v{DOFF}")
        a("s_lshl_b32 s72, s69, 7"); a(f"s_mul_i32 s73, s74, {2*16512}"); a("s_add_u32 s72, s72, s73"); a(f"s_add_u32 s72, s72, {WS_D}"); a("s_add_u32 s71, s72, 8192")
        a("s_barrier")
        for t in range(8):
            if t == 3 or t == 6: a(f"s_add_u32 s62, s62, {3*1280}")
            for h in range(2):
                if 2 * t + h >= td: a(f"s_waitcnt vmcnt({td-1})")
                a(f"buffer_load_dwordx4 v[{WB+32*h+4*t}:{WB+32*h+4*t+3}], v{VO}, s[{R_A}:{R_A+3}], s62 offen offset:{1280*(t%3)+128*h} nt")
        a("s_waitcnt lgkmcnt(0)"); a("s_barrier")
        self.putpart(ADD, Y, L_ACC0)
        a("s_waitcnt lgkmcnt(0)")
        a(f"s_cmp_eq_u32 s{S_WAVE}, 15"); a("s_cbranch_scc1 L_end")
        if self.opt.get("fs"): a("s_waitcnt vmcnt(0)"); self.stamp(5)
        a("s_barrier"); a("s_barrier")
        if not self.opt.get("fs"): self.stamp(5)
        a(f"ds_read_b32 v{X}, v{GPOS} offset:{L_ACT}")
        a("s_waitcnt vmcnt(0) lgkmcnt(0)")
        self.gemv(X, P, B, [(D1, WB), (D2, WB + 32)], 8)
        for r_ in range(4): a(f"v_permlane32_swap_b32 v{D1+r_}, v{D2+r_}")
        for r_ in range(4): a(f"v_add_f32_dpp v{D1+r_}, v{D2+r_}, v{D1+r_} row_ror:8 row_mask:0xf bank_mask:0xf")
        for r_ in range(4): a(f"v_bfi_b32 v{D1+r_}, s{S_M10}, v{V_T10}, v{D1+r_}")
        self.setexec(0x00ff00ff, 0x00ff00ff)
        a(f"buffer_store_dwordx4 v[{D1}:{D1+3}], v{DOFF}, s[{R_WS}:{R_WS+3}], s72 offen sc1")
        a(f"buffer_store_dwordx4 v[{D1}:{D1+3}], v{DOFF}, s[{R_WS}:{R_WS+3}], s71 offen sc1")
        self.allexec()
        if self.stamps:
            self.stamp(6)
            self.pw([5, 5, 6, 6, -1])
            a(f"s_cmp_lg_u32 s{S_WAVE}, {self.opt.get('sw', 14)}"); a("s_cbranch_scc1 L_end")
            self.flush_stamps(7, 5, role='F')
        a("s_endpgm")

    def regroup(self, WB):
        for t in range(4):
            for x, y in ((2, 8), (3, 9), (6, 12), (7, 13)): self.a(f"v_swap_b32 v{WB+16*t+x}, v{WB+16*t+y}")

    def sgemv(self, srcs, AR, D, WB, IDX, fill=(), wide=False):
        a = self.a; fill = list(fill)
        def prep(t, ds):
            for src, bm in srcs:
                if wide:
                    for d in ds[::2]: a(f"v_mov_b64_dpp v[{AR+4*t+d}:{AR+4*t+d+1}], v[{src}:{src+1}] row_newbcast:{4*t+d} row_mask:0xf bank_mask:{bm:#x}")
                else:
                    for d in ds: a(f"v_mov_b32_dpp v{AR+4*t+d}, v{src} row_newbcast:{4*t+d} row_mask:0xf bank_mask:{bm:#x}")
        if wide:
            src = srcs[0][0]; assert len(srcs) == 1 and src % 2 == 0
            a(f"v_mov_b32_dpp v{src+1}, v{src} quad_perm:[1,1,3,3] row_mask:0xf bank_mask:0xf")
            if wide == 2:
                wide = False; prep(0, (0, 1)); wide = True; prep(0, (2, 3)); prep(1, (0, 1))
            else:
                for _ in range(2):
                    if fill: a(fill.pop(0))
                prep(0, range(4)); prep(1, (0, 1))
            if fill: a(fill.pop(0))
        else: prep(0, range(4)); prep(1, (0, 1))
        for t in range(4):
            for h in range(2):
                a(f"v_smfmac_f32_16x16x64_bf16 v[{D+4*h}:{D+4*h+3}], v[{AR+4*t}:{AR+4*t+3}], v[{WB+16*t+8*h}:{WB+16*t+8*h+7}], v{IDX}")
                k = 2 * t + h + 3
                if k < 8: prep(k >> 1, (2 * (k & 1), 2 * (k & 1) + 1))
                for _ in range(1 if k < 8 else 2):
                    if fill: a(fill.pop(0))
        for x in fill: a(x)

    def gu_row(self, T):
        a = self.a
        a(f"v_and_b32 v{T}, 1, v{V_G}"); a(f"v_lshrrev_b32 v{T+1}, 1, v{V_G}"); a(f"v_lshl_add_u32 v{T+1}, v{T}, 3, v{T+1}")

    def gu_addr(self, T):
        a = self.a; VO, AD = self.VO, 56
        r0 = 32 if self.opt.get("ne") else 0
        a(f"v_mul_u32_u24 v{VO}, 3456, v{T+1}"); a(f"v_and_b32 v{T}, 7, v{V_N}"); a(f"v_lshl_add_u32 v{VO}, v{T}, 4, v{VO}")
        a(f"s_mul_i32 s62, s{S_WAVE}, {64*3456}"); a("s_lshl_b32 s63, s69, 7"); a("s_add_u32 s62, s62, s63"); a(f"s_add_u32 s62, s62, {(r0+1)*3456}")
        a(f"v_add_u32 v{VO}, s62, v{VO}")
        if self.opt.get("xc", 0) & 2:
            a(f"v_lshlrev_b32 v{VO}, 7, v{V_G}"); a(f"v_lshl_add_u32 v{VO}, v{T}, 4, v{VO}")
            a("s_mul_i32 s62, s69, 10"); a(f"s_add_u32 s62, s62, s{S_WAVE}"); a("s_lshl_b32 s62, s62, 13"); a("s_add_u32 s62, s62, 256"); a(f"v_add_u32 v{VO}, s62, v{VO}")
        a(f"v_mov_b32 v{AD}, s{S_WG}"); a(f"v_mov_b32 v{AD+1}, s{S_WG+1}"); a(f"v_mov_b32 v{T}, s{S_WU}"); a(f"v_mov_b32 v{T+1}, s{S_WU+1}")
        a(f"v_cmp_lt_u32 vcc, 7, v{V_N}"); a(f"v_cndmask_b32 v{AD}, v{AD}, v{T}, vcc"); a(f"v_cndmask_b32 v{AD+1}, v{AD+1}, v{T+1}, vcc")
        a(f"v_add_co_u32 v{AD}, vcc, v{AD}, v{VO}"); a(f"v_addc_co_u32 v{AD+1}, vcc, 0, v{AD+1}, vcc")
        a(f"s_mov_b32 s64, {4*3456}"); a("s_mov_b32 s65, 0"); a(f"s_mov_b32 s66, {12*3456}"); a("s_mov_b32 s67, 0")
        if self.opt.get("xc", 0) & 2: a(f"s_mov_b32 s64, 1024"); a(f"s_mov_b32 s66, 1024")

    def gu_ld(self, j, thr):
        a = self.a; AD, WB = 56, 64
        ne = self.opt.get("ne", 0); tf = self.opt.get("tf", 3)
        if ne and j == 8:
            if self.opt.get("xc", 0) & 2: a("s_mov_b32 s62, 1024"); a("s_mov_b32 s63, 0")
            else: a(f"s_mov_b32 s62, {-52*3456}"); a("s_mov_b32 s63, -1")
            a(f"v_lshl_add_u64 v[{AD}:{AD+1}], v[{AD}:{AD+1}], 0, s[62:63]")
        elif j and j % 2 == 0: a(f"v_lshl_add_u64 v[{AD}:{AD+1}], v[{AD}:{AD+1}], 0, s[{64 if j % 4 else 66}:{65 if j % 4 else 67}]")
        if isinstance(tf, list): tf = tf[j]
        if thr: a(f"s_waitcnt vmcnt({tf-1})")
        r = WB + 4 * ((j + 8) % 16 if ne else j)
        if self.opt.get("xf"): return
        a(f"global_load_dwordx4 v[{r}:{r+3}], v[{AD}:{AD+1}], off offset:{(1 if j & 1 else -1) * (256 if self.opt.get('xc', 0) & 2 else 3456)} nt")

    def pace(self, n, t):
        for _ in range(n): self.a(f"ds_read_b32 v{t}, v{t} offset:{L_FLAG}"); self.a("s_waitcnt lgkmcnt(0)")

    def f3_sp(self, sp, B, D, WB, IDX, PAD, SWR, X):
        a = self.a; dp = "row_mask:0xf bank_mask:0xf"
        GA, CB, XO, ADD, m, v, A4, t = 4, 5, 6, 7, 56, 57, 60, 0
        sets = [B, B + 16]; ms = [60, 62, 72, 78]
        def ld(S, i): a(f"buffer_load_dwordx4 v[{S+4*i}:{S+4*i+3}], v{PAD}, s[{R_WS}:{R_WS+3}], s{65+i} offen sc1")
        s0 = self.opt.get("sq", [0, 0])
        def gap():
            if s0[0]:
                a(f"s_lshl_b32 s76, s{S_WAVE}, 7")
                for j in range(s0[0]): a(f"s_load_dword s77, s[{(S_X, S_C)[j]}:{(S_X, S_C)[j]+1}], s76"); a("s_waitcnt lgkmcnt(0)")
        def chk(k, S, n):
            a(f"s_waitcnt vmcnt({n})")
            for i in range(4): a(f"v_and_b32 v{t+i}, s{S_M10}, v{S+4*i}")
            for i, q in enumerate(ms): a(f"v_cmp_ne_u32 s[{q}:{q+1}], v{t+i}, v{V_T10}")
            a(f"s_or_b64 vcc, s[{ms[0]}:{ms[0]+1}], s[{ms[1]}:{ms[1]+1}]")
            for q in ms[2:]: a(f"s_or_b64 vcc, vcc, s[{q}:{q+1}]")
            a(f"s_cbranch_scc0 L_sp{k}")
        def re(S):
            for i, q in enumerate(ms):
                if sp == 4:
                    l = a.label("SK")
                    a(f"s_quadmask_b64 s[76:77], s[{q}:{q+1}]"); a(f"s_cbranch_scc0 {l}"); a("s_wqm_b32 s76, s76")
                    a("s_bitreplicate_b64_b32 s[76:77], s76"); a("s_bitreplicate_b64_b32 exec, s76")
                    ld(S, i); a(f"{l}:")
                    continue
                if sp in (1, 5): a(f"s_cmp_lg_u64 s[{q}:{q+1}], 0"); a("s_cselect_b64 exec, -1, 1")
                else:
                    a(f"s_quadmask_b64 s[76:77], s[{q}:{q+1}]"); a("s_wqm_b32 s76, s76")
                    a("s_bitreplicate_b64_b32 s[76:77], s76"); a("s_max_u32 s76, s76, 1"); a("s_bitreplicate_b64_b32 exec, s76")
                ld(S, i)
            self.allexec()
        if sp == 4: sets = sets[:1]
        a(f"s_mov_b32 s{S_CNT}, 0")
        for i in range(4): ld(sets[0], i)
        if sp in (3, 5):
            chk(0, sets[0], 0)
            for i in range(0, 16, 2): a(f"v_mov_b64 v[{sets[1]+i}:{sets[1]+i+1}], v[{sets[0]+i}:{sets[0]+i+1}]")
            re(sets[0]); gap(); re(sets[1])
        elif sp < 3:
            gap()
            for i in range(4): ld(sets[1], i)
        a("L_sp:")
        for k, S in enumerate(sets):
            chk(k, S, 4 * (len(sets) - 1)); re(S)
        a(f"s_add_u32 s{S_CNT}, s{S_CNT}, 1"); a(f"s_cmp_lt_u32 s{S_CNT}, {SPIN}"); a("s_cbranch_scc1 L_sp")
        a("s_branch L_sp0")
        for k, S in enumerate(sets):
            self.hole("F")
            a(f"L_sp{k}:")
            self.stamp(4)
            for i in range(4): a(f"v_xor_b32 v{S+4*i}, v{S+4*i}, v{V_T10}")
            for i in range(8): a(f"v_add_f32 v{S+i}, v{S+i}, v{S+8+i}")
            for i in (0, 2, 1, 3): a(f"v_add_f32 v{S+i}, v{S+i}, v{S+4+i}")
            a(f"v_permlane32_swap_b32 v{S}, v{S+2}"); a(f"v_permlane32_swap_b32 v{S+1}, v{S+3}")
            a(f"v_add_f32 v{S}, v{S}, v{S+2}"); a(f"v_add_f32 v{S+1}, v{S+1}, v{S+3}")
            a(f"v_permlane16_swap_b32 v{S}, v{S+1}")
            a(f"v_add_f32 v{A4}, v{S}, v{S+1}")
            bfr(a, A4, A4)
            a(f"v_mul_f32 v{A4}, v{GA}, v{A4}"); bfr(a, A4, A4)
            a(f"v_add_f32 v{A4}, v{XO}, v{A4}"); bfr(a, A4, A4)
            a(f"v_subrev_f32 v{m}, s100, v{A4}")
            a(f"v_mul_f32 v{X}, v{m}, v{CB}"); bfr(a, X, X)
            a(f"v_mul_f32 v{v}, v{m}, v{m}")
            st = [f"v_permlane32_swap_b32 v{m}, v{v}", f"v_add_f32 v{m}, v{m}, v{v}"]
            st += [f"v_add_f32_dpp v{m}, v{m}, v{m} {md} {dp}" for md in ("quad_perm:[1,0,3,2]", "quad_perm:[2,3,0,1]", "row_half_mirror", "row_mirror")]
            st += [f"v_mov_b32 v{v}, v{m}", "s_mov_b32 s76, 1", f"v_permlane16_swap_b32 v{v}, v{m}", "s_mov_b32 s77, 1", f"v_add_f32 v{m}, v{m}, v{v}"]
            self.sgemv([(X, 0xf)], S, D, WB, IDX, st)
            a("s_mov_b64 exec, s[76:77]")
            a(f"ds_write_b32 v{SWR}, v{m} offset:{L_ST}")
            a("s_mov_b64 exec, 0xffff")
            for h in range(2): a(f"ds_write_b128 v{ADD}, v[{D+4*h}:{D+4*h+3}] offset:{L_ACC0+16*h}")
            if k < len(sets) - 1: a("s_branch L_spx")
        a("L_spx:")

    def role_f3(self):
        a = self.a
        ROW, VO, X, B, T, XO, ADD = self.ROW, self.VO, self.X, self.B, self.T, self.XO, self.ADD
        WB, IDX, D, AD, PAD, SWR, GPOS = 64, 13, 48, 56, 58, 59, 60
        tf = self.opt.get("tf", 3); td = self.opt.get("td", 6)
        GST = 512
        dp = "row_mask:0xf bank_mask:0xf"
        a("; GRP F")
        self.hole("F")
        a("L_f:")
        a(f"s_sub_u32 s69, s2, {NM}")
        a(f"v_and_b32 v{T}, 3, v{V_N}"); a(f"v_mul_u32_u24 v{IDX}, 0x5555, v{T}")
        self.gu_row(T)
        for i in range(8): a(f"v_mov_b32 v{D+i}, 0")
        a(f"s_cmp_ge_u32 s{S_WAVE}, 10"); a("s_cbranch_scc1 L_fd")
        ne = self.opt.get("ne", 0); fw = self.opt.get("fw", 0)
        if not ne: self.gu_addr(T)
        a(f"s_lshl_b32 s73, s{S_WAVE}, 6"); a(f"v_lshl_add_u32 v{ROW}, v{V_N}, 2, v{V_G}"); a(f"v_add_u32 v{ROW}, s73, v{ROW}")
        a(f"v_lshlrev_b32 v{T}, 1, v{ROW}"); a(f"v_lshlrev_b32 v{ROW}, 2, v{ROW}")
        a(f"buffer_load_ushort v{XO}, v{T}, s[{R_D}:{R_D+3}], 0 offen")
        for j in range(ne, 16):
            self.gu_ld(j, True)
            if j == self.opt.get("fb", 15):
                if fw: self.stamp(5)
                a("s_barrier")
        GA, SB, CB, A4 = T + 5, T + 6, T + 7, T + 8
        a(f"v_lshlrev_b32 v{GPOS}, 2, v{V_L}")
        a(f"s_lshl_b32 s79, s{S_WAVE}, 9"); a(f"v_lshl_add_u32 v{ADD}, v{V_N}, 5, s79")
        a(f"v_lshrrev_b32 v{T}, 1, v{V_G}"); a(f"v_mul_u32_u24 v{VO}, {L_ACC2-L_ACC1}, v{T}"); a(f"v_add_u32 v{VO}, v{VO}, v{ADD}")
        a(f"v_and_b32 v{T+1}, 1, v{V_G}"); a(f"v_mul_u32_u24 v{PAD}, 2560, v{T+1}"); a(f"v_lshl_add_u32 v{PAD}, v{T}, 14, v{PAD}")
        a(f"v_lshl_add_u32 v{PAD}, v{V_N}, 4, v{PAD}")
        a(f"s_lshl_b32 s73, s{S_WAVE}, 3"); a(f"v_lshrrev_b32 v{SWR}, 3, v{V_L}"); a(f"v_add_u32 v{SWR}, s73, v{SWR}")
        a(f"s_mov_b32 s63, {WS_MOD+1280*4}"); a(f"s_mov_b32 s64, {WS_MOD+2560*4}")
        a(f"s_mov_b32 s75, {WS_VOTE}")
        self.voteld(A4, GPOS)
        gs = self.opt.get("gs", 0)
        def iss3():
            if not gs: a(f"buffer_load_dword v{GA}, v{ROW}, s[{R_WS}:{R_WS+3}], s63 offen sc1")
            a(f"buffer_load_dword v{SB}, v{ROW}, s[{R_WS}:{R_WS+3}], s63 offen offset:2560 sc1")
            a(f"buffer_load_dword v{CB}, v{ROW}, s[{R_WS}:{R_WS+3}], s64 offen sc1")
        self.poll(iss3, lambda: self.untag([SB, CB] if gs else [GA, SB, CB], V_T16, T, 0xffff), "PG", hole="F")
        self.stamp(3)
        if fw and self.stamps: a(f"s_mov_b32 s{S_ST+16}, s{S_CNT}")
        self.side(A4, 70)
        a(f"s_lshl_b32 s73, s{S_WAVE}, 8"); a("s_add_u32 s70, s70, s73")
        if self.opt.get("qa") == 1: a("s_and_b32 s73, s69, 1"); a("s_lshl_b32 s73, s73, 19"); a("s_add_u32 s70, s70, s73")
        for i in range(4): a(f"s_add_u32 s{65+i}, s70, {WS_A+32768*i}")
        a(f"v_add_f32 v{CB}, 1.0, v{CB}"); bfr(a, CB, CB)
        a(f"v_lshlrev_b32 v{XO}, 16, v{XO}")
        self.regroup(WB)
        self.sgemv([(CB, 0x3), (SB, 0xc)], B, D, WB, IDX)
        a(f"v_mov_b32 v{T}, 0"); a(f"v_mov_b32 v{T+1}, 1")
        self.setexec(0xffff, 0xffff)
        for h in range(2): a(f"ds_write_b128 v{VO}, v[{D+4*h}:{D+4*h+3}] offset:{L_ACC1+16*h}")
        pb = self.opt.get("pb", 0)
        if not pb:
            self.setexec(1, 0)
            a(f"ds_add_u32 v{T}, v{T+1} offset:{L_CNT}")
        self.allexec()
        a("s_waitcnt lgkmcnt(0)")
        for i in range(8): a(f"v_mov_b32 v{D+i}, 0")
        la = self.opt.get("la", 0); L_S2 = 640
        if la:
            a(f"v_lshrrev_b32 v{T}, 2, v{V_N}"); a(f"v_mul_u32_u24 v{IDX}, 0x5555, v{T}")
            a(f"v_lshrrev_b32 v{SWR}, 5, v{V_L}"); a(f"v_lshlrev_b32 v{SWR}, 2, v{SWR}")
        if self.opt.get("sp"):
            for d_, s_ in ((4, GA), (5, CB), (6, XO), (7, ADD)): a(f"v_mov_b32 v{d_}, v{s_}")
        if fw: self.stamp(6)
        if pb: a("s_barrier")
        if gs: self.poll(lambda: a(f"buffer_load_dword v{GA}, v{ROW}, s[{R_WS}:{R_WS+3}], s63 offen sc1"), lambda: self.untag([GA], V_T16, T, 0xffff), "PH")
        self.stamp(7)
        lp = self.opt.get("lp")
        if lp:
            l1, l2 = a.label("LP"), a.label("LQ")
            a(f"v_and_b32 v{T}, 1, v{V_N}"); a(f"v_mul_u32_u24 v{T}, 2560, v{T}"); a(f"v_lshrrev_b32 v{T+1}, 1, v{V_N}"); a(f"v_lshl_add_u32 v{T}, v{T+1}, 14, v{T}")
            a(f"s_mov_b32 s{S_CNT}, 0"); a(f"s_mov_b64 exec, {lp[1]:#x}")
            a(f"{l1}:")
            a(f"buffer_load_dword v{T+1}, v{T}, s[{R_WS}:{R_WS+3}], s65 offen sc1")
            a("s_waitcnt vmcnt(0)")
            a(f"v_and_b32 v{T+1}, s{S_M10}, v{T+1}"); a(f"v_cmp_eq_u32 vcc, v{T+1}, v{V_T10}")
            a("s_bcnt1_i32_b64 s73, vcc"); a(f"s_cmp_ge_u32 s73, {lp[0]}"); a(f"s_cbranch_scc1 {l2}")
            a(f"s_add_u32 s{S_CNT}, s{S_CNT}, 1"); a(f"s_cmp_lt_u32 s{S_CNT}, {SPIN}"); a(f"s_cbranch_scc1 {l1}")
            a(f"{l2}:")
            self.allexec()
            self.stamp(7)
        sp = self.opt.get("sp", 0)
        if sp:
            assert not la
            self.f3_sp(sp, B, D, WB, IDX, PAD, SWR, X)
            T = 0
        else:
            lds4 = [f"buffer_load_dwordx4 v[{B+4*i}:{B+4*i+3}], v{PAD}, s[{R_WS}:{R_WS+3}], s{65+i} offen sc1" for i in range(4)]
            def iss4():
                for x in lds4: a(x)
            if self.opt.get("pp"): self.ppoll(lds4, list(range(B, B + 16, 4)), [60, 62, 72, 78], T, "PA", hole="F")
            else: self.poll(iss4, lambda: self.untag(list(range(B, B + 16, 4)), V_T10, T, 0x3ff), "PA", hole="F")
            self.stamp(4)
            m, v, r, u, w = T, T + 1, T + 2, T + 3, T + 4
            n64 = self.opt.get("n64", 0)
            if n64 & 1: X = 62
            for i in range(8): a(f"v_add_f32 v{B+i}, v{B+i}, v{B+8+i}")
            for i in (0, 2, 1, 3): a(f"v_add_f32 v{B+i}, v{B+i}, v{B+4+i}")
            a(f"v_permlane32_swap_b32 v{B}, v{B+2}"); a(f"v_permlane32_swap_b32 v{B+1}, v{B+3}")
            a(f"v_add_f32 v{B}, v{B}, v{B+2}"); a(f"v_add_f32 v{B+1}, v{B+1}, v{B+3}")
            a(f"v_permlane16_swap_b32 v{B}, v{B+1}")
            a(f"v_add_f32 v{A4}, v{B}, v{B+1}")
            bfr(a, A4, A4)
            a(f"v_mul_f32 v{A4}, v{GA}, v{A4}"); bfr(a, A4, A4)
            a(f"v_add_f32 v{A4}, v{XO}, v{A4}"); bfr(a, A4, A4)
            a(f"v_subrev_f32 v{m}, s100, v{A4}")
            a(f"v_mul_f32 v{X}, v{m}, v{CB}"); bfr(a, X, X)
            a(f"v_mul_f32 v{v}, v{m}, v{m}")
            st = [f"v_permlane32_swap_b32 v{m}, v{v}", f"v_add_f32 v{m}, v{m}, v{v}"]
            st += [f"v_add_f32_dpp v{m}, v{m}, v{m} {md} {dp}" for md in ("quad_perm:[1,0,3,2]", "quad_perm:[2,3,0,1]", "row_half_mirror", "row_mirror")]
            if la:
                st += [f"v_mul_f32 v{m}, {fh(1.0/640)}, v{m}", "s_mov_b32 s76, 0x10001", "s_mov_b32 s77, 0x10001", "s_mov_b64 exec, s[76:77]", f"ds_add_f32 v{SWR}, v{m} offset:{L_S2}", "s_mov_b64 exec, -1"]
                self.sgemv([(X, 0xf)], B, D, WB, IDX, st)
                for h in range(2): a(f"ds_add_f32 v{GPOS}, v{D+4*h} offset:{288*h}")
            else:
                st += [f"v_mov_b32 v{v}, v{m}", "s_mov_b32 s76, 1", f"v_permlane16_swap_b32 v{v}, v{m}", "s_mov_b32 s77, 1", f"v_add_f32 v{m}, v{m}, v{v}"]
                self.sgemv([(X, 0xf)], B, D, WB, IDX, st, wide=n64 & 1)
                a("s_mov_b64 exec, s[76:77]")
                a(f"ds_write_b32 v{SWR}, v{m} offset:{L_ST}")
                a("s_mov_b64 exec, 0xffff")
                for h in range(2): a(f"ds_write_b128 v{ADD}, v[{D+4*h}:{D+4*h+3}] offset:{L_ACC0+16*h}")
        if not fw: self.stamp(8)
        a("s_waitcnt lgkmcnt(0)"); a("s_barrier")
        if self.opt.get("ep", 0) >= 2:
            l = a.label("EP")
            a(f"s_or_b32 s62, s69, s{S_WAVE}"); a("s_cmp_lg_u32 s62, 0"); a(f"s_cbranch_scc1 {l}")
            a(f"v_mov_b32 v{T}, s{S_T}"); a(f"v_mov_b32 v{T+1}, 0")
            self.setexec(1, 0)
            a(f"buffer_store_dword v{T}, v{T+1}, s[{R_WS}:{R_WS+3}], 0 offen" + (" sc1" if self.opt["ep"] == 2 else ""))
            a(f"{l}:")
        if self.stamps:
            self.allexec()
            self.stamp(1)
            self.pw([5, 3, 6, 7, 8] if fw else [7, 4, 8, 1, -1])
            a(f"s_cmp_lg_u32 s{S_WAVE}, 0"); a("s_cbranch_scc1 L_end")
            self.flush_stamps(5, role='F'); self.flush_stamps(10, 7, role='F')
        a("s_endpgm")
        T = self.T; X = self.X
        if self.opt.get("n64", 0) & 2: X = 62
        self.hole("F")
        a("L_fd:")
        DOFF, RD, SRD_, K = 58, 59, 60, 44
        Q = B
        rd = self.opt.get("rd", 0)
        a(f"s_cmp_ge_u32 s{S_WAVE}, {11 if rd else 15}"); a(f"s_cbranch_scc1 {'L_race' if self.opt.get('rv') else 'L_end'}")
        if not rd: srd(a, R_A, S_WD, 0 if self.opt.get("xd") else 640 * 1728 * 2)
        a(f"v_lshlrev_b32 v{SRD_}, 3, v{V_N}")
        if la:
            assert pb
            a(f"v_lshlrev_b32 v{T}, 4, v{V_L}"); a(f"ds_write_b128 v{T}, v[{D}:{D+3}]")
            a(f"v_and_b32 v{T}, 1, v{V_N}"); a(f"v_mul_u32_u24 v{SRD_}, 288, v{T}"); a(f"v_lshl_add_u32 v{SRD_}, v{V_G}, 6, v{SRD_}")
            a(f"v_lshrrev_b32 v{T}, 1, v{V_N}"); a(f"v_lshl_add_u32 v{SRD_}, v{T}, 2, v{SRD_}")
        else: a(f"ds_write_b64 v{SRD_}, v[{D}:{D+1}] offset:{L_ST}"); a(f"ds_write_b32 v{D}, v{D} offset:{L_CNT}")
        if rd:
            a(f"v_lshlrev_b32 v{DOFF}, 2, v{V_L}"); a("s_lshl_b32 s72, s69, 8"); a(f"s_add_u32 s72, s72, {WS_D}"); a("s_add_u32 s73, s72, 8192")
        else:
            a(f"s_sub_u32 s74, s{S_WAVE}, 10")
            a(f"v_mul_u32_u24 v{VO}, 1280, v{T+1}"); a(f"v_lshl_add_u32 v{VO}, v{V_N}, 4, v{VO}")
            a(f"s_mul_i32 s62, s69, {64*1280}"); a(f"s_lshl_b32 s63, s74, 8"); a("s_add_u32 s62, s62, s63")
            a(f"v_lshrrev_b32 v{T}, 3, v{V_N}"); a(f"v_mul_u32_u24 v{DOFF}, 16512, v{T}"); a(f"v_bfe_u32 v{T}, v{V_N}, 2, 1"); a(f"v_mul_u32_u24 v{T}, 3456, v{T}")
            a(f"v_add_u32 v{DOFF}, v{DOFF}, v{T}"); a(f"v_and_b32 v{T}, 3, v{V_N}"); a(f"v_lshl_add_u32 v{DOFF}, v{T}, 4, v{DOFF}"); a(f"v_lshl_add_u32 v{DOFF}, v{V_G}, 13, v{DOFF}")
            a("s_lshl_b32 s72, s69, 7"); a(f"s_mul_i32 s73, s74, {2*16512}"); a("s_add_u32 s72, s72, s73"); a(f"s_add_u32 s72, s72, {WS_D}")
        a(f"v_lshrrev_b32 v{T}, 1, v{V_G}"); a(f"v_mul_u32_u24 v{RD}, {5*GST-512}, v{T}"); a(f"v_lshl_add_u32 v{RD}, v{V_L}, 4, v{RD}")
        if rd and self.opt.get("fj"):
            a("s_mov_b32 s70, s72"); a("s_mov_b32 s71, s73")
            self.otrig(self.opt["fj"], T)
            a("s_mov_b32 s72, s70"); a("s_mov_b32 s73, s71")
        a("s_waitcnt lgkmcnt(0)"); a("s_barrier")
        if fw: self.stamp(1)
        for j in range(0 if rd else 16):
            if j and j % 2 == 0: a(f"s_add_u32 s62, s62, {(4 if j % 4 else 12)*1280}")
            if j >= td: a(f"s_waitcnt vmcnt({td-1})")
            a(f"buffer_load_dwordx4 v[{WB+4*j}:{WB+4*j+3}], v{VO}, s[{R_A}:{R_A+3}], s62 offen offset:{2560*(j&1)} nt")
        if fw: self.stamp(3)
        def colsum(acc, Z):
            for i in range(5): a(f"ds_read_b128 v[{Q+4*i}:{Q+4*i+3}], v{RD} offset:{acc+GST*i}")
            yield
            a("s_waitcnt lgkmcnt(3)")
            for i in (0, 2): a(f"v_pk_add_f32 v[{Q+i}:{Q+i+1}], v[{Q+i}:{Q+i+1}], v[{Q+4+i}:{Q+5+i}]")
            yield
            a("s_waitcnt lgkmcnt(1)")
            for i in (0, 2): a(f"v_pk_add_f32 v[{Q+8+i}:{Q+9+i}], v[{Q+8+i}:{Q+9+i}], v[{Q+12+i}:{Q+13+i}]")
            a("s_waitcnt lgkmcnt(0)")
            for i in (0, 2): a(f"v_pk_add_f32 v[{Q+i}:{Q+i+1}], v[{Q+i}:{Q+i+1}], v[{Q+16+i}:{Q+17+i}]")
            for i in (0, 2): a(f"v_pk_add_f32 v[{Q+i}:{Q+i+1}], v[{Q+i}:{Q+i+1}], v[{Q+8+i}:{Q+9+i}]")
            yield
            a(f"v_permlane32_swap_b32 v{Q}, v{Q+2}"); a(f"v_permlane32_swap_b32 v{Q+1}, v{Q+3}")
            yield
            a(f"v_pk_add_f32 v[{Z}:{Z+1}], v[{Q}:{Q+1}], v[{Q+2}:{Q+3}]")
            yield
            a(f"v_permlane16_swap_b32 v{Z}, v{Z+1}")
        if pb:
            a(f"s_waitcnt vmcnt({self.opt.get('pk', 0)})")
            if fw: self.stamp(4)
            a("s_barrier")
        else:
            lp, dn = a.label("CL"), a.label("CD")
            a(f"s_mov_b32 s{S_CNT}, 0")
            a(f"{lp}:")
            a(f"ds_read_b32 v{T+2}, v{D} offset:{L_CNT}"); a("s_waitcnt lgkmcnt(0)")
            a(f"v_cmp_eq_u32 vcc, 10, v{T+2}"); a(f"s_cbranch_vccnz {dn}")
            a(f"s_add_u32 s{S_CNT}, s{S_CNT}, 1"); a(f"s_cmp_lt_u32 s{S_CNT}, {SPIN*16}"); a(f"s_cbranch_scc1 {lp}")
            if self.opt.get("touch", 1): a(f"s_branch {dn}"); self.hole("F")
            a(f"{dn}:")
        for acc, Z in ((L_ACC1, K), (L_ACC2, K + 2)):
            for _ in colsum(acc, Z): pass
        a("s_waitcnt vmcnt(0)")
        if rd: a("s_mov_b32 s79, 0xffff")
        else: self.regroup(WB)
        lx = self.opt.get("lx", 0)
        if lx:
            a(f"v_lshlrev_b32 v61, 2, v{V_L}"); a(f"v_mov_b32 v{X}, 1"); a(f"ds_write_b32 v61, v{X} offset:{L_ACT}")
            a(f"s_mov_b32 s{S_CNT}, 0"); a(f"s_cmp_ge_u32 s{S_WAVE}, {lx}"); a("s_waitcnt lgkmcnt(0)")
        self.stamp(9)
        self.hole("F", True)
        a("s_barrier")
        self.stamp(5)
        if lx:
            a("s_cbranch_scc0 L_lxn")
            a("L_lxs:")
            a(f"ds_read_b32 v{X}, v61 offset:{L_ACT}")
            a(f"s_add_u32 s{S_CNT}, s{S_CNT}, 1"); a(f"s_cmp_ge_u32 s{S_CNT}, {SPIN*16}"); a("s_cbranch_scc1 L_lxd")
            a("s_waitcnt lgkmcnt(0)")
            a(f"v_cmp_eq_u32 vcc, 1, v{X}"); a("s_cbranch_vccnz L_lxs")
            a("s_branch L_lxd")
            a("L_lxn:")
        if self.opt.get("x14"): a(f"s_cmp_ge_u32 s{S_WAVE}, {self.opt['x14']}"); a("s_cbranch_scc1 L_x14")
        m, v, r = T + 2, T + 3, T + 4
        Z = T + 8
        if la:
            t1, t3, t4 = T + 5, T + 6, T + 7
            kk = -2 * 0.7978845608028654 * LOG2E
            a(f"ds_read_b64 v[{m}:{v}], v{D} offset:{L_S2}")
            a(f"ds_read2_b32 v[{Z}:{Z+1}], v{SRD_} offset0:0 offset1:8")
            a("s_waitcnt lgkmcnt(1)")
            a(f"v_fma_f32 v{v}, -v{m}, v{m}, v{v}"); a(f"v_add_f32 v{m}, s100, v{m}")
            a(f"v_cvt_pk_bf16_f32 v{v}, 0, |v{v}|"); a(f"v_cvt_pk_bf16_f32 v{m}, 0, v{m}")
            a(f"v_add_f32 v{v}, {fh(1e-5)}, v{v}"); a(f"v_sub_f32 v{m}, s100, v{m}")
            a(f"v_cvt_pk_bf16_f32 v{v}, 0, v{v}"); a(f"v_sqrt_f32 v{v}, v{v}")
            a("s_waitcnt lgkmcnt(0)")
            a(f"v_fmac_f32 v{Z}, v{m}, v{K}")
            a(f"v_cvt_pk_bf16_f32 v{v}, 0, v{v}"); a(f"v_rcp_f32 v{r}, v{v}")
            a(f"v_fmac_f32 v{Z+1}, v{m}, v{K+1}")
            a(f"v_fma_f32 v{Z}, v{Z}, v{r}, v{K+2}")
            bfr(a, Z, Z)
            a(f"v_mul_f32 v{t3}, v{Z}, v{Z}"); a(f"v_mul_f32 v{t4}, {fh(kk*0.044715)}, v{Z}"); a(f"v_mul_f32 v{t1}, {fh(kk)}, v{Z}")
            a(f"v_fmac_f32 v{t1}, v{t4}, v{t3}")
        else:
            a(f"ds_read_b64 v[{m}:{v}], v{SRD_} offset:{L_ST}")
            cr = colsum(L_ACC0, Z); next(cr)
            a("s_waitcnt lgkmcnt(5)")
            mds = ("quad_perm:[1,0,3,2]", "quad_perm:[2,3,0,1]", "row_half_mirror", "row_mirror")
            st = []
            for md in mds: st.append([f"v_add_f32_dpp v{q}, v{q}, v{q} {md} {dp}" for q in (m, v)])
            st.append([f"v_mul_f32 v{m}, {fh(1.0/640)}, v{m}", f"v_mul_f32 v{v}, {fh(1.0/640)}, v{v}"])
            st.append([f"v_fma_f32 v{v}, -v{m}, v{m}, v{v}", f"v_add_f32 v{m}, s100, v{m}", f"v_max_f32 v{v}, 0, v{v}"])
            st.append([f"v_cvt_pk_bf16_f32 v{m}, 0, v{m}", f"v_cvt_pk_bf16_f32 v{v}, 0, v{v}",
                       f"v_add_f32 v{v}, {fh(1e-5)}, v{v}", f"v_sub_f32 v{m}, s100, v{m}", f"v_cvt_pk_bf16_f32 v{v}, 0, v{v}", f"v_sqrt_f32 v{v}, v{v}"])
            for x in st[0]: a(x)
            for grp in st[1:]:
                next(cr, None)
                for x in grp: a(x)
            for _ in cr: pass
            a(f"v_fmac_f32 v{Z}, v{m}, v{K}")
            a(f"v_cvt_pk_bf16_f32 v{v}, 0, v{v}"); a(f"v_rcp_f32 v{r}, v{v}")
            a(f"v_fmac_f32 v{Z+1}, v{m}, v{K+1}")
            a(f"v_fma_f32 v{Z}, v{Z}, v{r}, v{K+2}")
            bfr(a, Z, Z)
            t1, t3 = T + 5, T + 6
            kk = -2 * 0.7978845608028654 * LOG2E
            a(f"v_mul_f32 v{t3}, v{Z}, v{Z}")
            a(f"v_mul_f32 v{t1}, {fh(kk)}, v{Z}")
            a(f"v_fmaak_f32 v{t3}, s71, v{t3}, 1.0") if False else None
            a(f"v_mul_f32 v{t3}, {fh(0.044715)}, v{t3}")
            a(f"v_fmac_f32 v{t1}, v{t1}, v{t3}")
        a(f"v_exp_f32 v{t1}, v{t1}")
        a(f"v_fma_f32 v{Z+1}, v{Z+1}, v{r}, v{K+3}")
        a(f"v_add_f32 v{t1}, 1.0, v{t1}")
        a(f"v_rcp_f32 v{t1}, v{t1}")
        bfr(a, Z + 1, Z + 1)
        a(f"v_mul_f32 v{X}, v{Z}, v{t1}"); bfr(a, X, X)
        a(f"v_mul_f32 v{X}, v{X}, v{Z+1}"); bfr(a, X, X)
        if lx: a(f"ds_write_b32 v61, v{X} offset:{L_ACT}"); a("L_lxd:")
        if self.opt.get("x14"): a("L_x14:")
        if self.opt.get("pw"): self.stamp(2)
        if rd:
            a(f"v_or_b32 v{X}, v{X}, v{V_T16}")
            for h in range(2): a(f"buffer_store_dword v{X}, v{DOFF}, s[{R_WS}:{R_WS+3}], s{72+h} offen sc1")
        else:
            self.sgemv([(X, 0xf)], B, D, WB, IDX, wide=self.opt.get("n64", 0) & 2)
            a("s_mov_b32 exec_hi, 0")
            for h in range(2):
                a(f"v_bfi_b32 v{D+4*h}, s{S_M10}, v{V_T10}, v{D+4*h}")
                a(f"buffer_store_dwordx4 v[{D+4*h}:{D+4*h+3}], v{DOFF}, s[{R_WS}:{R_WS+3}], s72 offen offset:{64*h} sc1")
        if self.stamps:
            self.allexec()
            self.stamp(6)
            self.pw([1, 3, 4, 9, -1] if fw else [5, 2, 6, 9, -1])
            a(f"s_cmp_lg_u32 s{S_WAVE}, {self.opt.get('sw', 10 if rd else 14)}"); a("s_cbranch_scc1 L_end")
            self.flush_stamps(7, 5, role='F')
        a("s_endpgm")

    def role_mw(self):
        a = self.a
        X, B, D1, Y, T, ADD, CPOS, UOFF, P = self.X, self.B, self.D1, self.Y, self.T, self.ADD, self.CPOS, self.UOFF, self.P
        WO, AD, C, ML, O, RA, VA, CW = 64, 52, 58, 80, 84, 62, 63, 87
        dp = "row_mask:0xf bank_mask:0xf"
        self.hole("F")
        a("L_mw:")
        t0, t1, t5, t6 = T, T + 1, T + 2, T + 3
        a(f"v_bfe_u32 v{t0}, v{V_N}, 2, 1"); a(f"v_mul_u32_u24 v{t0}, 3, v{t0}"); a(f"v_lshrrev_b32 v{t1}, 3, v{V_N}")
        a(f"s_lshl_b32 s77, s{S_WAVE}, 5")
        a(f"v_lshl_add_u32 v{AD+1}, v{t0}, 2, s77"); a(f"v_lshl_add_u32 v{AD}, v{t1}, 2, v{AD+1}")
        a(f"v_and_b32 v{t5}, 3, v{V_N}"); a(f"v_lshlrev_b32 v{t5}, 2, v{t5}")
        a(f"v_lshrrev_b32 v{t6}, 3, v{V_L}"); a(f"v_lshl_add_u32 v{t5}, v{t6}, 4, v{t5}")
        a(f"v_lshl_add_u32 v{AD+4}, v{t0}, 9, v{t5}"); a(f"v_lshl_add_u32 v{AD+2}, v{t1}, 9, v{AD+4}")
        a(f"v_xor_b32 v{t1}, 1, v{t1}"); a(f"v_lshl_add_u32 v{AD+3}, v{t1}, 9, v{AD+4}"); a(f"v_lshl_add_u32 v{AD+5}, v{t1}, 2, v{AD+1}")
        a(f"v_and_b32 v{T}, 7, v{V_L}"); a(f"v_cmp_gt_u32 vcc, 6, v{T}"); a(f"v_cndmask_b32 v{VA}, 0, 1.0, vcc")
        a(f"v_lshl_add_u32 v{CW}, v{T}, 2, s77")
        a(f"v_min_u32 v{T}, 5, v{T}"); a(f"v_lshlrev_b32 v{RA}, 4, v{T}")
        a("s_lshl_b32 s69, s74, 7"); a(f"s_add_u32 s69, s69, {WS_ML}")
        a("s_mul_i32 s70, s74, 3072"); a("s_lshl_b32 s75, s75, 7"); a("s_add_u32 s70, s70, s75"); a(f"s_add_u32 s70, s70, {WS_O}")
        a(f"s_lshr_b32 s63, s{S_WAVE}, 3"); a("s_mul_i32 s64, s63, 2560"); a(f"s_mul_i32 s63, s63, {8*PST}"); a(f"v_add_u32 v{CPOS}, s63, v{CPOS}")
        a("s_lshl_b32 s62, s72, 14"); a("s_add_u32 s62, s62, s64"); a("s_lshl_b32 s64, s73, 8"); a("s_add_u32 s62, s62, s64"); a(f"s_add_u32 s62, s62, {WS_A}")
        a(f"v_and_b32 v{T}, 1, v{V_L}"); a(f"v_lshl_add_u32 v{UOFF}, v{T}, 13, v{UOFF}")
        a("s_getreg_b32 s68, hwreg(HW_REG_XCC_ID, 0, 4)"); a("s_lshl_b32 s68, s68, 10")
        a(f"s_and_b32 s71, s{S_WAVE}, 7"); a("s_mov_b32 s75, 0")
        a("s_branch L_mw_go")
        a("L_mw_real:")
        a("s_mov_b32 s75, 1")
        if self.stamps and self.opt.get("pw"): a("s_waitcnt vmcnt(0)"); self.stamp(5)
        self.poll(lambda: a(f"buffer_load_dwordx4 v[{ML}:{ML+3}], v{RA}, s[{R_WS}:{R_WS+3}], s69 offen sc1"), lambda: self.untag(list(range(ML, ML + 4)), V_T10, T, 0x3ff), "PM")
        r8 = ("quad_perm:[1,0,3,2]", "quad_perm:[2,3,0,1]", "row_half_mirror")
        a(f"v_max_f32_dpp v{T}, v{ML}, v{ML} {r8[0]} {dp}")
        a(f"v_cmp_ne_u32 vcc, s68, v{ML+2}")
        for m in r8[1:]: a(f"v_max_f32_dpp v{T}, v{T}, v{T} {m} {dp}")
        a(f"v_mul_f32 v{ML+1}, v{ML+1}, v{VA}")
        a(f"v_sub_f32 v{ML}, v{ML}, v{T}"); a(f"v_mul_f32 v{ML}, {fh(LOG2E)}, v{ML}"); a(f"v_exp_f32 v{ML}, v{ML}")
        a("s_cmp_eq_u64 vcc, 0"); a(f"s_cselect_b32 s77, {WS_ON-WS_O}, 0"); a("s_add_u32 s70, s70, s77")
        a(f"v_mul_f32 v{T}, v{ML}, v{ML+1}")
        for m in r8: a(f"v_add_f32_dpp v{T}, v{T}, v{T} {m} {dp}")
        a(f"v_rcp_f32 v{T}, v{T}")
        a(f"v_mul_f32 v{ML}, v{ML}, v{T}")
        a(f"ds_write_b32 v{CW}, v{ML}")
        a(f"ds_read_b32 v{C}, v{AD}"); a(f"ds_read_b32 v{C+1}, v{AD+5}"); a(f"ds_read_b32 v{C+2}, v{AD+1} offset:8")
        self.stamp(7)
        def isso():
            for j in range(3): a(f"buffer_load_dword v{O+j}, v{AD+2+j}, s[{R_WS}:{R_WS+3}], s70 offen offset:{1024 if j == 2 else 0} sc1")
        self.poll(isso, lambda: self.untag(list(range(O, O + 3)), V_T10, T + 1, 0x3ff), "PO")
        a("s_waitcnt lgkmcnt(0)")
        self.stamp(8)
        a("L_mw_go:")
        a(f"v_mul_f32 v{X}, v{C}, v{O}"); a(f"v_fmac_f32 v{X}, v{C+1}, v{O+1}"); a(f"v_fmac_f32 v{X}, v{C+2}, v{O+2}")
        a(f"v_add_f32_dpp v{X}, v{X}, v{X} row_shl:4 row_mask:0xf bank_mask:0x5")
        a(f"v_cvt_pk_bf16_f32 v{X}, v{X}, v{X}")
        self.gemv(X, P, B, [(D1, WO)], 4)
        self.fold_col(D1, None, Y)
        self.putpart(ADD, Y, L_ACC2)
        a("s_waitcnt lgkmcnt(0)"); a("s_barrier")
        a("s_cmp_lg_u32 s71, 0"); a("s_cbranch_scc1 L_mw_n")
        self.publish(L_ACC2, CPOS, UOFF, 62, 88, False, dual=True, half=True, one=True, gate=("s75", "L_mw_real"))
        self.stamp(6)
        a("L_mw_n:")
        a("s_cmp_eq_u32 s75, 0"); a("s_cbranch_scc1 L_mw_real")
        a(f"s_cmp_eq_u32 s{S_WAVE}, 2"); a("s_cbranch_scc1 L_red")
        self.pw([7, 8, 6, 5, -1, "s72"])
        a("s_endpgm")

    def breaks(self, L):
        import subprocess, re
        txt = "\n".join(l for l in L if not l.strip().startswith((".", ";"))) + "\n"
        o = subprocess.run(["llvm-mc", "-arch=amdgcn", "-mcpu=gfx950", "-show-encoding"], input=txt, capture_output=True, text=True)
        assert o.returncode == 0, o.stderr
        sz = [len(m.split(",")) for m in re.findall(r"encoding: \[([^\]]*)\]", o.stdout)]
        out = []; pos = None; k = 0; grp = "F"; prev = ""; pend = []
        for ln in L:
            t = ln.strip()
            if t.startswith(".p2alignl"): pos = 0; out.append(ln); continue
            if t.startswith("; GRP"): grp = t.split()[-1]
            if t.startswith((".", ";")) or not t:
                (pend if pend else out).append(ln); continue
            if t.endswith(":"): pend.append(ln); continue
            n = sz[k]; k += 1
            if pos is not None:
                term = prev.startswith(("s_branch", "s_endpgm"))
                last = t.startswith(("s_branch", "s_endpgm"))
                if pos + n + (0 if last else 4) > 4096 or (term and pos + 60 > 4096):
                    ishole = t.startswith("s_branch L_ret")
                    l = self.a.label("B" + grp)
                    if not term: out.append(f"    s_branch {l}x")
                    out.append("    .p2alignl 12, 0xbf810000"); pos = 0
                    if not ishole:
                        self.holes[grp].append(l); out += [f"{l}:", f"    s_branch L_ret{grp}"]; pos = 4
                    if not term: out.append(f"{l}x:")
                pos += n
            out += pend; pend = []
            out.append(ln); prev = t
        assert k == len(sz) and not pend
        return out

    def entry(self, ld=True):
        a = self.a
        if ld:
            a("s_load_dwordx16 s[4:19], s[0:1], 0"); a("s_load_dwordx8 s[20:27], s[0:1], 64"); a("s_load_dwordx2 s[28:29], s[0:1], 104")
            if not self.opt.get("fp"): self.stamp(0)
        a("v_lshrrev_b32 v2, 6, v0"); a(f"v_and_b32 v{V_L}, 63, v0"); a(f"v_readfirstlane_b32 s{S_WAVE}, v2")
        a(f"v_bfe_u32 v{V_G}, v0, 4, 2"); a(f"v_and_b32 v{V_N}, 15, v0")

    def remap(self):
        a = self.a
        if self.opt.get("remap", 1) == 1:
            a("s_and_b32 s61, s2, 7"); a("s_cmp_ge_u32 s61, 4"); a("s_cselect_b32 s60, 3, 0"); a("s_xor_b32 s60, s61, s60")
            a("s_lshl_b32 s60, s60, 3"); a("s_lshr_b32 s2, s2, 3"); a("s_or_b32 s2, s2, s60")

    def build(self):
        a = self.a
        fp = self.opt.get("fp", 0)
        if fp: self.stamp(0)
        else:
            a("s_cmp_ge_u32 s2, 256"); a("s_cbranch_scc1 L_end")
            self.entry()
        if self.opt.get("remap", 1) == 2:
            order = self.opt.get("xo", [5, 4, 0, 1, 2, 3, 7, 6])
            lut = sum(order.index(x) << (4 * x) for x in range(8))
            a("s_and_b32 s3, s2, 7"); a("s_lshl_b32 s3, s3, 2"); a(f"s_lshr_b32 s3, {lut:#x}, s3"); a("s_and_b32 s3, s3, 7")
            a("s_lshl_b32 s3, s3, 5"); a("s_lshr_b32 s2, s2, 3"); a("s_or_b32 s2, s2, s3")
        if self.opt.get("ay"): a(f"s_xor_b32 s2, s2, {self.opt['ay']}")
        a("s_cmp_lt_u32 s2, 64"); a("s_cbranch_scc1 L_front")
        if self.opt.get("ax"): a(f"s_xor_b32 s2, s2, {self.opt['ax']}")
        def mid():
            if fp & 1: a("L_quit:"); a("s_waitcnt lgkmcnt(0)")
            a("L_end:"); a("s_endpgm")
            a("L_front:")
            if fp and not fp & 2: self.entry()
            if not fp & 2: self.remap()
            self.front()
            self.role_m()
        self.attention(mid)
        if self.opt.get("f3"): self.role_f3()
        elif self.opt.get("f2"): self.role_f2()
        else: self.role_f()
        if self.opt.get("mw"): self.role_mw()
        L = hz.fix(a.l)
        if self.opt.get("touch", 1) and self.opt.get("pg", 1): L = self.breaks(L)
        L2 = []
        for ln in L:
            if ln.strip().startswith("; TOUCH"):
                hs = self.holes[ln.split()[-1]]; assert len(hs) <= 16
                g = ln.split()[-1]
                if self.opt.get("tc") and len(hs) < 16: L2 += [f"    s_cmp_lt_u32 s{S_WAVE}, {16-len(hs)}", f"    s_cbranch_scc1 {'L_att' if g == 'A' and not self.opt.get('le') else 'L_ret' + g}"]
                tz = self.opt.get("tz", 0) and g == "F"
                if tz and self.opt.get("tc") and len(hs) < 16: L2[-2] = f"    s_cmp_ge_u32 s{S_WAVE}, {len(hs)}"
                for k, h in enumerate(hs): L2 += [f"    s_cmp_eq_u32 s{S_WAVE}, {k if tz else 15-k}", f"    s_cbranch_scc1 {h}"]
            elif ln.strip().startswith("; GRP"): pass
            else: L2.append(ln)
        body = "\n".join(L2) + "\n"
        return wrap([(NAME + "_kernel", body, 128, 102, 128)], [(NAME + "_kernel", 256, 1024, LDS)])


if __name__ == "__main__":
    import json
    variants = json.loads(sys.argv[1]) if len(sys.argv) > 1 else {"g": {}}
    for nm, o in variants.items():
        thr = o.get("thr", 2)
        open(nm + "_st.s", "w").write(G(stamps=True, thr=thr, opt=o).build())
        open(nm + ".s", "w").write(G(stamps=False, thr=thr, opt=o).build())
```

```python
import sys
from asmlib import *
from mathlib import *
import hz

WS_CR = 0x64000
WS_TK = 0x5800
WS_VOTE, WS_RC, WS_ON = 0x5000, 0x6c000, 0x70000
WS_MOD, WS_Q, WS_ML, WS_O, WS_A, WS_D, WS_SIZE = 0x1000, 0x8000, 0x10000, 0x20000, 0x40000, 0x90000, 0x100000
WS_C2 = 0xe0000
SPIN = 30000
NW, NM, NF, NWO = 20, 37, 27, 80
PST = 576
L_CNT = 260
L_RK = 264
L_COEF, L_NEAR, L_TK = 512, 640, 656
L_Q, L_FLAG, L_MAX, L_SUM, L_ST, L_ACT = 0, 256, 320, 384, 512, 768
L_ACC0, L_ACC1, L_ACC2 = 1024, 1024 + 16 * PST, 1024 + 32 * PST
LDS = 1024 + 48 * PST
S_X, S_K, S_V, S_WQ, S_WO, S_WG, S_WU, S_WD, S_C, S_WM, S_OUT, S_WS = 4, 6, 8, 10, 12, 16, 18, 20, 22, 24, 26, 28
S_WAVE, S_T, S_CNT, S_M10 = 30, 31, 34, 35
R_WS, R_A, R_B, R_C, R_D, R_E = 36, 40, 44, 48, 52, 56
S_TMP = 60
S_ST = 80
V_HM, V_L, V_G, V_N, V_M, V_T16, V_T10 = 0, 1, 2, 3, 4, 8, 9
MFMA = "v_mfma_f32_16x16x32_bf16"


class G:
    def __init__(self, stamps=False, thr=2, pat="contig", opt=None):
        self.a = A(); self.stamps = stamps; self.thr = thr; self.pat = pat; self.opt = opt or {}; self.holes = {}

    def stamp(self, i, f=False):
        if self.opt.get("s0") and not f and i in (1, 2, 5, 6, 7): return
        if self.opt.get("xp") and not f and i in (5, 6): return
        if self.stamps: self.a(f"s_memrealtime s[{S_ST+2*i}:{S_ST+2*i+1}]")

    DBG = dict(W={0: 0, 1: 1, 3: 2, 5: 3, 7: 4, 8: 5}, M={0: 0, 1: 6, 2: 7, 3: 8}, F={0: 0, 3: 9, 4: 10, 6: 11}, A={0: 0, 1: 12, 2: 13, 4: 14})
    def flush_stamps(self, n, first=0, role=None):
        if not self.stamps: return
        a = self.a
        if self.opt.get("dbg"):
            a("s_load_dwordx2 s[60:61], s[0:1], 96")
            a("s_waitcnt lgkmcnt(0)")
            a("v_mov_b32 v10, 0")
            self.setexec(1, 0)
            for j in range(first, n):
                if j not in self.DBG[role]: continue
                a(f"v_mov_b32 v12, s{S_ST+2*j}")
                if j == 0:
                    a(f"global_atomic_umax v10, v12, s[60:61] offset:60")
                    a("v_not_b32 v12, v12")
                a(f"global_atomic_umax v10, v12, s[60:61] offset:{4*self.DBG[role][j]}")
            return
        a("s_waitcnt lgkmcnt(0)")
        a(f"s_lshl_b32 s60, s2, 7"); a(f"s_add_u32 s60, s{S_WS}, s60"); a(f"s_addc_u32 s61, s{S_WS+1}, 0")
        a("s_add_u32 s60, s60, 0x10000000"); a("s_addc_u32 s61, s61, 0")
        a("v_mov_b32 v10, 0")
        for j in range(first, n):
            a(f"v_mov_b32 v12, s{S_ST+2*j}"); a(f"v_mov_b32 v13, s{S_ST+2*j+1}")
            a(f"global_store_dwordx2 v10, v[12:13], s[60:61] offset:{8*j}")

    def pw(self, js):
        if not (self.stamps and self.opt.get("pw")): return
        a = self.a
        a("s_waitcnt lgkmcnt(0)")
        a(f"s_lshl_b32 s60, s2, 9"); a(f"s_lshl_b32 s61, s{S_WAVE}, 5"); a("s_add_u32 s60, s60, s61"); a(f"s_add_u32 s60, s{S_WS}, s60"); a(f"s_addc_u32 s61, s{S_WS+1}, 0")
        a("s_add_u32 s60, s60, 0x10400000"); a("s_addc_u32 s61, s61, 0")
        a("v_mov_b32 v10, 0")
        for k, j in enumerate(js):
            a(f"v_mov_b32 v12, {j}" if isinstance(j, str) else f"v_mov_b32 v12, s{S_ST+2*j}" if j >= 0 else f"v_mov_b32 v12, s{S_CNT}")
            a(f"global_store_dword v10, v12, s[60:61] offset:{4*k}")

    def hole(self, grp, skip=False):
        if not self.opt.get("touch", 1): return
        a = self.a
        l = a.label("H" + grp); self.holes.setdefault(grp, []).append(l)
        if skip: a(f"s_branch {l}x")
        a(f"{l}:"); a(f"s_branch L_ret{grp}")
        if skip: a(f"{l}x:")

    def page(self, grp):
        if self.opt.get("pg", 1): self.a(".p2alignl 12, 0xbf810000")
        self.hole(grp)

    def touch(self, grp):
        if self.opt.get("touch", 1): self.a(f"; TOUCH {grp}"); self.a(f"L_ret{grp}:")

    def setexec(self, lo, hi):
        self.a(f"s_mov_b32 exec_lo, {lo:#x}"); self.a(f"s_mov_b32 exec_hi, {hi:#x}")

    def allexec(self): self.a("s_mov_b64 exec, -1")

    def masks(self, t0):
        a = self.a
        a(f"v_and_b32 v{t0}, 1, v{V_N}"); a(f"v_lshlrev_b32 v{t0}, 4, v{t0}")
        a(f"v_mov_b32 v{t0+1}, 0xffff"); a(f"v_lshlrev_b32 v{V_HM}, v{t0}, v{t0+1}")
        a(f"v_bfe_u32 v{t0+1}, v{V_N}, 1, 2")
        for k in range(4):
            a(f"v_cmp_eq_u32 vcc, {k}, v{t0+1}"); a(f"v_cndmask_b32 v{V_M+k}, 0, 1.0, vcc")

    def spread(self, B, P):
        assert P % 2 == 0 and B % 2 == 0
        for k in (0, 2):
            self.a(f"v_pk_mul_f32 v[{B+k}:{B+k+1}], v[{P}:{P+1}], v[{V_M+k}:{V_M+k+1}] op_sel:[0,0] op_sel_hi:[0,1]")

    def tags(self):
        a = self.a
        a(f"s_add_u32 s{S_T}, s{S_T}, 1")
        a(f"s_and_b32 s32, s{S_T}, 0xffff"); a(f"s_and_b32 s33, s{S_T}, 0x3ff")
        a(f"v_mov_b32 v{V_T16}, s32"); a(f"v_mov_b32 v{V_T10}, s33")
        a(f"s_mov_b32 s{S_M10}, 0x3ff")

    def poll(self, issue, check, name="P", hole=None):
        a = self.a
        lp, dn = a.label(name), a.label(name + "d")
        a(f"s_mov_b32 s{S_CNT}, 0")
        a(f"{lp}:")
        issue()
        a("s_waitcnt vmcnt(0)")
        check()
        a(f"s_cbranch_vccz {dn}")
        a(f"s_add_u32 s{S_CNT}, s{S_CNT}, 1"); a(f"s_cmp_lt_u32 s{S_CNT}, {SPIN}"); a(f"s_cbranch_scc1 {lp}")
        if hole and self.opt.get("touch", 1): a(f"s_branch {dn}"); self.hole(hole)
        a(f"{dn}:")

    def ppoll(self, loads, regs, ms, t, name="P", hole=None):
        a = self.a
        lp, dn = a.label(name), a.label(name + "d")
        a(f"s_mov_b32 s{S_CNT}, 0")
        for m in ms: a(f"s_mov_b64 s[{m}:{m+1}], -1")
        a(f"{lp}:")
        for ld, m in zip(loads, ms):
            l = a.label("SK")
            a(f"s_cmp_eq_u64 s[{m}:{m+1}], 0"); a(f"s_cbranch_scc1 {l}"); a(ld); a(f"{l}:")
        a("s_waitcnt vmcnt(0)")
        for i, r in enumerate(regs): a(f"v_and_b32 v{t+i}, s{S_M10}, v{r}")
        for i, m in enumerate(ms): a(f"v_cmp_ne_u32 s[{m}:{m+1}], v{t+i}, v{V_T10}")
        if len(ms) == 1: a(f"s_cmp_lg_u64 s[{ms[0]}:{ms[0]+1}], 0")
        else:
            a(f"s_or_b64 vcc, s[{ms[0]}:{ms[0]+1}], s[{ms[1]}:{ms[1]+1}]")
            for m in ms[2:]: a(f"s_or_b64 vcc, vcc, s[{m}:{m+1}]")
        a(f"s_cbranch_scc0 {dn}")
        a(f"s_add_u32 s{S_CNT}, s{S_CNT}, 1"); a(f"s_cmp_lt_u32 s{S_CNT}, {SPIN}"); a(f"s_cbranch_scc1 {lp}")
        if hole and self.opt.get("touch", 1): a(f"s_branch {dn}"); self.hole(hole)
        a(f"{dn}:")
        for r in regs: a(f"v_xor_b32 v{r}, v{r}, v{V_T10}")

    def voteld(self, v, t):
        self.a(f"buffer_load_dword v{v}, v{t}, s[{R_WS}:{R_WS+3}], s75 offen sc1")

    def side(self, v, d):
        a = self.a
        sd = self.opt.get("side", 2)
        if sd == 2:
            a(f"s_lshl_b32 s76, s{S_T}, 2"); a("s_or_b32 s77, s76, 1"); a("s_or_b32 s76, s76, 2")
            a(f"v_cmp_eq_u32 vcc, s77, v{v}"); a("s_bcnt1_i32_b64 s77, vcc")
            a(f"v_cmp_eq_u32 vcc, s76, v{v}"); a("s_bcnt1_i32_b64 s76, vcc")
            a("s_cmp_gt_u32 s76, s77"); a("s_cselect_b32 s77, 1, 0")
        else: a(f"s_mov_b32 s77, {sd & 1}")
        a("s_getreg_b32 s76, hwreg(HW_REG_XCC_ID, 2, 1)"); a("s_xor_b32 s76, s76, s77")
        if sd == 3: a("s_mov_b32 s76, 0")
        a(f"s_lshl_b32 s{d}, s76, 13")

    def races(self, t):
        a = self.a
        if self.opt.get("rv"): a("s_mov_b32 s60, s69")
        else: a(f"s_sub_u32 s60, {'s3' if self.opt.get('fp', 0) & 2 else 's2'}, {13 if self.opt.get('pq') else 40}")
        a("s_lshl_b32 s61, s60, 8"); a(f"s_add_u32 s61, s61, {WS_RC}")
        a("s_add_u32 s62, s61, 0x2000"); a("s_add_u32 s63, s61, 0x2080"); a("s_add_u32 s64, s61, 0x80")
        for k in range(2):
            a(f"s_load_dword s65, s[{S_WS}:{S_WS+1}], s{61+2*k}"); a(f"s_load_dword s66, s[{S_WS}:{S_WS+1}], s{62+2*k}")
            a("s_waitcnt lgkmcnt(1)")
            a(f"s_getreg_b32 s{67+k}, hwreg(HW_REG_IB_STS, 8, 1)")
            a("s_waitcnt lgkmcnt(0)")
        a("s_getreg_b32 s65, hwreg(HW_REG_XCC_ID, 2, 1)"); a("s_xor_b32 s66, s65, 1")
        a("s_lshl_b32 s67, s67, s65"); a("s_lshl_b32 s68, s68, s66"); a("s_or_b32 s67, s67, s68")
        a(f"s_lshl_b32 s68, s{S_T}, 2"); a("s_or_b32 s67, s67, s68")
        a("s_lshl_b32 s60, s60, 2"); a(f"s_add_u32 s60, s60, {WS_VOTE}")
        a(f"v_mov_b32 v{t}, s67"); a(f"v_mov_b32 v{t+1}, 0")
        self.setexec(1, 0)
        a(f"buffer_store_dword v{t}, v{t+1}, s[{R_WS}:{R_WS+3}], s60 offen sc1")
        self.allexec()

    def untag(self, regs, tag, t, mask):
        a = self.a
        for r in regs: a(f"v_xor_b32 v{r}, v{r}, v{tag}")
        rs = list(regs)
        if len(rs) == 1: src = rs[0]
        else:
            if len(rs) == 2: a(f"v_or_b32 v{t}, v{rs[0]}, v{rs[1]}"); rest = []
            else: a(f"v_or3_b32 v{t}, v{rs[0]}, v{rs[1]}, v{rs[2]}"); rest = rs[3:]
            while rest:
                if len(rest) == 1: a(f"v_or_b32 v{t}, v{t}, v{rest[0]}"); rest = []
                else: a(f"v_or3_b32 v{t}, v{t}, v{rest[0]}, v{rest[1]}"); rest = rest[2:]
            src = t
        if mask is not None: a(f"v_and_b32 v{t}, {mask:#x}, v{src}"); src = t
        a(f"v_cmp_ne_u32 vcc, 0, v{src}")

    def bprep(self, X, P, B, t):
        a = self.a
        a(f"v_and_b32_dpp v{P}, v{X}, v{V_HM} row_newbcast:{t} row_mask:0xf bank_mask:0x3")
        a(f"v_and_b32_dpp v{P}, v{X}, v{V_HM} row_newbcast:{8+t} row_mask:0xf bank_mask:0xc")
        self.spread(B, P)

    def gemv(self, X, P, B, jobs, n, wait=None, pre=None):
        self.bprep(X, P, B, 0)
        for t in range(n):
            if t + 1 < n: self.bprep(X, P + 2 * ((t + 1) & 1), B + 4 * ((t + 1) & 1), t + 1)
            if wait: self.a(f"s_waitcnt vmcnt({wait(t)})")
            if pre: pre(t)
            for D, W in jobs: self.mfma(D, W[t] if isinstance(W, list) else W + 4 * t, B + 4 * (t & 1), t == 0)

    def mfma(self, D, Areg, B, first):
        self.a(f"{MFMA} v[{D}:{D+3}], v[{Areg}:{Areg+3}], v[{B}:{B+3}], " + ("0" if first else f"v[{D}:{D+3}]"))

    def fold_wide(self, D1, D2, Y):
        a = self.a
        for y in range(2):
            a(f"v_add_f32_dpp v{Y+y}, v{D2+2*y}, v{D1+2*y} row_ror:8 row_mask:0xf bank_mask:0x3")
            a(f"v_add_f32_dpp v{Y+y}, v{D1+2*y+1}, v{D2+2*y+1} row_ror:8 row_mask:0xf bank_mask:0xc")

    def fold_col(self, D1, D2, Y):
        a = self.a
        for D in (D1, D2):
            if D is None: continue
            for y in range(2): a(f"v_permlane32_swap_b32 v{D+2*y}, v{D+2*y+1}")
        for y in range(2):
            a(f"v_add_f32_dpp v{Y+y}, v{D1+2*y+1}, v{D1+2*y} row_ror:8 row_mask:0xf bank_mask:0x3")
            if D2 is not None:
                a(f"v_add_f32_dpp v{Y+y}, v{D2+2*y}, v{D2+2*y+1} row_ror:8 row_mask:0xf bank_mask:0xc")

    def colpos(self, d, col, t):
        a = self.a
        a(f"v_bfe_u32 v{d}, v{col}, 4, 1"); a(f"v_lshlrev_b32 v{d}, 6, v{d}")
        a(f"v_bfe_u32 v{t}, v{col}, 5, 1"); a(f"v_lshl_add_u32 v{d}, v{t}, 4, v{d}")
        a(f"v_bfe_u32 v{t}, v{col}, 3, 1"); a(f"v_lshl_add_u32 v{d}, v{t}, 5, v{d}")
        a(f"v_and_b32 v{t}, 7, v{col}"); a(f"v_add_u32 v{d}, v{d}, v{t}")
        a(f"v_lshlrev_b32 v{d}, 2, v{d}")

    def wraddr(self, d, stride=PST):
        a = self.a
        a(f"s_mul_i32 s79, s{S_WAVE}, {stride}"); a(f"v_lshlrev_b32 v{d}, 2, v{V_L}"); a(f"v_add_u32 v{d}, s79, v{d}")

    def putpart(self, addr, Y, acc):
        self.a(f"ds_write_b32 v{addr}, v{Y} offset:{acc}"); self.a(f"ds_write_b32 v{addr}, v{Y+1} offset:{acc+256}")

    def widerd(self, d, t):
        a = self.a
        a(f"v_and_b32 v{t}, 3, v{V_L}"); a(f"v_mul_u32_u24 v{d}, {PST}, v{t}")
        a(f"v_bfe_u32 v{t}, v{V_L}, 4, 1"); a(f"v_lshl_add_u32 v{d}, v{t}, 8, v{d}")
        a(f"v_bfe_u32 v{t}, v{V_L}, 5, 1"); a(f"v_lshl_add_u32 v{d}, v{t}, 6, v{d}")
        a(f"v_bfe_u32 v{t}, v{V_L}, 2, 2"); a(f"v_lshl_add_u32 v{d}, v{t}, 4, v{d}")
        a(f"s_and_b32 s79, s{S_WAVE}, 1"); a("s_lshl_b32 s79, s79, 7"); a(f"v_add_u32 v{d}, s79, v{d}")

    def colrd(self, d, t):
        a = self.a
        a(f"v_and_b32 v{t+1}, 60, v{V_L}")
        self.colpos(d, t + 1, t)
        a(f"v_and_b32 v{t}, 3, v{V_L}"); a(f"v_mul_u32_u24 v{t}, {PST}, v{t}"); a(f"v_add_u32 v{d}, v{d}, v{t}")

    def publish(self, acc, vrd, voff, soff, t, bf, near=None, dual=False, half=False, one=False, gate=None, holes=0):
        a = self.a
        for j in range(2 if half else 4): a(f"ds_read_b128 v[{t+4*j}:{t+4*j+3}], v{vrd} offset:{acc+4*j*PST}")
        if holes & 2: self.hole("F", True)
        if bf == 3: a("s_mov_b32 vcc_lo, 0xaaaaaaaa"); a("s_mov_b32 vcc_hi, 0xaaaaaaaa"); a("s_mov_b32 s78, 0xcccccccc"); a("s_mov_b32 s79, 0xcccccccc")
        a(f"s_waitcnt lgkmcnt({0 if half else 2})")
        for i in range(4): a(f"v_add_f32 v{t+i}, v{t+i}, v{t+4+i}")
        if not half:
            a("s_waitcnt lgkmcnt(0)")
            for i in range(4): a(f"v_add_f32 v{t+8+i}, v{t+8+i}, v{t+12+i}")
            for i in range(4): a(f"v_add_f32 v{t+i}, v{t+i}, v{t+8+i}")
        for m in ("quad_perm:[1,0,3,2]", "quad_perm:[2,3,0,1]"):
            for i in range(4): a(f"v_add_f32_dpp v{t+i}, v{t+i}, v{t+i} {m} row_mask:0xf bank_mask:0xf")
            if holes & 4 and m[11] == "1": self.hole("F", True)
        if bf == 3:
            a(f"v_cndmask_b32 v{t}, v{t}, v{t+1}, vcc"); a(f"v_cndmask_b32 v{t+2}, v{t+2}, v{t+3}, vcc")
            a(f"v_cndmask_b32 v{t}, v{t}, v{t+2}, s[78:79]")
            a(f"v_add_u32 v{t}, 0x200, v{t}"); a(f"v_bfi_b32 v{t}, s{S_M10}, v{V_T10}, v{t}")
            a(f"buffer_store_dword v{t}, v{voff}, s[{R_WS}:{R_WS+3}], s{soff} offen sc1")
            return
        if bf == 2:
            a("s_mov_b32 vcc_lo, 0xaaaaaaaa"); a("s_mov_b32 vcc_hi, 0xaaaaaaaa")
            a(f"v_cndmask_b32 v{t}, v{t}, v{t+2}, vcc"); a(f"v_cndmask_b32 v{t+2}, v{t+1}, v{t+3}, vcc")
            a(f"v_mov_b32 v{t+1}, s{S_T}"); a(f"v_mov_b32 v{t+3}, s{S_T}")
            hr = self.opt.get("hr", 1)
            if hr == 1: self.setexec(0x33333333, 0x33333333)
            a(f"buffer_store_dwordx4 v[{t}:{t+3}], v{voff}, s[{R_WS}:{R_WS+3}], s{soff} offen sc1")
            if hr == 4:
                a(f"s_add_u32 s{soff}, s{soff}, {2*self.opt.get('hs', 0x6100)}")
                a(f"buffer_store_dwordx4 v[{t}:{t+3}], v{voff}, s[{R_WS}:{R_WS+3}], s{soff} offen sc1")
            if hr == 1: self.allexec()
            return
        if bf:
            for i in range(4): a(f"v_cvt_pk_bf16_f32 v{t+i}, v{t+i}, v{t+i}")
            a("s_mov_b32 s79, 0xffff")
            for i in range(4): a(f"v_bfi_b32 v{t+i}, s79, v{V_T16}, v{t+i}")
        else:
            for i in range(1 if one else 4): a(f"v_bfi_b32 v{t+i}, s{S_M10}, v{V_T10}, v{t+i}")
        m = {0: 0x11111111, 1: 0x33333333, 2: 0xffffffff}[int(dual)]
        if gate: a(f"s_cmp_eq_u32 {gate[0]}, 0"); a(f"s_cbranch_scc1 {gate[1]}")
        self.setexec(m, m)
        if near is not None and self.opt.get("nn") != 1: a(f"buffer_store_dwordx4 v[{t}:{t+3}], v{voff}, s[{R_WS}:{R_WS+3}], s{near} offen" + self.opt.get("ns", ""))
        a(f"buffer_store_dwordx4 v[{t}:{t+3}], v{voff}, s[{R_WS}:{R_WS+3}], s{soff} offen sc1")
        self.allexec()

    def unitoff(self, d):
        self.a(f"v_and_b32 v{d}, 60, v{V_L}"); self.a(f"v_lshlrev_b32 v{d}, 2, v{d}")

    def rowidx(self, d, t, steps):
        a = self.a
        a(f"v_lshrrev_b32 v{t}, 3, v{V_L}"); a(f"v_mul_u32_u24 v{d}, {steps}, v{t}")
        a(f"v_and_b32 v{t}, 7, v{V_L}"); a(f"v_add_u32 v{d}, v{d}, v{t}")

    def colvoff(self, d, stride, t):
        a = self.a
        a(f"v_lshrrev_b32 v{t}, 3, v{V_L}"); a(f"v_mul_u32_u24 v{d}, {stride}, v{t}")
        a(f"v_and_b32 v{t}, 7, v{V_L}"); a(f"v_lshl_add_u32 v{d}, v{t}, 4, v{d}")

    def colloads(self, reg, voff, srd, sbase, stride, n=5, thr=0, lo=0):
        a = self.a
        for t in range(lo, n):
            if thr: a(f"s_waitcnt vmcnt({thr-1})")
            if t * stride < 4096: so = f"s{sbase} offen offset:{t*stride}"
            else: a(f"s_add_u32 s61, s{sbase}, {t*stride}"); so = "s61 offen"
            a(f"buffer_load_dwordx4 v[{reg+4*t}:{reg+4*t+3}], v{voff}, s[{srd}:{srd+3}], {so} nt")

    def silu(self, x, t):
        a = self.a
        a(f"v_mul_f32 v{t}, {fh(-LOG2E)}, v{x}"); a(f"v_exp_f32 v{t}, v{t}")
        a(f"v_add_f32 v{t}, 1.0, v{t}")
        a(f"v_min_f32 v{t}, {fh(3.0e38)}, v{t}")
        a(f"v_rcp_f32 v{t+1}, v{t}")
        a(f"v_mul_f32 v{t+2}, v{x}, v{t+1}")
        a(f"v_fma_f32 v{t+3}, -v{t+2}, v{t}, v{x}")
        a(f"v_fma_f32 v{x}, v{t+3}, v{t+1}, v{t+2}")
        a(f"v_cvt_pk_bf16_f32 v{x}, v{x}, v{x}")

    def xrow_allred(self, v, t, op):
        a = self.a
        a(f"v_mov_b32 v{t}, v{v}"); a(f"v_permlane32_swap_b32 v{t}, v{v}"); a(f"{op} v{v}, v{v}, v{t}")
        a(f"v_mov_b32 v{t}, v{v}"); a(f"v_permlane16_swap_b32 v{t}, v{v}"); a(f"{op} v{v}, v{v}, v{t}")

    def x2calc(self, vcol4, ga, xv, d, t):
        a = self.a
        if self.opt.get("w2"):
            for i in range(0, 8, 2): a(f"v_pk_add_f32 v[{t+i}:{t+i+1}], v[{t+i}:{t+i+1}], v[{t+8+i}:{t+9+i}]")
        a(f"v_pk_add_f32 v[{t}:{t+1}], v[{t}:{t+1}], v[{t+2}:{t+3}]"); a(f"v_pk_add_f32 v[{t+4}:{t+5}], v[{t+4}:{t+5}], v[{t+6}:{t+7}]")
        a(f"v_pk_add_f32 v[{t}:{t+1}], v[{t}:{t+1}], v[{t+4}:{t+5}]"); a(f"v_add_f32 v{d}, v{t}, v{t+1}")
        bfr(a, d, d)
        a(f"v_mul_f32 v{d}, v{ga}, v{d}"); bfr(a, d, d)
        a(f"v_add_f32 v{d}, v{xv}, v{d}"); bfr(a, d, d)

    def attention(self, mid):
        a = self.a
        n1, n2 = self.opt.get("n1", 4), self.opt.get("n2", 99)
        base = self.thr
        TH = [1 if j < n1 else (base if j < n2 else base + 1) for j in range(22)]
        KR, VR, D1, D2, Q, S = 32, 76, 120, 124, 10, 14
        VO, PQ, T = 20, 22, 24
        dy = self.opt.get("dy", 0); ty = self.opt.get("ty", 21); NB = self.opt.get("nblk", 20)
        fp = self.opt.get("fp", 0); step = 1024; pt = None
        if fp & 1:
            rw = self.opt.get("rw", 0); dz = self.opt.get("dz"); zt = dz.get("st", 0) if dz else 0; za = dz.get("a", 0) if dz else 0; NS = 10 if za else 11; PER = (15 * NS + zt) * 1024 if dz else 174764
            a(f"s_load_dwordx2 s[{R_A}:{R_A+1}], s[0:1], 8"); a(f"s_load_dwordx2 s[{R_WS}:{R_WS+1}], s[0:1], 104")
            if self.opt.get("aq"): a(f"s_load_dwordx2 s[{R_E}:{R_E+1}], s[0:1], 24")
            a("v_lshrrev_b32 v2, 6, v0")
            a("s_lshr_b32 s101, s2, 5"); a("s_and_b32 s100, s2, 31")
            if self.opt.get("hx"): a("s_bitcmp1_b32 s2, 5"); a(f"s_cselect_b32 s72, {self.opt['hx']}, 0"); a("s_xor_b32 s100, s100, s72")
            if rw in (1, 2): a(f"v_readfirstlane_b32 s{S_WAVE}, v2")
            if rw == 4: a("v_add_u32 v4, s100, v2"); a(f"v_mul_u32_u24 v5, {103 if za else 94}, v4")
            a(f"s_mul_i32 s72, s101, {PER}"); a("s_lshl_b32 s74, s100, 22")
            a(f"v_mul_u32_u24 v3, {(NS + 1) * 1024}, v2")
            if za: a(f"s_add_u32 s{R_A+2}, s74, {16384 * 256}")
            a("s_add_u32 s72, s72, s74")
            if rw == 4: a("v_lshrrev_b32 v5, 10, v5"); a(f"v_mad_i32_i24 v4, v5, {-NS}, v4")
            if zt: a("v_min_u32 v4, v4, v3")
            c0 = 12288 * 256 + (0 if dz else 680) - 2 * PER
            a(f"s_add_u32 s74, s72, {c0 + 15 * NS * 1024}")
            if not dz: a("s_and_b32 s74, s74, 0xfffffc00")
            if not za: a(f"s_add_u32 s{R_A+2}, s72, {c0 + PER}")
            a(f"v_lshl_add_u32 v{VO}, v0, 4, s74")
            if not dz: a(f"s_and_b32 s{R_A+2}, s{R_A+2}, 0xfffffc00")
            if rw == 0: a("s_mul_i32 s60, s100, 352"); a("s_and_b32 s60, s60, 0x3c00")
            elif rw == 1: a(f"s_add_u32 s60, s100, s{S_WAVE}"); a("s_and_b32 s60, s60, 7"); a("s_lshl_b32 s60, s60, 10")
            elif rw == 2:
                a(f"s_add_u32 s60, s100, s{S_WAVE}")
                for k in (44, 22, 11): a(f"s_sub_u32 s61, s60, {k}"); a("s_min_u32 s60, s60, s61")
                a("s_lshl_b32 s60, s60, 10")
            elif rw == 3: a("s_and_b32 s60, s100, 7"); a("s_lshl_b32 s60, s60, 10")
            a(f"v_sub_u32 v{VO}, v{VO}, v3")
            a(f"s_mov_b32 s{R_A+3}, 0x20000")
            if rw == 4: a(f"v_lshl_add_u32 v5, v4, 10, v{VO}")
            a("s_cmp_ge_u32 s2, 256"); a("s_cbranch_scc1 L_quit")
            a("s_waitcnt lgkmcnt(0)")
        else:
            if fp: a("s_cmp_ge_u32 s2, 256"); a("s_cbranch_scc1 L_end"); self.entry()
            if dy: a("s_load_dwordx2 s[52:53], s[0:1], 96")
            a("s_sub_u32 s3, s2, 64")
            a("s_and_b32 s100, s3, 31"); a("s_lshr_b32 s101, s3, 5")
            cnt = self.opt.get("cnt", [171, 171, 171, 171, 170, 170]); assert self.opt.get("xs") or (sum(cnt) == 1024 and max(cnt) <= 176 and min(cnt) > 165)
            lc = sum((c - 165) << (4 * i) for i, c in enumerate(cnt)); ls = sum((sum(cnt[:i]) - 165 * i) << (5 * i) for i in range(6))
            assert all(sum(cnt[:i]) - 165 * i < 32 for i in range(6))
            a("s_mul_i32 s72, s101, 5"); a(f"s_lshr_b32 s72, {ls:#x}, s72"); a("s_and_b32 s72, s72, 31"); a("s_mul_i32 s73, s101, 165"); a("s_add_u32 s72, s72, s73")
            a("s_lshl_b32 s73, s101, 2"); a(f"s_lshr_b32 s73, {lc:#x}, s73"); a("s_and_b32 s73, s73, 15"); a("s_add_u32 s73, s73, 165"); a("s_lshl_b32 s73, s73, 10")
            a("s_lshl_b32 s74, s100, 22"); a("s_lshl_b32 s72, s72, 10"); a("s_add_u32 s74, s74, s72"); a("s_add_u32 s74, s74, %d" % (12288 * 256))
            step = 1024 if self.pat == "contig" else 16384
            pt = self.opt.get("pt")
            a(f"s_sub_u32 s75, 15, s{S_WAVE}")
            if pt:
                sh = pt[0]; ch = 1 << sh; lim = 11 // ch * ch; c2 = 11 - lim
                a(f"s_mul_i32 s60, s100, {pt[1]}"); a(f"s_mul_i32 s61, s{S_WAVE}, {pt[2]}"); a("s_add_u32 s60, s60, s61")
                a(f"s_mul_i32 s61, s101, {pt[3]}"); a("s_add_u32 s60, s60, s61")
                a(f"v_add_u32 v{T}, s60, v{V_L}")
                a(f"v_mul_u32_u24 v{T+1}, 5958, v{T}"); a(f"v_lshrrev_b32 v{T+1}, 16, v{T+1}"); a(f"v_mul_u32_u24 v{T+1}, 11, v{T+1}"); a(f"v_sub_u32 v{T}, v{T}, v{T+1}")
                a(f"s_lshl_b32 s60, s75, {sh}"); a(f"s_mul_i32 s61, s75, {c2}"); a(f"s_add_u32 s61, s61, {15*lim-lim}")
                a(f"s_cmp_eq_u32 s{S_WAVE}, 0"); a(f"s_cselect_b32 s61, 165, s61"); a(f"s_cselect_b32 s62, 0, {lim}")
                a(f"v_lshrrev_b32 v{T+1}, {sh}, v{T}"); a(f"v_mul_u32_u24 v{T+1}, {15*ch}, v{T+1}"); a(f"v_and_b32 v{T+2}, {ch-1}, v{T}")
                a(f"v_add3_u32 v{T+1}, v{T+1}, v{T+2}, s60"); a(f"v_add_u32 v{T+2}, s61, v{T}")
                a(f"v_cmp_gt_u32 vcc, s62, v{T}"); a(f"v_cndmask_b32 v{T+1}, v{T+2}, v{T+1}, vcc"); a(f"v_lshlrev_b32 v{PQ}, 10, v{T+1}")
                a(f"v_lshlrev_b32 v{VO}, 4, v{V_L}"); a("s_mov_b32 s75, s73")
                a(f"v_readlane_b32 s60, v{PQ}, 0")
            else:
                a(f"s_mul_i32 s75, s75, {11*1024 if self.pat == 'contig' else 1024}")
                a(f"v_lshlrev_b32 v{VO}, 4, v{V_L}"); a(f"v_add_u32 v{VO}, s75, v{VO}")
                a("s_sub_u32 s75, s73, s75")
                a(f"s_add_u32 s60, s100, s{S_WAVE}")
                for k in (44, 22, 11): a(f"s_sub_u32 s61, s60, {k}"); a("s_min_u32 s60, s60, s61")
                a(f"s_mul_i32 s60, s60, {step}")
            a("s_waitcnt lgkmcnt(0)")
            a(f"s_load_dword s{S_T}, s[{S_WS}:{S_WS+1}], 0")
            a(f"s_add_u32 s{S_K}, s{S_K}, s74"); a(f"s_addc_u32 s{S_K+1}, s{S_K+1}, 0")
            srd(a, R_A, S_K, "s73")
        bj = self.opt.get("bj", 0); bt = {int(k): v for k, v in self.opt.get("bt", {}).items()}
        bo = self.opt.get("bo", 0); assert all(j < 12 or j >= 12 + bo for j in bt)
        def thr(j, n, rd):
            if j in bt:
                if rd: a(f"ds_read_b32 v{T}, v21 offset:{L_RK}")
                a(f"s_waitcnt vmcnt({n-1+bo}) lgkmcnt(0)")
                if rd: a(f"v_readfirstlane_b32 s54, v{T}")
                l = a.label("BT")
                if self.opt.get("bx"): a(f"s_bitcmp0_b32 {bt[j]}, s54")
                else: a(f"s_cmp_lt_u32 s54, {bt[j]}")
                a(f"s_cbranch_scc0 {l}"); a(f"s_waitcnt vmcnt({n-1 if bo else 0})"); a(f"{l}:")
            else: a(f"s_waitcnt vmcnt({n-1})")
        kp = za or 10
        ORD = list(range(10)) + list(range(11, 11 + kp - 10)) + [10] + list(range(11 + kp - 10, 22))
        def ld(j, mark=True):
            pc = ORD[j] if mark else j
            i = pc % 11; r = (KR if pc < 11 else VR) + 4 * i; sr = R_A if pc < 11 else R_B
            if za and mark and j == kp:
                lp, dn = a.label("YL"), a.label("YD")
                a(f"s_mov_b32 s{S_CNT}, 0")
                a(f"{lp}:")
                a(f"ds_read_b64 v[{T}:{T+1}], v21 offset:{L_RK+8}"); a("s_waitcnt lgkmcnt(0)")
                a(f"v_readfirstlane_b32 s54, v{T}"); a(f"v_readfirstlane_b32 s55, v{T+1}")
                a("s_cmp_lg_u32 s54, 0"); a(f"s_cbranch_scc1 {dn}")
                a(f"s_add_u32 s{S_CNT}, s{S_CNT}, 1"); a(f"s_cmp_lt_u32 s{S_CNT}, {SPIN*16}"); a(f"s_cbranch_scc1 {lp}")
                a(f"{dn}:")
                a("s_add_u32 s70, s70, s54"); a(f"s_cmp_le_u32 s{S_WAVE}, s55"); a("s_cselect_b32 s70, s70, s75")
            a(f"buffer_load_dwordx4 v[{r}:{r+3}], v{VO}, s[{sr}:{sr+3}], s{60+i} offen nt")
            if bj and mark and (j == bj or (j == bj + 2 and mark != 2)):
                l = a.label("BK")
                a(f"s_cmp_lg_u32 s{S_WAVE}, 1"); a(f"s_cbranch_scc1 {l}")
                if j == bj: a("s_mov_b64 exec, 1"); a(f"global_atomic_inc v{D1}, v{D1+1}, v{D1}, s[52:53] sc0 sc1"); a("s_mov_b64 exec, -1")
                else: a("s_waitcnt vmcnt(2)"); a("s_mov_b64 exec, 1"); a(f"ds_write_b32 v21, v{D1} offset:{L_RK}"); a("s_mov_b64 exec, -1")
                a(f"{l}:")
            if dz and mark and j == dz["j"]:
                a("s_mov_b64 exec, 1"); a(f"ds_add_u32 v21, v{D1} offset:{L_RK}"); a("s_mov_b64 exec, -1")
            if dy and mark and j == ty:
                l = a.label("TK")
                a(f"s_cmp_lg_u32 s{S_WAVE}, 1"); a(f"s_cbranch_scc1 {l}")
                a("s_mov_b64 exec, 1"); a(f"global_atomic_inc v{PQ}, v{PQ+1}, v{PQ}, s[52:53] sc0 sc1"); a("s_mov_b64 exec, -1")
                a(f"{l}:")
        def nxt(i):
            if pt: a(f"v_readlane_b32 s{60+i}, v{PQ}, {i}"); return
            if za and i == 10: a(f"s_mul_i32 s70, s{S_WAVE}, {11*1024}"); return
            a(f"s_add_u32 s{60+i}, s{59+i}, {step}"); a(f"s_sub_u32 s71, s{60+i}, {NS*step}"); a(f"s_min_u32 s{60+i}, s{60+i}, s71")
        n0 = TH[0] if n1 else base
        if fp & 1 and rw == 4:
            a(f"buffer_load_dwordx4 v[{KR}:{KR+3}], v5, s[{R_A}:{R_A+3}], 0 offen nt")
            a("v_readfirstlane_b32 s60, v4"); a("s_lshl_b32 s60, s60, 10")
        else: ld(0)
        e2 = self.opt.get("e2", 1); n0 = max(n0, e2, self.opt.get("e3", 0))
        for i in range(1, e2): nxt(i); ld(i)
        if self.opt.get("s0"): self.stamp(1, True)
        if fp & 1:
            a(f"s_load_dword s{S_T}, s[{R_WS}:{R_WS+1}], 0")
            if rw not in (1, 2): a(f"v_readfirstlane_b32 s{S_WAVE}, v2")
            a(f"s_load_dwordx2 s[{R_B}:{R_B+1}], s[0:1], 16"); a(f"s_load_dwordx2 s[{S_WO}:{S_WO+1}], s[0:1], 32"); a("s_load_dwordx2 s[52:53], s[0:1], 96")
        le = self.opt.get("le", 0)
        if le: assert e2 == 1 and n0 == 1; nxt(1)
        aq = self.opt.get("aq", 0)
        def aqld():
            am = self.opt.get("am", 0xff)
            if am != 0xffffffff: a(f"s_mov_b32 exec_lo, {am:#x}")
            a(f"buffer_load_dwordx4 v[{D1}:{D1+3}], v{D2}, s[{R_E}:{R_E+3}], s54 offen" + self.opt.get("an", " nt"))
            if am != 0xffffffff: a("s_mov_b32 exec_lo, -1")
        if aq:
            assert le
            a("s_lshr_b32 s54, s2, 3"); a(f"s_lshl4_add_u32 s54, s54, s{S_WAVE}"); a("s_sub_u32 s54, s54, 128")
            a("s_mul_i32 s55, s54, 171"); a("s_lshr_b32 s55, s55, 9"); a("s_lshl1_add_u32 s54, s55, s54")
            a("s_and_b32 s55, s2, 7"); a("s_lshl3_add_u32 s54, s54, s55"); a("s_lshl_b32 s54, s54, 10"); a("s_add_u32 s54, s54, 16384")
            a(f"v_and_b32 v{D2}, 63, v0"); a(f"v_lshlrev_b32 v{D2}, 4, v{D2}")
            a(f"s_mov_b32 s{R_E+2}, {640*4096*2}"); a(f"s_mov_b32 s{R_E+3}, 0x20000")
            if aq == 2: aqld()
        self.touch("A")
        if le:
            if self.opt.get("s0"): self.stamp(2, True)
            a(f"s_waitcnt vmcnt({1 if aq == 2 else 0})")
            if self.opt.get("s0"): self.stamp(5, True)
            if aq == 1: aqld()
            ld(1); e2 = n0 = 2
            if aq == 3: aqld()
        a("s_branch L_att")
        mid()
        a("; GRP A")
        self.hole("A")
        a("L_att:")
        for i in range(e2, 11):
            nxt(i)
            if i < n0: ld(i)
        for i in range(self.opt.get("xs", 0)): a(f"s_mov_b32 s{70-i}, 0x40000000")
        if fp & 1:
            a(f"v_and_b32 v{V_L}, 63, v0"); a(f"v_bfe_u32 v{V_G}, v0, 4, 2"); a(f"v_and_b32 v{V_N}, 15, v0")
            a("s_sub_u32 s3, s2, 64"); a("s_sub_u32 s101, s101, 2"); a("s_mov_b32 s75, 0x40000000" if za else f"s_sub_u32 s75, s{R_A+2}, s74")
            a(f"s_mov_b32 s{R_B+2}, s{R_A+2}"); a(f"s_mov_b32 s{R_B+3}, 0x20000"); a(f"s_mov_b32 s{R_WS+2}, {WS_SIZE}"); a(f"s_mov_b32 s{R_WS+3}, 0x20000")
            if self.stamps: a(f"s_mov_b64 s[{S_WS}:{S_WS+1}], s[{R_WS}:{R_WS+1}]")
        else:
            a(f"s_add_u32 s{S_V}, s{S_V}, s74"); a(f"s_addc_u32 s{S_V+1}, s{S_V+1}, 0")
            srd(a, R_B, S_V, "s73"); srd(a, R_WS, S_WS, WS_SIZE)
        a("v_mov_b32 v21, 0")
        a(f"ds_write_b32 v21, v21 offset:{L_FLAG}")
        a(f"ds_write_b32 v21, v21 offset:{L_CNT}")
        dc = self.opt.get("dc", 0)
        if dc: a(f"ds_write_b32 v21, v21 offset:{L_NEAR}")
        if self.opt.get("wg"): a(f"ds_write_b32 v21, v21 offset:{L_RK+16}")
        if dz: a(f"v_mov_b32 v{D1}, 1"); a(f"ds_write_b32 v21, v21 offset:{L_RK}")
        if za: a(f"ds_write_b32 v21, v21 offset:{L_RK+8}")
        if bj:
            a(f"v_mov_b32 v{D1}, -1"); a(f"ds_write_b32 v21, v{21 if bo else D1} offset:{L_RK}")
            bm = self.opt.get("bm", 0)
            if bm == 0: a("s_and_b32 s71, s101, 1"); a("s_lshl_b32 s71, s71, 7"); a("s_add_u32 s71, s71, 4")
            else: a("s_and_b32 s71, s3, 7"); a("s_lshl_b32 s71, s71, 5"); a("s_add_u32 s71, s71, 4")
            a(f"v_mov_b32 v{D1+1}, s71")
        elif bt:
            a("s_getreg_b32 s54, hwreg(HW_REG_XCC_ID, 0, 4)"); a(f"v_mov_b32 v{D1}, s54"); a(f"ds_write_b32 v21, v{D1} offset:{L_RK}")
        if dy: a(f"v_mov_b32 v{PQ}, {63 if self.opt.get('tt') == 1 or self.opt.get('wg') else 23}"); a("s_and_b32 s71, s3, 7"); a("s_lshl_b32 s71, s71, 5"); a(f"v_mov_b32 v{PQ+1}, s71")
        self.masks(T)
        for j in range(self.opt.get("lb", 0)):
            if self.opt.get("s0") and n0 == 1: self.stamp(2, True)
            thr(n0, TH[n0], True)
            if self.opt.get("s0") and n0 in (1, 2, 3): self.stamp(4 + n0, True)
            ld(n0); n0 += 1
        a("s_waitcnt lgkmcnt(0)")
        self.tags()
        a("s_barrier")
        jp = n0 if dz else max(n0, self.opt.get("jp", n1))
        def flagchk(target):
            a(f"ds_read_b32 v{T}, v21 offset:{L_FLAG}"); a("s_waitcnt lgkmcnt(0)")
            a(f"v_cmp_ne_u32 vcc, 0, v{T}"); a(f"s_cbranch_vccnz {target}")
        chk_j = [j for j in range(22) if j - TH[j] >= kp]
        sq = self.opt.get("sq"); sql = []
        if sq:
            a(f"s_mul_i32 s54, s{S_WAVE}, 11264"); a("s_sub_u32 s54, s74, s54")
            sql = [(p, k) for p in sq["p"] for k in range(0, 1024, sq.get("st", 128))]
        def sqld(j):
            if not sq or j < sq["j0"]: return
            for _ in range(sq["n"]):
                if not sql: return
                p, k = sql.pop(0); sr = R_A if p < 11 else R_B
                if k == 0: a(f"s_add_u32 s55, s54, s{60+p%11}")
                if sq.get("w", 1) == 1: a(f"s_buffer_load_dword s56, s[{sr}:{sr+3}], s55 offset:{k}")
                else: a(f"s_buffer_load_dwordx2 s[56:57], s[{sr}:{sr+3}], s55 offset:{k+60}")
        for j in range(n0, 22):
            if j == jp:
                a(f"s_cmp_eq_u32 s{S_WAVE}, 0"); a("s_cbranch_scc1 L_att_w0")
            a(f"L_att_a{j}:")
            if self.opt.get("s0") and j == 1: self.stamp(2, True)
            thr(j, TH[j], True)
            if self.opt.get("s0") and j in (1, 2, 3): self.stamp(4 + j, True)
            ld(j)
            sqld(j)
            if j in chk_j and j < 21: flagchk(f"L_att_b{j}")
        a("L_att_a22:")
        a(f"s_mov_b32 s76, 21")
        a(f"s_mov_b32 s{S_CNT}, 0")
        a("L_att_spin:")
        flagchk("L_att_qk")
        a(f"s_add_u32 s{S_CNT}, s{S_CNT}, 1"); a(f"s_cmp_lt_u32 s{S_CNT}, {SPIN*16}"); a("s_cbranch_scc1 L_att_spin")
        a("s_branch L_att_qk")
        self.hole("A")
        bq = self.opt.get("bq", 2)
        for j in chk_j[:-1]:
            a(f"L_att_b{j}:")
            for j2 in range(j + 1, min(j + bq, 21) + 1): ld(j2, 2)
            a(f"s_mov_b32 s76, {min(j + bq, 21)}"); a("s_branch L_att_qk")
        a("L_att_w0:")
        if not dz: a("s_setprio 3")
        qh = self.opt.get("qh", 0)
        if qh:
            a(f"v_lshlrev_b32 v{T+2}, 4, v{V_L}"); a("s_lshl_b32 s76, s100, 10"); a(f"s_add_u32 s76, s76, {WS_Q}")
            a(f"v_and_b32 v{T+3}, 31, v{V_L}"); a(f"v_lshrrev_b32 v{T+1}, 5, v{V_L}"); a(f"v_lshl_add_u32 v{T+3}, v{T+3}, 1, v{T+1}")
            a(f"v_lshlrev_b32 v{T+3}, 2, v{T+3}"); a(f"v_mov_b32 v{PQ+1}, 1")
        else:
            a(f"v_lshlrev_b32 v{T+2}, 3, v{V_L}"); a("s_lshl_b32 s76, s100, 9"); a(f"s_add_u32 s76, s76, {WS_Q}")
            a(f"v_lshlrev_b32 v{T+3}, 2, v{V_L}"); a(f"v_mov_b32 v{T+4}, 1"); a("s_mov_b32 s77, 0x07060302")
        def pq():
            if qh: a(f"buffer_load_dwordx4 v[{T+4}:{T+7}], v{T+2}, s[{R_WS}:{R_WS+3}], s76 offen sc1")
            else: a(f"buffer_load_dwordx2 v[{PQ}:{PQ+1}], v{T+2}, s[{R_WS}:{R_WS+3}], s76 offen sc1")
        def chk():
            if qh: self.untag(list(range(T + 4, T + 8)), V_T10, T, 0x3ff)
            else: self.untag([PQ, PQ + 1], V_T16, T, 0xffff)
            if self.opt.get("xq"): a("s_mov_b64 vcc, 0")
        def qput():
            if qh:
                a(f"v_permlane32_swap_b32 v{T+4}, v{T+6}"); a(f"v_permlane32_swap_b32 v{T+5}, v{T+7}")
                a(f"v_add_f32 v{T+4}, v{T+4}, v{T+6}"); a(f"v_add_f32 v{T+5}, v{T+5}, v{T+7}")
                a(f"v_cvt_pk_bf16_f32 v{PQ}, v{T+4}, v{T+5}")
            else: a(f"v_perm_b32 v{PQ}, v{PQ+1}, v{PQ}, s77")
            a(f"ds_write_b32 v{T+3}, v{PQ} offset:{L_Q}"); a(f"ds_write_b32 v21, v{PQ+1 if qh else T+4} offset:{L_FLAG}")
        ps = self.opt.get("ps", 3)
        slots = list(range(jp, 22, ps))
        w0 = self.opt.get("w0", 0)
        if dz:
            cs = dz["c"]; assert not w0 and zt != 1
            if za: assert zt and sum(cs) == 124 - 6 * zt and max(cs) <= 26 - zt and dz["j"] < kp
            else: assert sum(cs) == 34 - 6 * zt and min(cs) + zt >= 1 and max(cs) <= 11 - zt and sum(cs[1:5]) < 32
            for j in list(range(2, zt)) + list(range(11, 11 + zt)): a(f"s_waitcnt vmcnt({dz.get('t', 1) - 1})"); ld(j, False)
            tc = sum(c << (4 * i) for i, c in enumerate(cs)); to = sum(sum(cs[1:i]) << (5 * i) for i in range(1, 6))
            lp, dn = a.label("ZL"), a.label("ZD")
            a(f"s_mov_b32 s{S_CNT}, 0")
            a("s_and_b32 s71, s100, 7"); a("s_lshl_b32 s71, s71, 3"); a("s_lshr_b32 s78, s100, 3"); a("s_add_u32 s71, s71, s78"); a("s_lshl_b32 s71, s71, 2"); a("s_add_u32 s71, s71, 4")
            a(f"v_mov_b32 v{D1+1}, s71"); a(f"v_mov_b32 v{D1}, 5")
            zp = dz.get("p", 0)
            if zp:
                l1, l2 = a.label("ZP"), a.label("ZG")
                a("s_mov_b32 s54, 0")
                a(f"{l1}:")
                pq(); a("s_waitcnt vmcnt(0)"); a(f"ds_read_b32 v{T+1}, v21 offset:{L_RK}"); chk(); a(f"s_cbranch_vccz {l2}")
                a("s_waitcnt lgkmcnt(0)")
                a(f"v_cmp_le_u32 vcc, {dz.get('n', 8)}, v{T+1}"); a(f"s_cbranch_vccnz {dn}")
                a(f"s_add_u32 s{S_CNT}, s{S_CNT}, 1"); a(f"s_cmp_lt_u32 s{S_CNT}, {SPIN}"); a(f"s_cbranch_scc1 {l1}")
                a(f"{l2}:")
                qput(); self.stamp(1); a("s_mov_b32 s54, 1")
            a(f"{lp}:")
            a(f"ds_read_b32 v{T}, v21 offset:{L_RK}"); a("s_waitcnt lgkmcnt(0)")
            a(f"v_cmp_le_u32 vcc, {dz.get('n', 8)}, v{T}"); a(f"s_cbranch_vccnz {dn}")
            a(f"s_add_u32 s{S_CNT}, s{S_CNT}, 1"); a(f"s_cmp_lt_u32 s{S_CNT}, {SPIN*16}"); a(f"s_cbranch_scc1 {lp}")
            a(f"{dn}:")
            a("s_setprio 3")
            a("s_mov_b64 exec, 1"); a(f"global_atomic_inc v{D1}, v{D1+1}, v{D1}, s[52:53] sc0 sc1"); a("s_mov_b64 exec, -1")
            pq()
            a("s_lshl_b32 s78, s100, 22"); a(f"s_add_u32 s78, s78, {12288*256 + (90 * NS + 6 * zt)*1024}")
            if za:
                to = sum(sum(cs[:i]) << (8 * i) for i in range(7))
                a(f"s_mov_b32 s56, {to & 0xffffffff:#x}"); a(f"s_mov_b32 s57, {to >> 32:#x}")
            a("s_waitcnt vmcnt(1)")
            a(f"v_readfirstlane_b32 s71, v{D1}"); a("s_min_u32 s71, s71, 5")
            if dz.get("fix"): a("s_mov_b32 s71, s101")
            if za:
                a("s_lshl_b32 s79, s71, 3"); a("s_lshr_b64 s[56:57], s[56:57], s79"); a("s_and_b32 s79, s56, 0xff"); a("s_bfe_u32 s75, s56, 0x80008")
                a("s_sub_u32 s71, s75, s79"); a("s_lshl_b32 s79, s79, 10"); a("s_lshl_b32 s75, s75, 10")
                a(f"s_add_u32 s{R_A+2}, s78, s75"); a("s_add_u32 s78, s78, s79"); a("s_sub_u32 s79, s78, s74"); a("s_sub_u32 s79, s79, 1024")
                a(f"v_mov_b32 v{T}, s79"); a(f"v_mov_b32 v{T+1}, s71"); a(f"ds_write_b64 v21, v[{T}:{T+1}] offset:{L_RK+8}")
                a(f"s_add_u32 s78, s78, {15*1024}"); a(f"s_mov_b32 s{R_B+2}, s{R_A+2}")
            else:
                a("s_lshl_b32 s79, s71, 2"); a(f"s_lshr_b32 s75, {tc:#x}, s79"); a("s_and_b32 s75, s75, 15"); a("s_lshl_b32 s75, s75, 10")
                a("s_mul_i32 s79, s71, 5"); a(f"s_lshr_b32 s79, {to:#x}, s79"); a("s_and_b32 s79, s79, 31")
                a("s_cmp_eq_u32 s71, 0"); a(f"s_cselect_b32 s71, 0, {cs[0]}"); a("s_add_u32 s79, s79, s71"); a("s_lshl_b32 s79, s79, 10")
                a("s_add_u32 s78, s78, s79"); a(f"s_add_u32 s{R_A+2}, s78, s75"); a(f"s_mov_b32 s{R_B+2}, s{R_A+2}")
            if zt:
                a(f"s_sub_u32 s75, s{R_A+2}, s74"); a("s_sub_u32 s78, s78, s74")
                for i in range(zt, 11): a(f"s_add_u32 s{60+i}, s78, {(i - zt) * 1024}")
            else: a(f"v_lshl_add_u32 v{VO}, v{V_L}, 4, s78")
            od = list(range(zt, 11)) + list(range(11 + zt, 22)); NZ = len(od)
            zs = dz.get("s", 4); ze = dz.get("e", NZ); sl = list(range(0, ze, zs))
            if zp: a("s_cmp_lg_u32 s54, 0"); a("s_cbranch_scc1 L_att_y0")
            for j in sl:
                if j: pq()
                for j2 in range(j, min(j + zs, ze)): ld(od[j2], False)
                a(f"s_waitcnt vmcnt({min(j + zs, ze) - j})"); chk(); a(f"s_cbranch_vccz L_att_z{min(j + zs, ze)}")
            self.poll(pq, chk, "PQ")
            for j in sl[::-1]:
                a(f"L_att_z{min(j + zs, ze)}:"); qput(); self.stamp(1); a(f"s_branch L_att_y{min(j + zs, ze)}")
            for j in range(0 if zp else zs, NZ + 1):
                if j in sl and j < dz.get("b", NZ // 2) and j > zs: a(f"s_waitcnt vmcnt({zs})")
                if j in sl or j == ze: a(f"L_att_y{j}:")
                if j < NZ: ld(od[j], False)
            a(f"s_waitcnt vmcnt({NZ // 2})")
            a("s_setprio 0")
            a("s_mov_b32 s76, 21"); a("s_branch L_att_qk")
            slots = []; w0 = -1
        elif w0:
            slots = []
            for j in range(jp, w0): a(f"s_waitcnt vmcnt({self.opt.get('t0', TH[j])-1})"); ld(j, False)
            if self.opt.get("xp"): a("s_waitcnt vmcnt(0)"); self.stamp(5, True)
            self.poll(pq, chk, "PQ")
            qput()
            self.stamp(1)
            if self.opt.get("xp") and self.stamps: a(f"s_mul_i32 s54, s{S_CNT}, 100"); a(f"s_add_u32 s{S_ST+12}, s{S_ST}, s54"); a(f"s_addc_u32 s{S_ST+13}, s{S_ST+1}, 0")
            for j in range(w0, 22): ld(j, False)
            a("s_setprio 0")
            a("s_mov_b32 s76, 21"); a("s_branch L_att_qk")
        for j in slots:
            if j > jp:
                a(f"s_waitcnt vmcnt({ps})"); chk(); a(f"s_cbranch_vccz L_att_got{j}")
            else: a(f"s_waitcnt vmcnt({TH[j]-1})")
            pq()
            for j2 in range(j, min(j + ps, 22)): ld(j2, False)
        if not w0: self.poll(pq, chk, "PQ")
        for j in [] if w0 else [22] + slots[1:]:
            a(f"L_att_got{j}:")
            qput()
            a("s_setprio 0")
            self.stamp(1)
            a(f"s_branch L_att_a{j}")
        self.hole("A")
        a("L_att_qk:")
        if self.stamps and self.opt.get("sw0"):
            a("s_getreg_b32 s54, hwreg(HW_REG_HW_ID)"); a("s_getreg_b32 s55, hwreg(HW_REG_XCC_ID, 0, 4)")
            a("s_mov_b64 s[56:57], s[60:61]"); a("v_mov_b32 v126, v10"); a("v_mov_b32 v127, v12")
            self.pw([0, 1, 2, 5, 6, "s54", "s55", 7]); a("s_mov_b64 s[60:61], s[56:57]"); a("s_waitcnt vmcnt(0)")
            self.opt["pw"] = 0
        swa = self.opt.get("swa", 0); aw = self.opt.get("aw", 0)
        if swa: self.stamp(1)
        if aw: self.stamp(8)
        a(f"v_lshlrev_b32 v{T}, 4, v{V_N}")
        a(f"ds_read_b128 v[{Q}:{Q+3}], v{T} offset:{L_Q}")
        a("s_waitcnt lgkmcnt(0)")
        for t in range(6):
            pa, pb = 2 * t, 2 * t + 1
            for d in range(4):
                for i, acc in ((pa, T), (pb, T + 1)):
                    if i > 10: continue
                    a(f"v_dot2_f32_bf16 v{acc}, v{KR+4*i+d}, v{Q+d}, " + ("0" if d == 0 else f"v{acc}"))
            a(f"v_add_f32_dpp v{S+t}, v{T}, v{T} row_ror:8 row_mask:0xf bank_mask:{'0x3' if pb <= 10 else '0xf'}")
            if pb <= 10: a(f"v_add_f32_dpp v{S+t}, v{T+1}, v{T+1} row_ror:8 row_mask:0xf bank_mask:0xc")
        for m in ("quad_perm:[1,0,3,2]", "quad_perm:[2,3,0,1]", "row_half_mirror"):
            for t in range(6): a(f"v_add_f32_dpp v{S+t}, v{S+t}, v{S+t} {m} row_mask:0xf bank_mask:0xf")
        a(f"v_mov_b32 v{T+1}, 0xff800000")
        for t in range(6): bfr(a, S + t, S + t)
        for t in range(6): a(f"v_mul_f32 v{S+t}, {fh(128 ** -0.5)}, v{S+t}")
        for t in range(6): bfr(a, S + t, S + t)
        l = a.label("MK")
        a(f"s_cmp_lg_u32 s{S_WAVE}, 0"); a(f"s_cbranch_scc1 {l}")
        assert self.pat == "contig"
        for t in range(6):
            if za and t == 5:
                if self.opt.get("touch", 1): a(f"s_branch {l}"); self.hole("A")
                a(f"{l}:")
            a(f"s_cmp_lt_u32 s{60+2*t}, s75"); a("s_cselect_b32 s78, 0x00ff00ff, 0")
            if 2 * t + 1 <= 10:
                a(f"s_cmp_lt_u32 s{61+2*t}, s75"); a("s_cselect_b32 s79, 0xff00ff00, 0"); a("s_or_b32 s78, s78, s79")
            a("s_mov_b32 vcc_lo, s78"); a("s_mov_b32 vcc_hi, s78")
            a(f"v_cndmask_b32 v{S+t}, v{T+1}, v{S+t}, vcc")
        if not za:
            if self.opt.get("touch", 1): a(f"s_branch {l}"); self.hole("A")
            a(f"{l}:")
        MW = T + 6
        a(f"v_max3_f32 v{MW}, v{S}, v{S+1}, v{S+2}"); a(f"v_max3_f32 v{MW}, v{MW}, v{S+3}, v{S+4}"); a(f"v_max_f32 v{MW}, v{MW}, v{S+5}")
        a(f"v_mov_b32_dpp v{S+5}, v{T+1} quad_perm:[0,1,2,3] row_mask:0xf bank_mask:0xc")
        a(f"v_max_f32_dpp v{MW}, v{MW}, v{MW} row_ror:8 row_mask:0xf bank_mask:0xf")
        self.xrow_allred(MW, T + 1, "v_max_f32")
        for t in range(6): a(f"v_sub_f32 v{S+t}, v{S+t}, v{MW}")
        for t in range(6): a(f"v_mul_f32 v{S+t}, {fh(LOG2E)}, v{S+t}")
        for t in range(6): a(f"v_exp_f32 v{S+t}, v{S+t}")
        a(f"s_lshl_b32 s78, s{S_WAVE}, 3"); a(f"v_mov_b32 v{T+5}, s78")
        a(f"v_add_f32 v{MW+1}, v{S}, v{S+1}"); a(f"v_add_f32 v{T+1}, v{S+2}, v{S+3}"); a(f"v_add_f32 v{T+2}, v{S+4}, v{S+5}")
        a(f"v_add_f32 v{MW+1}, v{MW+1}, v{T+1}"); a(f"v_add_f32 v{MW+1}, v{MW+1}, v{T+2}")
        for t in range(6): a(f"v_cvt_pk_bf16_f32 v{S+t}, v{S+t}, v{S+t}")
        a(f"v_add_f32_dpp v{MW+1}, v{MW+1}, v{MW+1} row_ror:8 row_mask:0xf bank_mask:0xf")
        for t in range(6): a(f"v_and_b32 v{KR+24+2*t}, v{S+t}, v{V_HM}")
        for t in range(6): self.spread(KR + 4 * t, KR + 24 + 2 * t)
        self.xrow_allred(MW + 1, T + 2, "v_add_f32")
        a(f"ds_write_b64 v{T+5}, v[{MW}:{MW+1}] offset:{L_MAX}")
        a(f"v_mov_b32 v{T+1}, 1")
        self.setexec(1, 0)
        a(f"ds_add_u32 v21, v{T+1} offset:{L_CNT}")
        self.allexec()
        self.stamp(5)
        if bj:
            l = a.label("BQ")
            a(f"s_cmp_lg_u32 s{S_WAVE}, 1"); a(f"s_cbranch_scc1 {l}")
            a(f"s_sub_u32 s77, s76, {bj+2}"); a(f"s_cmp_ge_u32 s77, {bq}"); a(f"s_cbranch_scc1 {l}")
            a("s_waitcnt vmcnt(2)"); a("s_mov_b64 exec, 1"); a(f"ds_write_b32 v21, v{D1} offset:{L_RK}"); a("s_mov_b64 exec, -1")
            a(f"{l}:")
        j0 = min(chk_j[0] + bq, 21)
        tq = self.opt.get("tq", 0)
        for j in range(21, j0, -1):
            a(f"s_cmp_eq_u32 s76, {j}"); a(f"s_cbranch_scc1 L_att_c{j+1}")
        if self.opt.get("touch", 1): a(f"s_branch L_att_c{j0+1}"); self.hole("A")
        for j in range(j0 + 1, 22):
            a(f"L_att_c{j}:")
            thr(j, tq or TH[j], True)
            ld(j)
        a("L_att_c22:")
        if swa: self.stamp(2)
        if aw: self.stamp(9)
        self.wraddr(T + 2)
        self.widerd(T + 3, T + 4)
        self.unitoff(T + 4)
        a(f"v_lshlrev_b32 v{T+5}, 3, v{V_N}")
        a("s_mul_i32 s76, s100, 6"); a("s_add_u32 s76, s76, s101"); a("s_lshl_b32 s76, s76, 1")
        if dc: a(f"s_and_b32 s77, s{S_WAVE}, 1"); a("s_add_u32 s76, s76, s77")
        else: a(f"s_add_u32 s76, s76, s{S_WAVE}")
        a("s_lshl_b32 s76, s76, 8"); a(f"s_add_u32 s76, s76, {WS_O}")
        a(f"s_add_u32 s72, s76, {WS_ON-WS_O}")
        WO = KR + 24
        self.colvoff(VO, 4 * 1280, T)
        w2 = self.opt.get("w2", 0); NWO = 160 if w2 else 80
        a("s_and_b32 s64, s3, 7")
        if not dy: a("s_lshr_b32 s65, s3, 3")
        if dy: a(f"s_bfe_u32 s73, s{S_WAVE}, 0x10002")
        elif w2:
            a("s_cmp_ge_u32 s65, 10"); a("s_cselect_b32 s79, 1, 0"); a("s_cselect_b32 s73, 10, 0"); a("s_sub_u32 s65, s65, s73")
            a(f"s_bfe_u32 s73, s{S_WAVE}, 0x10002"); a("s_lshl1_add_u32 s73, s79, s73")
        else: a(f"s_lshr_b32 s73, s{S_WAVE}, 2")
        a("s_lshl_b32 s68, s73, 3"); a("s_add_u32 s68, s68, s64")
        a(f"s_and_b32 s71, s{S_WAVE}, 3"); a("s_lshl_b32 s66, s68, 2"); a("s_add_u32 s66, s66, s71")
        a(f"s_mul_i32 s60, s66, {32*1280}")
        if dy: a(f"s_cmp_ge_u32 s{S_WAVE}, 8"); a(f"s_cselect_b32 s67, {4096*640*2}, 0")
        else:
            a("s_lshl_b32 s61, s65, 7"); a("s_add_u32 s60, s60, s61")
            a(f"s_cmp_lt_u32 s3, {NWO}"); a(f"s_cselect_b32 s67, {0 if self.opt.get('xw') else 4096*640*2}, 0")
            if w2: a(f"s_cmp_ge_u32 s{S_WAVE}, 8"); a("s_cselect_b32 s67, s67, 0")
        srd(a, R_C, S_WO, "s67")
        xc = self.opt.get("xc", 0); wst = 1280
        if xc & 1:
            a(f"v_lshlrev_b32 v{VO}, 4, v{V_L}"); a(f"s_lshl_b32 s60, s{64 if dy else 3}, 3"); a(f"s_add_u32 s60, s60, s{S_WAVE}"); a("s_sub_u32 s60, s60, 8"); a("s_lshl_b32 s60, s60, 12"); wst = 1024
        a("s_lshl_b32 s69, s64, 7"); a(f"s_add_u32 s69, s69, {WS_ML}")
        a("s_mul_i32 s70, s68, 3072"); a("s_lshl_b32 s71, s71, 7"); a("s_add_u32 s70, s70, s71"); a(f"s_add_u32 s70, s70, {WS_O-1 if dc else WS_O}")
        if dy: a("s_lshl_b32 s62, s64, 14")
        else:
            if w2: a("s_lshl_b32 s62, s64, 14"); a("s_mul_i32 s63, s79, 2560")
            else: a("s_lshr_b32 s62, s64, 1"); a("s_lshl_b32 s62, s62, 14"); a("s_and_b32 s63, s64, 1"); a("s_mul_i32 s63, s63, 2560")
            a("s_add_u32 s62, s62, s63"); a("s_lshl_b32 s63, s65, 8")
            a("s_add_u32 s62, s62, s63")
        a(f"s_add_u32 s62, s62, {WS_A}")
        ML, O, X, P, B, Y, C, AD = 76, 88, 14, 16, 92, 22, 10, 80
        w1 = self.opt.get("w1", 2)
        hy = self.opt.get("hy", 0); WO2 = [72, 100, 104, 108]; wf = self.opt.get("wf", 0); wx = w1 + (4 if (hy or wf) else 0)
        def wold(lo, hi):
            for t in range(lo, hi):
                a(f"buffer_load_dwordx4 v[{WO+4*t}:{WO+4*t+3}], v{VO}, s[{R_C}:{R_C+3}], s60 offen offset:{wst*t} nt")
                if hy: a(f"buffer_load_dwordx4 v[{WO2[t]}:{WO2[t]+3}], v{ML+3}, s[{R_C}:{R_C+3}], s60 offen offset:{wst*t} nt")
        def addr():
            t0, t1, t5, t6 = 86, 87, 78, 79
            a(f"v_bfe_u32 v{t0}, v{V_N}, 2, 1"); a(f"v_mul_u32_u24 v{t0}, 3, v{t0}"); a(f"v_lshrrev_b32 v{t1}, 3, v{V_N}")
            a("s_lshl_b32 s77, s73, 5")
            a(f"v_lshl_add_u32 v{AD+1}, v{t0}, 2, s77"); a(f"v_lshl_add_u32 v{AD}, v{t1}, 2, v{AD+1}")
            a(f"v_and_b32 v{t5}, 3, v{V_N}"); a(f"v_lshlrev_b32 v{t5}, 2, v{t5}")
            a(f"v_lshrrev_b32 v{t6}, 3, v{V_L}"); a(f"v_lshl_add_u32 v{t5}, v{t6}, 4, v{t5}")
            a(f"v_lshl_add_u32 v{AD+4}, v{t0}, 9, v{t5}"); a(f"v_lshl_add_u32 v{AD+2}, v{t1}, 9, v{AD+4}")
            a(f"v_xor_b32 v{t1}, 1, v{t1}"); a(f"v_lshl_add_u32 v{AD+3}, v{t1}, 9, v{AD+4}"); a(f"v_lshl_add_u32 v{AD+5}, v{t1}, 2, v{AD+1}")
        def isso():
            for j in range(3): a(f"buffer_load_dword v{O+j}, v{AD+2+j}, s[{R_WS}:{R_WS+3}], s70 offen offset:{1024 if j == 2 else 0} sc1")
        def scale():
            a(f"v_mov_b32 v{T}, v{Q}")
            row_red(a, T, "v_max_f32")
            a(f"v_sub_f32 v{MW}, v{MW}, v{T}"); a(f"v_mul_f32 v{MW}, {fh(LOG2E)}, v{MW}"); a(f"v_exp_f32 v{MW}, v{MW}")
        def fold():
            self.fold_wide(D1, D2, S)
            a(f"v_mul_f32 v{S}, v{S}, v{MW}"); a(f"v_mul_f32 v{S+1}, v{S+1}, v{MW}")
            self.putpart(T + 2, S, L_ACC0)
        dp = "row_mask:0xf bank_mask:0xf"
        nb = self.opt.get("nb", 9)
        for i in range(11):
            a(f"s_waitcnt vmcnt({10-i+(wx if i >= nb else 0)})")
            self.mfma(D1 if i % 2 == 0 else D2, VR + 4 * i, KR + 4 * (i // 2), i < 2)
            if i == nb - 1:
                if self.stamps and self.opt.get("hw"): a(f"s_getreg_b32 s{S_ST+12}, hwreg(HW_REG_HW_ID)"); a(f"s_getreg_b32 s{S_ST+13}, hwreg(HW_REG_XCC_ID, 0, 4)")
                else: self.stamp(6)
                addr()
                l = a.label("ML")
                a(f"s_cmp_lg_u32 s{S_WAVE}, 0"); a(f"s_cbranch_scc1 {l}")
                a("s_waitcnt vmcnt(0)")
                for i2 in range(nb, 11): self.mfma(D1 if i2 % 2 == 0 else D2, VR + 4 * i2, KR + 4 * (i2 // 2), False)
                a("s_lshl_b32 s77, s100, 7"); a("s_lshl_b32 s78, s101, 4"); a("s_add_u32 s77, s77, s78"); a(f"s_add_u32 s77, s77, {WS_ML}")
                a("s_getreg_b32 s74, hwreg(HW_REG_XCC_ID, 0, 4)"); a("s_lshl_b32 s74, s74, 10")
                lp, dn = a.label("CL"), a.label("CD")
                a(f"s_mov_b32 s{S_CNT}, 0")
                a(f"{lp}:")
                a(f"ds_read_b32 v{T}, v21 offset:{L_CNT}"); a(f"ds_read_b64 v[{Q}:{Q+1}], v{T+5} offset:{L_MAX}"); a("s_waitcnt lgkmcnt(0)")
                a(f"v_cmp_eq_u32 vcc, 16, v{T}"); a(f"s_cbranch_vccnz {dn}")
                a(f"s_add_u32 s{S_CNT}, s{S_CNT}, 1"); a(f"s_cmp_lt_u32 s{S_CNT}, {SPIN*16}"); a(f"s_cbranch_scc1 {lp}")
                if self.opt.get("touch", 1): a(f"s_branch {dn}"); self.hole("A")
                a(f"{dn}:")
                scale()
                a(f"v_sub_f32 v{Q}, v{Q}, v{T}"); a(f"v_mul_f32 v{Q}, {fh(LOG2E)}, v{Q}"); a(f"v_exp_f32 v{Q}, v{Q}")
                a(f"v_or_b32 v{Q+2}, s74, v{V_T10}"); a(f"v_mov_b32 v{Q+3}, v{V_T10}")
                a(f"v_mul_f32 v{Q+1}, v{Q+1}, v{Q}")
                a(f"v_bfi_b32 v{Q}, s{S_M10}, v{V_T10}, v{T}")
                row_red(a, Q + 1)
                a(f"v_bfi_b32 v{Q+1}, s{S_M10}, v{V_T10}, v{Q+1}")
                self.setexec(1, 0)
                a(f"buffer_store_dwordx4 v[{Q}:{Q+3}], v21, s[{R_WS}:{R_WS+3}], s77 offen sc1")
                self.allexec()
                self.stamp(2)
                fold()
                RA, VA = O, O + 1
                a(f"v_and_b32 v{T}, 7, v{V_L}"); a(f"v_cmp_gt_u32 vcc, 6, v{T}"); a(f"v_cndmask_b32 v{VA}, 0, 1.0, vcc")
                a(f"v_min_u32 v{T}, 5, v{T}"); a(f"v_lshlrev_b32 v{T}, 4, v{T}")
                if dc:
                    a(f"v_bfe_u32 v{T+1}, v{V_L}, 3, 1"); a(f"v_add_u32 v{T+1}, s73, v{T+1}")
                    a("s_lshl_b32 s77, s73, 5"); a(f"v_lshl_add_u32 v{O+2}, v{V_N}, 2, s77")
                else: a(f"v_bfe_u32 v{T+1}, v{V_L}, 3, 2")
                a(f"v_lshl_add_u32 v{RA}, v{T+1}, 10, v{T}")
                a("s_setprio 3")
                if dc: a("s_waitcnt lgkmcnt(0)")
                a("s_barrier")
                self.stamp(7)
                if dy:
                    a(f"ds_read_b32 v{T}, v21 offset:{L_TK+8}"); a("s_waitcnt lgkmcnt(0)"); a(f"v_readfirstlane_b32 s65, v{T}")
                    a(f"s_cmp_ge_u32 s65, {NB}"); a(f"s_cbranch_scc1 {'L_w_f0' if self.stamps else 'L_end'}")
                    a("s_cmp_ge_u32 s65, 10"); a("s_cselect_b32 s65, 2048, 0"); a(f"s_cselect_b32 s66, {16*3072+1}, 1"); a("s_add_u32 s69, s69, s65")
                else: a(f"s_cmp_ge_u32 s3, {NWO}"); a(f"s_cbranch_scc1 {('L_w_f0' if self.stamps else 'L_end') if dc else 'L_att_fin'}")
                def issm(): a(f"buffer_load_dwordx4 v[{ML}:{ML+3}], v{RA}, s[{R_WS}:{R_WS+3}], s69 offen sc1")
                def chkm(): self.untag(list(range(ML, ML + 4)), V_T10, T, 0x3ff)
                issm()
                if dc: a("s_barrier"); a("s_waitcnt vmcnt(0)")
                else:
                    wold(0, w1)
                    a(f"s_waitcnt vmcnt({w1})")
                chkm()
                a("s_cbranch_vccz L_w_c")
                self.poll(issm, chkm, "PM")
                a("L_w_c:")
                r8 = ("quad_perm:[1,0,3,2]", "quad_perm:[2,3,0,1]", "row_half_mirror")
                a(f"v_max_f32_dpp v{T}, v{ML}, v{ML} {r8[0]} {dp}")
                a(f"v_cmp_ne_u32 vcc, s74, v{ML+2}")
                for m in r8[1:]: a(f"v_max_f32_dpp v{T}, v{T}, v{T} {m} {dp}")
                a(f"v_mul_f32 v{ML+1}, v{ML+1}, v{VA}")
                a(f"v_sub_f32 v{ML}, v{ML}, v{T}"); a(f"v_mul_f32 v{ML}, {fh(LOG2E)}, v{ML}"); a(f"v_exp_f32 v{ML}, v{ML}")
                if dy: a("s_cmp_eq_u64 vcc, 0"); a(f"s_cselect_b32 s77, {0 if self.opt.get('nn') == 1 else WS_ON-WS_O}, 0"); a("s_add_u32 s77, s77, s66")
                else: a("s_cmp_eq_u64 vcc, 0"); a(f"s_cselect_b32 s77, {(WS_ON-WS_O if self.opt.get('near', 1) else 0)+dc}, {dc}")
                a(f"v_mov_b32 v{T+1}, s77")
                if not dc: a(f"ds_write_b32 v21, v{T+1} offset:{L_NEAR}")
                a(f"v_mul_f32 v{T}, v{ML}, v{ML+1}")
                for m in r8: a(f"v_add_f32_dpp v{T}, v{T}, v{T} {m} {dp}")
                a(f"v_rcp_f32 v{T}, v{T}")
                if not dc: a(f"v_and_b32 v{T+1}, 31, v{V_L}"); a(f"v_lshlrev_b32 v{T+1}, 2, v{T+1}")
                a(f"v_mul_f32 v{ML}, v{ML}, v{T}")
                if dc:
                    a(f"ds_write_b32 v{O+2}, v{ML} offset:{L_COEF}"); a(f"ds_write_b32 v21, v{T+1} offset:{L_NEAR}")
                    a("s_waitcnt lgkmcnt(0)")
                    if self.stamps:
                        a("L_w_f1:"); self.flush_stamps(3, role='A'); self.flush_stamps(8, 5, role='A')
                    a("s_endpgm")
                    if self.stamps: a("L_w_f0:"); a("s_barrier"); a("s_branch L_w_f1")
                else:
                    a(f"ds_write_b32 v{T+1}, v{ML} offset:{L_COEF}")
                    a("s_branch L_att_fin")
                self.hole("A")
                a(f"{l}:")
                if dy:
                    l = a.label("TW")
                    a(f"s_cmp_lg_u32 s{S_WAVE}, 1"); a(f"s_cbranch_scc1 {l}")
                    a(f"s_waitcnt vmcnt({21-ty})"); a(f"v_readfirstlane_b32 s65, v{PQ}")
                    mw = self.opt.get("mw", 0)
                    if mw:
                        assert not hy
                        a("s_lshr_b32 s77, s65, 1"); a("s_and_b32 s65, s65, 1"); a("s_mul_i32 s65, s65, 10")
                        a("s_add_u32 s65, s65, s77"); a(f"s_cmp_ge_u32 s77, {10-mw}"); a("s_cselect_b32 s65, 63, s65")
                    if hy:
                        a("s_lshr_b32 s77, s65, 1"); a("s_and_b32 s65, s65, 1"); a("s_mul_i32 s65, s65, 10")
                        a(f"s_cmp_lt_u32 s77, {hy}"); a(f"s_cselect_b32 s66, s77, {hy}"); a("s_cselect_b32 s78, 128, 0x40000000"); a("s_add_u32 s77, s77, s66")
                        a("s_add_u32 s65, s65, s77"); a("s_cmp_ge_u32 s77, 10"); a("s_cselect_b32 s65, 63, s65"); a(f"v_mov_b32 v{ML+3}, s78")
                    a("s_cmp_ge_u32 s65, 10"); a(f"s_cselect_b32 s66, {16*128*1280-1280}, 0")
                    a("s_lshl_b32 s77, s65, 7"); a("s_add_u32 s66, s66, s77"); a("s_lshl_b32 s77, s65, 8")
                    if xc & 1: a("s_lshl_b32 s66, s65, 18")
                    a(f"s_cmp_ge_u32 s65, {NB}"); a("s_cselect_b32 s66, 0x40000000, s66")
                    a(f"v_mov_b32 v{ML}, s66"); a(f"v_mov_b32 v{ML+1}, s77"); a(f"v_mov_b32 v{ML+2}, s65")
                    if hy: a(f"ds_write_b128 v21, v[{ML}:{ML+3}] offset:{L_TK}")
                    else: a(f"ds_write_b96 v21, v[{ML}:{ML+2}] offset:{L_TK}")
                    a("s_waitcnt lgkmcnt(0)")
                    a(f"{l}:")
                a("s_barrier")
                sk = self.opt.get("sk", 0)
                if sk:
                    assert dy
                    ls, lj = a.label("WS"), a.label("WJ")
                    a(f"ds_read_b64 v[{Q}:{Q+1}], v{T+5} offset:{L_MAX}")
                    a(f"s_cmp_lt_u32 s{S_WAVE}, 8"); a(f"s_cbranch_scc1 {ls}")
                    if hy: a(f"ds_read_b128 v[{ML}:{ML+3}], v21 offset:{L_TK}")
                    else: a(f"ds_read_b96 v[{ML}:{ML+2}], v21 offset:{L_TK}")
                    a("s_waitcnt lgkmcnt(0)"); a(f"v_readfirstlane_b32 s65, v{ML+2}"); a(f"v_add_u32 v{VO}, v{VO}, v{ML}")
                    a(f"s_cmp_ge_u32 s65, {NB}"); a(f"s_cbranch_scc1 {ls}")
                    wl = self.opt.get("wl", 0)
                    if wl:
                        a(f"v_readfirstlane_b32 s63, v{ML+1}"); a("s_add_u32 s62, s62, s63")
                        a(f"s_cmp_lt_u32 s65, {wl}"); a(f"s_cbranch_scc1 {ls}")
                    for t in range(4): a(f"buffer_load_dwordx4 v[{WO+4*t}:{WO+4*t+3}], v{VO}, s[{R_C}:{R_C+3}], s60 offen offset:{wst*t} nt")
                    if not wl: a(f"v_readfirstlane_b32 s63, v{ML+1}"); a("s_add_u32 s62, s62, s63")
                    if wf:
                        l2 = a.label("WP")
                        a(f"s_cmp_lt_u32 s65, {wf}"); a(f"s_cbranch_scc1 {l2}")
                        scale(); a("s_waitcnt vmcnt(4)"); a(f"s_branch {lj}")
                        a(f"{l2}:")
                        a("s_lshl_b32 s63, s65, 8"); a("s_sub_u32 s63, s60, s63"); a(f"s_add_u32 s63, s63, {16*128*1280+9*128}")
                        for t in range(4): a(f"buffer_load_dwordx4 v[72:75], v{VO}, s[{R_C}:{R_C+3}], s63 offen offset:{wst*t} nt")
                    if hy:
                        l2 = a.label("WD")
                        a(f"v_readfirstlane_b32 s79, v{ML+3}")
                        a(f"s_and_b32 s63, s{S_WAVE}, 1"); a("s_lshl_b32 s78, s63, 5"); a("s_lshl_b32 s63, s63, 8"); a("s_add_u32 s62, s62, s63")
                        a("s_cmp_eq_u32 s79, 128"); a("s_cselect_b32 s79, 10, 9"); a(f"s_cbranch_scc1 {l2}")
                        scale(); a("s_waitcnt vmcnt(4)"); a(f"s_branch {lj}")
                        a(f"{l2}:")
                        for t in range(4): a(f"buffer_load_dwordx4 v[{WO2[t]}:{WO2[t]+3}], v{VO}, s[{R_C}:{R_C+3}], s60 offen offset:{wst*t+128} nt")
                    scale()
                    a(f"s_branch {lj}")
                    a(f"{ls}:"); a("s_waitcnt lgkmcnt(0)"); scale(); a("s_waitcnt vmcnt(0)")
                    a(f"{lj}:")
                    continue
                else:
                    if hy: a(f"ds_read_b128 v[{ML}:{ML+3}], v21 offset:{L_TK}")
                    elif dy: a(f"ds_read_b96 v[{ML}:{ML+2}], v21 offset:{L_TK}")
                    a(f"ds_read_b64 v[{Q}:{Q+1}], v{T+5} offset:{L_MAX}")
                    if dy: a("s_waitcnt lgkmcnt(1)"); a(f"v_add_u32 v{VO}, v{VO}, v{ML}")
                    if hy: a(f"v_readfirstlane_b32 s79, v{ML+3}"); a(f"v_add_u32 v{ML+3}, v{ML+3}, v{VO}")
                    wold(0, w1)
                    if dy: a(f"v_readfirstlane_b32 s63, v{ML+1}"); a(f"v_readfirstlane_b32 s65, v{ML+2}"); a("s_add_u32 s62, s62, s63")
                    if hy:
                        a("s_cmp_eq_u32 s79, 128"); a("s_cselect_b32 s79, 10, 9")
                        a(f"s_and_b32 s63, s{S_WAVE}, 1"); a("s_lshl_b32 s78, s63, 5"); a("s_lshl_b32 s63, s63, 8"); a("s_add_u32 s62, s62, s63")
                a("s_waitcnt lgkmcnt(0)")
                scale()
        fold()
        a("L_att_fin:")
        if aw:
            self.stamp(3); a("s_mov_b64 s[74:75], s[60:61]"); self.pw([8, 9, 6, 3, -1]); a("s_mov_b64 s[60:61], s[74:75]")
        if swa: self.stamp(3)
        a("s_waitcnt lgkmcnt(0)"); a("s_barrier")
        if swa: self.stamp(4)
        if dc:
            a(f"s_cmp_ge_u32 s{S_WAVE}, 8"); a("s_cbranch_scc1 L_w")
            tt = self.opt.get("tt", 0) == 2
            a(f"s_lshr_b32 s77, s{S_WAVE}, 1"); a("s_cmp_lg_u32 s77, 1"); a(f"s_cbranch_scc1 {'L_flag' if tt or self.opt.get('wg') else 'L_end'}")
            a("s_setprio 3")
            self.stamp(3)
            self.publish(L_ACC0, T + 3, T + 4, 76, KR, False, near=72)
            self.stamp(4)
            if self.stamps:
                a(f"s_cmp_lg_u32 s{S_WAVE}, 2"); a("s_cbranch_scc1 L_end"); self.flush_stamps(5, 3, role='A')
            a("s_endpgm")
            if tt:
                a("L_flag:")
                a(f"s_cmp_lg_u32 s{S_WAVE}, 1"); a("s_cbranch_scc1 L_end")
                a("s_lshl_b32 s65, s65, 3"); a("s_add_u32 s65, s65, s64"); a("s_lshl_b32 s65, s65, 2"); a(f"s_add_u32 s65, s65, {WS_TK}")
                a(f"v_mov_b32 v{T}, s{S_T}"); a("s_mov_b64 exec, 1")
                a(f"buffer_store_dword v{T}, v21, s[{R_WS}:{R_WS+3}], s65 offen sc1")
                a("s_endpgm")
            wg = self.opt.get("wg")
            if wg:
                a("L_flag:")
                a(f"s_cmp_lg_u32 s{S_WAVE}, 4"); a("s_cbranch_scc1 L_end")
                a(f"ds_read_b32 v{T}, v21 offset:{L_TK+8}"); a(f"v_lshlrev_b32 v{T+1}, 5, v{V_L}"); a(f"v_mov_b32 v{T+2}, 1")
                a(f"s_mov_b32 s{S_CNT}, 0"); a("s_mov_b64 exec, 0xff")
                a("s_waitcnt lgkmcnt(0)"); a(f"v_readfirstlane_b32 s65, v{T}")
                a(f"s_cmp_ge_u32 s65, {self.opt['wl']}"); a("s_cbranch_scc1 L_end")
                a("L_flag_p:")
                a(f"global_load_dword v{T}, v{T+1}, s[52:53] sc0 sc1"); a("s_waitcnt vmcnt(0)")
                for m in ("quad_perm:[1,0,3,2]", "quad_perm:[2,3,0,1]", "row_half_mirror"): a(f"v_add_u32_dpp v{T}, v{T}, v{T} {m} {dp}")
                a(f"v_cmp_le_u32 vcc, {wg}, v{T}"); a("s_cbranch_vccnz L_flag_d")
                a(f"s_add_u32 s{S_CNT}, s{S_CNT}, 1"); a(f"s_cmp_lt_u32 s{S_CNT}, {SPIN}"); a("s_cbranch_scc1 L_flag_p")
                a("L_flag_d:")
                a(f"ds_write_b32 v21, v{T+2} offset:{L_RK+16}"); a("s_waitcnt lgkmcnt(0)")
                a("s_endpgm")
            a("L_w:")
            if dy: a(f"s_cmp_ge_u32 s65, {NB}"); a(f"s_cbranch_scc1 {'L_w_sk' if self.stamps else 'L_end'}")
            else: a(f"s_cmp_ge_u32 s3, {NWO}"); a(f"s_cbranch_scc1 L_end")
            a(f"s_mov_b32 s{S_CNT}, 0")
            if wg:
                a(f"s_cmp_ge_u32 s65, {self.opt['wl']}"); a("s_cbranch_scc1 L_w_sp")
                a("L_w_sg:")
                a(f"ds_read_b32 v{T}, v21 offset:{L_RK+16}")
                a(f"s_add_u32 s{S_CNT}, s{S_CNT}, 1"); a(f"s_cmp_ge_u32 s{S_CNT}, {SPIN*64}"); a(f"s_cbranch_scc1 L_end")
                a("s_waitcnt lgkmcnt(0)")
                a(f"v_cmp_eq_u32 vcc, 0, v{T}"); a("s_cbranch_vccnz L_w_sg")
                for t in range(4): a(f"buffer_load_dwordx4 v[{WO+4*t}:{WO+4*t+3}], v{VO}, s[{R_C}:{R_C+3}], s60 offen offset:{wst*t} nt")
            a("L_w_sp:")
            a(f"ds_read_b32 v{T}, v21 offset:{L_NEAR}")
            a(f"s_add_u32 s{S_CNT}, s{S_CNT}, 1"); a(f"s_cmp_ge_u32 s{S_CNT}, {SPIN*64}"); a(f"s_cbranch_scc1 L_end")
            a("s_waitcnt lgkmcnt(0)")
            a(f"v_cmp_eq_u32 vcc, 0, v{T}"); a("s_cbranch_vccnz L_w_sp")
            if self.opt.get("wl") and not wg:
                a(f"s_cmp_ge_u32 s65, {self.opt['wl']}"); a("s_cbranch_scc1 L_w_nl")
                for t in range(4): a(f"buffer_load_dwordx4 v[{WO+4*t}:{WO+4*t+3}], v{VO}, s[{R_C}:{R_C+3}], s60 offen offset:{wst*t} nt")
                a("L_w_nl:")
            a(f"ds_read_b32 v{C}, v{AD} offset:{L_COEF}"); a(f"ds_read_b32 v{C+1}, v{AD+5} offset:{L_COEF}"); a(f"ds_read_b32 v{C+2}, v{AD+1} offset:{L_COEF+8}")
        else:
            a(f"s_cmp_gt_u32 s{S_WAVE}, 1"); a("s_cbranch_scc1 L_w")
            self.stamp(3)
            self.publish(L_ACC0, T + 3, T + 4, 76, KR, False, near=72)
            self.stamp(4)
            a("L_w:")
            a(f"s_cmp_ge_u32 s3, {NWO}"); a(f"s_cbranch_scc1 {'L_w_fl' if self.stamps else 'L_end'}")
            if w2:
                assert w1 == 4
                a(f"s_cmp_lt_u32 s{S_WAVE}, 8"); a(f"s_cbranch_scc1 {'L_w_fl' if self.stamps else 'L_end'}")
            a(f"ds_read_b32 v{T}, v21 offset:{L_NEAR}")
            a(f"ds_read_b32 v{C}, v{AD} offset:{L_COEF}"); a(f"ds_read_b32 v{C+1}, v{AD+5} offset:{L_COEF}"); a(f"ds_read_b32 v{C+2}, v{AD+1} offset:{L_COEF+8}")
        if w1 < 4:
            a("s_barrier")
            wold(w1, 4)
        if not dc: a("s_waitcnt lgkmcnt(3)")
        a(f"v_readfirstlane_b32 s77, v{T}"); a("s_add_u32 s70, s70, s77")
        if self.opt.get("pw"): self.stamp(7); a(f"s_mov_b32 s{S_CNT}, -1")
        isso()
        a(f"v_and_b32 v{T+1}, 1, v{V_L}"); a(f"v_lshl_add_u32 v{T+4}, v{T+1}, 13, v{T+4}")
        qa = self.opt.get("qa", 0)
        if qa: a(f"v_and_b32 v{T+1}, 2, v{V_L}"); a(f"v_lshl_add_u32 v{T+4}, v{T+1}, 18, v{T+4}")
        self.colrd(T + 3, T)
        if hy: a(f"v_add_u32 v{T+3}, s78, v{T+3}")
        if self.opt.get("ws") and self.stamps: a("s_waitcnt vmcnt(3)"); self.stamp(5)
        a("s_waitcnt vmcnt(0) lgkmcnt(0)")
        self.untag(list(range(O, O + 3)), V_T10, T + 1, 0x3ff)
        a("s_cbranch_vccz L_w_go")
        self.poll(isso, lambda: self.untag(list(range(O, O + 3)), V_T10, T + 1, 0x3ff), "PO", hole="A")
        a("L_w_go:")
        self.stamp(8)
        a(f"v_mul_f32 v{X}, v{C}, v{O}"); a(f"v_fmac_f32 v{X}, v{C+1}, v{O+1}"); a(f"v_fmac_f32 v{X}, v{C+2}, v{O+2}")
        a(f"v_add_f32_dpp v{X}, v{X}, v{X} row_shl:4 row_mask:0xf bank_mask:0x5")
        a(f"v_cvt_pk_bf16_f32 v{X}, v{X}, v{X}")
        self.gemv(X, P, B, [(D1, WO), (D2, WO2)] if hy else [(D1, WO)], 4)
        self.fold_col(D1, D2 if hy else None, Y)
        self.putpart(T + 2, Y, L_ACC1)
        if swa: self.stamp(9)
        if self.opt.get("pw"): self.stamp(6)
        a("s_waitcnt lgkmcnt(0)"); a("s_barrier")
        if self.opt.get("pw") and not self.opt.get("ws"): self.stamp(5)
        a(f"s_cmp_ge_u32 s{S_WAVE}, s79" if hy else f"s_cmp_lg_u32 s{S_WAVE}, {8 if w2 else 0}"); a(f"s_cbranch_scc1 {('L_w_pw' if self.opt.get('pw') else 'L_w_fl') if self.stamps else 'L_end'}")
        self.publish(L_ACC1 + (8 * PST if w2 else 0), T + 3, T + 4, 62, KR, False, dual=2 if qa else 1, half=w2, one=self.opt.get("f3"))
        self.stamp(9)
        if self.stamps and w2:
            if hy: a(f"s_cmp_lg_u32 s{S_WAVE}, 8"); a(f"s_cbranch_scc1 L_w_pw")
            self.flush_stamps(10, 8, role='A')
            a("L_w_pw:")
            if not aw: self.pw([7, 8, 6, 5, -1, "s65"])
            a("s_endpgm")
            if dy:
                a("L_w_sk:")
                for j in (5, 6, 7, 8, 9): self.stamp(j)
                a(f"s_mov_b32 s{S_CNT}, 777")
                a(f"s_cmp_lg_u32 s{S_WAVE}, 8"); a("s_cbranch_scc1 L_w_pw"); self.flush_stamps(10, 8, role='A'); a("s_branch L_w_pw")
            a("L_w_fl:")
            if not dc:
                a(f"s_cmp_lg_u32 s{S_WAVE}, {swa}"); a("s_cbranch_scc1 L_end")
                self.flush_stamps(8, role='A')
        elif self.stamps:
            a("L_w_fl:")
            a(f"s_cmp_lg_u32 s{S_WAVE}, {swa}"); a("s_cbranch_scc1 L_end")
            self.flush_stamps(10, role='A')
        a("s_endpgm")

    ROW, VO, X, B, D1, D2, Y, T = 10, 11, 12, 14, 22, 26, 30, 32
    XO, ADD, CPOS, UOFF, P = 44, 45, 46, 47, 48
    def front(self):
        a = self.a
        ROW, VO, X, B, D1, D2, Y, T, XO, ADD, CPOS, UOFF, P = self.ROW, self.VO, self.X, self.B, self.D1, self.D2, self.Y, self.T, self.XO, self.ADD, self.CPOS, self.UOFF, self.P
        CR, WQ, XS, CV, VQ = 52, 64, 84, 94, 95
        pq = self.opt.get("pq", 0); WQ2 = 96; pc = self.opt.get("pc", 0); SC = "s3" if pq or pc else "s2"
        fp = self.opt.get("fp", 0) & 2; qst = 8192
        ro = self.opt.get("ro", 0)
        if ro & 2: qst = 8 * 8192
        qh = self.opt.get("qh", 0); HR, WPOS = 13, 52; assert fp or not qh
        if fp:
            assert pc == 1 and not pq
            for r, o in ((R_A, 80), (R_C, 72), (R_D, 0), (R_B, 24), (R_WS, 104)): a(f"s_load_dwordx2 s[{r}:{r+1}], s[0:1], {o}")
            a(f"v_lshrrev_b32 v{T+2}, 3, v0"); a(f"v_and_b32 v{T+3}, 7, v0")
            a("s_mov_b32 s3, s2")
            a(f"s_mov_b32 s{R_C+2}, 1280"); a(f"s_mov_b32 s{R_C+3}, 0x20000")
        else:
            if pc:
                self.roleidx(2)
                a("s_lshl_b32 s60, s2, 1"); a("s_add_u32 s3, s60, 7"); a(f"s_sub_u32 s61, s60, 34"); a(f"s_sub_u32 s62, s60, {2*NM-1}")
                a(f"s_cmp_ge_u32 s2, 17"); a("s_cselect_b32 s3, s61, s3")
                a(f"s_cmp_ge_u32 s2, {NM}"); a("s_cselect_b32 s3, s62, s3")
                a(f"s_cmp_ge_u32 s2, 40"); a("s_cselect_b32 s3, s2, s3")
                if pc == 2: a("s_mov_b32 s3, s2")
            if pq:
                self.roleidx(2)
                a("s_lshl_b32 s60, s2, 1"); a("s_add_u32 s3, s60, 15"); a(f"s_sub_u32 s61, s60, {2*NM}"); a(f"s_sub_u32 s62, s60, {2*NM+39}")
                a(f"s_cmp_ge_u32 s2, {NM}"); a("s_cselect_b32 s3, s61, s3"); a(f"s_cselect_b32 s76, 0, {640*4096*2}")
                a(f"s_cmp_ge_u32 s2, {NM+20}"); a("s_cselect_b32 s3, s62, s3")
            a(f"s_and_b32 s64, {SC}, 1"); a(f"s_lshr_b32 s65, {SC}, 1")
            a("s_cmp_eq_u32 s64, 0"); a("s_cselect_b32 s66, 24, 16"); a("s_cselect_b32 s67, 0, 384"); a(f"s_cselect_b32 s68, {2*7680}, 0x40000000")
            a("s_cselect_b32 s73, 3, 2"); a("s_mul_i32 s72, s73, 7680")
            self.colvoff(VO, "s72", T)
            a(f"s_mul_i32 s66, s66, s{S_WAVE}"); a("s_add_u32 s66, s66, s67")
            a("s_mul_i32 s62, s66, 7680"); a("s_lshl_b32 s63, s65, 7"); a("s_add_u32 s62, s62, s63")
            a(f"s_add_u32 s63, s62, 7680"); a("s_add_u32 s68, s68, s62")
            a(f"s_cmp_lt_u32 {SC}, 40"); a(f"s_cselect_b32 s69, {640*3840*2}, 0")
            self.rowidx(CV, T, "s73")
            a(f"v_add_u32 v{CV}, s66, v{CV}"); a(f"v_lshlrev_b32 v{CV}, 1, v{CV}")
            self.colvoff(VQ, 5 * 8192, T)
            if pq:
                a("s_sub_u32 s71, s2, 8"); a("s_mul_i32 s71, s71, 43"); a("s_lshr_b32 s71, s71, 7"); a("s_min_u32 s71, s71, 5"); a("s_add_u32 s71, s71, s2"); a("s_sub_u32 s71, s71, 10"); a("s_lshl_b32 s71, s71, 1")
                a("s_lshr_b32 s70, s2, 1"); a("s_lshl_b32 s70, s70, 3"); a("s_and_b32 s101, s2, 1"); a("s_add_u32 s70, s70, s101"); a("s_add_u32 s70, s70, 2")
                a("s_cmp_lt_u32 s2, 10"); a("s_cselect_b32 s101, s70, s71"); a("s_cselect_b32 s77, 0x40000000, 128"); a("s_cselect_b32 s78, 1, 2")
            else:
                a("s_cmp_ge_u32 s2, 48"); a("s_cselect_b32 s71, 8, 0"); a("s_sub_u32 s71, s2, s71")
                a("s_add_u32 s70, s71, 4"); a("s_mul_i32 s70, s70, 37"); a("s_lshr_b32 s70, s70, 8"); a("s_add_u32 s71, s71, s70")
                a("s_lshl_b32 s70, s2, 3"); a("s_sub_u32 s70, s70, 317"); a("s_lshr_b32 s101, s2, 3"); a("s_cmp_eq_u32 s101, 5"); a("s_cselect_b32 s101, s70, s71")
            a(f"s_mul_i32 s70, s{S_WAVE}, {40*8192}"); a("s_lshl_b32 s71, s101, 7"); a("s_add_u32 s70, s70, s71")
            xc = self.opt.get("xc", 0); qst = 8192
            if xc & 8:
                a(f"v_lshlrev_b32 v{VQ}, 4, v{V_L}"); a(f"s_lshl_b32 s70, s101, 4"); a(f"s_add_u32 s70, s70, s{S_WAVE}"); a("s_mul_i32 s70, s70, 5120"); qst = 1024
            if xc & 16:
                a(f"v_lshlrev_b32 v{VO}, 4, v{V_L}"); a(f"s_lshl_b32 s62, s65, 4"); a(f"s_add_u32 s62, s62, s{S_WAVE}"); a("s_mul_i32 s62, s62, 5120")
                a("s_mul_i32 s63, s64, 3072"); a("s_add_u32 s62, s62, s63"); a("s_add_u32 s63, s62, 1024")
                a("s_cmp_eq_u32 s64, 0"); a(f"s_cselect_b32 s68, 2048, 0x40000000"); a("s_add_u32 s68, s68, s62")
            self.rowidx(ROW, T, 5)
            a(f"s_mul_i32 s74, s{S_WAVE}, 40"); a(f"v_add_u32 v{ROW}, s74, v{ROW}"); a(f"v_min_u32 v{ROW}, 639, v{ROW}")
            a(f"v_lshlrev_b32 v{T}, 1, v{ROW}"); a(f"v_lshlrev_b32 v{ADD}, 2, v{V_L}")
            a("s_waitcnt lgkmcnt(0)")
            a(f"s_load_dword s{S_T}, s[{S_WS}:{S_WS+1}], 0")
            srd(a, R_C, S_C, 1280); srd(a, R_A, S_WM, "s69")
        def cld(t): a(f"buffer_load_dwordx4 v[{CR+4*t}:{CR+4*t+3}], v{VO}, s[{R_A}:{R_A+3}], s{(62, 63, 68)[t]} offen nt")
        def wld(t):
            if pq:
                u, t = t & 1, t >> 1
                if t and not u: a(f"s_add_u32 s70, s70, {qst}")
                if u: a(f"s_add_u32 s61, s70, s77")
                r = (WQ2 if u else WQ) + 4 * t
                a(f"buffer_load_dwordx4 v[{r}:{r+3}], v{VQ}, s[{R_B}:{R_B+3}], s{61 if u else 70} offen nt")
                return
            if t: a(f"s_add_u32 s61, s70, {t*qst}")
            a(f"buffer_load_dwordx4 v[{WQ+4*t}:{WQ+4*t+3}], v{VQ}, s[{R_B}:{R_B+3}], s{61 if t else 70} offen nt")
        NQ = 10 if pq else 5
        co = self.opt.get("co", 0); assert fp or not co
        lnc, lx = a.label("NC"), a.label("NX")
        a(f"s_cmp_ge_u32 {SC}, 40"); a(f"s_cbranch_scc1 {lx}")
        if fp:
            if co & 1: a("s_setprio 3")
            a(f"s_bitcmp{0 if self.opt.get('bs') else 1}_b32 s2, 2")
            a("s_cselect_b32 s73, 3, 2"); a("s_cselect_b32 s67, 0, 384"); a(f"s_cselect_b32 s68, {(16 if ro & 1 else 2)*7680}, 0x40000000")
            if ro & 1:
                a("s_cselect_b32 s72, 16, 8"); a(f"v_lshrrev_b32 v{CV}, 6, v0"); a(f"v_mad_u32_u24 v{VO}, v{CV}, s72, v{T+2}")
                a(f"v_lshl_add_u32 v{CV}, v{T+3}, 3, v{VO}")
                a("s_mul_i32 s62, s67, 7680")
            else:
                a(f"v_mad_u32_u24 v{CV}, v{T+2}, s73, v{T+3}")
                a("s_mul_i32 s72, s73, 7680"); a("s_mul_i32 s62, s67, 7680")
            a(f"v_add_lshl_u32 v{CV}, v{CV}, s67, 1")
            a("s_lshr_b32 s60, s2, 3"); a("s_and_b32 s65, s2, 3")
            a(f"v_mul_u32_u24 v{VO}, 7680, v{VO}" if ro & 1 else f"v_mul_u32_u24 v{VO}, s72, v{T+2}")
            a("s_lshl2_add_u32 s65, s60, s65"); a("s_lshl_b32 s63, s65, 7")
            a(f"v_lshl_add_u32 v{VO}, v{T+3}, 4, v{VO}")
            a("s_add_u32 s62, s62, s63"); a(f"s_add_u32 s63, s62, {(8 if ro & 1 else 1)*7680}"); a("s_add_u32 s68, s68, s62")
            a(f"s_mov_b32 s{R_A+2}, {640*3840*2}"); a(f"s_mov_b32 s{R_A+3}, 0x20000")
            a("s_waitcnt lgkmcnt(0)")
        a(f"buffer_load_ushort v{CV}, v{CV}, s[{R_C}:{R_C+3}], 0 offen")
        cb = self.opt.get("cb", 0)
        cld(0); cld(1)
        if cb: cld(2)
        cw = self.opt.get("cw", 0) and self.stamps
        if cw: self.stamp(4)
        if co & 1: a("s_setprio 0")
        if fp:
            assert cb
        h4 = self.opt.get("h4", 0)
        if h4:
            a("s_lshl_b32 s69, s73, 3"); a("s_lshl_b32 s63, s65, 10"); a("s_sub_u32 s69, s63, s69")
            a("s_cmp_ge_u32 s65, 10"); a(f"s_cselect_b32 s63, 0, {10240-4}"); a("s_add_u32 s69, s69, s63"); a(f"s_add_u32 s69, s69, {WS_CR+24+4-10240}")
        elif fp:
            a("s_sub_u32 s69, 3, s73"); a("s_mul_i32 s69, s69, 10240"); a("s_lshl_b32 s63, s65, 9"); a("s_add_u32 s69, s69, s63"); a(f"s_add_u32 s69, s69, {WS_C2 if self.opt.get('hr') else WS_CR}")
        a(f"{lx}:")
        if fp:
            a(f"v_and_b32 v{V_L}, 63, v0")
            a("s_lshr_b32 s60, s2, 3"); a("s_and_b32 s101, s2, 7")
            if ro & 2:
                assert not qh and not h4
                a(f"v_lshrrev_b32 v{ROW}, 6, v0"); a(f"v_lshl_add_u32 v{T+2}, v{ROW}, 5, v{T+2}"); a(f"v_min_u32 v{ROW}, 4, v{T+3}")
            elif h4: a(f"v_min_u32 v{ROW}, 4, v{T+3}")
            else: a(f"v_mad_u32_u24 v{ROW}, v{T+2}, 5, v{T+3}")
            a(f"s_xor_b32 s60, s60, {self.opt.get('qx', 4)}"); a("s_lshl3_add_u32 s101, s101, s60")
            a(f"v_lshlrev_b32 v{XS+6 if co >= 2 else ADD}, 2, v{V_L}")
            if co >= 2: a(f"v_lshlrev_b32 v{XS+5}, 4, v{V_L}")
            if qh:
                assert co >= 2
                a("s_and_b32 s60, s101, 1"); a(f"s_mul_i32 s71, s60, {320*8192-128}"); a("s_mul_i32 s60, s60, 320")
                a(f"v_and_b32 v{T+4}, 1, v{T+2}"); a(f"v_lshrrev_b32 v{T+2}, 4, v0")
                a(f"v_lshl_add_u32 v{T+4}, v{T+3}, 1, v{T+4}"); a(f"v_and_b32 v{T+3}, 15, v0")
                a(f"v_min_u32 v{T+4}, 4, v{T+4}")
                a("s_lshl_b32 s70, s101, 7"); a(f"s_mov_b32 s{R_D+2}, 1280"); a("s_add_u32 s70, s70, s71")
                a(f"v_mad_u32_u24 v{T+4}, v{T+2}, 5, v{T+4}")
            else: a("s_lshl_b32 s70, s101, 7"); a(f"s_mov_b32 s{R_D+2}, 1280")
            if ro & 2: a(f"v_lshl_add_u32 v{ROW}, v{ROW}, 3, v{T+2}")
            elif h4: a(f"v_mad_u32_u24 v{ROW}, v{T+2}, 5, v{ROW}")
            else: a(f"v_min_u32 v{ROW}, 639, v{ROW}")
            a(f"s_mov_b32 s{R_D+3}, 0x20000"); a(f"s_mov_b32 s{R_B+2}, {640*4096*2}")
            if qh: a(f"v_add_lshl_u32 v{XO}, v{T+4}, s60, 1"); a(f"v_add_lshl_u32 v{HR}, v{T+4}, s60, 3")
            else: a(f"v_lshlrev_b32 v{XO if co >= 2 else T}, 1, v{ROW}")
            a(f"s_mov_b32 s{R_B+3}, 0x20000")
            a(f"v_mul_u32_u24 v{VQ}, {(1 if ro & 2 else 5)*8192}, v{T+2}"); a(f"v_lshl_add_u32 v{VQ}, v{T+3}, 4, v{VQ}")
            a("s_waitcnt lgkmcnt(0)")
            a(f"s_load_dword s{S_T}, s[{R_WS}:{R_WS+1}], 0")
        else:
            srd(a, R_D, S_X, 1280); srd(a, R_B, S_WQ, "s76" if pq else 640 * 4096 * 2)
        def xld():
            a(f"buffer_load_dwordx4 v[{XS}:{XS+3}], v{XS+5}, s[{R_D}:{R_D+3}], 0 offen")
            a(f"buffer_load_dword v{XS+4}, v{XS+6}, s[{R_D}:{R_D+3}], 0 offen offset:1024")
            a(f"buffer_load_ushort v{XO}, v{XO}, s[{R_D}:{R_D+3}], 0 offen")
        if co < 2:
            for i in range(5): a(f"buffer_load_dword v{XS+i}, v{ADD}, s[{R_D}:{R_D+3}], 0 offen offset:{256*i}")
            a(f"buffer_load_ushort v{XO}, v{T}, s[{R_D}:{R_D+3}], 0 offen")
        l = a.label("NW")
        a(f"s_cmp_lt_u32 {SC}, 40"); a(f"s_cbranch_scc1 {l}")
        if co >= 2: xld()
        for t in range(NQ): wld(t)
        a(f"{l}:")
        if fp:
            self.entry()
            a(f"s_mov_b32 s{R_WS+2}, {WS_SIZE}"); a(f"s_mov_b32 s{R_WS+3}, 0x20000")
            self.remap(); self.roleidx(2)
        else: srd(a, R_WS, S_WS, WS_SIZE)
        self.masks(T)
        self.colrd(CPOS, T)
        self.wraddr(ADD)
        self.unitoff(UOFF)
        a(f"v_lshlrev_b32 v{ROW}, 2, v{ROW}")
        a("s_waitcnt lgkmcnt(0)")
        self.tags()
        a(f"s_cmp_ge_u32 {SC}, 40"); a(f"s_cbranch_scc1 {lnc}")
        if cw: self.stamp(3)
        a(f"s_waitcnt vmcnt({3 if co >= 2 else 8+cb})")
        if cw: self.stamp(5)
        a(f"v_lshlrev_b32 v{X}, 16, v{CV}")
        self.silu(X, T)
        def rest(): xld(); wld(0); wld(1)
        def cwait(t):
            if co >= 2:
                a(f"s_waitcnt vmcnt({2-t})")
                if t == 2 and co >> 1 == 1: rest()
            elif t == 0:
                a(f"s_waitcnt vmcnt({7+cb})")
                if not cb: cld(2)
            elif t == 1: a("s_waitcnt vmcnt(7)"); wld(0)
            else: a(f"s_waitcnt vmcnt({7 if cb else 1})"); wld(1)
            if cw: self.stamp(6 + t)
        self.gemv(X, P, B, [(D1, CR)], 3, pre=cwait)
        self.fold_col(D1, None, Y)
        self.putpart(ADD, Y, L_ACC1)
        if co >> 1 == 2: rest()
        a("s_waitcnt lgkmcnt(0)"); a("s_barrier")
        if co >> 1 == 3: rest()
        if cw:
            self.stamp(9)
            a("v_mov_b32 v126, v10"); a("v_mov_b32 v127, v12"); self.opt["pw"] = 1
            self.pw([0, 4, 3, 5, 6, 7, 8, 9]); self.opt["pw"] = 0
            a("s_waitcnt vmcnt(0)"); a("v_mov_b32 v10, v126"); a("v_mov_b32 v12, v127")
        a(f"s_cmp_lg_u32 s{S_WAVE}, 0"); a(f"s_cbranch_scc1 {lnc}")
        if self.opt.get("hr", 0) > 1: a(f"s_mov_b32 s79, {self.opt.get('hs', 0x6100)//2}")
        if not fp: a("s_mul_i32 s62, s64, 10240"); a("s_lshl_b32 s63, s65, 9"); a("s_add_u32 s62, s62, s63"); a(f"s_add_u32 s62, s62, {WS_CR}")
        if h4: a(f"v_lshlrev_b32 v{T}, 4, v{V_L}")
        else: a(f"v_and_b32 v{T}, 1, v{V_L}"); a(f"v_lshlrev_b32 v{T}, 4, v{T}"); a(f"v_lshl_add_u32 v{T}, v{UOFF}, 1, v{T}")
        hr, hs = self.opt.get("hr", 0), self.opt.get("hs", 0x6100)
        if hr > 1: a(f"v_and_b32 v{T+1}, 2, v{V_L}"); a(f"v_mad_u32_u24 v{T}, v{T+1}, s79, v{T}")
        self.publish(L_ACC1, CPOS, T, 69 if fp else 62, B, 3 if h4 else 2)
        self.stamp(1)
        a(f"{lnc}:")
        if cb:
            l = a.label("XW")
            a(f"s_cmp_ge_u32 {SC}, 40"); a(f"s_cbranch_scc1 {l}"); a("s_waitcnt vmcnt(2)"); a(f"{l}:")
        a(f"s_waitcnt vmcnt({NQ})")
        for i in range(5):
            a(f"v_and_b32 v{XS+5+i}, 0xffff0000, v{XS+i}"); a(f"v_lshlrev_b32 v{XS+i}, 16, v{XS+i}")
        a(f"v_lshlrev_b32 v{XO}, 16, v{XO}")
        m, v, r, u, w = T, T + 1, T + 2, T + 3, T + 4
        xs = list(range(XS, XS + 10))
        a(f"v_add_f32 v{m}, v{xs[0]}, v{xs[1]}")
        for x in xs[2:]: a(f"v_add_f32 v{m}, v{m}, v{x}")
        row_red(a, m); self.xrow_allred(m, u, "v_add_f32")
        a(f"v_mul_f32 v{m}, {fh(1.0/640)}, v{m}")
        a(f"v_sub_f32 v{u}, v{xs[0]}, v{m}"); a(f"v_mul_f32 v{v}, v{u}, v{u}")
        for x in xs[1:]: a(f"v_sub_f32 v{u}, v{x}, v{m}"); a(f"v_fmac_f32 v{v}, v{u}, v{u}")
        row_red(a, v); self.xrow_allred(v, u, "v_add_f32")
        a(f"v_mul_f32 v{v}, {fh(1.0/640)}, v{v}")
        bfr(a, m, m); bfr(a, v, v)
        a(f"v_add_f32 v{v}, {fh(1e-5)}, v{v}"); bfr(a, v, v)
        a(f"v_readfirstlane_b32 s100, v{m}")
        a(f"v_sqrt_f32 v{v}, v{v}"); bfr(a, v, v)
        a(f"v_rcp_f32 v{r}, v{v}")
        a(f"v_sub_f32 v{u}, v{XO}, v{m}"); bfr(a, u, u)
        fdiv_r(a, X, u, v, r, w); bfr(a, X, X)
        l = a.label("NR")
        a(f"s_cmp_ge_u32 {SC}, 40"); a(f"s_cbranch_scc1 {l}")
        tw = self.opt.get("tw", 2)
        for t in range(2, NQ):
            if tw: a(f"s_waitcnt vmcnt({tw-1})")
            wld(t)
        l2 = a.label("NV"); rv = self.opt.get("rv", 0); hb = self.opt.get("hb", 0)
        if not rv: a(f"s_branch {l2}")
        a(f"{l}:")
        if not rv: a(f"s_cmp_eq_u32 s{S_WAVE}, 1"); a(f"s_cbranch_scc1 L_race")
        a(f"{l2}:"); self.l_back = l2
        self.touch("F")
        def hbar():
            if not hb: return
            l = a.label("HB")
            a(f"s_cmp_lt_u32 s74, 40"); a(f"s_cbranch_scc1 {l}")
            if hb > 1: a(f"s_waitcnt vmcnt({hb-2})")
            a("s_barrier"); a(f"{l}:")
        if hb: a(f"s_mov_b32 s74, {SC}")
        if pq: a(f"s_cmp_ge_u32 s2, {NM}"); a("s_cbranch_scc1 L_f")
        if hr > 1:
            a(f"s_bfe_u32 s70, {SC}, {((hr >> 1) << 16) | self.opt.get('hx', 0):#x}"); a(f"s_mul_i32 s70, s70, {hs}")
            for i in (3, 2, 1, 0): a(f"s_add_u32 s{70+i}, s70, {WS_C2+5120*i}")
        else:
            for i in range(1 if h4 else 4): a(f"s_mov_b32 s{70+i}, {(WS_C2 if hr else WS_CR)+5120*i}")
        H = B
        if qh: self.widerd(WPOS, T)
        else: a(f"v_lshlrev_b32 v{T+1}, {2 if h4 else 1}, v{ROW}")
        if not h4: a(f"v_mov_b32 v{T+2}, s{S_T}")
        def iss():
            if h4: a(f"buffer_load_dwordx4 v[{H}:{H+3}], v{T+1}, s[{R_WS}:{R_WS+3}], s70 offen sc1"); return
            for i in range(4):
                a(f"buffer_load_dwordx2 v[{H+2*i}:{H+2*i+1}], v{HR if qh else T+1}, s[{R_WS}:{R_WS+3}], s{70+i} offen sc1")
        chkh = lambda: self.untag(list(range(H + 1, H + 8, 2)), T + 2, T, None)
        if h4: assert not qh and not hr; chkh = lambda: self.untag(list(range(H, H + 4)), V_T10, T, 0x3ff)
        ne = self.opt.get("ne", 0)
        nl = self.opt.get("nl", 0); hh = self.opt.get("hh", 0)
        if nl:
            assert pc and ne
            ml = self.opt.get("ml", 0); lm, lp_ = a.label("ML"), a.label("MP")
            a("s_mov_b32 s3, s2")
            if ml: a(f"s_cmp_lt_u32 s3, {NM}"); a(f"s_cbranch_scc1 {lm}")
            a(f"s_sub_u32 s69, s3, {NM}")
            self.gu_row(T + 3); self.gu_addr(T + 3)
            if ml:
                a(f"s_branch {lp_}")
                a(f"{lm}:")
                self.m_setup(T + 3, 84)
                a(f"{lp_}:")
            hbar()
            xh = self.opt.get("xh") and self.stamps
            if xh:
                self.stamp(7)
                if self.opt["xh"] == 1: a("s_waitcnt vmcnt(0)"); self.stamp(8)
            self.poll(iss, chkh, "PH", hole="F" if hh else None)
            self.stamp(9)
            if xh: a(f"s_mov_b32 s75, s{S_CNT}")
            le, lm = a.label("NE"), a.label("ML")
            a(f"s_cmp_lt_u32 s3, {NM}"); a(f"s_cbranch_scc1 {lm if ml else le}")
            a(f"s_cmp_ge_u32 s{S_WAVE}, 10"); a(f"s_cbranch_scc1 {le}")
            for j in range(ne): self.gu_ld(j, False)
            if ml:
                a(f"s_branch {le}")
                a(f"{lm}:")
                self.colloads(88, VO, R_A, 62, 7680, n=ml)
            a(f"{le}:")
        else:
            if ne:
                iss()
                if pc: a("s_mov_b32 s3, s2")
                else: self.roleidx(3)
                le, lj = a.label("NE"), a.label("NJ")
                a(f"s_sub_u32 s69, s3, {NM}")
                self.gu_row(T + 3); self.gu_addr(T + 3)
                a(f"s_cmp_lt_u32 s3, {NM}"); a(f"s_cbranch_scc1 {le}")
                a(f"s_cmp_ge_u32 s{S_WAVE}, 10"); a(f"s_cbranch_scc1 {le}")
                for j in range(ne): self.gu_ld(j, False)
                a(f"s_waitcnt vmcnt({ne})"); a(f"s_branch {lj}")
                a(f"{le}:"); a("s_waitcnt vmcnt(0)")
                a(f"{lj}:")
                chkh()
                a("s_cbranch_vccz L_hgo")
            self.poll(iss, chkh, "PH", hole="F" if hh else None)
            a("L_hgo:")
            self.stamp(9)
        if h4: a(f"v_add_f32 v{H}, v{H}, v{H+2}"); a(f"v_add_f32 v{H+1}, v{H+1}, v{H+3}")
        else: a(f"v_add_f32 v{H}, v{H}, v{H+4}"); a(f"v_add_f32 v{H+1}, v{H+2}, v{H+6}")
        bfr(a, H, H); bfr(a, H + 1, H + 1)
        a(f"v_add_f32 v{H+1}, 1.0, v{H+1}"); bfr(a, H + 1, H + 1)
        a(f"v_mul_f32 v{X}, v{X}, v{H+1}"); bfr(a, X, X)
        a(f"v_add_f32 v{X}, v{X}, v{H}"); a(f"v_cvt_pk_bf16_f32 v{X}, v{X}, v{X}")
        if hh > 2: self.hole("F", True)
        if pq:
            self.gemv(X, P, B, [(D1, WQ), (D2, WQ2)], 5)
            self.fold_col(D1, D2, Y)
        elif qh:
            self.bprep(X, P, B, 0); self.bprep(X, P + 2, B + 4, 1)
            self.mfma(D1, WQ, B, True); self.mfma(D2, WQ + 4, B, True)
            self.bprep(X, P, T, 2)
            self.mfma(D1, WQ + 8, B + 4, False); self.mfma(D2, WQ + 12, B + 4, False); self.mfma(D1, WQ + 16, T, False)
            if hh > 1: self.hole("F", True)
            self.fold_wide(D1, D2, Y)
        else:
            self.gemv(X, P, B, [(D1, WQ)], 5)
            if hh > 1: self.hole("F", True)
            self.fold_col(D1, None, Y)
        self.putpart(ADD, Y, L_ACC0)
        if self.opt.get("xh") == 2: self.stamp(8)
        a("s_waitcnt lgkmcnt(0)"); a("s_barrier")
        if self.opt.get("xh") == 2: self.stamp(5)
        if hh > 3: self.hole("F", True)
        l = a.label("QP")
        if pq:
            a(f"s_cmp_ge_u32 s{S_WAVE}, s78"); a(f"s_cbranch_scc1 {l}")
            a(f"s_add_u32 s70, s101, s{S_WAVE}"); a("s_lshl_b32 s70, s70, 8"); a(f"s_add_u32 s70, s70, {WS_Q}")
            a(f"s_lshl_b32 s71, s{S_WAVE}, 5"); a(f"v_add_u32 v{T+1}, s71, v{CPOS}")
            self.publish(L_ACC0, T + 1, UOFF, 70, B, True)
        elif qh:
            qw = self.opt.get("qw", 0)
            a(f"s_lshr_b32 s70, s{S_WAVE}, 1"); a(f"s_cmp_lg_u32 s70, {qw >> 1}"); a(f"s_cbranch_scc1 {l}")
            a(f"s_lshl1_add_u32 s70, s101, s{S_WAVE}"); a("s_lshl_b32 s70, s70, 8"); a(f"s_add_u32 s70, s70, {WS_Q - 256 * qw}")
            self.publish(L_ACC0, WPOS, UOFF, 70, B, False, holes=self.opt.get("hq", 0))
        else:
            a(f"s_cmp_lg_u32 s{S_WAVE}, 0"); a(f"s_cbranch_scc1 {l}")
            a("s_lshl_b32 s70, s101, 8"); a(f"s_add_u32 s70, s70, {WS_Q}")
            self.publish(L_ACC0, CPOS, UOFF, 70, B, True, holes=self.opt.get("hq", 0))
        self.stamp(2)
        a(f"{l}:")
        if self.opt.get("xh") and self.stamps:
            self.stamp(6)
            a("v_mov_b32 v126, v10"); a("v_mov_b32 v127, v12"); self.opt["pw"] = 1; a("s_mov_b64 s[76:77], s[60:61]")
            self.pw([0, 1, 7, 8, 9, 6, "s75", 5]); self.opt["pw"] = 0
            a("s_waitcnt vmcnt(0)"); a("v_mov_b32 v10, v126"); a("v_mov_b32 v12, v127"); a("s_mov_b64 s[60:61], s[76:77]")
        if pq: a("s_branch L_m")
        else:
            if ne: a("s_mov_b32 s2, s3")
            elif not pc: self.roleidx(2)
            xa = self.opt.get("xa")
            if xa:
                srd(a, R_E, S_K, 0x8000000)
                a("s_lshr_b32 s60, s2, 1"); a("s_lshl_b32 s60, s60, 22"); a("s_and_b32 s61, s2, 1"); a("s_lshl_b32 s61, s61, 18"); a("s_add_u32 s60, s60, s61"); a("s_add_u32 s60, s60, 0x200000"); a(f"s_lshl_b32 s61, s{S_WAVE}, 14"); a("s_add_u32 s60, s60, s61")
                a(f"s_cmp_lt_u32 s2, {NM}"); a(f"s_cselect_b32 s61, {xa[0]}, {xa[1]}")
                a(f"v_lshlrev_b32 v{T}, 4, v{V_L}")
                lx, ly = a.label("XA"), a.label("XB")
                a("s_cmp_eq_u32 s61, 0"); a(f"s_cbranch_scc1 {ly}")
                a(f"{lx}:")
                a(f"s_waitcnt vmcnt({xa[2]-1})")
                a(f"buffer_load_dwordx4 v[96:99], v{T}, s[{R_E}:{R_E+3}], s60 offen nt")
                a("s_add_u32 s60, s60, 1024"); a("s_sub_u32 s61, s61, 1"); a("s_cmp_lg_u32 s61, 0"); a(f"s_cbranch_scc1 {lx}")
                if len(xa) < 4: a("s_waitcnt vmcnt(0)"); a("s_barrier")
                a(f"{ly}:")
            a(f"s_cmp_lt_u32 s2, {NM}"); a("s_cbranch_scc1 L_m"); a("s_branch L_f")
            if self.opt.get("hq", 0) & 1: self.hole("F")
        self.page("F")
        a("L_m:")

    def roleidx(self, d):
        a = self.a
        nf = self.opt.get("nf")
        if nf:
            assert sum(nf) == NF
            nm = [8 - v for v in nf]; pm = [sum(nm[:i]) for i in range(8)]
            lutn = sum(nm[i] << (4 * i) for i in range(8))
            lo = sum(pm[i] << (8 * i) for i in range(4)); hi = sum(pm[4 + i] << (8 * i) for i in range(4))
            a("s_lshr_b32 s60, s2, 3"); a("s_and_b32 s61, s2, 7")
            a("s_lshl_b32 s62, s60, 2"); a(f"s_lshr_b32 s62, {lutn:#x}, s62"); a("s_and_b32 s62, s62, 15")
            a(f"s_mov_b32 s64, {lo:#x}"); a(f"s_mov_b32 s65, {hi:#x}"); a("s_lshl_b32 s63, s60, 3"); a("s_lshr_b64 s[64:65], s[64:65], s63"); a("s_and_b32 s64, s64, 255")
            a("s_add_u32 s65, s64, s61")
            a("s_sub_u32 s66, s2, s64"); a("s_sub_u32 s66, s66, s62"); a(f"s_add_u32 s66, s66, {NM}")
            if self.opt.get("pf"):
                s2nm = "s63"
                a("s_lshl_b32 s63, s62, 1"); a("s_sub_u32 s63, s63, 8")
                a("s_sub_u32 s3, s2, s64"); a("s_sub_u32 s3, s3, s63")
                a("s_cmp_ge_u32 s61, s63"); a(f"s_cselect_b32 s101, {640*1728*2}, 0")
            a("s_cmp_lt_u32 s61, s62"); a(f"s_cselect_b32 s{d}, s65, s66")

    def m_setup(self, T, c):
        a = self.a
        a("s_lshl_b32 s68, s2, 1"); a("s_add_u32 s68, s68, 54"); a("s_add_u32 s69, s2, 17")
        a("s_cmp_lt_u32 s2, 3")
        a(f"s_cselect_b32 s67, {640*3840*2}, 0"); a("s_cselect_b32 s68, s68, s69"); a("s_cselect_b32 s69, 2, 1")
        srd(a, R_A, S_WM, 640 * 3840 * 2); srd(a, R_B, S_WM, "s67"); srd(a, R_E, S_OUT, 1280)
        a(f"v_lshrrev_b32 v{T}, 1, v{self.ROW}")
        a(f"buffer_load_ushort v{c}, v{T}, s[{R_C}:{R_C+3}], 0 offen")
        self.colvoff(self.VO, 5 * 7680, T)
        a(f"s_mul_i32 s62, s{S_WAVE}, {40*7680}"); a("s_lshl_b32 s63, s68, 7"); a("s_add_u32 s62, s62, s63"); a("s_add_u32 s64, s62, 128")

    def role_m(self):
        a = self.a
        ROW, VO, X, B, D1, D2, Y, T, XO, ADD, CPOS, UOFF, P = self.ROW, self.VO, self.X, self.B, self.D1, self.D2, self.Y, self.T, self.XO, self.ADD, self.CPOS, self.UOFF, self.P
        WB = 88
        tm = self.opt.get("tm", 2)
        dbl = self.opt.get("dbl"); ml = self.opt.get("ml", 0)
        if ml: assert not dbl and self.opt.get("nl")
        elif dbl:
            mk = sum(1 << i for i in dbl); assert len(dbl) == 3
            a(f"s_mov_b32 s64, {mk & 0xffffffff:#x}"); a(f"s_mov_b32 s65, {mk >> 32:#x}")
            a("s_bfm_b64 s[66:67], s2, 0"); a("s_and_b64 s[66:67], s[66:67], s[64:65]"); a("s_bcnt1_i32_b64 s66, s[66:67]")
            a("s_lshl_b32 s68, s66, 1"); a("s_add_u32 s68, s68, 54"); a("s_sub_u32 s69, s2, s66"); a("s_add_u32 s69, s69, 20")
            a("s_bitcmp1_b64 s[64:65], s2")
        else:
            a("s_lshl_b32 s68, s2, 1"); a("s_add_u32 s68, s68, 54"); a("s_add_u32 s69, s2, 17")
            a("s_cmp_lt_u32 s2, 3")
        mw = self.opt.get("mw", 0); rd = self.opt.get("rd", 0)
        if rd:
            u0 = self.opt.get("u0", 0)
            srd(a, R_A, S_WM, 640 * 3840 * 2); srd(a, R_E, S_OUT, 1280); srd(a, R_B, S_WD, 640 * 1728 * 2)
            if rd == 2:
                rm = self.opt["rm"]; u1 = [i for i in range(NM) if i not in rm or i in self.opt.get("ru", [])]
                u3 = self.opt.get("u3", []); assert len(u1) + len(u3) == 30
                a("s_mov_b32 s3, 0")
                self.member(u1, 68, "L_rd")
                if u3: a("s_cmp_lt_u32 s68, 20"); a("s_cselect_b32 s69, 30, 0"); a("s_add_u32 s68, s68, s69")
                else: a("s_add_u32 s68, s68, 20")
                a("L_mu:")
            else:
                a(f"s_sub_u32 s68, s2, {u0}"); a("s_cmp_ge_u32 s68, 30"); a("s_cbranch_scc1 L_rd")
                a("s_add_u32 s68, s68, 20")
            a(f"v_lshrrev_b32 v{T}, 1, v{ROW}")
            a(f"buffer_load_ushort v{X}, v{T}, s[{R_C}:{R_C+3}], 0 offen")
            self.colvoff(VO, 5 * 7680, T)
            a(f"s_mul_i32 s62, s{S_WAVE}, {40*7680}"); a("s_lshl_b32 s63, s68, 7"); a("s_add_u32 s62, s62, s63")
            self.colloads(WB, VO, R_A, 62, 7680, thr=tm)
            a(f"s_waitcnt vmcnt(5)")
            a(f"v_lshlrev_b32 v{X}, 16, v{X}")
            self.silu(X, T)
            self.gemv(X, P, B, [(D1, WB)], 5, wait=lambda t: 4 - t)
            self.fold_col(D1, None, Y)
            self.putpart(ADD, Y, L_ACC1)
            a("s_waitcnt lgkmcnt(0)"); a("s_barrier")
            a(f"s_cmp_lg_u32 s{S_WAVE}, 0"); a(f"s_cbranch_scc1 L_rd")
            a("s_lshl_b32 s70, s68, 8"); a(f"s_add_u32 s70, s70, {WS_MOD}")
            self.publish(L_ACC1, CPOS, UOFF, 70, WB, True)
            a("L_rd:")
            if self.stamps:
                l = a.label("MS")
                a(f"s_cmp_lg_u32 s{S_WAVE}, 0"); a(f"s_cbranch_scc1 {l}")
                if rd == 2:
                    l2 = a.label("MT")
                    a(f"s_cmp_eq_u32 s3, 0"); a(f"s_cbranch_scc1 {l2}")
                    self.stamp(9); self.flush_stamps(10, 9, role='M'); a("s_endpgm")
                    a(f"{l2}:")
                self.stamp(3); a("v_mov_b32 v63, v10"); self.flush_stamps(4, role='M'); a("v_mov_b32 v10, v63")
                a(f"{l}:")
            if rd == 2:
                u2 = self.opt["u2"]; assert len(u2) == 10 and not set(u2) & set(rm) and not set(u3) & set(rm) and not set(u3) & set(u2)
                a("s_cmp_lg_u32 s3, 0"); a("s_cbranch_scc1 L_end")
                a("s_mov_b32 s3, 1")
                l = a.label("MG")
                if u3:
                    l3 = a.label("MH")
                    self.member(u3, 68, l3)
                    a(f"s_add_u32 s68, s68, {30-len(u3)}"); a(f"s_branch {l}")
                    a(f"{l3}:")
                self.member(u2, 68, "L_rd2")
                a("s_add_u32 s68, s68, 50")
                a(f"s_cmp_lg_u32 s{S_WAVE}, 3"); a(f"s_cbranch_scc1 {l}")
                self.otrig(self.opt.get("gj", 0), T)
                a(f"{l}:")
                a("s_barrier")
                a("s_branch L_mu")
                a("L_rd2:")
                self.role_rd2()
            else: self.role_rd()
        elif mw:
            WO, VW = 64, 61
            a("s_cselect_b32 s68, s68, s69"); a("s_cselect_b32 s69, 2, 1")
            srd(a, R_A, S_WM, 640 * 3840 * 2); srd(a, R_E, S_OUT, 1280)
            a(f"v_lshrrev_b32 v{T}, 1, v{ROW}")
            a(f"buffer_load_ushort v{X}, v{T}, s[{R_C}:{R_C+3}], 0 offen")
            self.colvoff(VO, 5 * 7680, T)
            a(f"s_mul_i32 s62, s{S_WAVE}, {40*7680}"); a("s_lshl_b32 s63, s68, 7"); a("s_add_u32 s62, s62, s63"); a("s_add_u32 s64, s62, 128")
            self.colloads(WB, VO, R_A, 62, 7680, thr=tm)
            nm = [8 - v for v in self.opt["nf"]]; pm = [sum(nm[:i]) for i in range(8)]; mk = sum(1 << p for p in pm)
            a(f"s_mov_b32 s76, {mk & 0xffffffff:#x}"); a(f"s_mov_b32 s77, {mk >> 32:#x}")
            a("s_add_u32 s72, s2, 1"); a("s_bfm_b64 s[66:67], s72, 0"); a("s_and_b64 s[66:67], s[66:67], s[76:77]")
            a("s_bcnt1_i32_b64 s72, s[66:67]"); a("s_sub_u32 s72, s72, 1"); a("s_flbit_i32_b64 s73, s[66:67]")
            a("s_add_u32 s73, s73, s2"); a(f"s_sub_u32 s73, s73, {63-10+mw}")
            a("s_cmp_ge_u32 s72, 4"); a("s_cselect_b32 s74, 3, 0"); a("s_xor_b32 s72, s72, s74")
            a("s_cmp_lt_u32 s73, 10"); a(f"s_cselect_b32 s67, {4096*640*2}, 0")
            srd(a, R_B, S_WO, "s67")
            a(f"s_lshr_b32 s74, s{S_WAVE}, 2"); a("s_lshl_b32 s74, s74, 3"); a("s_add_u32 s74, s74, s72")
            a(f"s_and_b32 s75, s{S_WAVE}, 3"); a("s_lshl_b32 s66, s74, 2"); a("s_add_u32 s66, s66, s75")
            a(f"s_mul_i32 s66, s66, {32*1280}"); a("s_lshl_b32 s67, s73, 7"); a("s_add_u32 s66, s66, s67")
            self.colvoff(VW, 4 * 1280, T)
            pn = self.opt.get("pn", 2)
            def wl(lo, hi, thr):
                for t in range(lo, hi):
                    if thr: a(f"s_waitcnt vmcnt({thr-1})")
                    a(f"buffer_load_dwordx4 v[{WO+4*t}:{WO+4*t+3}], v{VW}, s[{R_B}:{R_B+3}], s66 offen offset:{1280*t} nt")
            l = a.label("MD")
            a("s_cmp_eq_u32 s69, 1"); a(f"s_cbranch_scc1 {l}")
            self.colloads(WB + 20, VO, R_A, 64, 7680, thr=tm)
            a("s_waitcnt vmcnt(0)")
            a(f"{l}:")
            wl(0, pn, tm)
            a(f"s_waitcnt vmcnt({5+pn})")
            a(f"v_lshlrev_b32 v{X}, 16, v{X}")
            self.silu(X, T)
            self.gemv(X, P, B, [(D1, WB), (D2, WB + 20)], 5, wait=lambda t: 4 - t + pn)
            self.fold_col(D1, D2, Y)
            self.putpart(ADD, Y, L_ACC1)
            wl(pn, 4, 0)
            a("s_waitcnt lgkmcnt(0)"); a("s_barrier")
            l = a.label("MP")
            a(f"s_cmp_ge_u32 s{S_WAVE}, s69"); a(f"s_cbranch_scc1 {l}")
            a(f"s_add_u32 s70, s68, s{S_WAVE}"); a("s_lshl_b32 s70, s70, 8"); a(f"s_add_u32 s70, s70, {WS_MOD}")
            a(f"s_lshl_b32 s71, s{S_WAVE}, 5"); a(f"v_add_u32 v{T+1}, s71, v{CPOS}")
            self.publish(L_ACC1, T + 1, UOFF, 70, WB, True)
            if self.stamps:
                a(f"s_cmp_lg_u32 s{S_WAVE}, 0"); a(f"s_cbranch_scc1 {l}")
                self.stamp(3); self.flush_stamps(4, role='M'); self.flush_stamps(10, 9, role='M')
            a(f"{l}:")
            a("s_cmp_lt_u32 s73, 10"); a("s_cbranch_scc1 L_mw")
            a(f"s_cmp_eq_u32 s{S_WAVE}, 2"); a("s_cbranch_scc1 L_red")
            a("s_endpgm")
        elif ml:
            self.colloads(WB, VO, R_A, 62, 7680, thr=tm, lo=ml)
            self.colloads(WB + 20, VO, R_B, 64, 7680, thr=tm)
            a(f"v_lshlrev_b32 v{X}, 16, v84")
            self.silu(X, T)
            self.gemv(X, P, B, [(D1, WB), (D2, WB + 20)], 5, wait=lambda t: 4 - t)
            self.fold_col(D1, D2, Y)
            self.putpart(ADD, Y, L_ACC1)
            a("s_waitcnt lgkmcnt(0)"); a("s_barrier")
            a(f"s_cmp_eq_u32 s{S_WAVE}, 2"); a("s_cbranch_scc1 L_red")
            a(f"s_cmp_ge_u32 s{S_WAVE}, s69"); a(f"s_cbranch_scc1 L_end")
            a(f"s_add_u32 s70, s68, s{S_WAVE}"); a("s_lshl_b32 s70, s70, 8"); a(f"s_add_u32 s70, s70, {WS_MOD}")
            a(f"s_lshl_b32 s71, s{S_WAVE}, 5"); a(f"v_add_u32 v{T+1}, s71, v{CPOS}")
            self.publish(L_ACC1, T + 1, UOFF, 70, WB, True)
            if self.stamps:
                a(f"s_cmp_lg_u32 s{S_WAVE}, 0"); a("s_cbranch_scc1 L_end")
                self.stamp(3); self.flush_stamps(4, role='M'); self.flush_stamps(10, 9, role='M')
            a("s_endpgm")
        else:
            mx = self.opt.get("mx")
            if mx:
                assert len(mx) == 20
                srd(a, R_E, S_OUT, 1280)
                self.member(mx, 68, "L_mno")
                a("s_lshl1_add_u32 s68, s68, 20"); a("s_cmp_eq_u32 s2, s2")
            a(f"s_cselect_b32 s67, {640*3840*2}, 0"); a("s_cselect_b32 s68, s68, s69"); a("s_cselect_b32 s69, 2, 1")
            if self.opt.get("xg"):
                a("s_cmp_ge_u32 s68, 50"); a(f"s_cselect_b32 s67, 0, {640*3840*2}")
                srd(a, R_A, S_WM, "s67"); srd(a, R_B, S_WM, 0); srd(a, R_E, S_OUT, 1280)
            else:
                srd(a, R_A, S_WM, 0 if self.opt.get("xm") else 640 * 3840 * 2); srd(a, R_B, S_WM, 0 if self.opt.get("xm") else "s67"); srd(a, R_E, S_OUT, 1280)
            a(f"v_lshrrev_b32 v{T}, 1, v{ROW}")
            a(f"buffer_load_ushort v{X}, v{T}, s[{R_C}:{R_C+3}], 0 offen")
            ro = self.opt.get("ro", 0) & 2; mst = 8 * 7680 if ro else 7680
            self.colvoff(VO, (1 if ro else 5) * 7680, T)
            a(f"s_mul_i32 s62, s{S_WAVE}, {40*7680}"); a("s_lshl_b32 s63, s68, 7"); a("s_add_u32 s62, s62, s63"); a("s_add_u32 s64, s62, 128")
            md = self.opt.get("md")
            if md:
                l = a.label("MG")
                a(f"s_cmp_lg_u32 s{S_WAVE}, 3"); a(f"s_cbranch_scc1 {l}")
                par = [((128, 16, WS_ML), (3072, 512, WS_O))[md[k]] + (md[k + 1],) for k in (0, 2)]
                a("s_cmp_ge_u32 s68, 50")
                for i in range(4): a(f"s_mov_b32 s{72+i}, {par[0][i]}"); a(f"s_cselect_b32 s{72+i}, {par[1][i]}, s{72+i}")
                a(f"v_and_b32 v{T}, 31, v{V_L}"); a(f"v_mul_u32_u24 v{T}, s72, v{T}")
                a(f"v_lshrrev_b32 v{T+1}, 5, v{V_L}"); a(f"v_and_b32 v{T+2}, 1, v{V_L}"); a(f"v_lshl_add_u32 v{T+1}, v{T+1}, 1, v{T+2}")
                a(f"v_mul_u32_u24 v{T+1}, s73, v{T+1}"); a(f"v_add_u32 v{T}, v{T}, v{T+1}")
                lp = a.label("MQ")
                a(f"s_mov_b32 s{S_CNT}, 0")
                a("s_cmp_eq_u32 s75, 0"); a(f"s_cbranch_scc1 {l}")
                a(f"{lp}:")
                a(f"buffer_load_dword v{T+1}, v{T}, s[{R_WS}:{R_WS+3}], s74 offen sc1")
                a("s_waitcnt vmcnt(0)")
                a(f"v_and_b32 v{T+1}, s{S_M10}, v{T+1}"); a(f"v_cmp_eq_u32 vcc, v{T+1}, v{V_T10}")
                a("s_bcnt1_i32_b64 s72, vcc"); a("s_cmp_ge_u32 s72, s75"); a(f"s_cbranch_scc1 {l}")
                a(f"s_add_u32 s{S_CNT}, s{S_CNT}, 1"); a(f"s_cmp_lt_u32 s{S_CNT}, {SPIN}"); a(f"s_cbranch_scc1 {lp}")
                a(f"{l}:")
                a("s_barrier")
                self.stamp(9)
            if self.opt.get("xc", 0) & 4:
                a(f"v_lshlrev_b32 v{VO}, 4, v{V_L}"); a(f"s_lshl_b32 s62, s68, 4"); a(f"s_add_u32 s62, s62, s{S_WAVE}"); a("s_mul_i32 s62, s62, 5120"); a(f"s_add_u32 s64, s62, {16*5120}")
                self.colloads(WB, VO, R_A, 62, 1024, thr=tm)
                self.colloads(WB + 20, VO, R_B, 64, 1024, thr=tm)
            elif self.opt.get("pf") or self.opt.get("wp"):
                self.colloads(WB + 20, VO, R_B, 64, mst, thr=tm)
                self.colloads(WB, VO, R_A, 62, mst, thr=tm)
            else:
                self.colloads(WB, VO, R_A, 62, mst, thr=tm)
                self.colloads(WB + 20, VO, R_B, 64, mst, thr=tm)
            pf = self.opt.get("pf", 0); pn = self.opt.get("pn", 2) if pf else 0
            def pfld(lo, hi, thr):
                for i in range(lo, hi):
                    if thr: a(f"s_waitcnt vmcnt({thr-1})")
                    a(f"buffer_load_dwordx4 v[{64+4*i}:{64+4*i+3}], v{VO}, s[{R_B}:{R_B+3}], s62 offen offset:{1024*(i%4)}" + (" nt" if pf == 2 else ""))
                    if i == 3: a("s_add_u32 s62, s62, 4096")
            if pf:
                srd(a, R_B, S_WD, "s101")
                a(f"s_mul_i32 s62, s3, {64*1280}"); a(f"s_mul_i32 s63, s{S_WAVE}, 5120"); a("s_add_u32 s62, s62, s63")
                a(f"v_lshlrev_b32 v{VO}, 4, v{V_L}")
                pfld(0, pn, tm)
            wp = self.opt.get("wp")
            if wp:
                assert self.opt.get("hb") and not pf
                pn = self.opt.get("pn", 2)
                a("s_lshr_b32 s63, s74, 3"); a("s_cmp_lt_u32 s63, 4"); a(f"s_cselect_b32 s67, {(1 << 27) if self.opt.get('xk') else 4096*640*2}, 0")
                srd(a, R_B, S_K if self.opt.get("xk") else S_WO, "s67")
                a("s_and_b32 s62, s74, 7"); a("s_lshr_b32 s64, s63, 1"); a("s_lshl3_add_u32 s62, s64, s62"); a("s_and_b32 s63, s63, 1")
                a("s_lshl1_add_u32 s62, s62, s63"); a(f"s_lshl4_add_u32 s62, s62, s{S_WAVE}"); a("s_mul_i32 s62, s62, 5120")
                a(f"v_lshlrev_b32 v{VO}, 4, v{V_L}")
                def wpld(lo, hi, thr):
                    for i in range(lo, hi):
                        o = wp[i // 5] * ((1 << 22) if self.opt.get("xk") else 8 * 163840) + 1024 * (i % 5)
                        if i % 5 in (0, 4) or i == lo: a(f"s_add_u32 s63, s62, {o - o % 4096}")
                        a(f"s_waitcnt vmcnt({thr-1})")
                        a(f"buffer_load_dwordx4 v[{64+4*(i%5)}:{64+4*(i%5)+3}], v{VO}, s[{R_B}:{R_B+3}], s63 offen offset:{o % 4096} nt")
                wpld(0, pn, tm)
            a(f"s_waitcnt vmcnt({10+pn})")
            a(f"v_lshlrev_b32 v{X}, 16, v{X}")
            self.silu(X, T)
            self.gemv(X, P, B, [(D1, WB), (D2, WB + 20)], 5, wait=lambda t: 4 - t + pn)
            self.fold_col(D1, D2, Y)
            self.putpart(ADD, Y, L_ACC1)
            if pf: pfld(pn, 5, 0)
            a("s_waitcnt lgkmcnt(0)"); a("s_barrier")
            if not wp: a(f"s_cmp_eq_u32 s{S_WAVE}, 2"); a("s_cbranch_scc1 L_red")
            a(f"s_cmp_ge_u32 s{S_WAVE}, s69"); a(f"s_cbranch_scc1 {'L_wp' if wp else 'L_end'}")
            a(f"s_add_u32 s70, s68, s{S_WAVE}"); a("s_lshl_b32 s70, s70, 8"); a(f"s_add_u32 s70, s70, {WS_MOD}")
            a(f"s_lshl_b32 s71, s{S_WAVE}, 5"); a(f"v_add_u32 v{T+1}, s71, v{CPOS}")
            self.publish(L_ACC1, T + 1, UOFF, 70, WB, True)
            if wp:
                self.stamp(3)
                a("L_wp:")
                wpld(pn, 5 * len(wp), self.opt.get("wt", 2))
                a(f"s_cmp_eq_u32 s{S_WAVE}, 2"); a("s_cbranch_scc1 L_red")
                if self.stamps:
                    a(f"s_cmp_lg_u32 s{S_WAVE}, 0"); a("s_cbranch_scc1 L_end"); a("s_waitcnt vmcnt(0)")
                    self.stamp(9); self.flush_stamps(4, role='M'); self.flush_stamps(10, 9, role='M')
            elif self.stamps:
                a(f"s_cmp_lg_u32 s{S_WAVE}, 0"); a("s_cbranch_scc1 L_end")
                self.stamp(3); self.flush_stamps(4, role='M'); self.flush_stamps(10, 9, role='M')
            a("s_endpgm")
            if mx or self.opt.get("mb"):
                a("L_mno:")
                a(f"s_cmp_eq_u32 s{S_WAVE}, 2"); a("s_cbranch_scc1 L_red")
                if self.stamps:
                    a(f"s_cmp_lg_u32 s{S_WAVE}, 0"); a("s_cbranch_scc1 L_end")
                    self.stamp(3); self.flush_stamps(4, role='M'); self.flush_stamps(10, 9, role='M')
                a("s_endpgm")
        a("L_race:")
        self.races(T)
        a("s_endpgm" if self.opt.get("rv") else f"s_branch {self.l_back}")
        self.hole("F")
        a("L_red:")
        if not rd: a(f"s_cmp_ge_u32 s2, {NW}"); a("s_cbranch_scc1 L_end")
        COL, GA, GB, XV, A4, R = 10, 11, 12, 13, 14, 64
        f3 = self.opt.get("f3")
        if f3:
            a(f"v_and_b32 v{T}, 3, v{V_N}"); a(f"v_lshlrev_b32 v{T}, 3, v{T}"); a(f"v_and_or_b32 v{T+6}, v{V_N}, 4, v{T}"); a(f"v_add_u32 v{COL}, v{T+6}, v{V_G}")
        else: a(f"v_and_b32 v{T}, 7, v{V_N}"); a(f"v_lshl_add_u32 v{COL}, v{V_G}, 3, v{T}")
        a("s_lshl_b32 s62, s2, 5"); a(f"v_add_u32 v{COL}, s62, v{COL}")
        a(f"v_lshlrev_b32 v{T+1}, 1, v{COL}"); a(f"v_lshlrev_b32 v{COL}, 2, v{COL}")
        a(f"buffer_load_ushort v{XV}, v{T+1}, s[{R_D}:{R_D+3}], 0 offen")
        if self.opt.get("ot"): a(f"buffer_load_ushort v{R}, v{T+1}, s[{R_E}:{R_E+3}], 0 offen")
        a(f"s_mov_b32 s63, {WS_MOD+1280*4}"); a(f"s_mov_b32 s64, {WS_MOD+3200*4}")
        a(f"s_mov_b32 s75, {WS_VOTE}"); a(f"v_lshlrev_b32 v{T+3}, 2, v{V_L}")
        self.voteld(T + 4, T + 3)
        def iss3():
            a(f"buffer_load_dword v{GA}, v{COL}, s[{R_WS}:{R_WS+3}], s63 offen sc1")
            if not rd: a(f"buffer_load_dword v{GB}, v{COL}, s[{R_WS}:{R_WS+3}], s64 offen sc1")
        self.poll(iss3, lambda: self.untag([GA] if rd else [GA, GB], V_T16, T + 2, 0xffff), "PG")
        self.side(T + 4, 74)
        if rd == 1:
            l, lp = a.label("RG"), a.label("RQ")
            a(f"v_and_b32 v{T+2}, 31, v{V_L}"); a(f"v_mul_u32_u24 v{T+2}, 3072, v{T+2}")
            a(f"v_lshrrev_b32 v{T+3}, 5, v{V_L}"); a(f"v_mul_u32_u24 v{T+3}, 3, v{T+3}"); a(f"v_and_b32 v{T+4}, 1, v{V_L}"); a(f"v_add_u32 v{T+3}, v{T+3}, v{T+4}")
            a(f"v_lshl_add_u32 v{T+2}, v{T+3}, 9, v{T+2}")
            a(f"s_mov_b32 s{S_CNT}, 0"); a(f"s_mov_b32 s72, {WS_O}")
            a(f"v_mov_b32 v{A4}, 0"); a(f"v_mov_b32 v{A4+1}, 0"); a(f"v_lshlrev_b32 v{T+4}, 3, v{V_L}")
            if self.opt.get("rj", 16):
                a(f"{lp}:")
                a(f"buffer_load_dword v{T+3}, v{T+2}, s[{R_WS}:{R_WS+3}], s72 offen sc1")
                a("s_waitcnt vmcnt(0)")
                a(f"v_and_b32 v{T+3}, s{S_M10}, v{T+3}"); a(f"v_cmp_eq_u32 vcc, v{T+3}, v{V_T10}")
                a("s_bcnt1_i32_b64 s73, vcc"); a(f"s_cmp_ge_u32 s73, {self.opt.get('rj', 16)}"); a(f"s_cbranch_scc1 {l}")
                a(f"s_add_u32 s{S_CNT}, s{S_CNT}, 1"); a(f"s_cmp_lt_u32 s{S_CNT}, {SPIN}"); a(f"s_cbranch_scc1 {lp}")
                a(f"{l}:")
            a("s_barrier")
            self.stamp(4)
            a(f"ds_write_b64 v{T+4}, v[{A4}:{A4+1}] offset:{L_ACC0+15*512}")
            a("s_waitcnt lgkmcnt(0)")
        def red8(R):
            a(f"v_permlane32_swap_b32 v{R}, v{R+2}"); a(f"v_permlane32_swap_b32 v{R+1}, v{R+3}")
            a(f"v_add_f32 v{R}, v{R}, v{R+2}"); a(f"v_add_f32 v{R+1}, v{R+1}, v{R+3}")
            a(f"v_permlane16_swap_b32 v{R}, v{R+1}")
            a(f"v_add_f32 v{R}, v{R}, v{R+1}")
            a(f"v_add_f32_dpp v{R}, v{R}, v{R} row_ror:8 row_mask:0xf bank_mask:0xf")
            bfr(a, R, R)
        if f3:
            assert self.opt.get("w2")
            a("s_lshl_b32 s65, s2, 7"); a("s_add_u32 s65, s65, s74"); a(f"s_add_u32 s65, s65, {WS_A}"); a("s_add_u32 s66, s65, 0x10000")
            a(f"v_lshlrev_b32 v{T+6}, 2, v{T+6}"); a(f"v_lshl_add_u32 v{T+6}, v{V_G}, 14, v{T+6}")
            a(f"v_lshrrev_b32 v{T+2}, 3, v{V_N}"); a(f"v_mul_u32_u24 v{T+2}, 2560, v{T+2}"); a(f"v_add_u32 v{T+6}, v{T+6}, v{T+2}")
            def iss4():
                for i in range(2): a(f"buffer_load_dwordx4 v[{A4+4*i}:{A4+4*i+3}], v{T+6}, s[{R_WS}:{R_WS+3}], s{65+i} offen sc1")
            self.poll(iss4, lambda: self.untag([A4, A4 + 4], V_T10, T + 2, 0x3ff), "PA", hole="F")
            a(f"v_lshlrev_b32 v{XV}, 16, v{XV}")
            for i in range(4): a(f"v_add_f32 v{A4+i}, v{A4+i}, v{A4+4+i}")
            red8(A4)
            a(f"v_mul_f32 v{A4}, v{GA}, v{A4}"); bfr(a, A4, A4)
            a(f"v_add_f32 v{A4}, v{XV}, v{A4}"); bfr(a, A4, A4)
        else:
            for i in range(4): a(f"s_add_u32 s{65+i}, s74, {WS_A+16384*i}")
            NP = 16 if self.opt.get("w2") else 8
            if NP == 16: a(f"v_add_u32 v{T+6}, 0x10000, v{COL}")
            def iss4():
                for i in range(NP):
                    a(f"buffer_load_dword v{A4+i}, v{COL if i < 8 else T+6}, s[{R_WS}:{R_WS+3}], s{65+((i>>1)&3)} offen offset:{2560*(i&1)} sc1")
            self.poll(iss4, lambda: self.untag(list(range(A4, A4 + NP)), V_T10, T + 2, 0x3ff), "PA", hole="F")
            a(f"v_lshlrev_b32 v{XV}, 16, v{XV}")
            self.x2calc(COL, GA, XV, A4, A4)
        self.stamp(6)
        a(f"v_lshlrev_b32 v{T+2}, 4, v{V_L}")
        if rd:
            R = 64
            def lsum(acc, n):
                for i in range(n): a(f"ds_read_b128 v[{R+4*i}:{R+4*i+3}], v{T+2} offset:{acc+1024*i}")
                def ad(x, y):
                    for i in (0, 2): a(f"v_pk_add_f32 v[{R+4*x+i}:{R+4*x+i+1}], v[{R+4*x+i}:{R+4*x+i+1}], v[{R+4*y+i}:{R+4*y+i+1}]")
                for x in range(0, n - 1, 2):
                    a(f"s_waitcnt lgkmcnt({n-x-2})"); ad(x, x + 1)
                    if x % 4 == 2: ad(x - 2, x)
                if n % 2: a("s_waitcnt lgkmcnt(0)")
                if n == 7: ad(4, 6)
                ad(0, 4)
                red8(R)
            if rd == 2:
                if self.opt.get("rb"): a("s_barrier")
                self.poll(lambda: a(f"buffer_load_dword v{GB}, v{COL}, s[{R_WS}:{R_WS+3}], s64 offen sc1"), lambda: self.untag([GB], V_T16, T + 3, 0xffff), "PB")
                self.stamp(5)
                a("s_and_b32 s62, s2, 1"); a(f"s_mul_i32 s62, s62, {7*1024}"); a(f"v_add_u32 v{T+2}, s62, v{T+2}")
            else:
                a("s_barrier")
                self.stamp(5)
                lsum(L_ACC2, 5)
                a(f"v_mov_b32 v{GB}, v{R}")
            a("s_setprio 3")
            self.hole("F", True)
            a("s_barrier")
            self.stamp(7)
            lsum(L_ACC0, 8 if rd == 1 else 7)
        else: self.red_gather(red8)
        R = self.R
        a(f"v_mul_f32 v{R}, v{GB}, v{R}"); bfr(a, R, R)
        a(f"v_add_f32 v{R}, v{A4}, v{R}")
        a(f"v_cvt_pk_bf16_f32 v{R}, v{R}, v{R}")
        self.setexec(0x00ff00ff, 0x00ff00ff)
        a(f"buffer_store_short v{R}, v{T+1}, s[{R_E}:{R_E+3}], 0 offen" + self.opt.get("os", ""))
        self.allexec()
        self.stamp(8)
        ep = self.opt.get("ep", 0)
        if ep < 2:
            l = a.label("EP")
            a("s_cmp_lg_u32 s2, 0"); a(f"s_cbranch_scc1 {l}")
            a(f"v_mov_b32 v{T}, s{S_T}"); a(f"v_mov_b32 v{T+1}, 0")
            self.setexec(1, 0)
            a(f"buffer_store_dword v{T}, v{T+1}, s[{R_WS}:{R_WS+3}], 0 offen" + ("" if ep else " sc1"))
            self.allexec()
            a(f"{l}:")
        if rd == 2: a(f"s_mov_b32 s{S_WAVE}, 2")
        self.pw([6, 7, 8, 8, -1])
        self.flush_stamps(9, 4 if rd else 6, role='W')
        a("s_endpgm")

    def member(self, lst, d, out):
        a = self.a; mk = sum(1 << i for i in lst)
        a(f"s_mov_b32 s64, {mk & 0xffffffff:#x}"); a(f"s_mov_b32 s65, {mk >> 32:#x}")
        a("s_bitcmp0_b64 s[64:65], s2"); a(f"s_cbranch_scc1 {out}")
        a("s_bfm_b64 s[66:67], s2, 0"); a("s_and_b64 s[66:67], s[66:67], s[64:65]"); a(f"s_bcnt1_i32_b64 s{d}, s[66:67]")

    def otrig(self, n, T):
        a = self.a
        if not n: return
        l, lp = a.label("RG"), a.label("RQ")
        if self.opt.get("tt") == 2:
            a(f"v_and_b32 v{T+2}, 7, v{V_L}"); a(f"v_lshlrev_b32 v{T+2}, 2, v{T+2}")
            a(f"s_mov_b32 s{S_CNT}, 0"); a(f"s_mov_b32 s72, {WS_TK+32*n[0]}"); a("s_mov_b64 exec, 0xff")
            a(f"{lp}:")
            a(f"buffer_load_dword v{T+3}, v{T+2}, s[{R_WS}:{R_WS+3}], s72 offen sc1")
            a("s_waitcnt vmcnt(0)")
            a(f"v_cmp_eq_u32 vcc, s{S_T}, v{T+3}")
            a("s_bcnt1_i32_b64 s73, vcc"); a(f"s_cmp_ge_u32 s73, {n[1]}"); a(f"s_cbranch_scc1 {l}")
            a(f"s_add_u32 s{S_CNT}, s{S_CNT}, 1"); a(f"s_cmp_lt_u32 s{S_CNT}, {SPIN}"); a(f"s_cbranch_scc1 {lp}")
            a(f"{l}:")
            a("s_mov_b64 exec, -1")
            return
        if self.opt.get("tt"):
            dp = "row_mask:0xf bank_mask:0xf"
            a("s_load_dwordx2 s[66:67], s[0:1], 96")
            a(f"v_and_b32 v{T+2}, 7, v{V_L}"); a(f"v_lshlrev_b32 v{T+2}, 5, v{T+2}")
            a(f"s_mov_b32 s{S_CNT}, 0"); a("s_waitcnt lgkmcnt(0)")
            a(f"{lp}:")
            a(f"global_load_dword v{T+3}, v{T+2}, s[66:67] sc0 sc1")
            a("s_waitcnt vmcnt(0)")
            for m in ("quad_perm:[1,0,3,2]", "quad_perm:[2,3,0,1]", "row_half_mirror"): a(f"v_add_u32_dpp v{T+3}, v{T+3}, v{T+3} {m} {dp}")
            a(f"v_readfirstlane_b32 s73, v{T+3}"); a(f"s_cmp_ge_u32 s73, {n}"); a(f"s_cbranch_scc1 {l}")
            a(f"s_add_u32 s{S_CNT}, s{S_CNT}, 1"); a(f"s_cmp_lt_u32 s{S_CNT}, {SPIN}"); a(f"s_cbranch_scc1 {lp}")
            a(f"{l}:")
            return
        a(f"v_and_b32 v{T+2}, 31, v{V_L}"); a(f"v_mul_u32_u24 v{T+2}, 3072, v{T+2}")
        a(f"v_lshrrev_b32 v{T+3}, 5, v{V_L}"); a(f"v_mul_u32_u24 v{T+3}, 3, v{T+3}"); a(f"v_and_b32 v{T+4}, 1, v{V_L}"); a(f"v_add_u32 v{T+3}, v{T+3}, v{T+4}")
        a(f"v_lshl_add_u32 v{T+2}, v{T+3}, 9, v{T+2}")
        a(f"s_mov_b32 s{S_CNT}, 0"); a(f"s_mov_b32 s72, {WS_O}")
        a(f"{lp}:")
        a(f"buffer_load_dword v{T+3}, v{T+2}, s[{R_WS}:{R_WS+3}], s72 offen sc1")
        a("s_waitcnt vmcnt(0)")
        a(f"v_and_b32 v{T+3}, s{S_M10}, v{T+3}"); a(f"v_cmp_eq_u32 vcc, v{T+3}, v{V_T10}")
        a("s_bcnt1_i32_b64 s73, vcc"); a(f"s_cmp_ge_u32 s73, {n}"); a(f"s_cbranch_scc1 {l}")
        a(f"s_add_u32 s{S_CNT}, s{S_CNT}, 1"); a(f"s_cmp_lt_u32 s{S_CNT}, {SPIN}"); a(f"s_cbranch_scc1 {lp}")
        a(f"{l}:")

    def role_rd2(self):
        a = self.a
        VO, AR, T = self.VO, self.B, self.T
        IDX, PS, D, WB, LA, PA = 13, 22, 48, 64, 44, 45
        self.member(self.opt["rm"], 2, "L_end")
        a("s_lshl_b32 s60, s2, 7"); a("s_lshl_b32 s2, s2, 1")
        a(f"s_sub_u32 s73, s{S_WAVE}, 2"); a("s_cmp_lt_u32 s73, 2"); a(f"s_cbranch_scc0 L_rdw")
        a("s_add_u32 s2, s2, s73")
        rk = self.opt.get("rk", 0)
        if rk:
            l = a.label("RK")
            a("s_cmp_eq_u32 s73, 0"); a(f"s_cbranch_scc1 {l}")
            self.otrig(self.opt["rj"], T)
            a(f"{l}:")
            a("s_barrier")
            self.stamp(4)
        a("s_branch L_red")
        a("L_rdw:")
        a(f"s_min_u32 s73, s73, s{S_WAVE}")
        self.gu_row(T)
        a(f"v_and_b32 v{T}, 8, v{V_N}"); a(f"v_lshl_add_u32 v{T+1}, v{T}, 1, v{T+1}"); a(f"v_and_b32 v{T+2}, 7, v{V_N}")
        a(f"v_mul_u32_u24 v{VO}, 1280, v{T+1}"); a(f"v_lshl_add_u32 v{VO}, v{T+2}, 4, v{VO}")
        a(f"s_mul_i32 s62, s73, {128*1280}"); a("s_add_u32 s62, s62, s60")
        a(f"s_mov_b32 s75, {WS_VOTE}"); a(f"v_lshlrev_b32 v{PA}, 2, v{V_L}")
        self.voteld(PS, PA)
        rt = self.opt.get("rt", 2); rt = rt if isinstance(rt, list) else [rt] * 16
        for j in range(16):
            if j and j % 2 == 0: a(f"s_add_u32 s62, s62, {(4 if j % 4 else 28)*1280}")
            if rk and j == rk: a("s_barrier")
            if j >= rt[j]: a(f"s_waitcnt vmcnt({rt[j]-1})")
            a(f"buffer_load_dwordx4 v[{WB+4*j}:{WB+4*j+3}], v{VO}, s[{R_B}:{R_B+3}], s62 offen offset:{2560*(j&1)} nt")
        a(f"v_and_b32 v{T+2}, 3, v{V_N}"); a(f"v_mul_u32_u24 v{IDX}, 0x5555, v{T+2}")
        a(f"v_bfe_u32 v{T}, v{V_N}, 2, 1"); a(f"v_mul_u32_u24 v{LA}, {7*1024}, v{T}"); a(f"v_lshl_add_u32 v{LA}, v{V_G}, 7, v{LA}"); a(f"v_lshl_add_u32 v{LA}, v{T+2}, 4, v{LA}")
        a("s_lshl_b32 s62, s73, 9"); a(f"v_add_u32 v{LA}, s62, v{LA}")
        for i in range(16): a(f"v_mov_b32 v{D+i}, 0")
        self.side(PS, 74)
        a("s_add_u32 s70, s62, s74"); a(f"s_add_u32 s70, s70, {WS_D}"); a("s_cmp_lt_u32 s73, 13"); a("s_cselect_b32 s71, 256, 0"); a("s_add_u32 s71, s71, s70")
        a("s_mov_b32 s76, 0xff0000ff"); a("s_mov_b32 s77, 0"); a("s_mov_b32 s78, 0"); a("s_mov_b32 s79, 0xff0000ff")
        a("s_waitcnt vmcnt(0)")
        self.stamp(4)
        self.regroup(WB)
        if self.opt.get("rb"): a("s_barrier")
        self.stamp(5)
        def bc(dst, src):
            for d in range(4): a(f"v_mov_b32_dpp v{dst+d}, v{src} quad_perm:[{d},{d},{d},{d}] row_mask:0xf bank_mask:0xf")
        ns = self.opt.get("rs", 1)
        def iss(k):
            for i in range(2): a(f"buffer_load_dword v{PS+2*k+i}, v{PA}, s[{R_WS}:{R_WS+3}], s{70+i} offen sc1")
        for k in range(ns): iss(k)
        a(f"s_mov_b32 s{S_CNT}, 0")
        a("L_pd:")
        for k in range(ns):
            a(f"s_waitcnt vmcnt({2*(ns-1)})")
            self.untag([PS + 2 * k, PS + 2 * k + 1], V_T16, T, 0xffff)
            a(f"s_cbranch_vccz L_pd{k}")
            iss(k)
        a(f"s_add_u32 s{S_CNT}, s{S_CNT}, 1"); a(f"s_cmp_lt_u32 s{S_CNT}, {SPIN}"); a(f"s_cbranch_scc1 L_pd")
        a("s_branch L_pd0"); self.hole("F")
        for k in range(ns):
            a(f"L_pd{k}:")
            bc(AR, PS + 2 * k); bc(AR + 4, PS + 2 * k + 1)
            if k < ns - 1: a("s_branch L_pdx")
        a("L_pdx:")
        self.stamp(6)
        for t in range(4):
            for h in range(2):
                d = D + 8 * (t & 1) + 4 * h; A_ = AR + 4 * (t >> 1); W = WB + 16 * t + 8 * h
                a(f"v_smfmac_f32_16x16x64_bf16 v[{d}:{d+3}], v[{A_}:{A_+3}], v[{W}:{W+7}], v{IDX}")
        for hb in range(2):
            a(f"s_mov_b64 exec, s[{76+2*hb}:{77+2*hb}]")
            for h in range(2): a(f"ds_write_b128 v{LA}, v[{D+8*hb+4*h}:{D+8*hb+4*h+3}] offset:{L_ACC0+64*h}")
        a("s_waitcnt lgkmcnt(0)"); a("s_barrier")
        if self.stamps:
            self.allexec()
            self.stamp(7)
            self.pw([4, 5, 6, 7, -1])
        a("s_endpgm")

    R = 64
    def role_rd(self):
        a = self.a
        VO, X, AR, T = self.VO, self.X, self.B, self.T
        IDX, VG, PS, D, WB, LA, PA = 13, 10, 22, 48, 64, 44, 45
        rm = self.opt.get("rm", list(range(20))); assert len(rm) == 20
        mk = sum(1 << i for i in rm)
        a(f"s_mov_b32 s64, {mk & 0xffffffff:#x}"); a(f"s_mov_b32 s65, {mk >> 32:#x}")
        a("s_bitcmp0_b64 s[64:65], s2"); a("s_cbranch_scc1 L_end")
        a("s_bfm_b64 s[66:67], s2, 0"); a("s_and_b64 s[66:67], s[66:67], s[64:65]"); a("s_bcnt1_i32_b64 s2, s[66:67]")
        a(f"s_cmp_eq_u32 s{S_WAVE}, 2"); a("s_cbranch_scc1 L_red")
        a(f"s_cmp_gt_u32 s{S_WAVE}, 2"); a(f"s_subb_u32 s73, s{S_WAVE}, 0")
        a(f"s_mov_b32 s75, {WS_VOTE}"); a(f"v_lshlrev_b32 v{PA}, 2, v{V_L}")
        self.voteld(PS, PA)
        a("s_max_u32 s72, s73, 5"); a("s_sub_u32 s72, s72, 5")
        a(f"v_lshl_add_u32 v{T}, v{V_N}, 2, v{V_G}"); a(f"v_lshlrev_b32 v{T}, 1, v{T}"); a("s_lshl_b32 s62, s72, 7")
        a(f"buffer_load_ushort v{X}, v{T}, s[{R_C}:{R_C+3}], s62 offen")
        a(f"v_and_b32 v{T+2}, 3, v{V_N}"); a(f"v_mul_u32_u24 v{IDX}, 0x5555, v{T+2}")
        self.gu_row(T)
        a(f"v_and_b32 v{T}, 12, v{V_N}"); a(f"v_lshl_add_u32 v{T+1}, v{T}, 2, v{T+1}")
        a(f"v_mul_u32_u24 v{VO}, 1280, v{T+1}"); a(f"v_lshl_add_u32 v{VO}, v{T+2}, 4, v{VO}")
        a(f"v_mul_u32_u24 v{VG}, 7680, v{T+1}"); a(f"v_lshl_add_u32 v{VG}, v{T+2}, 4, v{VG}")
        a(f"v_lshlrev_b32 v{LA}, 7, v{V_G}"); a(f"v_lshl_add_u32 v{LA}, v{T+2}, 4, v{LA}"); a("s_lshl_b32 s62, s73, 9"); a(f"v_add_u32 v{LA}, s62, v{LA}")
        a("s_lshl_b32 s60, s2, 6")
        a(f"s_mul_i32 s62, s73, {64*1280}"); a("s_add_u32 s62, s62, s60"); a("s_add_u32 s63, s62, 5120")
        a("s_cmp_lt_u32 s73, 12"); a(f"s_cselect_b32 s64, {15*64*1280}, 0x40000000"); a(f"s_cselect_b32 s71, {15*256}, 0")
        a("s_add_u32 s65, s64, s63"); a("s_add_u32 s64, s64, s62")
        a(f"s_mul_i32 s66, s72, {64*7680}"); a("s_add_u32 s66, s66, s60"); a("s_add_u32 s66, s66, 6400")
        for i in range(3): a(f"s_add_u32 s{67+i}, s{66+i}, {2*7680}")
        for i in range(8): a(f"v_mov_b32 v{D+i}, 0")
        a("s_waitcnt vmcnt(0)")
        self.side(PS, 74)
        a("s_lshl_b32 s70, s73, 8"); a("s_add_u32 s70, s70, s74"); a(f"s_add_u32 s70, s70, {WS_D}"); a("s_add_u32 s71, s71, s70")
        a(f"v_lshlrev_b32 v{X}, 16, v{X}")
        self.silu(X, T)
        a(f"v_and_b32 v{X}, 0xffff0000, v{X}")
        def bc(dst, src):
            for d in range(4): a(f"v_mov_b32_dpp v{dst+d}, v{src} quad_perm:[{d},{d},{d},{d}] row_mask:0xf bank_mask:0xf")
        def rg(W):
            for x, y in ((2, 8), (3, 9), (6, 12), (7, 13)): a(f"v_swap_b32 v{W+x}, v{W+y}")
        def mm(A_, W):
            for h in range(2): a(f"v_smfmac_f32_16x16x64_bf16 v[{D+4*h}:{D+4*h+3}], v[{A_}:{A_+3}], v[{W+8*h}:{W+8*h+7}], v{IDX}")
        def put(acc):
            self.setexec(0x00f0000f, 0xf0000f00)
            for h in range(2): a(f"ds_write_b128 v{LA}, v[{D+4*h}:{D+4*h+3}] offset:{acc+64*h}")
        bc(AR, X)
        rt = self.opt.get("rt", 0); nt = " nt" if self.opt.get("rn", 1) else ""
        def wd():
            for j in range(8):
                if rt: a(f"s_waitcnt vmcnt({rt-1})")
                a(f"buffer_load_dwordx4 v[{WB+4*j}:{WB+4*j+3}], v{VO}, s[{R_B}:{R_B+3}], s{62+(j>>1)} offen offset:{2560*(j&1)}{nt}")
        l, l2 = a.label("RN"), a.label("RM")
        a("s_cmp_lt_u32 s73, 5")
        a("s_barrier")
        a(f"s_cbranch_scc1 {l}")
        for j in range(4):
            if rt: a(f"s_waitcnt vmcnt({rt-1})")
            a(f"buffer_load_dwordx4 v[{WB+32+4*j}:{WB+32+4*j+3}], v{VG}, s[{R_A}:{R_A+3}], s{66+j} offen{nt}")
        a(f"{l}:")
        wd()
        a(f"s_cbranch_scc1 {l2}")
        a("s_waitcnt vmcnt(8)")
        rg(WB + 32); mm(AR, WB + 32); put(L_ACC2 - 5 * 512)
        self.allexec()
        a("s_waitcnt lgkmcnt(0)")
        for i in range(8): a(f"v_mov_b32 v{D+i}, 0")
        a(f"{l2}:")
        a("s_waitcnt vmcnt(0)")
        self.stamp(4)
        rg(WB); rg(WB + 16)
        a("s_barrier")
        self.stamp(5)
        ns = self.opt.get("rs", 1)
        def iss(k):
            for i in range(2): a(f"buffer_load_dword v{PS+2*k+i}, v{PA}, s[{R_WS}:{R_WS+3}], s{70+i} offen sc1")
        for k in range(ns): iss(k)
        a(f"s_mov_b32 s{S_CNT}, 0")
        a("L_pd:")
        for k in range(ns):
            a(f"s_waitcnt vmcnt({2*(ns-1)})")
            self.untag([PS + 2 * k, PS + 2 * k + 1], V_T16, T, 0xffff)
            a(f"s_cbranch_vccz L_pd{k}")
            iss(k)
        a(f"s_add_u32 s{S_CNT}, s{S_CNT}, 1"); a(f"s_cmp_lt_u32 s{S_CNT}, {SPIN}"); a(f"s_cbranch_scc1 L_pd")
        a("s_branch L_pd0"); self.hole("F")
        for k in range(ns):
            a(f"L_pd{k}:")
            bc(AR, PS + 2 * k); bc(AR + 4, PS + 2 * k + 1)
            if k < ns - 1: a("s_branch L_pdx")
        a("L_pdx:")
        self.stamp(6)
        mm(AR, WB); mm(AR + 4, WB + 16)
        put(L_ACC0)
        a("s_waitcnt lgkmcnt(0)"); a("s_barrier")
        if self.stamps:
            self.allexec()
            self.stamp(7)
            self.pw([4, 5, 6, 7, -1])
        a("s_endpgm")

    def red_gather(self, red8):
        a = self.a; T = self.T; R = 64; f3 = self.opt.get("f3")
        a(f"v_min_u32 v{T+3}, {2*128+112}, v{T+2}")
        a(f"v_cmp_gt_u32 vcc, 24, v{V_L}"); a(f"v_cndmask_b32 v{T+4}, 0, 1.0, vcc")
        a("s_lshr_b32 s62, s2, 1"); a("s_mul_i32 s62, s62, 16512"); a("s_and_b32 s63, s2, 1"); a("s_mul_i32 s63, s63, 3456"); a("s_add_u32 s62, s62, s63")
        a("s_add_u32 s62, s62, s74"); a(f"s_add_u32 s62, s62, {WS_D}")
        def iss5(R=R):
            for i in range(4):
                a(f"buffer_load_dwordx4 v[{R+4*i}:{R+4*i+3}], v{T+2 if i < 3 else T+3}, s[{R_WS}:{R_WS+3}], s62 offen offset:{1024*i} sc1")
        ns = self.opt.get("rs", 1)
        if ns > 1:
            sets = [48 + 16 * k for k in range(ns)]; R = 22
            for S_ in sets: iss5(S_)
            a(f"s_mov_b32 s{S_CNT}, 0")
            a("L_pd:")
            for k, S_ in enumerate(sets):
                a(f"s_waitcnt vmcnt({4*(ns-1)})")
                self.untag(list(range(S_, S_ + 16, 4)), V_T10, T + 5, 0x3ff)
                a(f"s_cbranch_vccz L_pd{k}")
                iss5(S_)
            a(f"s_add_u32 s{S_CNT}, s{S_CNT}, 1"); a(f"s_cmp_lt_u32 s{S_CNT}, {SPIN}"); a(f"s_cbranch_scc1 L_pd")
            a("s_branch L_pd0"); self.hole("F")
            for k, S_ in enumerate(sets):
                a(f"L_pd{k}:")
                for i in range(4): a(f"v_add_f32 v{R+i}, v{S_+i}, v{S_+4+i}")
                for i in range(4): a(f"v_fma_f32 v{R+4+i}, v{S_+12+i}, v{T+4}, v{S_+8+i}")
                if k < ns - 1: a("s_branch L_pdx")
            a("L_pdx:")
            self.stamp(7)
            for i in range(4): a(f"v_add_f32 v{R+i}, v{R+i}, v{R+4+i}")
        else:
            self.poll(iss5, lambda: self.untag(list(range(R, R + 16, 4 if f3 else 1)), V_T10, T + 5, 0x3ff), "PD")
            self.stamp(7)
            for i in range(4): a(f"v_add_f32 v{R+i}, v{R+i}, v{R+4+i}")
            for i in range(4): a(f"v_fma_f32 v{R+8+i}, v{R+12+i}, v{T+4}, v{R+8+i}")
            for i in range(4): a(f"v_add_f32 v{R+i}, v{R+i}, v{R+8+i}")
        red8(R)
        self.R = R

    def role_f(self):
        a = self.a
        ROW, VO, X, B, D1, D2, Y, T, XO, ADD, CPOS, UOFF, P = self.ROW, self.VO, self.X, self.B, self.D1, self.D2, self.Y, self.T, self.XO, self.ADD, self.CPOS, self.UOFF, self.P
        WA, WB = 56, 88
        tf = self.opt.get("tf", 2)
        a("; GRP F")
        self.hole("F")
        a("L_f:")
        a(f"s_sub_u32 s69, s2, {NM}")
        fsz = 0 if self.opt.get("xf") else 640 * 1728 * 2
        srd(a, R_C, S_WG, fsz); srd(a, R_E, S_WU, fsz); srd(a, R_A, S_WD, fsz)
        self.colvoff(VO, 5 * 3456, T)
        a(f"s_mul_i32 s62, s{S_WAVE}, {40*3456}"); a("s_lshl_b32 s63, s69, 7"); a("s_add_u32 s62, s62, s63")
        for t in range(5):
            if t: a(f"s_add_u32 s62, s62, 3456")
            for h, sr in enumerate((R_C, R_E)):
                th = 1 if 2 * t + h <= self.opt.get("f1", 0) else tf
                if th: a(f"s_waitcnt vmcnt({th-1})")
                a(f"buffer_load_dwordx4 v[{WB+20*h+4*t}:{WB+20*h+4*t+3}], v{VO}, s[{sr}:{sr+3}], s62 offen nt")
        def downloads(thr, vo):
            l = a.label("FD")
            a(f"s_cmp_ge_u32 s{S_WAVE}, 10"); a(f"s_cbranch_scc1 {l}")
            self.colvoff(vo, 8 * 1280, T)
            a(f"s_mul_i32 s62, s69, {64*1280}"); a(f"s_lshl_b32 s74, s{S_WAVE}, 7"); a("s_add_u32 s62, s62, s74")
            self.colloads(WA, vo, R_A, 62, 1280, n=8, thr=thr)
            a(f"{l}:")
        fd = self.opt.get("fd", 0)
        if not fd: downloads(tf, VO)
        GA, SB, CB, A4, VAL = T + 5, T + 6, T + 7, T + 8, UOFF
        GPOS, DOFF, SRD_, SWR = 52, 53, 54, 55
        AWR, G1 = VO, 13
        a(f"v_lshlrev_b32 v{GPOS}, 2, v{V_L}")
        GST = 528
        self.wraddr(ADD, GST)
        a(f"s_lshl_b32 s73, s{S_WAVE}, 4"); a(f"v_lshlrev_b32 v{T+1}, 2, v{V_G}"); a(f"v_add_u32 v{T+1}, s73, v{T+1}")
        self.colpos(CPOS, T + 1, T)
        a(f"v_mul_u32_u24 v{T}, {GST}, v{V_N}"); a(f"v_add_u32 v{CPOS}, v{CPOS}, v{T}")
        a(f"s_lshl_b32 s73, s{S_WAVE}, 6"); a(f"v_and_b32 v{AWR}, 60, v{V_L}"); a(f"v_add_u32 v{AWR}, s73, v{AWR}")
        a(f"v_mul_u32_u24 v{DOFF}, 3456, v{V_G}"); a(f"v_lshl_add_u32 v{DOFF}, v{V_N}, 4, v{DOFF}")
        a("s_lshl_b32 s72, s69, 7"); a(f"s_mul_i32 s73, s{S_WAVE}, 16512"); a("s_add_u32 s72, s72, s73"); a(f"s_add_u32 s72, s72, {WS_D}"); a("s_add_u32 s71, s72, 8192")
        a(f"v_and_b32 v{T}, 7, v{V_N}"); a(f"v_cmp_gt_u32 vcc, 5, v{T}"); a(f"v_cndmask_b32 v{VAL}, 0, 1.0, vcc")
        a(f"v_lshlrev_b32 v{SRD_}, 3, v{V_N}")
        a(f"s_lshl_b32 s73, s{S_WAVE}, 3"); a(f"v_mov_b32 v{SWR}, s73")
        a(f"s_mov_b32 s63, {WS_MOD+1280*4}"); a(f"s_mov_b32 s64, {WS_MOD+2560*4}")
        a(f"s_mov_b32 s75, {WS_VOTE}")
        self.voteld(A4, GPOS)
        def iss3():
            a(f"buffer_load_dword v{GA}, v{ROW}, s[{R_WS}:{R_WS+3}], s63 offen sc1")
            a(f"buffer_load_dword v{SB}, v{ROW}, s[{R_WS}:{R_WS+3}], s63 offen offset:2560 sc1")
            a(f"buffer_load_dword v{CB}, v{ROW}, s[{R_WS}:{R_WS+3}], s64 offen sc1")
        self.poll(iss3, lambda: self.untag([GA, SB, CB], V_T16, T, 0xffff), "PG", hole="F")
        self.stamp(3)
        if fd == 1: downloads(0, T + 1)
        self.side(A4, 70)
        for i in range(4): a(f"s_add_u32 s{65+i}, s70, {WS_A+16384*i}")
        a(f"v_add_f32 v{CB}, 1.0, v{CB}"); bfr(a, CB, CB)
        def colred(acc, Z):
            a(f"ds_read_b128 v[{D1}:{D1+3}], v{CPOS} offset:{acc}"); a(f"ds_read_b128 v[{D2}:{D2+3}], v{CPOS} offset:{acc+32}")
            yield
            for D, R in ((D1, B), (D2, B + 2)):
                for j in range(2): a(f"v_add_f32_dpp v{R+j}, v{D+j}, v{D+j} row_ror:8 row_mask:0xf bank_mask:0x3")
            for D, R in ((D1, B), (D2, B + 2)):
                for j in range(2): a(f"v_add_f32_dpp v{R+j}, v{D+2+j}, v{D+2+j} row_ror:8 row_mask:0xf bank_mask:0xc")
            yield
            for R, z in ((B, Z), (B + 2, Z + 1)): a(f"v_add_f32_dpp v{z}, v{R}, v{R} row_shl:4 row_mask:0xf bank_mask:0x5")
            yield
            for R, z in ((B, Z), (B + 2, Z + 1)): a(f"v_add_f32_dpp v{z}, v{R+1}, v{R+1} row_shr:4 row_mask:0xf bank_mask:0xa")
            for md in ("quad_perm:[1,0,3,2]", "quad_perm:[2,3,0,1]"):
                yield
                for z in (Z, Z + 1): a(f"v_add_f32_dpp v{z}, v{z}, v{z} {md} row_mask:0xf bank_mask:0xf")
        for src, acc in ((CB, L_ACC1), (SB, L_ACC2)):
            a(f"v_cvt_pk_bf16_f32 v{X}, v{src}, v{src}")
            self.gemv(X, P, B, [(D1, WB), (D2, WB + 20)], 5)
            self.fold_col(D1, D2, Y)
            self.putpart(ADD, Y, acc)
        self.hole("F", True)
        a("s_waitcnt lgkmcnt(0)"); a("s_barrier")
        C1, C2 = B + 4, B + 6
        l = a.label("FC")
        a(f"s_cmp_ge_u32 s{S_WAVE}, 4"); a(f"s_cbranch_scc1 {l}")
        for acc, Z in ((L_ACC1, T), (L_ACC2, T + 2)):
            for i, _ in enumerate(colred(acc, Z)):
                if i == 0: a("s_waitcnt lgkmcnt(0)")
        K1G, K1U, K2G, K2U = SB, G1, V_G, V_N
        a(f"v_mov_b32 v{K1G}, v{T}"); a(f"v_mov_b32 v{K1U}, v{T+1}"); a(f"v_mov_b32 v{K2G}, v{T+2}"); a(f"v_mov_b32 v{K2U}, v{T+3}")
        a(f"{l}:")
        if fd == 2: downloads(self.opt.get("td", 0), T + 1)
        self.stamp(7)
        NP = 16 if self.opt.get("w2") else 8
        if NP == 16: a(f"v_add_u32 v{T+1}, 0x10000, v{ROW}")
        def iss4():
            for i in range(NP):
                a(f"buffer_load_dword v{B+i}, v{ROW if i < 8 else T+1}, s[{R_WS}:{R_WS+3}], s{65+((i>>1)&3)} offen offset:{2560*(i&1)} sc1")
        self.poll(iss4, lambda: self.untag(list(range(B, B + NP)), V_T10, T, 0x3ff), "PA", hole="F")
        self.stamp(4)
        m, v, r, u, w = T, T + 1, T + 2, T + 3, T + 4
        self.x2calc(ROW, GA, XO, A4, B)
        a(f"v_subrev_f32 v{m}, s100, v{A4}")
        a(f"v_mul_f32 v{X}, v{m}, v{CB}"); a(f"v_cvt_pk_bf16_f32 v{X}, v{X}, v{X}")
        a(f"v_mul_f32 v{m}, v{m}, v{VAL}")
        self.gemv(X, P, B, [(D1, WB), (D2, WB + 20)], 5)
        a(f"v_mul_f32 v{v}, v{m}, v{m}")
        a(f"v_permlane32_swap_b32 v{m}, v{v}"); a(f"v_add_f32 v{m}, v{m}, v{v}")
        row_red(a, m)
        a(f"v_mov_b32 v{v}, v{m}"); a(f"v_permlane16_swap_b32 v{v}, v{m}"); a(f"v_add_f32 v{m}, v{m}, v{v}")
        self.fold_col(D1, D2, Y)
        self.setexec(1, 1)
        a(f"v_lshrrev_b32 v{v}, 3, v{V_L}"); a(f"v_add_u32 v{v}, v{v}, v{SWR}")
        a(f"ds_write_b32 v{v}, v{m} offset:{L_ST}")
        self.allexec()
        self.putpart(ADD, Y, L_ACC0)
        self.stamp(8)
        a("s_waitcnt lgkmcnt(0)"); a("s_barrier")
        a(f"s_cmp_ge_u32 s{S_WAVE}, 10"); a("s_cbranch_scc1 L_end")
        self.stamp(1)
        l = a.label("FA")
        a(f"s_cmp_ge_u32 s{S_WAVE}, 4"); a(f"s_cbranch_scc1 {l}")
        a(f"ds_read_b64 v[{m}:{v}], v{SRD_} offset:{L_ST}")
        Z = A4
        cr = colred(L_ACC0, Z); next(cr)
        a("s_waitcnt lgkmcnt(2)")
        mds = ("quad_perm:[1,0,3,2]", "quad_perm:[2,3,0,1]", "row_half_mirror", "row_mirror")
        st = []
        for md in mds: st.append([f"v_add_f32_dpp v{q}, v{q}, v{q} {md} row_mask:0xf bank_mask:0xf" for q in (m, v)])
        st.append([f"v_mul_f32 v{m}, {fh(1.0/640)}, v{m}", f"v_mul_f32 v{v}, {fh(1.0/640)}, v{v}", f"v_fma_f32 v{v}, -v{m}, v{m}, v{v}",
                   f"v_add_f32 v{m}, s100, v{m}", f"v_max_f32 v{v}, 0, v{v}", f"v_cvt_pk_bf16_f32 v{m}, 0, v{m}", f"v_cvt_pk_bf16_f32 v{v}, 0, v{v}"])
        st.append([f"v_add_f32 v{v}, {fh(1e-5)}, v{v}", f"v_sub_f32 v{m}, s100, v{m}", f"v_cvt_pk_bf16_f32 v{v}, 0, v{v}", f"v_sqrt_f32 v{v}, v{v}"])
        st.append([f"v_cvt_pk_bf16_f32 v{v}, 0, v{v}", f"v_rcp_f32 v{r}, v{v}"])
        for x in st[0] + st[1]: a(x)
        a("s_waitcnt lgkmcnt(0)")
        for grp in st[2:]:
            next(cr, None)
            for x in grp: a(x)
        for _ in cr: pass
        a(f"v_fmac_f32 v{Z}, v{m}, v{K1G}"); a(f"v_fmac_f32 v{Z+1}, v{m}, v{K1U}")
        a(f"v_fma_f32 v{Z}, v{Z}, v{r}, v{K2G}"); a(f"v_fma_f32 v{Z+1}, v{Z+1}, v{r}, v{K2U}")
        bfr(a, Z, Z); bfr(a, Z + 1, Z + 1)
        gelu(a, X, Z, T + 2, T + 3, T + 4); bfr(a, X, X)
        a(f"v_mul_f32 v{X}, v{X}, v{Z+1}"); a(f"v_cvt_pk_bf16_f32 v{X}, v{X}, v{X}")
        a(f"ds_write_b32 v{AWR}, v{X} offset:{L_ACT}")
        self.hole("F", True)
        a("s_waitcnt lgkmcnt(0)")
        a(f"{l}:")
        a("s_barrier")
        self.stamp(5)
        a(f"ds_read_b32 v{X}, v{GPOS} offset:{L_ACT}")
        a("s_waitcnt lgkmcnt(0)")
        if self.opt.get("fs"): self.stamp(9)
        self.gemv(X, P, B, [(D1, WA)], 8)
        for r_ in range(4): a(f"v_permlane32_swap_b32 v{D1+r_}, v{D2+r_}")
        for r_ in range(4): a(f"v_add_f32_dpp v{D1+r_}, v{D2+r_}, v{D1+r_} row_ror:8 row_mask:0xf bank_mask:0xf")
        for r_ in range(4): a(f"v_bfi_b32 v{D1+r_}, s{S_M10}, v{V_T10}, v{D1+r_}")
        if self.opt.get("fs"): a(f"v_readfirstlane_b32 s79, v{D1+3}"); self.stamp(2)
        self.setexec(0x00ff00ff, 0)
        a(f"buffer_store_dwordx4 v[{D1}:{D1+3}], v{DOFF}, s[{R_WS}:{R_WS+3}], s72 offen sc1")
        a(f"buffer_store_dwordx4 v[{D1}:{D1+3}], v{DOFF}, s[{R_WS}:{R_WS+3}], s71 offen sc1")
        self.allexec()
        if self.stamps:
            a(f"s_cmp_lg_u32 s{S_WAVE}, {self.opt.get('sw', 0)}"); a("s_cbranch_scc1 L_end")
            self.stamp(6); self.flush_stamps(10, role='F')
        a("s_endpgm")

    def role_f2(self):
        a = self.a
        ROW, VO, X, B, D1, D2, Y, T, XO, ADD, CPOS, UOFF, P = self.ROW, self.VO, self.X, self.B, self.D1, self.D2, self.Y, self.T, self.XO, self.ADD, self.CPOS, self.UOFF, self.P
        WB = 64
        tf = self.opt.get("tf", 3); td = self.opt.get("td", 6)
        GST = 528
        a("; GRP F")
        self.hole("F")
        a("L_f:")
        a(f"s_sub_u32 s69, s2, {NM}")
        fsz = 0 if self.opt.get("xf") else 640 * 1728 * 2
        a(f"s_cmp_ge_u32 s{S_WAVE}, 10"); a("s_cbranch_scc1 L_fd")
        srd(a, R_C, S_WG, fsz); srd(a, R_E, S_WU, fsz)
        a(f"v_bfe_u32 v{T}, v{V_L}, 3, 1"); a(f"v_lshl_add_u32 v{T}, v{T}, 5, v{V_G}"); a(f"v_mul_u32_u24 v{VO}, 3456, v{T}")
        a(f"v_and_b32 v{T}, 7, v{V_L}"); a(f"v_lshl_add_u32 v{VO}, v{T}, 4, v{VO}")
        a(f"s_mul_i32 s62, s{S_WAVE}, {64*3456}"); a("s_lshl_b32 s63, s69, 7"); a("s_add_u32 s62, s62, s63")
        a(f"s_lshl_b32 s73, s{S_WAVE}, 6"); a(f"v_lshl_add_u32 v{ROW}, v{V_N}, 2, v{V_G}"); a(f"v_add_u32 v{ROW}, s73, v{ROW}")
        a(f"v_lshlrev_b32 v{T}, 1, v{ROW}"); a(f"v_lshlrev_b32 v{ROW}, 2, v{ROW}")
        a(f"buffer_load_ushort v{XO}, v{T}, s[{R_D}:{R_D+3}], 0 offen")
        for t in range(8):
            if t: a(f"s_add_u32 s62, s62, {4*3456}")
            for h, sr in enumerate((R_C, R_E)):
                a(f"s_waitcnt vmcnt({tf-1})")
                a(f"buffer_load_dwordx4 v[{WB+32*h+4*t}:{WB+32*h+4*t+3}], v{VO}, s[{sr}:{sr+3}], s62 offen nt")
                if 2 * t + h == self.opt.get("fb", 15): a("s_barrier")
        GA, SB, CB, A4 = T + 5, T + 6, T + 7, T + 8
        GPOS, PAD, SRD_, SWR = 52, 53, 54, 55
        AWR, G1 = VO, 13
        a(f"v_lshlrev_b32 v{GPOS}, 2, v{V_L}")
        self.wraddr(ADD, GST)
        a(f"s_lshl_b32 s73, s{S_WAVE}, 4"); a(f"v_lshlrev_b32 v{T+1}, 2, v{V_G}"); a(f"v_add_u32 v{T+1}, s73, v{T+1}")
        self.colpos(CPOS, T + 1, T)
        a(f"v_mul_u32_u24 v{T}, {GST}, v{V_N}"); a(f"v_add_u32 v{CPOS}, v{CPOS}, v{T}")
        a(f"s_lshl_b32 s73, s{S_WAVE}, 6"); a(f"v_and_b32 v{AWR}, 60, v{V_L}"); a(f"v_add_u32 v{AWR}, s73, v{AWR}")
        a(f"v_and_b32 v{T}, 1, v{V_G}"); a(f"v_mul_u32_u24 v{PAD}, 2560, v{T}"); a(f"v_lshrrev_b32 v{T}, 1, v{V_G}"); a(f"v_lshl_add_u32 v{PAD}, v{T}, 14, v{PAD}")
        a(f"v_lshl_add_u32 v{PAD}, v{V_N}, 4, v{PAD}")
        a(f"v_lshlrev_b32 v{SRD_}, 3, v{V_N}")
        a(f"s_lshl_b32 s73, s{S_WAVE}, 3"); a(f"v_lshrrev_b32 v{SWR}, 3, v{V_L}"); a(f"v_add_u32 v{SWR}, s73, v{SWR}")
        a(f"s_mov_b32 s63, {WS_MOD+1280*4}"); a(f"s_mov_b32 s64, {WS_MOD+2560*4}")
        a(f"s_mov_b32 s75, {WS_VOTE}")
        self.voteld(A4, GPOS)
        def iss3():
            a(f"buffer_load_dword v{GA}, v{ROW}, s[{R_WS}:{R_WS+3}], s63 offen sc1")
            a(f"buffer_load_dword v{SB}, v{ROW}, s[{R_WS}:{R_WS+3}], s63 offen offset:2560 sc1")
            a(f"buffer_load_dword v{CB}, v{ROW}, s[{R_WS}:{R_WS+3}], s64 offen sc1")
        self.poll(iss3, lambda: self.untag([GA, SB, CB], V_T16, T, 0xffff), "PG", hole="F")
        self.stamp(3)
        self.side(A4, 70)
        NJ = 4 if self.opt.get("w2") else 2
        a(f"s_lshl_b32 s73, s{S_WAVE}, 8"); a("s_add_u32 s70, s70, s73")
        for i in range(NJ): a(f"s_add_u32 s{65+i}, s70, {WS_A+32768*i}")
        a(f"v_add_f32 v{CB}, 1.0, v{CB}"); bfr(a, CB, CB)
        a(f"v_lshlrev_b32 v{XO}, 16, v{XO}")
        def colred(acc, Z):
            a(f"ds_read_b128 v[{D1}:{D1+3}], v{CPOS} offset:{acc}"); a(f"ds_read_b128 v[{D2}:{D2+3}], v{CPOS} offset:{acc+32}")
            yield
            for D, R in ((D1, B), (D2, B + 2)):
                for j in range(2): a(f"v_add_f32_dpp v{R+j}, v{D+j}, v{D+j} row_ror:8 row_mask:0xf bank_mask:0x3")
            for D, R in ((D1, B), (D2, B + 2)):
                for j in range(2): a(f"v_add_f32_dpp v{R+j}, v{D+2+j}, v{D+2+j} row_ror:8 row_mask:0xf bank_mask:0xc")
            yield
            for R, z in ((B, Z), (B + 2, Z + 1)): a(f"v_add_f32_dpp v{z}, v{R}, v{R} row_shl:4 row_mask:0xf bank_mask:0x5")
            yield
            for R, z in ((B, Z), (B + 2, Z + 1)): a(f"v_add_f32_dpp v{z}, v{R+1}, v{R+1} row_shr:4 row_mask:0xf bank_mask:0xa")
            for md in ("quad_perm:[1,0,3,2]", "quad_perm:[2,3,0,1]"):
                yield
                for z in (Z, Z + 1): a(f"v_add_f32_dpp v{z}, v{z}, v{z} {md} row_mask:0xf bank_mask:0xf")
        a(f"v_cvt_pk_bf16_f32 v{X}, v{CB}, v{CB}"); a(f"v_add_u32 v{T}, {L_ACC1}, v{ADD}"); a("s_mov_b32 s73, 0")
        a("L_fp:")
        self.gemv(X, P, B, [(D1, WB), (D2, WB + 32)], 8)
        self.fold_col(D1, D2, Y)
        self.putpart(T, Y, 0)
        a(f"v_cvt_pk_bf16_f32 v{X}, v{SB}, v{SB}"); a(f"v_add_u32 v{T}, {L_ACC2}, v{ADD}")
        a("s_add_u32 s73, s73, 1"); a("s_cmp_lt_u32 s73, 2"); a("s_cbranch_scc1 L_fp")
        self.hole("F", True)
        a("s_waitcnt lgkmcnt(0)"); a("s_barrier")
        l = a.label("FC")
        a(f"s_cmp_ge_u32 s{S_WAVE}, 4"); a(f"s_cbranch_scc1 {l}")
        for acc, Z in ((L_ACC1, T), (L_ACC2, T + 2)):
            for i, _ in enumerate(colred(acc, Z)):
                if i == 0: a("s_waitcnt lgkmcnt(0)")
        K1G, K1U, K2G, K2U = 56, 57, 58, 59
        a(f"v_mov_b32 v{K1G}, v{T}"); a(f"v_mov_b32 v{K1U}, v{T+1}"); a(f"v_mov_b32 v{K2G}, v{T+2}"); a(f"v_mov_b32 v{K2U}, v{T+3}")
        a(f"{l}:")
        self.stamp(7)
        def iss4():
            for i in range(NJ):
                a(f"buffer_load_dwordx4 v[{B+4*i}:{B+4*i+3}], v{PAD}, s[{R_WS}:{R_WS+3}], s{65+i} offen sc1")
        self.poll(iss4, lambda: self.untag(list(range(B, B + 4 * NJ)), V_T10, T, 0x3ff), "PA", hole="F")
        self.stamp(4)
        m, v, r, u, w = T, T + 1, T + 2, T + 3, T + 4
        if NJ == 4:
            for i in range(0, 8, 2): a(f"v_pk_add_f32 v[{B+i}:{B+i+1}], v[{B+i}:{B+i+1}], v[{B+8+i}:{B+9+i}]")
        for i in (0, 2): a(f"v_pk_add_f32 v[{B+i}:{B+i+1}], v[{B+i}:{B+i+1}], v[{B+4+i}:{B+5+i}]")
        a(f"v_permlane32_swap_b32 v{B}, v{B+2}"); a(f"v_permlane32_swap_b32 v{B+1}, v{B+3}")
        a(f"v_pk_add_f32 v[{B}:{B+1}], v[{B}:{B+1}], v[{B+2}:{B+3}]")
        a(f"v_permlane16_swap_b32 v{B}, v{B+1}")
        a(f"v_add_f32 v{A4}, v{B}, v{B+1}")
        bfr(a, A4, A4)
        a(f"v_mul_f32 v{A4}, v{GA}, v{A4}"); bfr(a, A4, A4)
        a(f"v_add_f32 v{A4}, v{XO}, v{A4}"); bfr(a, A4, A4)
        a(f"v_subrev_f32 v{m}, s100, v{A4}")
        a(f"v_mul_f32 v{X}, v{m}, v{CB}"); a(f"v_cvt_pk_bf16_f32 v{X}, v{X}, v{X}")
        st = [f"v_mul_f32 v{v}, v{m}, v{m}", f"v_permlane32_swap_b32 v{m}, v{v}", f"v_add_f32 v{m}, v{m}, v{v}"]
        st += [f"v_add_f32_dpp v{m}, v{m}, v{m} {md} row_mask:0xf bank_mask:0xf" for md in ("quad_perm:[1,0,3,2]", "quad_perm:[2,3,0,1]", "row_half_mirror", "row_mirror")]
        st += [f"v_mov_b32 v{v}, v{m}"]
        self.gemv(X, P, B, [(D1, WB), (D2, WB + 32)], 8, pre=lambda t: a(st[t]))
        a(f"v_permlane16_swap_b32 v{v}, v{m}"); a(f"v_add_f32 v{m}, v{m}, v{v}")
        self.setexec(1, 1)
        a(f"ds_write_b32 v{SWR}, v{m} offset:{L_ST}")
        self.allexec()
        self.fold_col(D1, D2, Y)
        self.putpart(ADD, Y, L_ACC0)
        self.stamp(8)
        a("s_waitcnt lgkmcnt(0)"); a("s_barrier")
        self.stamp(1)
        a(f"s_cmp_ge_u32 s{S_WAVE}, 4"); a(f"s_cbranch_scc1 {'L_fpw' if self.stamps and self.opt.get('pw') else 'L_end'}")
        a(f"ds_read_b64 v[{m}:{v}], v{SRD_} offset:{L_ST}")
        Z = A4
        cr = colred(L_ACC0, Z); next(cr)
        a("s_waitcnt lgkmcnt(2)")
        mds = ("quad_perm:[1,0,3,2]", "quad_perm:[2,3,0,1]", "row_half_mirror", "row_mirror")
        st = []
        for md in mds: st.append([f"v_add_f32_dpp v{q}, v{q}, v{q} {md} row_mask:0xf bank_mask:0xf" for q in (m, v)])
        st.append([f"v_mul_f32 v{m}, {fh(1.0/640)}, v{m}", f"v_mul_f32 v{v}, {fh(1.0/640)}, v{v}", f"v_fma_f32 v{v}, -v{m}, v{m}, v{v}",
                   f"v_add_f32 v{m}, s100, v{m}", f"v_max_f32 v{v}, 0, v{v}", f"v_cvt_pk_bf16_f32 v{m}, 0, v{m}", f"v_cvt_pk_bf16_f32 v{v}, 0, v{v}"])
        st.append([f"v_add_f32 v{v}, {fh(1e-5)}, v{v}", f"v_sub_f32 v{m}, s100, v{m}", f"v_cvt_pk_bf16_f32 v{v}, 0, v{v}", f"v_sqrt_f32 v{v}, v{v}"])
        st.append([f"v_cvt_pk_bf16_f32 v{v}, 0, v{v}", f"v_rcp_f32 v{r}, v{v}"])
        for x in st[0] + st[1]: a(x)
        a("s_waitcnt lgkmcnt(0)")
        for grp in st[2:]:
            next(cr, None)
            for x in grp: a(x)
        for _ in cr: pass
        a(f"v_fmac_f32 v{Z}, v{m}, v{K1G}"); a(f"v_fmac_f32 v{Z+1}, v{m}, v{K1U}")
        a(f"v_fma_f32 v{Z}, v{Z}, v{r}, v{K2G}"); a(f"v_fma_f32 v{Z+1}, v{Z+1}, v{r}, v{K2U}")
        bfr(a, Z, Z); bfr(a, Z + 1, Z + 1)
        gelu(a, X, Z, T + 2, T + 3, T + 4); bfr(a, X, X)
        a(f"v_mul_f32 v{X}, v{X}, v{Z+1}"); a(f"v_cvt_pk_bf16_f32 v{X}, v{X}, v{X}")
        a(f"ds_write_b32 v{AWR}, v{X} offset:{L_ACT}")
        a("s_waitcnt lgkmcnt(0)")
        a("s_barrier")
        if self.stamps:
            a("L_fpw:")
            self.pw([7, 4, 8, 1, -1])
            a(f"s_cmp_lg_u32 s{S_WAVE}, 0"); a("s_cbranch_scc1 L_end")
            self.flush_stamps(5, role='F'); self.flush_stamps(10, 7, role='F')
        a("s_endpgm")
        self.hole("F")
        a("L_fd:")
        DOFF = 53
        a(f"s_cmp_lt_u32 s{S_WAVE}, 15"); a(f"s_cselect_b32 s67, {fsz}, 0")
        srd(a, R_A, S_WD, "s67")
        self.wraddr(ADD, GST)
        a(f"v_mov_b32 v{Y}, 0"); a(f"v_mov_b32 v{Y+1}, 0")
        self.putpart(ADD, Y, L_ACC1); self.putpart(ADD, Y, L_ACC2)
        a(f"s_lshl_b32 s73, s{S_WAVE}, 3"); a(f"v_mov_b32 v{T}, s73"); a(f"ds_write_b64 v{T}, v[{Y}:{Y+1}] offset:{L_ST}")
        a(f"s_sub_u32 s74, s{S_WAVE}, 10")
        self.colvoff(VO, 8 * 1280, T)
        a(f"s_mul_i32 s62, s69, {64*1280}"); a(f"s_lshl_b32 s63, s74, 8"); a("s_add_u32 s62, s62, s63")
        a(f"v_lshlrev_b32 v{GPOS}, 2, v{V_L}")
        a(f"v_and_b32 v{T}, 1, v{V_G}"); a(f"v_mul_u32_u24 v{DOFF}, 3456, v{T}"); a(f"v_lshrrev_b32 v{T}, 1, v{V_G}"); a(f"v_mul_u32_u24 v{T}, 16512, v{T}")
        a(f"v_add_u32 v{DOFF}, v{DOFF}, v{T}"); a(f"v_lshl_add_u32 v{DOFF}, v{V_N}, 4, v{DOFF}")
        a("s_lshl_b32 s72, s69, 7"); a(f"s_mul_i32 s73, s74, {2*16512}"); a("s_add_u32 s72, s72, s73"); a(f"s_add_u32 s72, s72, {WS_D}"); a("s_add_u32 s71, s72, 8192")
        a("s_barrier")
        for t in range(8):
            if t == 3 or t == 6: a(f"s_add_u32 s62, s62, {3*1280}")
            for h in range(2):
                if 2 * t + h >= td: a(f"s_waitcnt vmcnt({td-1})")
                a(f"buffer_load_dwordx4 v[{WB+32*h+4*t}:{WB+32*h+4*t+3}], v{VO}, s[{R_A}:{R_A+3}], s62 offen offset:{1280*(t%3)+128*h} nt")
        a("s_waitcnt lgkmcnt(0)"); a("s_barrier")
        self.putpart(ADD, Y, L_ACC0)
        a("s_waitcnt lgkmcnt(0)")
        a(f"s_cmp_eq_u32 s{S_WAVE}, 15"); a("s_cbranch_scc1 L_end")
        if self.opt.get("fs"): a("s_waitcnt vmcnt(0)"); self.stamp(5)
        a("s_barrier"); a("s_barrier")
        if not self.opt.get("fs"): self.stamp(5)
        a(f"ds_read_b32 v{X}, v{GPOS} offset:{L_ACT}")
        a("s_waitcnt vmcnt(0) lgkmcnt(0)")
        self.gemv(X, P, B, [(D1, WB), (D2, WB + 32)], 8)
        for r_ in range(4): a(f"v_permlane32_swap_b32 v{D1+r_}, v{D2+r_}")
        for r_ in range(4): a(f"v_add_f32_dpp v{D1+r_}, v{D2+r_}, v{D1+r_} row_ror:8 row_mask:0xf bank_mask:0xf")
        for r_ in range(4): a(f"v_bfi_b32 v{D1+r_}, s{S_M10}, v{V_T10}, v{D1+r_}")
        self.setexec(0x00ff00ff, 0x00ff00ff)
        a(f"buffer_store_dwordx4 v[{D1}:{D1+3}], v{DOFF}, s[{R_WS}:{R_WS+3}], s72 offen sc1")
        a(f"buffer_store_dwordx4 v[{D1}:{D1+3}], v{DOFF}, s[{R_WS}:{R_WS+3}], s71 offen sc1")
        self.allexec()
        if self.stamps:
            self.stamp(6)
            self.pw([5, 5, 6, 6, -1])
            a(f"s_cmp_lg_u32 s{S_WAVE}, {self.opt.get('sw', 14)}"); a("s_cbranch_scc1 L_end")
            self.flush_stamps(7, 5, role='F')
        a("s_endpgm")

    def regroup(self, WB):
        for t in range(4):
            for x, y in ((2, 8), (3, 9), (6, 12), (7, 13)): self.a(f"v_swap_b32 v{WB+16*t+x}, v{WB+16*t+y}")

    def sgemv(self, srcs, AR, D, WB, IDX, fill=(), wide=False):
        a = self.a; fill = list(fill)
        def prep(t, ds):
            for src, bm in srcs:
                if wide:
                    for d in ds[::2]: a(f"v_mov_b64_dpp v[{AR+4*t+d}:{AR+4*t+d+1}], v[{src}:{src+1}] row_newbcast:{4*t+d} row_mask:0xf bank_mask:{bm:#x}")
                else:
                    for d in ds: a(f"v_mov_b32_dpp v{AR+4*t+d}, v{src} row_newbcast:{4*t+d} row_mask:0xf bank_mask:{bm:#x}")
        if wide:
            src = srcs[0][0]; assert len(srcs) == 1 and src % 2 == 0
            a(f"v_mov_b32_dpp v{src+1}, v{src} quad_perm:[1,1,3,3] row_mask:0xf bank_mask:0xf")
            if wide == 2:
                wide = False; prep(0, (0, 1)); wide = True; prep(0, (2, 3)); prep(1, (0, 1))
            else:
                for _ in range(2):
                    if fill: a(fill.pop(0))
                prep(0, range(4)); prep(1, (0, 1))
            if fill: a(fill.pop(0))
        else: prep(0, range(4)); prep(1, (0, 1))
        for t in range(4):
            for h in range(2):
                a(f"v_smfmac_f32_16x16x64_bf16 v[{D+4*h}:{D+4*h+3}], v[{AR+4*t}:{AR+4*t+3}], v[{WB+16*t+8*h}:{WB+16*t+8*h+7}], v{IDX}")
                k = 2 * t + h + 3
                if k < 8: prep(k >> 1, (2 * (k & 1), 2 * (k & 1) + 1))
                for _ in range(1 if k < 8 else 2):
                    if fill: a(fill.pop(0))
        for x in fill: a(x)

    def gu_row(self, T):
        a = self.a
        a(f"v_and_b32 v{T}, 1, v{V_G}"); a(f"v_lshrrev_b32 v{T+1}, 1, v{V_G}"); a(f"v_lshl_add_u32 v{T+1}, v{T}, 3, v{T+1}")

    def gu_addr(self, T):
        a = self.a; VO, AD = self.VO, 56
        r0 = 32 if self.opt.get("ne") else 0
        a(f"v_mul_u32_u24 v{VO}, 3456, v{T+1}"); a(f"v_and_b32 v{T}, 7, v{V_N}"); a(f"v_lshl_add_u32 v{VO}, v{T}, 4, v{VO}")
        a(f"s_mul_i32 s62, s{S_WAVE}, {64*3456}"); a("s_lshl_b32 s63, s69, 7"); a("s_add_u32 s62, s62, s63"); a(f"s_add_u32 s62, s62, {(r0+1)*3456}")
        a(f"v_add_u32 v{VO}, s62, v{VO}")
        if self.opt.get("xc", 0) & 2:
            a(f"v_lshlrev_b32 v{VO}, 7, v{V_G}"); a(f"v_lshl_add_u32 v{VO}, v{T}, 4, v{VO}")
            a("s_mul_i32 s62, s69, 10"); a(f"s_add_u32 s62, s62, s{S_WAVE}"); a("s_lshl_b32 s62, s62, 13"); a("s_add_u32 s62, s62, 256"); a(f"v_add_u32 v{VO}, s62, v{VO}")
        a(f"v_mov_b32 v{AD}, s{S_WG}"); a(f"v_mov_b32 v{AD+1}, s{S_WG+1}"); a(f"v_mov_b32 v{T}, s{S_WU}"); a(f"v_mov_b32 v{T+1}, s{S_WU+1}")
        a(f"v_cmp_lt_u32 vcc, 7, v{V_N}"); a(f"v_cndmask_b32 v{AD}, v{AD}, v{T}, vcc"); a(f"v_cndmask_b32 v{AD+1}, v{AD+1}, v{T+1}, vcc")
        a(f"v_add_co_u32 v{AD}, vcc, v{AD}, v{VO}"); a(f"v_addc_co_u32 v{AD+1}, vcc, 0, v{AD+1}, vcc")
        a(f"s_mov_b32 s64, {4*3456}"); a("s_mov_b32 s65, 0"); a(f"s_mov_b32 s66, {12*3456}"); a("s_mov_b32 s67, 0")
        if self.opt.get("xc", 0) & 2: a(f"s_mov_b32 s64, 1024"); a(f"s_mov_b32 s66, 1024")

    def gu_ld(self, j, thr):
        a = self.a; AD, WB = 56, 64
        ne = self.opt.get("ne", 0); tf = self.opt.get("tf", 3)
        if ne and j == 8:
            if self.opt.get("xc", 0) & 2: a("s_mov_b32 s62, 1024"); a("s_mov_b32 s63, 0")
            else: a(f"s_mov_b32 s62, {-52*3456}"); a("s_mov_b32 s63, -1")
            a(f"v_lshl_add_u64 v[{AD}:{AD+1}], v[{AD}:{AD+1}], 0, s[62:63]")
        elif j and j % 2 == 0: a(f"v_lshl_add_u64 v[{AD}:{AD+1}], v[{AD}:{AD+1}], 0, s[{64 if j % 4 else 66}:{65 if j % 4 else 67}]")
        if isinstance(tf, list): tf = tf[j]
        if thr: a(f"s_waitcnt vmcnt({tf-1})")
        r = WB + 4 * ((j + 8) % 16 if ne else j)
        if self.opt.get("xf"): return
        a(f"global_load_dwordx4 v[{r}:{r+3}], v[{AD}:{AD+1}], off offset:{(1 if j & 1 else -1) * (256 if self.opt.get('xc', 0) & 2 else 3456)} nt")

    def pace(self, n, t):
        for _ in range(n): self.a(f"ds_read_b32 v{t}, v{t} offset:{L_FLAG}"); self.a("s_waitcnt lgkmcnt(0)")

    def f3_sp(self, sp, B, D, WB, IDX, PAD, SWR, X):
        a = self.a; dp = "row_mask:0xf bank_mask:0xf"
        GA, CB, XO, ADD, m, v, A4, t = 4, 5, 6, 7, 56, 57, 60, 0
        sets = [B, B + 16]; ms = [60, 62, 72, 78]
        def ld(S, i): a(f"buffer_load_dwordx4 v[{S+4*i}:{S+4*i+3}], v{PAD}, s[{R_WS}:{R_WS+3}], s{65+i} offen sc1")
        s0 = self.opt.get("sq", [0, 0])
        def gap():
            if s0[0]:
                a(f"s_lshl_b32 s76, s{S_WAVE}, 7")
                for j in range(s0[0]): a(f"s_load_dword s77, s[{(S_X, S_C)[j]}:{(S_X, S_C)[j]+1}], s76"); a("s_waitcnt lgkmcnt(0)")
        def chk(k, S, n):
            a(f"s_waitcnt vmcnt({n})")
            for i in range(4): a(f"v_and_b32 v{t+i}, s{S_M10}, v{S+4*i}")
            for i, q in enumerate(ms): a(f"v_cmp_ne_u32 s[{q}:{q+1}], v{t+i}, v{V_T10}")
            a(f"s_or_b64 vcc, s[{ms[0]}:{ms[0]+1}], s[{ms[1]}:{ms[1]+1}]")
            for q in ms[2:]: a(f"s_or_b64 vcc, vcc, s[{q}:{q+1}]")
            a(f"s_cbranch_scc0 L_sp{k}")
        def re(S):
            for i, q in enumerate(ms):
                if sp == 4:
                    l = a.label("SK")
                    a(f"s_quadmask_b64 s[76:77], s[{q}:{q+1}]"); a(f"s_cbranch_scc0 {l}"); a("s_wqm_b32 s76, s76")
                    a("s_bitreplicate_b64_b32 s[76:77], s76"); a("s_bitreplicate_b64_b32 exec, s76")
                    ld(S, i); a(f"{l}:")
                    continue
                if sp in (1, 5): a(f"s_cmp_lg_u64 s[{q}:{q+1}], 0"); a("s_cselect_b64 exec, -1, 1")
                else:
                    a(f"s_quadmask_b64 s[76:77], s[{q}:{q+1}]"); a("s_wqm_b32 s76, s76")
                    a("s_bitreplicate_b64_b32 s[76:77], s76"); a("s_max_u32 s76, s76, 1"); a("s_bitreplicate_b64_b32 exec, s76")
                ld(S, i)
            self.allexec()
        if sp == 4: sets = sets[:1]
        a(f"s_mov_b32 s{S_CNT}, 0")
        for i in range(4): ld(sets[0], i)
        if sp in (3, 5):
            chk(0, sets[0], 0)
            for i in range(0, 16, 2): a(f"v_mov_b64 v[{sets[1]+i}:{sets[1]+i+1}], v[{sets[0]+i}:{sets[0]+i+1}]")
            re(sets[0]); gap(); re(sets[1])
        elif sp < 3:
            gap()
            for i in range(4): ld(sets[1], i)
        a("L_sp:")
        for k, S in enumerate(sets):
            chk(k, S, 4 * (len(sets) - 1)); re(S)
        a(f"s_add_u32 s{S_CNT}, s{S_CNT}, 1"); a(f"s_cmp_lt_u32 s{S_CNT}, {SPIN}"); a("s_cbranch_scc1 L_sp")
        a("s_branch L_sp0")
        for k, S in enumerate(sets):
            self.hole("F")
            a(f"L_sp{k}:")
            self.stamp(4)
            for i in range(4): a(f"v_xor_b32 v{S+4*i}, v{S+4*i}, v{V_T10}")
            for i in range(8): a(f"v_add_f32 v{S+i}, v{S+i}, v{S+8+i}")
            for i in (0, 2, 1, 3): a(f"v_add_f32 v{S+i}, v{S+i}, v{S+4+i}")
            a(f"v_permlane32_swap_b32 v{S}, v{S+2}"); a(f"v_permlane32_swap_b32 v{S+1}, v{S+3}")
            a(f"v_add_f32 v{S}, v{S}, v{S+2}"); a(f"v_add_f32 v{S+1}, v{S+1}, v{S+3}")
            a(f"v_permlane16_swap_b32 v{S}, v{S+1}")
            a(f"v_add_f32 v{A4}, v{S}, v{S+1}")
            bfr(a, A4, A4)
            a(f"v_mul_f32 v{A4}, v{GA}, v{A4}"); bfr(a, A4, A4)
            a(f"v_add_f32 v{A4}, v{XO}, v{A4}"); bfr(a, A4, A4)
            a(f"v_subrev_f32 v{m}, s100, v{A4}")
            a(f"v_mul_f32 v{X}, v{m}, v{CB}"); bfr(a, X, X)
            a(f"v_mul_f32 v{v}, v{m}, v{m}")
            st = [f"v_permlane32_swap_b32 v{m}, v{v}", f"v_add_f32 v{m}, v{m}, v{v}"]
            st += [f"v_add_f32_dpp v{m}, v{m}, v{m} {md} {dp}" for md in ("quad_perm:[1,0,3,2]", "quad_perm:[2,3,0,1]", "row_half_mirror", "row_mirror")]
            st += [f"v_mov_b32 v{v}, v{m}", "s_mov_b32 s76, 1", f"v_permlane16_swap_b32 v{v}, v{m}", "s_mov_b32 s77, 1", f"v_add_f32 v{m}, v{m}, v{v}"]
            self.sgemv([(X, 0xf)], S, D, WB, IDX, st)
            a("s_mov_b64 exec, s[76:77]")
            a(f"ds_write_b32 v{SWR}, v{m} offset:{L_ST}")
            a("s_mov_b64 exec, 0xffff")
            for h in range(2): a(f"ds_write_b128 v{ADD}, v[{D+4*h}:{D+4*h+3}] offset:{L_ACC0+16*h}")
            if k < len(sets) - 1: a("s_branch L_spx")
        a("L_spx:")

    def role_f3(self):
        a = self.a
        ROW, VO, X, B, T, XO, ADD = self.ROW, self.VO, self.X, self.B, self.T, self.XO, self.ADD
        WB, IDX, D, AD, PAD, SWR, GPOS = 64, 13, 48, 56, 58, 59, 60
        tf = self.opt.get("tf", 3); td = self.opt.get("td", 6)
        GST = 512
        dp = "row_mask:0xf bank_mask:0xf"
        a("; GRP F")
        self.hole("F")
        a("L_f:")
        a(f"s_sub_u32 s69, s2, {NM}")
        a(f"v_and_b32 v{T}, 3, v{V_N}"); a(f"v_mul_u32_u24 v{IDX}, 0x5555, v{T}")
        self.gu_row(T)
        for i in range(8): a(f"v_mov_b32 v{D+i}, 0")
        a(f"s_cmp_ge_u32 s{S_WAVE}, 10"); a("s_cbranch_scc1 L_fd")
        ne = self.opt.get("ne", 0); fw = self.opt.get("fw", 0)
        if not ne: self.gu_addr(T)
        a(f"s_lshl_b32 s73, s{S_WAVE}, 6"); a(f"v_lshl_add_u32 v{ROW}, v{V_N}, 2, v{V_G}"); a(f"v_add_u32 v{ROW}, s73, v{ROW}")
        a(f"v_lshlrev_b32 v{T}, 1, v{ROW}"); a(f"v_lshlrev_b32 v{ROW}, 2, v{ROW}")
        a(f"buffer_load_ushort v{XO}, v{T}, s[{R_D}:{R_D+3}], 0 offen")
        for j in range(ne, 16):
            self.gu_ld(j, True)
            if j == self.opt.get("fb", 15):
                if fw: self.stamp(5)
                a("s_barrier")
        GA, SB, CB, A4 = T + 5, T + 6, T + 7, T + 8
        a(f"v_lshlrev_b32 v{GPOS}, 2, v{V_L}")
        a(f"s_lshl_b32 s79, s{S_WAVE}, 9"); a(f"v_lshl_add_u32 v{ADD}, v{V_N}, 5, s79")
        a(f"v_lshrrev_b32 v{T}, 1, v{V_G}"); a(f"v_mul_u32_u24 v{VO}, {L_ACC2-L_ACC1}, v{T}"); a(f"v_add_u32 v{VO}, v{VO}, v{ADD}")
        a(f"v_and_b32 v{T+1}, 1, v{V_G}"); a(f"v_mul_u32_u24 v{PAD}, 2560, v{T+1}"); a(f"v_lshl_add_u32 v{PAD}, v{T}, 14, v{PAD}")
        a(f"v_lshl_add_u32 v{PAD}, v{V_N}, 4, v{PAD}")
        a(f"s_lshl_b32 s73, s{S_WAVE}, 3"); a(f"v_lshrrev_b32 v{SWR}, 3, v{V_L}"); a(f"v_add_u32 v{SWR}, s73, v{SWR}")
        a(f"s_mov_b32 s63, {WS_MOD+1280*4}"); a(f"s_mov_b32 s64, {WS_MOD+2560*4}")
        a(f"s_mov_b32 s75, {WS_VOTE}")
        self.voteld(A4, GPOS)
        gs = self.opt.get("gs", 0)
        def iss3():
            if not gs: a(f"buffer_load_dword v{GA}, v{ROW}, s[{R_WS}:{R_WS+3}], s63 offen sc1")
            a(f"buffer_load_dword v{SB}, v{ROW}, s[{R_WS}:{R_WS+3}], s63 offen offset:2560 sc1")
            a(f"buffer_load_dword v{CB}, v{ROW}, s[{R_WS}:{R_WS+3}], s64 offen sc1")
        self.poll(iss3, lambda: self.untag([SB, CB] if gs else [GA, SB, CB], V_T16, T, 0xffff), "PG", hole="F")
        self.stamp(3)
        if fw and self.stamps: a(f"s_mov_b32 s{S_ST+16}, s{S_CNT}")
        self.side(A4, 70)
        a(f"s_lshl_b32 s73, s{S_WAVE}, 8"); a("s_add_u32 s70, s70, s73")
        if self.opt.get("qa") == 1: a("s_and_b32 s73, s69, 1"); a("s_lshl_b32 s73, s73, 19"); a("s_add_u32 s70, s70, s73")
        for i in range(4): a(f"s_add_u32 s{65+i}, s70, {WS_A+32768*i}")
        a(f"v_add_f32 v{CB}, 1.0, v{CB}"); bfr(a, CB, CB)
        a(f"v_lshlrev_b32 v{XO}, 16, v{XO}")
        self.regroup(WB)
        self.sgemv([(CB, 0x3), (SB, 0xc)], B, D, WB, IDX)
        a(f"v_mov_b32 v{T}, 0"); a(f"v_mov_b32 v{T+1}, 1")
        self.setexec(0xffff, 0xffff)
        for h in range(2): a(f"ds_write_b128 v{VO}, v[{D+4*h}:{D+4*h+3}] offset:{L_ACC1+16*h}")
        pb = self.opt.get("pb", 0)
        if not pb:
            self.setexec(1, 0)
            a(f"ds_add_u32 v{T}, v{T+1} offset:{L_CNT}")
        self.allexec()
        a("s_waitcnt lgkmcnt(0)")
        for i in range(8): a(f"v_mov_b32 v{D+i}, 0")
        la = self.opt.get("la", 0); L_S2 = 640
        if la:
            a(f"v_lshrrev_b32 v{T}, 2, v{V_N}"); a(f"v_mul_u32_u24 v{IDX}, 0x5555, v{T}")
            a(f"v_lshrrev_b32 v{SWR}, 5, v{V_L}"); a(f"v_lshlrev_b32 v{SWR}, 2, v{SWR}")
        if self.opt.get("sp"):
            for d_, s_ in ((4, GA), (5, CB), (6, XO), (7, ADD)): a(f"v_mov_b32 v{d_}, v{s_}")
        if fw: self.stamp(6)
        if pb: a("s_barrier")
        if gs: self.poll(lambda: a(f"buffer_load_dword v{GA}, v{ROW}, s[{R_WS}:{R_WS+3}], s63 offen sc1"), lambda: self.untag([GA], V_T16, T, 0xffff), "PH")
        self.stamp(7)
        lp = self.opt.get("lp")
        if lp:
            l1, l2 = a.label("LP"), a.label("LQ")
            a(f"v_and_b32 v{T}, 1, v{V_N}"); a(f"v_mul_u32_u24 v{T}, 2560, v{T}"); a(f"v_lshrrev_b32 v{T+1}, 1, v{V_N}"); a(f"v_lshl_add_u32 v{T}, v{T+1}, 14, v{T}")
            a(f"s_mov_b32 s{S_CNT}, 0"); a(f"s_mov_b64 exec, {lp[1]:#x}")
            a(f"{l1}:")
            a(f"buffer_load_dword v{T+1}, v{T}, s[{R_WS}:{R_WS+3}], s65 offen sc1")
            a("s_waitcnt vmcnt(0)")
            a(f"v_and_b32 v{T+1}, s{S_M10}, v{T+1}"); a(f"v_cmp_eq_u32 vcc, v{T+1}, v{V_T10}")
            a("s_bcnt1_i32_b64 s73, vcc"); a(f"s_cmp_ge_u32 s73, {lp[0]}"); a(f"s_cbranch_scc1 {l2}")
            a(f"s_add_u32 s{S_CNT}, s{S_CNT}, 1"); a(f"s_cmp_lt_u32 s{S_CNT}, {SPIN}"); a(f"s_cbranch_scc1 {l1}")
            a(f"{l2}:")
            self.allexec()
            self.stamp(7)
        sp = self.opt.get("sp", 0)
        if sp:
            assert not la
            self.f3_sp(sp, B, D, WB, IDX, PAD, SWR, X)
            T = 0
        else:
            lds4 = [f"buffer_load_dwordx4 v[{B+4*i}:{B+4*i+3}], v{PAD}, s[{R_WS}:{R_WS+3}], s{65+i} offen sc1" for i in range(4)]
            def iss4():
                for x in lds4: a(x)
            if self.opt.get("pp"): self.ppoll(lds4, list(range(B, B + 16, 4)), [60, 62, 72, 78], T, "PA", hole="F")
            else: self.poll(iss4, lambda: self.untag(list(range(B, B + 16, 4)), V_T10, T, 0x3ff), "PA", hole="F")
            self.stamp(4)
            m, v, r, u, w = T, T + 1, T + 2, T + 3, T + 4
            n64 = self.opt.get("n64", 0)
            if n64 & 1: X = 62
            for i in range(8): a(f"v_add_f32 v{B+i}, v{B+i}, v{B+8+i}")
            for i in (0, 2, 1, 3): a(f"v_add_f32 v{B+i}, v{B+i}, v{B+4+i}")
            a(f"v_permlane32_swap_b32 v{B}, v{B+2}"); a(f"v_permlane32_swap_b32 v{B+1}, v{B+3}")
            a(f"v_add_f32 v{B}, v{B}, v{B+2}"); a(f"v_add_f32 v{B+1}, v{B+1}, v{B+3}")
            a(f"v_permlane16_swap_b32 v{B}, v{B+1}")
            a(f"v_add_f32 v{A4}, v{B}, v{B+1}")
            bfr(a, A4, A4)
            a(f"v_mul_f32 v{A4}, v{GA}, v{A4}"); bfr(a, A4, A4)
            a(f"v_add_f32 v{A4}, v{XO}, v{A4}"); bfr(a, A4, A4)
            a(f"v_subrev_f32 v{m}, s100, v{A4}")
            a(f"v_mul_f32 v{X}, v{m}, v{CB}"); bfr(a, X, X)
            a(f"v_mul_f32 v{v}, v{m}, v{m}")
            st = [f"v_permlane32_swap_b32 v{m}, v{v}", f"v_add_f32 v{m}, v{m}, v{v}"]
            st += [f"v_add_f32_dpp v{m}, v{m}, v{m} {md} {dp}" for md in ("quad_perm:[1,0,3,2]", "quad_perm:[2,3,0,1]", "row_half_mirror", "row_mirror")]
            if la:
                st += [f"v_mul_f32 v{m}, {fh(1.0/640)}, v{m}", "s_mov_b32 s76, 0x10001", "s_mov_b32 s77, 0x10001", "s_mov_b64 exec, s[76:77]", f"ds_add_f32 v{SWR}, v{m} offset:{L_S2}", "s_mov_b64 exec, -1"]
                self.sgemv([(X, 0xf)], B, D, WB, IDX, st)
                for h in range(2): a(f"ds_add_f32 v{GPOS}, v{D+4*h} offset:{288*h}")
            else:
                st += [f"v_mov_b32 v{v}, v{m}", "s_mov_b32 s76, 1", f"v_permlane16_swap_b32 v{v}, v{m}", "s_mov_b32 s77, 1", f"v_add_f32 v{m}, v{m}, v{v}"]
                self.sgemv([(X, 0xf)], B, D, WB, IDX, st, wide=n64 & 1)
                a("s_mov_b64 exec, s[76:77]")
                a(f"ds_write_b32 v{SWR}, v{m} offset:{L_ST}")
                a("s_mov_b64 exec, 0xffff")
                for h in range(2): a(f"ds_write_b128 v{ADD}, v[{D+4*h}:{D+4*h+3}] offset:{L_ACC0+16*h}")
        if not fw: self.stamp(8)
        a("s_waitcnt lgkmcnt(0)"); a("s_barrier")
        if self.opt.get("ep", 0) >= 2:
            l = a.label("EP")
            a(f"s_or_b32 s62, s69, s{S_WAVE}"); a("s_cmp_lg_u32 s62, 0"); a(f"s_cbranch_scc1 {l}")
            a(f"v_mov_b32 v{T}, s{S_T}"); a(f"v_mov_b32 v{T+1}, 0")
            self.setexec(1, 0)
            a(f"buffer_store_dword v{T}, v{T+1}, s[{R_WS}:{R_WS+3}], 0 offen" + (" sc1" if self.opt["ep"] == 2 else ""))
            a(f"{l}:")
        if self.stamps:
            self.allexec()
            self.stamp(1)
            self.pw([5, 3, 6, 7, 8] if fw else [7, 4, 8, 1, -1])
            a(f"s_cmp_lg_u32 s{S_WAVE}, 0"); a("s_cbranch_scc1 L_end")
            self.flush_stamps(5, role='F'); self.flush_stamps(10, 7, role='F')
        a("s_endpgm")
        T = self.T; X = self.X
        if self.opt.get("n64", 0) & 2: X = 62
        self.hole("F")
        a("L_fd:")
        DOFF, RD, SRD_, K = 58, 59, 60, 44
        Q = B
        rd = self.opt.get("rd", 0)
        a(f"s_cmp_ge_u32 s{S_WAVE}, {11 if rd else 15}"); a(f"s_cbranch_scc1 {'L_race' if self.opt.get('rv') else 'L_end'}")
        if not rd: srd(a, R_A, S_WD, 0 if self.opt.get("xd") else 640 * 1728 * 2)
        a(f"v_lshlrev_b32 v{SRD_}, 3, v{V_N}")
        if la:
            assert pb
            a(f"v_lshlrev_b32 v{T}, 4, v{V_L}"); a(f"ds_write_b128 v{T}, v[{D}:{D+3}]")
            a(f"v_and_b32 v{T}, 1, v{V_N}"); a(f"v_mul_u32_u24 v{SRD_}, 288, v{T}"); a(f"v_lshl_add_u32 v{SRD_}, v{V_G}, 6, v{SRD_}")
            a(f"v_lshrrev_b32 v{T}, 1, v{V_N}"); a(f"v_lshl_add_u32 v{SRD_}, v{T}, 2, v{SRD_}")
        else: a(f"ds_write_b64 v{SRD_}, v[{D}:{D+1}] offset:{L_ST}"); a(f"ds_write_b32 v{D}, v{D} offset:{L_CNT}")
        if rd:
            a(f"v_lshlrev_b32 v{DOFF}, 2, v{V_L}"); a("s_lshl_b32 s72, s69, 8"); a(f"s_add_u32 s72, s72, {WS_D}"); a("s_add_u32 s73, s72, 8192")
        else:
            a(f"s_sub_u32 s74, s{S_WAVE}, 10")
            a(f"v_mul_u32_u24 v{VO}, 1280, v{T+1}"); a(f"v_lshl_add_u32 v{VO}, v{V_N}, 4, v{VO}")
            a(f"s_mul_i32 s62, s69, {64*1280}"); a(f"s_lshl_b32 s63, s74, 8"); a("s_add_u32 s62, s62, s63")
            a(f"v_lshrrev_b32 v{T}, 3, v{V_N}"); a(f"v_mul_u32_u24 v{DOFF}, 16512, v{T}"); a(f"v_bfe_u32 v{T}, v{V_N}, 2, 1"); a(f"v_mul_u32_u24 v{T}, 3456, v{T}")
            a(f"v_add_u32 v{DOFF}, v{DOFF}, v{T}"); a(f"v_and_b32 v{T}, 3, v{V_N}"); a(f"v_lshl_add_u32 v{DOFF}, v{T}, 4, v{DOFF}"); a(f"v_lshl_add_u32 v{DOFF}, v{V_G}, 13, v{DOFF}")
            a("s_lshl_b32 s72, s69, 7"); a(f"s_mul_i32 s73, s74, {2*16512}"); a("s_add_u32 s72, s72, s73"); a(f"s_add_u32 s72, s72, {WS_D}")
        a(f"v_lshrrev_b32 v{T}, 1, v{V_G}"); a(f"v_mul_u32_u24 v{RD}, {5*GST-512}, v{T}"); a(f"v_lshl_add_u32 v{RD}, v{V_L}, 4, v{RD}")
        if rd and self.opt.get("fj"):
            a("s_mov_b32 s70, s72"); a("s_mov_b32 s71, s73")
            self.otrig(self.opt["fj"], T)
            a("s_mov_b32 s72, s70"); a("s_mov_b32 s73, s71")
        a("s_waitcnt lgkmcnt(0)"); a("s_barrier")
        if fw: self.stamp(1)
        for j in range(0 if rd else 16):
            if j and j % 2 == 0: a(f"s_add_u32 s62, s62, {(4 if j % 4 else 12)*1280}")
            if j >= td: a(f"s_waitcnt vmcnt({td-1})")
            a(f"buffer_load_dwordx4 v[{WB+4*j}:{WB+4*j+3}], v{VO}, s[{R_A}:{R_A+3}], s62 offen offset:{2560*(j&1)} nt")
        if fw: self.stamp(3)
        def colsum(acc, Z):
            for i in range(5): a(f"ds_read_b128 v[{Q+4*i}:{Q+4*i+3}], v{RD} offset:{acc+GST*i}")
            yield
            a("s_waitcnt lgkmcnt(3)")
            for i in (0, 2): a(f"v_pk_add_f32 v[{Q+i}:{Q+i+1}], v[{Q+i}:{Q+i+1}], v[{Q+4+i}:{Q+5+i}]")
            yield
            a("s_waitcnt lgkmcnt(1)")
            for i in (0, 2): a(f"v_pk_add_f32 v[{Q+8+i}:{Q+9+i}], v[{Q+8+i}:{Q+9+i}], v[{Q+12+i}:{Q+13+i}]")
            a("s_waitcnt lgkmcnt(0)")
            for i in (0, 2): a(f"v_pk_add_f32 v[{Q+i}:{Q+i+1}], v[{Q+i}:{Q+i+1}], v[{Q+16+i}:{Q+17+i}]")
            for i in (0, 2): a(f"v_pk_add_f32 v[{Q+i}:{Q+i+1}], v[{Q+i}:{Q+i+1}], v[{Q+8+i}:{Q+9+i}]")
            yield
            a(f"v_permlane32_swap_b32 v{Q}, v{Q+2}"); a(f"v_permlane32_swap_b32 v{Q+1}, v{Q+3}")
            yield
            a(f"v_pk_add_f32 v[{Z}:{Z+1}], v[{Q}:{Q+1}], v[{Q+2}:{Q+3}]")
            yield
            a(f"v_permlane16_swap_b32 v{Z}, v{Z+1}")
        if pb:
            a(f"s_waitcnt vmcnt({self.opt.get('pk', 0)})")
            if fw: self.stamp(4)
            a("s_barrier")
        else:
            lp, dn = a.label("CL"), a.label("CD")
            a(f"s_mov_b32 s{S_CNT}, 0")
            a(f"{lp}:")
            a(f"ds_read_b32 v{T+2}, v{D} offset:{L_CNT}"); a("s_waitcnt lgkmcnt(0)")
            a(f"v_cmp_eq_u32 vcc, 10, v{T+2}"); a(f"s_cbranch_vccnz {dn}")
            a(f"s_add_u32 s{S_CNT}, s{S_CNT}, 1"); a(f"s_cmp_lt_u32 s{S_CNT}, {SPIN*16}"); a(f"s_cbranch_scc1 {lp}")
            if self.opt.get("touch", 1): a(f"s_branch {dn}"); self.hole("F")
            a(f"{dn}:")
        for acc, Z in ((L_ACC1, K), (L_ACC2, K + 2)):
            for _ in colsum(acc, Z): pass
        a("s_waitcnt vmcnt(0)")
        if rd: a("s_mov_b32 s79, 0xffff")
        else: self.regroup(WB)
        lx = self.opt.get("lx", 0)
        if lx:
            a(f"v_lshlrev_b32 v61, 2, v{V_L}"); a(f"v_mov_b32 v{X}, 1"); a(f"ds_write_b32 v61, v{X} offset:{L_ACT}")
            a(f"s_mov_b32 s{S_CNT}, 0"); a(f"s_cmp_ge_u32 s{S_WAVE}, {lx}"); a("s_waitcnt lgkmcnt(0)")
        self.stamp(9)
        self.hole("F", True)
        a("s_barrier")
        self.stamp(5)
        if lx:
            a("s_cbranch_scc0 L_lxn")
            a("L_lxs:")
            a(f"ds_read_b32 v{X}, v61 offset:{L_ACT}")
            a(f"s_add_u32 s{S_CNT}, s{S_CNT}, 1"); a(f"s_cmp_ge_u32 s{S_CNT}, {SPIN*16}"); a("s_cbranch_scc1 L_lxd")
            a("s_waitcnt lgkmcnt(0)")
            a(f"v_cmp_eq_u32 vcc, 1, v{X}"); a("s_cbranch_vccnz L_lxs")
            a("s_branch L_lxd")
            a("L_lxn:")
        if self.opt.get("x14"): a(f"s_cmp_ge_u32 s{S_WAVE}, {self.opt['x14']}"); a("s_cbranch_scc1 L_x14")
        m, v, r = T + 2, T + 3, T + 4
        Z = T + 8
        if la:
            t1, t3, t4 = T + 5, T + 6, T + 7
            kk = -2 * 0.7978845608028654 * LOG2E
            a(f"ds_read_b64 v[{m}:{v}], v{D} offset:{L_S2}")
            a(f"ds_read2_b32 v[{Z}:{Z+1}], v{SRD_} offset0:0 offset1:8")
            a("s_waitcnt lgkmcnt(1)")
            a(f"v_fma_f32 v{v}, -v{m}, v{m}, v{v}"); a(f"v_add_f32 v{m}, s100, v{m}")
            a(f"v_cvt_pk_bf16_f32 v{v}, 0, |v{v}|"); a(f"v_cvt_pk_bf16_f32 v{m}, 0, v{m}")
            a(f"v_add_f32 v{v}, {fh(1e-5)}, v{v}"); a(f"v_sub_f32 v{m}, s100, v{m}")
            a(f"v_cvt_pk_bf16_f32 v{v}, 0, v{v}"); a(f"v_sqrt_f32 v{v}, v{v}")
            a("s_waitcnt lgkmcnt(0)")
            a(f"v_fmac_f32 v{Z}, v{m}, v{K}")
            a(f"v_cvt_pk_bf16_f32 v{v}, 0, v{v}"); a(f"v_rcp_f32 v{r}, v{v}")
            a(f"v_fmac_f32 v{Z+1}, v{m}, v{K+1}")
            a(f"v_fma_f32 v{Z}, v{Z}, v{r}, v{K+2}")
            bfr(a, Z, Z)
            a(f"v_mul_f32 v{t3}, v{Z}, v{Z}"); a(f"v_mul_f32 v{t4}, {fh(kk*0.044715)}, v{Z}"); a(f"v_mul_f32 v{t1}, {fh(kk)}, v{Z}")
            a(f"v_fmac_f32 v{t1}, v{t4}, v{t3}")
        else:
            a(f"ds_read_b64 v[{m}:{v}], v{SRD_} offset:{L_ST}")
            cr = colsum(L_ACC0, Z); next(cr)
            a("s_waitcnt lgkmcnt(5)")
            mds = ("quad_perm:[1,0,3,2]", "quad_perm:[2,3,0,1]", "row_half_mirror", "row_mirror")
            st = []
            for md in mds: st.append([f"v_add_f32_dpp v{q}, v{q}, v{q} {md} {dp}" for q in (m, v)])
            st.append([f"v_mul_f32 v{m}, {fh(1.0/640)}, v{m}", f"v_mul_f32 v{v}, {fh(1.0/640)}, v{v}"])
            st.append([f"v_fma_f32 v{v}, -v{m}, v{m}, v{v}", f"v_add_f32 v{m}, s100, v{m}", f"v_max_f32 v{v}, 0, v{v}"])
            st.append([f"v_cvt_pk_bf16_f32 v{m}, 0, v{m}", f"v_cvt_pk_bf16_f32 v{v}, 0, v{v}",
                       f"v_add_f32 v{v}, {fh(1e-5)}, v{v}", f"v_sub_f32 v{m}, s100, v{m}", f"v_cvt_pk_bf16_f32 v{v}, 0, v{v}", f"v_sqrt_f32 v{v}, v{v}"])
            for x in st[0]: a(x)
            for grp in st[1:]:
                next(cr, None)
                for x in grp: a(x)
            for _ in cr: pass
            a(f"v_fmac_f32 v{Z}, v{m}, v{K}")
            a(f"v_cvt_pk_bf16_f32 v{v}, 0, v{v}"); a(f"v_rcp_f32 v{r}, v{v}")
            a(f"v_fmac_f32 v{Z+1}, v{m}, v{K+1}")
            a(f"v_fma_f32 v{Z}, v{Z}, v{r}, v{K+2}")
            bfr(a, Z, Z)
            t1, t3 = T + 5, T + 6
            kk = -2 * 0.7978845608028654 * LOG2E
            a(f"v_mul_f32 v{t3}, v{Z}, v{Z}")
            a(f"v_mul_f32 v{t1}, {fh(kk)}, v{Z}")
            a(f"v_fmaak_f32 v{t3}, s71, v{t3}, 1.0") if False else None
            a(f"v_mul_f32 v{t3}, {fh(0.044715)}, v{t3}")
            a(f"v_fmac_f32 v{t1}, v{t1}, v{t3}")
        a(f"v_exp_f32 v{t1}, v{t1}")
        a(f"v_fma_f32 v{Z+1}, v{Z+1}, v{r}, v{K+3}")
        a(f"v_add_f32 v{t1}, 1.0, v{t1}")
        a(f"v_rcp_f32 v{t1}, v{t1}")
        bfr(a, Z + 1, Z + 1)
        a(f"v_mul_f32 v{X}, v{Z}, v{t1}"); bfr(a, X, X)
        a(f"v_mul_f32 v{X}, v{X}, v{Z+1}"); bfr(a, X, X)
        if lx: a(f"ds_write_b32 v61, v{X} offset:{L_ACT}"); a("L_lxd:")
        if self.opt.get("x14"): a("L_x14:")
        if self.opt.get("pw"): self.stamp(2)
        if rd:
            a(f"v_or_b32 v{X}, v{X}, v{V_T16}")
            for h in range(2): a(f"buffer_store_dword v{X}, v{DOFF}, s[{R_WS}:{R_WS+3}], s{72+h} offen sc1")
        else:
            self.sgemv([(X, 0xf)], B, D, WB, IDX, wide=self.opt.get("n64", 0) & 2)
            a("s_mov_b32 exec_hi, 0")
            for h in range(2):
                a(f"v_bfi_b32 v{D+4*h}, s{S_M10}, v{V_T10}, v{D+4*h}")
                a(f"buffer_store_dwordx4 v[{D+4*h}:{D+4*h+3}], v{DOFF}, s[{R_WS}:{R_WS+3}], s72 offen offset:{64*h} sc1")
        if self.stamps:
            self.allexec()
            self.stamp(6)
            self.pw([1, 3, 4, 9, -1] if fw else [5, 2, 6, 9, -1])
            a(f"s_cmp_lg_u32 s{S_WAVE}, {self.opt.get('sw', 10 if rd else 14)}"); a("s_cbranch_scc1 L_end")
            self.flush_stamps(7, 5, role='F')
        a("s_endpgm")

    def role_mw(self):
        a = self.a
        X, B, D1, Y, T, ADD, CPOS, UOFF, P = self.X, self.B, self.D1, self.Y, self.T, self.ADD, self.CPOS, self.UOFF, self.P
        WO, AD, C, ML, O, RA, VA, CW = 64, 52, 58, 80, 84, 62, 63, 87
        dp = "row_mask:0xf bank_mask:0xf"
        self.hole("F")
        a("L_mw:")
        t0, t1, t5, t6 = T, T + 1, T + 2, T + 3
        a(f"v_bfe_u32 v{t0}, v{V_N}, 2, 1"); a(f"v_mul_u32_u24 v{t0}, 3, v{t0}"); a(f"v_lshrrev_b32 v{t1}, 3, v{V_N}")
        a(f"s_lshl_b32 s77, s{S_WAVE}, 5")
        a(f"v_lshl_add_u32 v{AD+1}, v{t0}, 2, s77"); a(f"v_lshl_add_u32 v{AD}, v{t1}, 2, v{AD+1}")
        a(f"v_and_b32 v{t5}, 3, v{V_N}"); a(f"v_lshlrev_b32 v{t5}, 2, v{t5}")
        a(f"v_lshrrev_b32 v{t6}, 3, v{V_L}"); a(f"v_lshl_add_u32 v{t5}, v{t6}, 4, v{t5}")
        a(f"v_lshl_add_u32 v{AD+4}, v{t0}, 9, v{t5}"); a(f"v_lshl_add_u32 v{AD+2}, v{t1}, 9, v{AD+4}")
        a(f"v_xor_b32 v{t1}, 1, v{t1}"); a(f"v_lshl_add_u32 v{AD+3}, v{t1}, 9, v{AD+4}"); a(f"v_lshl_add_u32 v{AD+5}, v{t1}, 2, v{AD+1}")
        a(f"v_and_b32 v{T}, 7, v{V_L}"); a(f"v_cmp_gt_u32 vcc, 6, v{T}"); a(f"v_cndmask_b32 v{VA}, 0, 1.0, vcc")
        a(f"v_lshl_add_u32 v{CW}, v{T}, 2, s77")
        a(f"v_min_u32 v{T}, 5, v{T}"); a(f"v_lshlrev_b32 v{RA}, 4, v{T}")
        a("s_lshl_b32 s69, s74, 7"); a(f"s_add_u32 s69, s69, {WS_ML}")
        a("s_mul_i32 s70, s74, 3072"); a("s_lshl_b32 s75, s75, 7"); a("s_add_u32 s70, s70, s75"); a(f"s_add_u32 s70, s70, {WS_O}")
        a(f"s_lshr_b32 s63, s{S_WAVE}, 3"); a("s_mul_i32 s64, s63, 2560"); a(f"s_mul_i32 s63, s63, {8*PST}"); a(f"v_add_u32 v{CPOS}, s63, v{CPOS}")
        a("s_lshl_b32 s62, s72, 14"); a("s_add_u32 s62, s62, s64"); a("s_lshl_b32 s64, s73, 8"); a("s_add_u32 s62, s62, s64"); a(f"s_add_u32 s62, s62, {WS_A}")
        a(f"v_and_b32 v{T}, 1, v{V_L}"); a(f"v_lshl_add_u32 v{UOFF}, v{T}, 13, v{UOFF}")
        a("s_getreg_b32 s68, hwreg(HW_REG_XCC_ID, 0, 4)"); a("s_lshl_b32 s68, s68, 10")
        a(f"s_and_b32 s71, s{S_WAVE}, 7"); a("s_mov_b32 s75, 0")
        a("s_branch L_mw_go")
        a("L_mw_real:")
        a("s_mov_b32 s75, 1")
        if self.stamps and self.opt.get("pw"): a("s_waitcnt vmcnt(0)"); self.stamp(5)
        self.poll(lambda: a(f"buffer_load_dwordx4 v[{ML}:{ML+3}], v{RA}, s[{R_WS}:{R_WS+3}], s69 offen sc1"), lambda: self.untag(list(range(ML, ML + 4)), V_T10, T, 0x3ff), "PM")
        r8 = ("quad_perm:[1,0,3,2]", "quad_perm:[2,3,0,1]", "row_half_mirror")
        a(f"v_max_f32_dpp v{T}, v{ML}, v{ML} {r8[0]} {dp}")
        a(f"v_cmp_ne_u32 vcc, s68, v{ML+2}")
        for m in r8[1:]: a(f"v_max_f32_dpp v{T}, v{T}, v{T} {m} {dp}")
        a(f"v_mul_f32 v{ML+1}, v{ML+1}, v{VA}")
        a(f"v_sub_f32 v{ML}, v{ML}, v{T}"); a(f"v_mul_f32 v{ML}, {fh(LOG2E)}, v{ML}"); a(f"v_exp_f32 v{ML}, v{ML}")
        a("s_cmp_eq_u64 vcc, 0"); a(f"s_cselect_b32 s77, {WS_ON-WS_O}, 0"); a("s_add_u32 s70, s70, s77")
        a(f"v_mul_f32 v{T}, v{ML}, v{ML+1}")
        for m in r8: a(f"v_add_f32_dpp v{T}, v{T}, v{T} {m} {dp}")
        a(f"v_rcp_f32 v{T}, v{T}")
        a(f"v_mul_f32 v{ML}, v{ML}, v{T}")
        a(f"ds_write_b32 v{CW}, v{ML}")
        a(f"ds_read_b32 v{C}, v{AD}"); a(f"ds_read_b32 v{C+1}, v{AD+5}"); a(f"ds_read_b32 v{C+2}, v{AD+1} offset:8")
        self.stamp(7)
        def isso():
            for j in range(3): a(f"buffer_load_dword v{O+j}, v{AD+2+j}, s[{R_WS}:{R_WS+3}], s70 offen offset:{1024 if j == 2 else 0} sc1")
        self.poll(isso, lambda: self.untag(list(range(O, O + 3)), V_T10, T + 1, 0x3ff), "PO")
        a("s_waitcnt lgkmcnt(0)")
        self.stamp(8)
        a("L_mw_go:")
        a(f"v_mul_f32 v{X}, v{C}, v{O}"); a(f"v_fmac_f32 v{X}, v{C+1}, v{O+1}"); a(f"v_fmac_f32 v{X}, v{C+2}, v{O+2}")
        a(f"v_add_f32_dpp v{X}, v{X}, v{X} row_shl:4 row_mask:0xf bank_mask:0x5")
        a(f"v_cvt_pk_bf16_f32 v{X}, v{X}, v{X}")
        self.gemv(X, P, B, [(D1, WO)], 4)
        self.fold_col(D1, None, Y)
        self.putpart(ADD, Y, L_ACC2)
        a("s_waitcnt lgkmcnt(0)"); a("s_barrier")
        a("s_cmp_lg_u32 s71, 0"); a("s_cbranch_scc1 L_mw_n")
        self.publish(L_ACC2, CPOS, UOFF, 62, 88, False, dual=True, half=True, one=True, gate=("s75", "L_mw_real"))
        self.stamp(6)
        a("L_mw_n:")
        a("s_cmp_eq_u32 s75, 0"); a("s_cbranch_scc1 L_mw_real")
        a(f"s_cmp_eq_u32 s{S_WAVE}, 2"); a("s_cbranch_scc1 L_red")
        self.pw([7, 8, 6, 5, -1, "s72"])
        a("s_endpgm")

    def breaks(self, L):
        import subprocess, re
        txt = "\n".join(l for l in L if not l.strip().startswith((".", ";"))) + "\n"
        o = subprocess.run(["llvm-mc", "-arch=amdgcn", "-mcpu=gfx950", "-show-encoding"], input=txt, capture_output=True, text=True)
        assert o.returncode == 0, o.stderr
        sz = [len(m.split(",")) for m in re.findall(r"encoding: \[([^\]]*)\]", o.stdout)]
        out = []; pos = None; k = 0; grp = "F"; prev = ""; pend = []
        for ln in L:
            t = ln.strip()
            if t.startswith(".p2alignl"): pos = 0; out.append(ln); continue
            if t.startswith("; GRP"): grp = t.split()[-1]
            if t.startswith((".", ";")) or not t:
                (pend if pend else out).append(ln); continue
            if t.endswith(":"): pend.append(ln); continue
            n = sz[k]; k += 1
            if pos is not None:
                term = prev.startswith(("s_branch", "s_endpgm"))
                last = t.startswith(("s_branch", "s_endpgm"))
                if pos + n + (0 if last else 4) > 4096 or (term and pos + 60 > 4096):
                    ishole = t.startswith("s_branch L_ret")
                    l = self.a.label("B" + grp)
                    if not term: out.append(f"    s_branch {l}x")
                    out.append("    .p2alignl 12, 0xbf810000"); pos = 0
                    if not ishole:
                        self.holes[grp].append(l); out += [f"{l}:", f"    s_branch L_ret{grp}"]; pos = 4
                    if not term: out.append(f"{l}x:")
                pos += n
            out += pend; pend = []
            out.append(ln); prev = t
        assert k == len(sz) and not pend
        return out

    def entry(self, ld=True):
        a = self.a
        if ld:
            a("s_load_dwordx16 s[4:19], s[0:1], 0"); a("s_load_dwordx8 s[20:27], s[0:1], 64"); a("s_load_dwordx2 s[28:29], s[0:1], 104")
            if not self.opt.get("fp"): self.stamp(0)
        a("v_lshrrev_b32 v2, 6, v0"); a(f"v_and_b32 v{V_L}, 63, v0"); a(f"v_readfirstlane_b32 s{S_WAVE}, v2")
        a(f"v_bfe_u32 v{V_G}, v0, 4, 2"); a(f"v_and_b32 v{V_N}, 15, v0")

    def remap(self):
        a = self.a
        if self.opt.get("remap", 1) == 1:
            a("s_and_b32 s61, s2, 7"); a("s_cmp_ge_u32 s61, 4"); a("s_cselect_b32 s60, 3, 0"); a("s_xor_b32 s60, s61, s60")
            a("s_lshl_b32 s60, s60, 3"); a("s_lshr_b32 s2, s2, 3"); a("s_or_b32 s2, s2, s60")

    def build(self):
        a = self.a
        fp = self.opt.get("fp", 0)
        if fp: self.stamp(0)
        else:
            a("s_cmp_ge_u32 s2, 256"); a("s_cbranch_scc1 L_end")
            self.entry()
        if self.opt.get("remap", 1) == 2:
            order = self.opt.get("xo", [5, 4, 0, 1, 2, 3, 7, 6])
            lut = sum(order.index(x) << (4 * x) for x in range(8))
            a("s_and_b32 s3, s2, 7"); a("s_lshl_b32 s3, s3, 2"); a(f"s_lshr_b32 s3, {lut:#x}, s3"); a("s_and_b32 s3, s3, 7")
            a("s_lshl_b32 s3, s3, 5"); a("s_lshr_b32 s2, s2, 3"); a("s_or_b32 s2, s2, s3")
        if self.opt.get("ay"): a(f"s_xor_b32 s2, s2, {self.opt['ay']}")
        a("s_cmp_lt_u32 s2, 64"); a("s_cbranch_scc1 L_front")
        if self.opt.get("ax"): a(f"s_xor_b32 s2, s2, {self.opt['ax']}")
        def mid():
            if fp & 1: a("L_quit:"); a("s_waitcnt lgkmcnt(0)")
            a("L_end:"); a("s_endpgm")
            a("L_front:")
            if fp and not fp & 2: self.entry()
            if not fp & 2: self.remap()
            self.front()
            self.role_m()
        self.attention(mid)
        if self.opt.get("f3"): self.role_f3()
        elif self.opt.get("f2"): self.role_f2()
        else: self.role_f()
        if self.opt.get("mw"): self.role_mw()
        L = hz.fix(a.l)
        if self.opt.get("touch", 1) and self.opt.get("pg", 1): L = self.breaks(L)
        L2 = []
        for ln in L:
            if ln.strip().startswith("; TOUCH"):
                hs = self.holes[ln.split()[-1]]; assert len(hs) <= 16
                g = ln.split()[-1]
                if self.opt.get("tc") and len(hs) < 16: L2 += [f"    s_cmp_lt_u32 s{S_WAVE}, {16-len(hs)}", f"    s_cbranch_scc1 {'L_att' if g == 'A' and not self.opt.get('le') else 'L_ret' + g}"]
                tz = self.opt.get("tz", 0) and g == "F"
                if tz and self.opt.get("tc") and len(hs) < 16: L2[-2] = f"    s_cmp_ge_u32 s{S_WAVE}, {len(hs)}"
                for k, h in enumerate(hs): L2 += [f"    s_cmp_eq_u32 s{S_WAVE}, {k if tz else 15-k}", f"    s_cbranch_scc1 {h}"]
            elif ln.strip().startswith("; GRP"): pass
            else: L2.append(ln)
        body = "\n".join(L2) + "\n"
        return wrap([(NAME + "_kernel", body, 128, 102, 128)], [(NAME + "_kernel", 256, 1024, LDS)])


if __name__ == "__main__":
    import json
    variants = json.loads(sys.argv[1]) if len(sys.argv) > 1 else {"g": {}}
    for nm, o in variants.items():
        thr = o.get("thr", 2)
        open(nm + "_st.s", "w").write(G(stamps=True, thr=thr, opt=o).build())
        open(nm + ".s", "w").write(G(stamps=False, thr=thr, opt=o).build())
```

```python
import json, sys, gen11
base = eval(open("mk.py").read().split("base = ")[1].split("\n")[0])
for nm, d in json.loads(sys.argv[1]).items():
    o = dict(base); o.update(d); o = {k: v for k, v in o.items() if v is not None}
    open(nm + "_st.s", "w").write(gen11.G(stamps=True, thr=o.get("thr", 2), opt=o).build())
```
